```python
import torch

def _softmax(x, axis=-1):
    return torch.softmax(x, dim=axis)

def _gelu(x):
    return torch.nn.functional.gelu(x, approximate='tanh')

def _silu(x):
    return torch.nn.functional.silu(x)

def _sigmoid(x):
    return torch.sigmoid(x)

def _layernorm(x, axis=-1, eps=1e-05):
    m = x.mean(dim=axis, keepdim=True)
    v = x.var(dim=axis, keepdim=True, unbiased=False)
    return (x - m) / torch.sqrt(v + eps)

def _scatter_add(tgt, idx, src, axis=0):
    return tgt.clone().index_add_(axis, idx, src)

def _segment_sum(src, seg, n):
    out = torch.zeros((n,) + src.shape[1:], dtype=src.dtype)
    return out.index_add_(0, seg, src)

def _pad(x, pw):
    flat = tuple((v for pair in reversed(pw) for v in pair))
    return torch.nn.functional.pad(x, flat)
kernel_name = 'adaLN_cond__compressed_kv_cla__dense_activation_relu__decode'

def setup_inputs():

    _w = lambda a: (lambda t: t.to(torch.bfloat16) if t.is_floating_point() else t)(torch.as_tensor(a))

    def _A_setup():
        B, H, Sq, Sk, D, M = (4, 32, 1, 4096, 128, 512)
        Dc = 4 * D
        return {'x': _w((lambda *s: torch.randn(*s, dtype=torch.bfloat16) * 0.05)(B, Sq, M)), 'c_kv': _w((lambda *s: torch.randn(*s, dtype=torch.bfloat16) * 1.6)(B, Sk, Dc)), 'w_q': _w((lambda *s: torch.randn(*s, dtype=torch.bfloat16) * 1.6)(M, H, D) * M ** (-0.5)), 'w_uk': _w((lambda *s: torch.randn(*s, dtype=torch.bfloat16) * 1.6)(Dc, H, D) * Dc ** (-0.5)), 'w_uv': _w((lambda *s: torch.randn(*s, dtype=torch.bfloat16) * 1.6)(Dc, H, D) * Dc ** (-0.5)), 'w_o': _w((lambda *s: torch.randn(*s, dtype=torch.bfloat16) * 1.6)(H, D, M) * (H * D) ** (-0.5))}
    _A_in = _A_setup()

    def _B_setup():
        B, S, D, Dff = (4, 1, 512, 1376)
        return {'x': _w((lambda *s: torch.randn(*s, dtype=torch.bfloat16) * 0.05)(B, S, D)), 'w1': _w((lambda *s: torch.randn(*s, dtype=torch.bfloat16) * 0.05)(D, Dff)), 'w2': _w((lambda *s: torch.randn(*s, dtype=torch.bfloat16) * 0.05)(Dff, D))}
    _B_in = _B_setup()
    return {'A_x': _A_in['x'], 'A_c_kv': _A_in['c_kv'], 'A_w_q': _A_in['w_q'], 'A_w_uk': _A_in['w_uk'], 'A_w_uv': _A_in['w_uv'], 'A_w_o': _A_in['w_o'], 'B_x': _B_in['x'], 'B_w1': _B_in['w1'], 'B_w2': _B_in['w2'], 'c': _w((lambda *s: torch.randn(*s, dtype=torch.bfloat16) * 0.2)(4, 512) * 8.0), 'w_mod': _w((lambda *s: torch.randn(*s, dtype=torch.bfloat16) * 0.2)(512, 6 * 512) * 512 ** (-0.5) * 8.0)}

def reference(A_x, A_c_kv, A_w_q, A_w_uk, A_w_uv, A_w_o, B_x, B_w1, B_w2, c, w_mod):

    def _A_ref(x, c_kv, w_q, w_uk, w_uv, w_o):
        B, Sq, M = (x.shape[0], x.shape[1], x.shape[2])
        Sk = c_kv.shape[1]
        H, D = (w_q.shape[1], w_q.shape[2])
        q = torch.einsum('bqm,mhd->bhqd', x, w_q)
        k = torch.einsum('bkc,chd->bhkd', c_kv, w_uk)
        v = torch.einsum('bkc,chd->bhkd', c_kv, w_uv)
        scores = torch.einsum('bhqd,bhkd->bhqk', q, k) * D ** (-0.5)
        off = Sk - Sq
        qi = torch.arange(Sq)[:, None]
        kj = torch.arange(Sk)[None, :]
        cmask = kj <= qi + off
        scores = torch.where(cmask[None, None], scores, -1000000000.0)
        p = _softmax(scores, axis=-1)
        ctx = torch.einsum('bhqk,bhkd->bhqd', p, v)
        return torch.einsum('bhqd,hdm->bqm', ctx, w_o)

    def _B_ref(x, w1, w2):
        h = torch.einsum('bsd,df->bsf', x, w1)
        zero = torch.zeros_like(h)
        h = torch.maximum(h, zero)
        return torch.einsum('bsf,fd->bsd', h, w2)
    x = A_x
    mod = (_silu(c) @ w_mod).reshape(c.shape[0], 6, 1, -1)
    sa, ca, ga, sb, cb, gb = (mod[:, 0].clone(), mod[:, 1].clone(), mod[:, 2].clone(), mod[:, 3].clone(), mod[:, 4].clone(), mod[:, 5].clone())
    h = _layernorm(x, axis=-1) * (1 + ca) + sa
    x = x + ga * _A_ref(h, A_c_kv, A_w_q, A_w_uk, A_w_uv, A_w_o)
    h = _layernorm(x, axis=-1) * (1 + cb) + sb
    x = x + gb * _B_ref(h, B_w1, B_w2)
    return x
```

```python
import re

def _regs(tok):
    tok = tok.strip()
    neg = tok.lstrip('-')
    if neg.startswith('abs(') or neg.startswith('|'):
        neg = neg.replace('abs(', '').replace(')', '').replace('|', '')
    m = re.fullmatch(r'([vsa])(\d+)', neg)
    if m: return [(m.group(1), int(m.group(2)))]
    m = re.fullmatch(r'([vsa])\[(\d+):(\d+)\]', neg)
    if m: return [(m.group(1), n) for n in range(int(m.group(2)), int(m.group(3)) + 1)]
    if neg == 'vcc': return [('s', 106), ('s', 107)]
    if neg == 'vcc_lo': return [('s', 106)]
    if neg == 'vcc_hi': return [('s', 107)]
    if neg == 'exec': return [('s', 126), ('s', 127)]
    if neg == 'exec_lo': return [('s', 126)]
    if neg == 'exec_hi': return [('s', 127)]
    if neg == 'm0': return [('s', 124)]
    return []

TRANS = ('v_exp_f32', 'v_log_f32', 'v_rcp_f32', 'v_rsq_f32', 'v_sqrt_f32', 'v_sin_f32', 'v_cos_f32', 'v_rcp_iflag_f32')

class Ins:
    __slots__ = ('text', 'op', 'dst', 'src', 'kind', 'dpp', 'sdst')
    def __init__(self, text):
        self.text = text
        t = text.split(';')[0].strip()
        parts = t.split(None, 1)
        self.op = parts[0]
        ops = []
        if len(parts) > 1:
            depth = 0; cur = ''
            for ch in parts[1]:
                if ch == '[': depth += 1
                if ch == ']': depth -= 1
                if ch == ',' and depth == 0:
                    ops.append(cur.strip()); cur = ''
                else: cur += ch
            ops.append(cur.strip())
        mods = ''
        if ops:
            sp = ops[-1].split(None, 1)
            ops[-1] = sp[0]
            if len(sp) > 1: mods = sp[1]
        op = self.op
        self.dpp = ('row_' in mods or 'quad_perm' in mods or 'wave_' in mods or op.endswith('_dpp'))
        self.dst = []; self.src = []; self.sdst = []
        R = [_regs(o) for o in ops]
        if op.startswith('v_mfma'):
            self.kind = 'mfma'; self.dst = R[0]; self.src = R[1] + R[2] + R[3]
        elif op.startswith('v_cmp'):
            self.kind = 'valu'; self.sdst = R[0]; self.src = sum(R[1:], [])
            if op.startswith('v_cmpx'): self.sdst += [('s', 126), ('s', 127)]
        elif op.startswith('v_readlane') or op.startswith('v_readfirstlane'):
            self.kind = 'valu'; self.sdst = R[0]; self.src = sum(R[1:], [])
        elif op.startswith('v_permlane') and 'swap' in op or op.startswith('v_swap'):
            self.kind = 'valu'; self.dst = R[0] + R[1]; self.src = R[0] + R[1]
        elif op.startswith('v_'):
            self.kind = 'valu'; self.dst = R[0]; self.src = sum(R[1:], [])
            if op.startswith(('v_add_co', 'v_sub_co', 'v_addc_co', 'v_subb_co', 'v_subrev_co')):
                self.sdst = R[1]; self.src = sum(R[2:], [])
            if op.startswith(('v_fmac', 'v_dot2c', 'v_pk_fmac', 'v_mac')): self.src += R[0]
            if op.startswith('v_writelane'): self.src += R[0]
            if op.startswith('v_cndmask') and len(ops) == 3: self.src += [('s', 106), ('s', 107)]
        elif op.startswith(('buffer_store', 'global_store', 'buffer_atomic', 'global_atomic')):
            self.kind = 'vmem_st'; self.src = sum(R, [])
            self.dst = []
        elif op.startswith(('buffer_load', 'global_load')):
            if ' lds' in (' ' + mods) or 'load_lds' in op:
                self.kind = 'vmem_lds'; self.src = sum(R, []) + [('s', 124)]
            else:
                self.kind = 'vmem_ld'; self.dst = R[0]; self.src = sum(R[1:], [])
        elif op.startswith('ds_'):
            if op.startswith(('ds_read', 'ds_bpermute', 'ds_permute', 'ds_swizzle')):
                self.kind = 'ds_rd'; self.dst = R[0]; self.src = sum(R[1:], [])
            else:
                self.kind = 'ds_wr'; self.src = sum(R, [])
        elif op.startswith('s_'):
            self.kind = 'salu'
            if op.startswith(('s_cmp', 's_cbranch', 's_branch', 's_waitcnt', 's_barrier', 's_nop', 's_sleep', 's_endpgm', 's_setprio', 's_bitcmp')):
                self.src = sum(R, [])
            else:
                self.sdst = R[0] if R else []; self.src = sum(R[1:], [])
                if 'saveexec' in op: self.sdst = self.sdst + [('s', 126), ('s', 127)]
        else:
            raise ValueError('unknown op: ' + text)

    def states(self):
        if self.op == 's_nop':
            return int(self.text.split(';')[0].split()[1], 0) + 1
        return 1

def need_states(prod, cons):
    n = 0
    pv = set(r for r in prod.dst if r[0] in 'va')
    cs = set(cons.src); cd = set(cons.dst)
    if prod.kind == 'mfma':
        big = '32x32' in prod.op
        if cons.kind == 'mfma':
            t = cons.text.split(';')[0]
            opsrc = Ins_ops(cons)
            ab = set(opsrc[1]) | set(opsrc[2]); c = set(opsrc[3])
            if pv & ab: n = max(n, 12 if big else 8)
            if pv & c and c != pv: n = max(n, 10 if big else 6)
            if pv & cd and cd != pv and not (pv & c): n = max(n, 12 if big else 8)
        else:
            if pv & (cs | cd): n = max(n, 12 if big else 8)
    if cons.kind == 'valu' and False: pass
    if prod.kind == 'valu':
        if cons.kind == 'mfma' and pv & cs: n = max(n, 2)
        if cons.kind == 'valu':
            if cons.dpp and pv & cs: n = max(n, 2)
            if cons.op.startswith('v_permlane') and pv & cs: n = max(n, 2)
            if cons.op.startswith(('v_readlane', 'v_readfirstlane')) and pv & cs: n = max(n, 1)
            if prod.op.replace('_e32', '').replace('_e64', '') in TRANS and pv & cs: n = max(n, 1)
            if 'op_sel' in prod.text and pv & (cs | cd): n = max(n, 1)
        ps = set(prod.sdst)
        if ps:
            if cons.kind == 'valu' and ps & cs:
                n = max(n, 4 if cons.op.startswith(('v_readlane', 'v_writelane')) else 2)
            if cons.kind in ('vmem_ld', 'vmem_st', 'vmem_lds') and ps & cs: n = max(n, 5)
            if cons.kind == 'salu' and ps & cs: n = max(n, 1)
            if (('s', 126) in ps):
                if cons.kind == 'mfma': n = max(n, 4)
                if cons.kind == 'valu' and (cons.dpp): n = max(n, 5)
                if cons.kind == 'valu' and cons.op.startswith(('v_readlane', 'v_readfirstlane', 'v_writelane', 'v_permlane')): n = max(n, 4)
    if prod.kind == 'vmem_st' and ('x4' in prod.op or 'x3' in prod.op):
        data = set(r for r in prod.src if r[0] == 'v')
        if cons.kind == 'valu' and data & cd: n = max(n, 2)
        elif cons.kind in ('vmem_ld', 'ds_rd', 'mfma') and data & cd: n = max(n, 1)
    if prod.kind == 'salu' and ('s', 124) in set(prod.sdst) and cons.kind == 'vmem_lds': n = max(n, 1)
    if prod.kind == 'mfma' and cons.kind == 'valu':
        c = set(Ins_ops(prod)[3])
        if c & cd: n = max(n, 7 if '32x32' in prod.op else 3)
    return n

def Ins_ops(ins):
    t = ins.text.split(';')[0].strip().split(None, 1)[1]
    depth = 0; cur = ''; ops = []
    for ch in t:
        if ch == '[': depth += 1
        if ch == ']': depth -= 1
        if ch == ',' and depth == 0: ops.append(cur.strip()); cur = ''
        else: cur += ch
    ops.append(cur.strip().split()[0])
    return [_regs(o) for o in ops]

class Asm:
    def __init__(self):
        self.lines = []
        self.uid = 0
    def __call__(self, text):
        for ln in text.split('\n'):
            ln = ln.strip()
            if not ln: continue
            if ln.startswith(';'): self.lines.append(('c', ln)); continue
            if ln.endswith(':'): self.lines.append(('l', ln)); continue
            self.lines.append(('i', ln))
    def label(self, base):
        self.uid += 1
        return f'L_{base}_{self.uid}'
    def finish(self):
        out = []; hist = []
        npad = 0
        for kind, text in self.lines:
            if kind != 'i':
                out.append(text if kind == 'l' else '    ' + text)
                continue
            ins = Ins(text)
            need = 0; dist = 0
            for prev in reversed(hist):
                r = need_states(prev, ins)
                if r > dist: need = max(need, r - dist)
                dist += prev.states()
                if dist >= 20: break
            while need > 0:
                k = min(need, 16)
                nop = Ins(f's_nop {k-1}')
                out.append(f'    s_nop {k-1}'); hist.append(nop); need -= k; npad += 1
            out.append('    ' + text); hist.append(ins)
            if len(hist) > 40: hist = hist[-30:]
        self.npad = npad
        return '\n'.join(out) + '\n'
```

```python
import sys, json
from asmlib import Asm

KNAME = 'adaLN_cond__compressed_kv_cla__dense_activation_relu__decode_kernel'

CFG = dict(ts=False, nt=True, limit=20000, stop=None, sleepC=2, sleepE=2, sleepD=1, sleepF=1, sleepA=1)

WS_EPOCH = 0
WS_H  = 0x1000
WS_MR = 0x4000
WS_Q  = 0x10000
WS_FL = 0x50000
WS_E  = 0x60000
WS_F  = 0xA0000
WS_D  = 0x100000
WS_TS = 0x600000
WS_SIZE = 0x700000
SM   = 131072
QT   = SM
RED  = SM
PT   = SM + 16384
WL   = PT
MX   = SM + 20480
LS   = SM + 20992
SV   = SM + 21504
QB   = SM + 25856
OB   = SM + 27136
RED2 = SM + 28160
LDS_BYTES = 163840
SVS = 1088
QBS = 320

TAGMUL = 0x9E3779B1
SCALE = (128 ** -0.5) * 1.4426950408889634
LOG2E = 1.4426950408889634

def fhex(x):
    import struct
    return '0x%08x' % struct.unpack('<I', struct.pack('<f', x))[0]

sX, sI, sW, sTAG, sEP = 's3', 's4', 's5', 's6', 's7'
WS = 's[8:11]'; SA = 's[12:15]'; SB = 's[44:47]'; SC = 's[48:51]'
P_X, P_CKV, P_WQ, P_WUK, P_WUV, P_WO, P_W1, P_W2, P_C, P_WMOD, P_OUT, P_DBG, P_WS = 16, 18, 20, 22, 24, 26, 30, 32, 34, 36, 38, 40, 42
sWB = 's52'
sT0, sT1, sT2, sT3 = 's53', 's54', 's55', 's56'
sPLO, sPHI = 's57', 's58'
sCNT = 's59'
mT4 = 's[60:61]'
mTMP = 's[62:63]'
sCH, sBA, sS, sHH = 's64', 's65', 's66', 's67'
sR0, sR1, sR2, sR3 = 's68', 's69', 's70', 's71'
TSREG = [72,74,76,78,80,82,84,86,88,90,92,94,28,0]
TSSLOT = dict(start=0, hp_loaded=1, hp_pub=2, wq_landed=1, h_got=2, q_pub=3, c_trig=4, c_got=5, b1=6, b3=7, d_st=8, d_flag=9,
              dfl_got=10, d_got=11, e_pub=12, e_trig=10, e_got=11, f_pub=12, mr_pub=10, fe_got=11, f_got=12, out_st=13)
vTID, vL, vG, vT, vB4 = 'v0', 'v1', 'v2', 'v3', 'v4'

def vr(a, n=1):
    return f'v{a}' if n == 1 else f'v[{a}:{a+n-1}]'

class Gen:
    def __init__(self, cfg):
        self.cfg = dict(CFG); self.cfg.update(cfg)
        self.a = Asm()
        self.nts = 0
        self.tsnames = []
        self.failsites = []
    def ts(self, name):
        if not self.cfg['ts']: return
        r = TSREG[TSSLOT[name]]
        if name not in self.tsnames: self.tsnames.append(name)
        self.a(f's_memrealtime s[{r}:{r+1}]')
    def srd(self, quad, ptr, size):
        q = int(quad[2:quad.index(':')])
        self.a(f's_mov_b32 s{q}, s{ptr}\ns_mov_b32 s{q+1}, s{ptr+1}\ns_mov_b32 s{q+2}, {size}\ns_mov_b32 s{q+3}, 0x00020000')
    def nt(self):
        return ' nt' if self.cfg['nt'] else ''
    def poll_begin(self):
        l = self.a.label('poll')
        self.a(f's_mov_b32 {sCNT}, {self.cfg["limit"]}\n{l}:')
        return l
    def poll_end(self, l, code, sleep, vacc):
        a = self.a
        ok = a.label('ok')
        fl = f'L_fail_{code}'
        if code not in self.failsites: self.failsites.append(code)
        a(f'v_cmp_ne_u32 vcc, 0, {vacc}')
        a(f's_cbranch_vccz {ok}')
        a(f's_sub_u32 {sCNT}, {sCNT}, 1')
        a(f's_cbranch_scc1 {fl}')
        if sleep: a(f's_sleep {sleep}')
        a(f's_branch {l}')
        a(f'{ok}:')
    def tagchk(self, vacc, regs, first=True):
        a = self.a
        for k, r in enumerate(regs):
            if k == 0 and first: a(f'v_xor_b32 {vacc}, {sTAG}, {r}')
            else: a(f'v_bitop3_b32 {vacc}, {vacc}, {r}, {sTAG} bitop3:0xf6')
    def allsum(self, regs, tmp, op='v_add_f32'):
        a = self.a
        for n in (8, 4, 2, 1):
            for r in regs: a(f'{op}_dpp {r}, {r}, {r} row_ror:{n} row_mask:0xf bank_mask:0xf')
        self.crossrow(regs, tmp, op)
    def crossrow(self, regs, tmp, op):
        a = self.a
        for sw in ('v_permlane16_swap_b32', 'v_permlane32_swap_b32'):
            for r, t in zip(regs, tmp): a(f'v_mov_b32 {t}, {r}')
            for r, t in zip(regs, tmp): a(f'{sw} {r}, {t}')
            for r, t in zip(regs, tmp): a(f'{op} {r}, {r}, {t}')
    def stop_at(self, name):
        if self.cfg['stop'] == name:
            self.a('s_branch L_exit')

    def prologue(self):
        a = self.a
        a(f'''
        s_cmp_ge_u32 s2, 256
        s_cbranch_scc1 L_end
        s_load_dwordx16 s[16:31], s[0:1], 0
        s_load_dwordx8 s[32:39], s[0:1], 64
        s_load_dwordx4 s[40:43], s[0:1], 96
        ''')
        self.ts('start')
        a(f'''
        v_lshrrev_b32 v5, 6, v0
        v_and_b32 {vL}, 63, v0
        v_readfirstlane_b32 {sW}, v5
        v_lshrrev_b32 {vG}, 4, {vL}
        v_and_b32 {vT}, 15, {vL}
        v_and_b32 {vB4}, 3, {vL}
        s_and_b32 {sX}, s2, 7
        s_lshr_b32 {sI}, s2, 3
        s_lshl_b32 {sWB}, {sW}, 14
        s_mov_b32 {sPLO}, 0x05040100
        s_mov_b32 {sPHI}, 0x07060302
        s_mov_b32 s60, 0x000f000f
        s_mov_b32 s61, 0x000f000f
        s_lshl_b32 {sCH}, {sX}, 4
        s_lshr_b32 {sT0}, {sI}, 1
        s_add_u32 {sCH}, {sCH}, {sT0}
        s_lshr_b32 {sBA}, {sCH}, 5
        s_and_b32 {sS}, {sCH}, 31
        s_and_b32 {sHH}, {sI}, 1
        s_lshl_b32 {sCH}, {sCH}, 17
        s_waitcnt lgkmcnt(0)
        s_load_dword {sEP}, s[{P_WS}:{P_WS+1}], 0
        ''')
        self.srd(WS, P_WS, WS_SIZE)
    def tag(self):
        a = self.a
        a(f'''
        s_waitcnt lgkmcnt(0)
        s_add_u32 {sTAG}, {sEP}, 1
        s_mul_i32 {sTAG}, {sTAG}, {TAGMUL:#x}
        s_add_u32 {sTAG}, {sTAG}, 0x7f4a7c15
        ''')
        if self.cfg.get('dbgtag'): self.ts('c_trig')

    def dma(self, srd, voffs, n, soff0, soff_step, lds0, lds_step=1024, sreg=sT0, mreg=sT1):
        a = self.a
        for k in range(n):
            a(f's_mov_b32 m0, {mreg}')
            if k < n - 1: a(f's_add_u32 {mreg}, {mreg}, {lds_step}')
            else: a('s_nop 0')
            a(f'buffer_load_dwordx4 {voffs[k % len(voffs)]}, {srd}, {sreg} offen{self.nt()} lds')
            if k < n - 1: a(f's_add_u32 {sreg}, {sreg}, {soff_step}')

    def dma_ckv(self):
        a = self.a
        self.srd(SA, P_CKV, 16 << 20)
        a(f'v_lshlrev_b32 v6, 4, {vL}')
        for k in range(1, 8): a(f'v_xor_b32 v{6+k}, {k << 5}, v6')
        a(f's_add_u32 {sT0}, {sCH}, {sWB}')
        a(f's_mov_b32 {sT1}, {sWB}')
        for n in range(16):
            if n % 4 == 0:
                a(f's_mov_b32 m0, {sT1}')
                if n: a(f's_add_u32 {sT0}, {sT0}, 4096')
                a(f's_add_u32 {sT1}, {sT1}, 4096')
            off = f' offset:{(n & 3) * 1024}' if n & 3 else ''
            a(f'buffer_load_dwordx4 v{6 + (n & 7)}, {SA}, {sT0} offen{off}{self.nt()} lds')

    def dma128(self, srd, rowstride, n, lds_off, v=6):
        a = self.a
        a(f'''
        v_lshrrev_b32 v{v}, 3, {vL}
        v_mul_u32_u24 v{v}, {rowstride}, v{v}
        v_and_b32 v{v+1}, 7, {vL}
        v_lshlrev_b32 v{v+2}, 1, {vG}
        v_xor_b32 v{v+1}, v{v+1}, v{v+2}
        v_lshl_add_u32 v{v}, v{v+1}, 4, v{v}
        s_add_u32 {sT1}, {sWB}, {lds_off}
        ''')
        self.dma(srd, [f'v{v}'], n, None, rowstride * 8, None)

    def tr128_addr(self, v, lds_off=0):
        a = self.a
        a(f'''
        v_lshrrev_b32 v{v}, 2, {vT}
        v_lshl_add_u32 v{v}, {vG}, 2, v{v}          ; row = 4g + (t>>2)
        v_lshrrev_b32 v{v+1}, 1, v{v}
        v_and_b32 v{v+1}, 3, v{v+1}                 ; f
        v_lshlrev_b32 v{v+1}, 5, v{v+1}
        v_lshl_add_u32 v{v}, v{v}, 7, v{v+1}
        v_lshrrev_b32 v{v+1}, 1, {vB4}
        v_lshl_add_u32 v{v}, v{v+1}, 4, v{v}
        v_and_b32 v{v+1}, 1, {vB4}
        v_lshl_add_u32 v{v}, v{v+1}, 3, v{v}
        s_add_u32 {sT2}, {sWB}, {lds_off}
        v_add_u32 v{v}, {sT2}, v{v}
        ''')
        for ct in range(1, 4): a(f'v_xor_b32 v{v+ct}, {ct << 5}, v{v}')
        return [f'v{v+ct}' for ct in range(4)]

    def tr_reads(self, addrs, nks, rb, dst, base_off=0):
        a = self.a
        for ks in range(nks):
            for ct, ad in enumerate(addrs):
                d = dst + 4 * (ks * len(addrs) + ct)
                for hi in range(2):
                    off = base_off + (32 * ks + 16 * hi) * rb
                    a(f'ds_read_b64_tr_b16 {vr(d + 2*hi, 2)}, {ad} offset:{off}')

    def sel4(self, dst, srcs, masks):
        a = self.a
        a(f'v_cndmask_b32 {dst}, {srcs[0]}, {srcs[1]}, {masks[0]}')
        a(f'v_cndmask_b32 {dst}, {dst}, {srcs[2]}, {masks[1]}')
        a(f'v_cndmask_b32 {dst}, {dst}, {srcs[3]}, {masks[2]}')
    def masks_t(self):
        a = self.a
        for k, val in enumerate((0x22222222, 0x44444444, 0x88888888)):
            a(f's_mov_b32 s{self.M0+2*k}, {val:#x}\ns_mov_b32 s{self.M0+2*k+1}, {val:#x}')
        return [f's[{self.M0+2*k}:{self.M0+2*k+1}]' for k in range(3)]
    def masks_g(self):
        a = self.a
        vals = ((0xffff0000, 0), (0, 0x0000ffff), (0, 0xffff0000))
        for k, (lo, hi) in enumerate(vals):
            a(f's_mov_b32 s{self.M0+2*k}, {lo:#x}\ns_mov_b32 s{self.M0+2*k+1}, {hi:#x}')
        return [f's[{self.M0+2*k}:{self.M0+2*k+1}]' for k in range(3)]
    M0 = 96

    def silu_vec(self):
        a = self.a
        self.srd(SB, P_C, 4096)
        a(f'''
        v_lshlrev_b32 v16, 3, v0
        buffer_load_dwordx2 v[18:19], v16, {SB}, 0 offen
        v_lshrrev_b32 v20, 7, v0
        v_mul_u32_u24 v20, {SVS}, v20
        v_and_b32 v21, 127, v0
        v_lshrrev_b32 v21, 3, v21
        v_lshl_add_u32 v20, v21, 6, v20
        v_and_b32 v21, 3, v0
        v_lshl_add_u32 v20, v21, 4, v20
        v_lshrrev_b32 v21, 2, v0
        v_and_b32 v21, 1, v21
        v_lshl_add_u32 v20, v21, 3, v20
        v_add_u32 v20, {SV}, v20
        ''')
    def silu_vec2(self):
        a = self.a
        a(f'''
        v_lshlrev_b32 v22, 16, v18
        v_and_b32 v23, 0xffff0000, v18
        v_lshlrev_b32 v24, 16, v19
        v_and_b32 v25, 0xffff0000, v19
        ''')
        for r in range(22, 26): a(f'v_mul_f32 v{r+4}, {fhex(-LOG2E)}, v{r}')
        for r in range(22, 26): a(f'v_exp_f32 v{r+4}, v{r+4}')
        for r in range(22, 26): a(f'v_add_f32 v{r+4}, 1.0, v{r+4}')
        for r in range(22, 26): a(f'v_rcp_f32 v{r+4}, v{r+4}')
        for r in range(22, 26): a(f'v_mul_f32 v{r}, v{r}, v{r+4}')
        a('''
        v_cvt_pk_bf16_f32 v22, v22, v23
        v_cvt_pk_bf16_f32 v23, v24, v25
        ds_write_b64 v20, v[22:23]
        ''')
    def sv_frags(self, dst):
        a = self.a
        a(f'''
        v_mul_u32_u24 v5, {SVS}, {vB4}
        v_lshl_add_u32 v5, {vG}, 4, v5
        s_lshl_b32 {sT2}, {sW}, 7
        s_add_u32 {sT2}, {sT2}, {SV}
        v_add_u32 v5, {sT2}, v5
        ds_read_b128 {vr(dst,4)}, v5
        ds_read_b128 {vr(dst+4,4)}, v5 offset:64
        ''')

    def p_pre(self):
        a = self.a
        a('; ================= P pre')
        skip = a.label('nohp')
        a(f's_sub_u32 {sR0}, {sI}, 16')
        a(f's_cmp_ge_u32 {sR0}, 4')
        a(f's_cbranch_scc1 {skip}')
        a(f's_lshl_b32 {sR1}, {sX}, 2\ns_add_u32 {sR1}, {sR1}, {sR0}')
        self.srd(SA, P_WMOD, 512 * 6144)
        a(f'''
        v_lshrrev_b32 v6, 2, {vL}
        v_mul_u32_u24 v6, 6144, v6
        v_and_b32 v7, 1, {vG}
        v_lshlrev_b32 v7, 1, v7
        v_xor_b32 v7, v7, {vB4}
        v_and_b32 v8, 1, v7
        v_lshl_add_u32 v6, v8, 4, v6
        v_lshrrev_b32 v8, 1, v7
        v_lshl_add_u32 v6, v8, 10, v6
        s_mul_i32 {sT0}, {sW}, {64*6144}
        s_lshl_b32 {sT2}, {sR1}, 5
        s_add_u32 {sT0}, {sT0}, {sT2}
        s_mov_b32 {sT1}, {sWB}
        ''')
        self.dma(SA, ['v6'], 4, None, 16 * 6144, None)
        self.silu_vec()
        self.srd(SC, P_X, 4096)
        a(f'''
        s_and_b32 {sT2}, {sW}, 3
        s_lshl_b32 {sT3}, {sT2}, 10
        v_lshlrev_b32 v30, 4, {vL}
        buffer_load_dwordx4 v[32:35], v30, {SC}, {sT3} offen
        v_lshrrev_b32 v39, 3, {vL}
        v_and_b32 v39, 3, v39
        v_lshlrev_b32 v36, 10, v39
        v_and_b32 v37, 7, {vL}
        v_lshl_add_u32 v36, v37, 2, v36
        s_lshl_b32 {sT3}, {sR1}, 5
        buffer_load_dword v38, v36, {SC}, {sT3} offen
        ''')
        self.tag()
        a('s_waitcnt vmcnt(2)')
        self.silu_vec2()
        a('s_waitcnt vmcnt(1)')
        for k in range(4):
            a(f'v_lshlrev_b32 v{40+2*k}, 16, v{32+k}\nv_and_b32 v{41+2*k}, 0xffff0000, v{32+k}')
        a('v_add_f32 v48, v40, v41\nv_mul_f32 v49, v40, v40\nv_fmac_f32 v49, v41, v41')
        for k in range(42, 48):
            a(f'v_add_f32 v48, v48, v{k}\nv_fmac_f32 v49, v{k}, v{k}')
        self.allsum(['v48', 'v49'], ['v50', 'v51'])
        a(f'''
        v_mul_f32 v48, {fhex(1/512)}, v48
        v_mul_f32 v49, {fhex(1/512)}, v49
        v_fma_f32 v49, -v48, v48, v49
        v_max_f32 v49, 0, v49
        v_add_f32 v49, {fhex(1e-5)}, v49
        v_rsq_f32 v49, v49
        s_lshl_b32 {sT3}, {sT2}, 3
        s_add_u32 {sT3}, {sT3}, {LS}
        v_mov_b32 v50, {sT3}
        ds_write_b64 v50, v[48:49]
        s_waitcnt vmcnt(0) lgkmcnt(0)
        s_barrier
        ''')
        self.ts('hp_loaded')
        self.sv_frags(52)
        a(f'''
        v_lshrrev_b32 v6, 2, {vT}
        v_lshl_add_u32 v6, {vG}, 2, v6          ; row = 4g + (t>>2)
        v_lshlrev_b32 v6, 6, v6
        v_lshrrev_b32 v7, 1, {vB4}
        v_and_b32 v8, 1, {vG}
        v_lshlrev_b32 v8, 1, v8
        v_xor_b32 v7, v7, v8
        v_lshl_add_u32 v6, v7, 4, v6
        v_and_b32 v7, 1, {vB4}
        v_lshl_add_u32 v6, v7, 3, v6
        v_add_u32 v6, {sWB}, v6
        v_xor_b32 v7, 32, v6
        ''')
        self.tr_reads(['v6', 'v7'], 2, 64, 16)
        a('s_waitcnt lgkmcnt(0)')
        for ks in range(2):
            for ct in range(2):
                c = '0' if ks == 0 else vr(60 + 4*ct, 4)
                a(f'v_mfma_f32_16x16x32_bf16 {vr(60+4*ct,4)}, {vr(16+4*(ks*2+ct),4)}, {vr(52+4*ks,4)}, {c}')
        a(f'''
        s_lshl_b32 {sT2}, {sW}, 9
        s_add_u32 {sT2}, {sT2}, {RED}
        v_lshlrev_b32 v6, 6, {vT}
        v_lshl_add_u32 v6, {vG}, 4, v6
        v_add_u32 v6, {sT2}, v6
        s_mov_b64 exec, {mT4}
        ds_write_b128 v6, v[60:63]
        ds_write_b128 v6, v[64:67] offset:256
        s_mov_b64 exec, -1
        s_waitcnt lgkmcnt(0)
        s_barrier
        ''')
        fin = a.label('hpfin')
        a(f's_cmp_lg_u32 {sW}, 0\ns_cbranch_scc1 {fin}')
        a(f'''
        v_lshrrev_b32 v6, 5, {vL}
        v_lshlrev_b32 v6, 8, v6
        v_lshl_add_u32 v6, v39, 6, v6
        v_lshl_add_u32 v6, v37, 3, v6
        v_add_u32 v6, {RED}, v6
        v_lshlrev_b32 v7, 3, v39
        v_add_u32 v7, {LS}, v7
        ds_read_b64 v[32:33], v7
        ''')
        for ww in range(8): a(f'ds_read_b64 {vr(16+2*ww,2)}, v6 offset:{ww*512}')
        a('s_waitcnt lgkmcnt(0)')
        for ww in range(1, 8): a(f'v_add_f32 v16, v16, v{16+2*ww}\nv_add_f32 v17, v17, v{17+2*ww}')
        a(f'''
        v_mov_b32 v18, v16
        v_mov_b32 v19, v17
        v_permlane32_swap_b32 v16, v18
        v_permlane32_swap_b32 v17, v19
        v_lshlrev_b32 v20, 16, v38
        v_and_b32 v21, 0xffff0000, v38
        v_sub_f32 v20, v20, v32
        v_sub_f32 v21, v21, v32
        v_mul_f32 v20, v20, v33
        v_mul_f32 v21, v21, v33
        v_add_f32 v16, v16, v20
        v_add_f32 v17, v17, v21
        v_fmac_f32 v16, v20, v18
        v_fmac_f32 v17, v21, v19
        v_cvt_pk_bf16_f32 v22, v16, v17
        v_mov_b32 v23, {sTAG}
        v_lshlrev_b32 v24, 11, v39
        v_lshl_add_u32 v24, v37, 3, v24
        s_lshl_b32 {sT2}, {sR1}, 6
        s_add_u32 {sT2}, {sT2}, {WS_H}
        s_mov_b32 exec_hi, 0
        buffer_store_dwordx2 v[22:23], v24, {WS}, {sT2} offen sc1
        s_mov_b64 exec, -1
        {fin}:
        ''')
        self.ts('hp_pub')
        done = a.label('hpdone')
        a(f's_branch {done}')
        a(f'{skip}:')
        self.tag()
        a(f'{done}:')
        self.dma_ckv()
        a(f'''
        s_sub_u32 {sR0}, {sI}, 16
        s_lshr_b32 {sR1}, {sR0}, 2
        s_lshl_b32 {sT0}, {sX}, 2
        s_add_u32 {sR1}, {sR1}, {sT0}          ; hp
        s_and_b32 {sR0}, {sR0}, 3              ; bp
        ''')

    def q_pre(self):
        a = self.a
        a('; ================= Q pre')
        a(f'''
        s_lshr_b32 {sR1}, {sI}, 2
        s_lshl_b32 {sT0}, {sX}, 2
        s_add_u32 {sR1}, {sR1}, {sT0}          ; hq
        s_and_b32 {sR0}, {sI}, 3               ; cq
        ''')
        self.srd(SA, P_WQ, 4 << 20)
        a(f'''
        v_and_b32 v8, 15, {vL}
        v_lshlrev_b32 v9, 1, {vG}
        v_xor_b32 v10, v8, v9
        v_lshlrev_b32 v6, 13, {vG}
        v_lshl_add_u32 v7, v10, 4, v6
        v_xor_b32 v7, 128, v7
        v_lshl_add_u32 v6, v10, 4, v6
        s_lshl_b32 {sT0}, {sW}, 19             ; 64 rows * 8192
        s_lshl_b32 {sT2}, {sR1}, 8
        s_add_u32 {sT0}, {sT0}, {sT2}
        s_mov_b32 {sT1}, {sWB}
        ''')
        self.dma(SA, ['v6', 'v7'], 16, None, 32768, None)
        self.srd(SB, P_WUK, 4 << 20)
        a(f'''
        v_lshlrev_b32 v8, 13, {vT}
        v_lshl_add_u32 v8, {vG}, 4, v8
        s_lshl_b32 {sT0}, {sR0}, 20            ; 128*8192*cq
        s_lshl_b32 {sT1}, {sW}, 17             ; 16*8192*w
        s_add_u32 {sT0}, {sT0}, {sT1}
        s_add_u32 {sT0}, {sT0}, {sT2}
        ''')
        for st in range(4):
            off = f' offset:{st*64}' if st else ''
            a(f'buffer_load_dwordx4 {vr(112+4*st,4)}, v8, {SB}, {sT0} offen{off}{self.nt()}')
        self.tag()
        a(f'''
        v_lshrrev_b32 v8, 2, {vT}
        v_lshl_add_u32 v8, {vG}, 2, v8         ; row 0..15
        v_and_b32 v9, 7, v8
        v_lshlrev_b32 v9, 5, v9
        v_lshl_add_u32 v8, v8, 8, v9
        v_lshrrev_b32 v9, 1, {vB4}
        v_lshl_add_u32 v8, v9, 4, v8
        v_and_b32 v9, 1, {vB4}
        v_lshl_add_u32 v8, v9, 3, v8
        v_add_u32 v8, {sWB}, v8
        ''')
        for ct in range(1, 8): a(f'v_xor_b32 v{8+ct}, {ct << 5}, v8')
        a(f'''
        v_lshlrev_b32 v152, 11, {vB4}
        v_lshl_add_u32 v152, {vG}, 4, v152
        s_lshl_b32 {sT3}, {sW}, 8
        s_add_u32 {sT3}, {sT3}, {WS_H}
        s_waitcnt vmcnt(4)
        ''')
        self.ts('wq_landed')
        self.tr_reads([f'v{8+ct}' for ct in range(8)], 2, 256, 16)
        l = self.poll_begin()
        for k in range(4):
            off = f' offset:{k*64}' if k else ''
            a(f'buffer_load_dwordx4 {vr(128+4*k,4)}, v152, {WS}, {sT3} offen{off} sc1')
        a('s_waitcnt vmcnt(0)')
        self.tagchk('v153', [f'v{128+4*k+o}' for k in range(4) for o in (1, 3)])
        self.poll_end(l, 1, self.cfg['sleepA'], 'v153')
        self.ts('h_got')
        for ks in range(2):
            a(f'''
            v_mov_b32 v{144+4*ks}, v{128+8*ks}
            v_mov_b32 v{145+4*ks}, v{130+8*ks}
            v_mov_b32 v{146+4*ks}, v{132+8*ks}
            v_mov_b32 v{147+4*ks}, v{134+8*ks}
            ''')
        a('s_waitcnt lgkmcnt(0)')
        self.dma_ckv()
        for ks in range(2):
            for ct in range(8):
                c = '0' if ks == 0 else vr(80 + 4*ct, 4)
                a(f'v_mfma_f32_16x16x32_bf16 {vr(80+4*ct,4)}, {vr(16+4*(ks*8+ct),4)}, {vr(144+4*ks,4)}, {c}')
        a(f'''
        s_lshl_b32 {sT2}, {sW}, 11
        s_add_u32 {sT2}, {sT2}, {RED}
        v_lshlrev_b32 v5, 6, {vG}
        v_lshl_add_u32 v5, {vT}, 4, v5
        v_add_u32 v5, {sT2}, v5
        s_mov_b64 exec, {mT4}
        ''')
        for ct in range(8): a(f'ds_write_b128 v5, {vr(80+4*ct,4)} offset:{ct*256}')
        a(f'''
        s_mov_b64 exec, -1
        v_lshlrev_b32 v5, 2, v0
        v_add_u32 v5, {RED}, v5
        s_waitcnt lgkmcnt(0)
        s_barrier
        ''')
        for ww in range(8): a(f'ds_read_b32 v{128+ww}, v5 offset:{ww*2048}')
        a(f'''
        v_lshrrev_b32 v154, 2, {vL}
        v_and_b32 v154, 3, v154
        v_mul_u32_u24 v154, {QBS}, v154
        v_lshl_add_u32 v154, {vG}, 3, v154
        v_lshl_add_u32 v154, {vB4}, 1, v154
        s_lshl_b32 {sT2}, {sW}, 5
        s_add_u32 {sT2}, {sT2}, {QB}
        v_add_u32 v154, {sT2}, v154
        v_mul_u32_u24 v155, {QBS}, {vB4}
        v_lshl_add_u32 v155, {vG}, 4, v155
        v_add_u32 v155, {QB}, v155
        s_waitcnt lgkmcnt(0)
        v_add_f32 v128, v128, v129
        v_add_f32 v130, v130, v131
        v_add_f32 v132, v132, v133
        v_add_f32 v134, v134, v135
        v_add_f32 v128, v128, v130
        v_add_f32 v132, v132, v134
        v_add_f32 v128, v128, v132
        v_cvt_pk_bf16_f32 v128, v128, v128
        ds_write_b16 v154, v128
        s_waitcnt lgkmcnt(0)
        s_barrier
        ''')
        for st in range(4): a(f'ds_read_b128 {vr(128+4*st,4)}, v155 offset:{st*64}')
        a('s_waitcnt lgkmcnt(0)')
        for st in range(4):
            c = '0' if st == 0 else 'v[144:147]'
            a(f'v_mfma_f32_16x16x32_bf16 v[144:147], {vr(112+4*st,4)}, {vr(128+4*st,4)}, {c}')
        a(f'''
        v_lshlrev_b32 v5, 16, {vB4}
        v_lshl_add_u32 v5, {vG}, 4, v5
        s_lshl_b32 {sT0}, {sR1}, 11
        s_lshl_b32 {sT1}, {sR0}, 9
        s_add_u32 {sT0}, {sT0}, {sT1}
        s_lshl_b32 {sT1}, {sW}, 6
        s_add_u32 {sT0}, {sT0}, {sT1}
        s_add_u32 {sT0}, {sT0}, {WS_Q}
        s_mov_b32 {sT1}, {fhex(SCALE)}
        v_mul_f32 v144, {sT1}, v144
        v_mul_f32 v145, {sT1}, v145
        v_mul_f32 v146, {sT1}, v146
        v_mul_f32 v147, {sT1}, v147
        v_cvt_pk_bf16_f32 v148, v144, v145
        v_mov_b32 v149, {sTAG}
        v_cvt_pk_bf16_f32 v150, v146, v147
        v_mov_b32 v151, {sTAG}
        s_mov_b64 exec, {mT4}
        buffer_store_dwordx4 v[148:151], v5, {WS}, {sT0} offen sc1
        s_mov_b64 exec, -1
        ''')
        self.ts('q_pub')

    def attention(self):
        a = self.a
        a('; ================= attention')
        a(f'''
        v_and_b32 v5, 7, {vT}
        v_lshlrev_b32 v5, 5, v5                ; sw5
        v_lshlrev_b32 v244, 4, {vG}
        v_xor_b32 v244, v244, v5
        v_lshl_add_u32 v244, {vT}, 10, v244    ; rel(0)
        v_xor_b32 v245, 64, v244
        v_xor_b32 v246, 128, v244
        v_xor_b32 v247, 192, v244
        v_add_u32 v248, {QT}, v244
        v_add_u32 v249, {QT}, v245
        v_add_u32 v250, {QT}, v246
        v_add_u32 v251, {QT}, v247
        v_add_u32 v244, {sWB}, v244
        v_add_u32 v245, {sWB}, v245
        v_add_u32 v246, {sWB}, v246
        v_add_u32 v247, {sWB}, v247
        ''')
        a(f'''
        s_lshl_b32 {sT0}, {sBA}, 16
        s_lshl_b32 {sT1}, {sHH}, 15
        s_add_u32 {sT0}, {sT0}, {sT1}
        s_add_u32 {sR2}, {sT0}, {WS_Q}
        v_lshlrev_b32 v252, 4, v0
        ''')
        a(f'''
        v_lshrrev_b32 v253, 2, {vL}
        v_lshlrev_b32 v253, 11, v253
        v_lshl_add_u32 v253, {vB4}, 9, v253
        v_add_u32 v253, 504, v253
        ''')
        if self.cfg.get('ctrig', True):
            l = self.poll_begin()
            a(f'buffer_load_dwordx2 v[176:177], v253, {WS}, {sR2} offen sc1')
            a('s_waitcnt vmcnt(0)')
            self.tagchk('v254', ['v177'])
            self.poll_end(l, 2, self.cfg['sleepC'], 'v254')
        self.ts('c_trig')
        a(f's_add_u32 {sT1}, {sR2}, 8192\ns_add_u32 {sT2}, {sR2}, 16384\ns_add_u32 {sT3}, {sR2}, 24576')
        l = self.poll_begin()
        for n, so in enumerate((sR2, sT1, sT2, sT3)):
            a(f'buffer_load_dwordx4 {vr(176+4*n,4)}, v252, {WS}, {so} offen sc1')
        a('s_waitcnt vmcnt(0)')
        self.tagchk('v254', [f'v{176+4*n+o}' for n in range(4) for o in (1, 3)])
        self.poll_end(l, 3, 1, 'v254')
        self.ts('c_got')
        for st in range(16):
            a(f'ds_read_b128 {vr(16+4*st,4)}, v{244+(st&3)} offset:{(st>>2)*256}')
        a(f'''
        s_lshr_b32 {sT0}, {sW}, 1
        v_and_b32 v253, 127, v0
        v_lshrrev_b32 v254, 1, v253
        s_lshl_b32 {sT1}, {sT0}, 1
        v_xor_b32 v254, {sT1}, v254
        v_lshlrev_b32 v254, 4, v254
        v_and_b32 v253, 1, v253
        v_lshl_add_u32 v254, v253, 3, v254
        s_lshl_b32 {sT1}, {sT0}, 10
        s_add_u32 {sT1}, {sT1}, {QT}
        v_add_u32 v254, {sT1}, v254
        v_xor_b32 v253, 128, v254
        v_mov_b32 v177, v178
        v_mov_b32 v181, v182
        v_mov_b32 v185, v186
        v_mov_b32 v189, v190
        ds_write_b64 v254, v[176:177]
        ds_write_b64 v253, v[180:181] offset:4096
        ds_write_b64 v254, v[184:185] offset:8192
        ds_write_b64 v253, v[188:189] offset:12288
        s_waitcnt lgkmcnt(0)
        s_barrier
        ''')
        self.ts('b1')
        NB = 8
        for st in range(NB): a(f'ds_read_b128 {vr(196+4*st,4)}, v{248+(st&3)} offset:{(st>>2)*256}')
        for st in range(16):
            outstanding = min(16, st + NB) - st
            a(f's_waitcnt lgkmcnt({outstanding-1})')
            c = '0' if st == 0 else 'v[192:195]'
            a(f'v_mfma_f32_16x16x32_bf16 v[192:195], {vr(16+4*st,4)}, {vr(196+4*(st%NB),4)}, {c}')
            if st + NB < 16:
                s2 = st + NB
                a(f'ds_read_b128 {vr(196+4*(s2%NB),4)}, v{248+(s2&3)} offset:{(s2>>2)*256}')
        a(f'''
        v_lshrrev_b32 v244, 2, {vT}
        v_lshl_add_u32 v244, {vG}, 2, v244     ; key_l
        v_and_b32 v245, 7, v244
        v_lshlrev_b32 v245, 5, v245
        s_lshl_b32 {sT0}, {sW}, 7
        v_lshl_add_u32 v246, {vB4}, 4, {sT0}
        v_xor_b32 v245, v245, v246
        v_lshl_add_u32 v244, v244, 10, v245
        v_lshrrev_b32 v245, 1, {vB4}
        v_lshl_add_u32 v244, v245, 3, v244     ; pp=0,T=0
        v_xor_b32 v245, 8, v244                ; pp=0,T=1
        v_xor_b32 v246, 64, v244               ; pp=1,T=0
        v_xor_b32 v247, 72, v244               ; pp=1,T=1
        ''')
        a(f'''
        v_max_f32 v228, v192, v193
        v_max3_f32 v228, v228, v194, v195
        ''')
        self.crossrow(['v228'], ['v229'], 'v_max_f32')
        a(f'''
        v_lshlrev_b32 v230, 5, {vT}
        s_lshl_b32 {sT0}, {sW}, 2
        s_add_u32 {sT1}, {sT0}, {MX}
        v_add_u32 v231, {sT1}, v230
        ds_write_b32 v231, v228
        v_add_u32 v232, {MX}, v230
        s_waitcnt lgkmcnt(0)
        s_barrier
        ds_read_b128 v[236:239], v232
        ds_read_b128 v[240:243], v232 offset:16
        ''')
        def pva(ks):
            for pp in range(2):
                for T in range(2):
                    d = 16 + 4 * ((ks * 2 + pp) * 2 + T)
                    for hi in range(2):
                        off = (ks & 1) * 32768 + hi * 16384
                        a(f'ds_read_b64_tr_b16 {vr(d+2*hi,2)}, v{244+2*pp+T} offset:{off}')
        pva(0); pva(1)
        for k in range(4): a(f'v_add_u32 v{244+k}, 0x10000, v{244+k}')
        a('s_waitcnt lgkmcnt(15)')
        pva(2); pva(3)
        a(f'''
        v_max3_f32 v236, v236, v237, v238
        v_max3_f32 v240, v240, v241, v242
        v_max3_f32 v228, v236, v239, v240
        v_max_f32 v228, v228, v243             ; M
        v_sub_f32 v192, v192, v228
        v_sub_f32 v193, v193, v228
        v_sub_f32 v194, v194, v228
        v_sub_f32 v195, v195, v228
        v_exp_f32 v192, v192
        v_exp_f32 v193, v193
        v_exp_f32 v194, v194
        v_exp_f32 v195, v195
        v_add_f32 v229, v192, v193
        v_add_f32 v230, v194, v195
        v_cvt_pk_bf16_f32 v234, v192, v193
        v_cvt_pk_bf16_f32 v235, v194, v195
        v_add_f32 v229, v229, v230
        s_lshr_b32 {sT1}, {sW}, 1
        s_lshl_b32 {sT1}, {sT1}, 10
        s_and_b32 {sT2}, {sW}, 1
        s_lshl_b32 {sT2}, {sT2}, 3
        s_add_u32 {sT1}, {sT1}, {sT2}
        s_add_u32 {sT1}, {sT1}, {PT}
        v_lshl_add_u32 v233, {vL}, 4, {sT1}
        ds_write_b64 v233, v[234:235]
        ''')
        self.crossrow(['v229'], ['v230'], 'v_add_f32')
        a(f'''
        v_lshlrev_b32 v230, 5, {vT}
        s_add_u32 {sT1}, {sT0}, {LS}
        v_add_u32 v231, {sT1}, v230
        ds_write_b32 v231, v229
        v_add_u32 v232, {LS}, v230
        v_lshlrev_b32 v233, 4, {vL}
        v_add_u32 v233, {PT}, v233
        s_waitcnt lgkmcnt(0)
        s_barrier
        ''')
        self.ts('b3')
        for ks in range(4): a(f'ds_read_b128 {vr(196+4*ks,4)}, v233 offset:{ks*1024}')
        a('ds_read_b128 v[236:239], v232\nds_read_b128 v[240:243], v232 offset:16')
        for ks in range(4):
            a(f's_waitcnt lgkmcnt({5-ks})')
            for pp in range(2):
                for T in range(2):
                    acc = vr(212 + 4 * (pp * 2 + T), 4)
                    c = '0' if ks == 0 else acc
                    a(f'v_mfma_f32_16x16x32_bf16 {acc}, {vr(16+4*((ks*2+pp)*2+T),4)}, {vr(196+4*ks,4)}, {c}')
        a(f'''
        s_waitcnt lgkmcnt(0)
        v_add_f32 v236, v236, v237
        v_add_f32 v238, v238, v239
        v_add_f32 v240, v240, v241
        v_add_f32 v242, v242, v243
        v_add_f32 v236, v236, v238
        v_add_f32 v240, v240, v242
        v_add_f32 v236, v236, v240             ; l
        v_rcp_f32 v237, v236
        v_log_f32 v238, v236
        v_lshlrev_b32 v5, 15, {vT}
        v_lshl_add_u32 v5, {vG}, 4, v5
        s_lshl_b32 {sT0}, {sBA}, 5
        s_lshl_b32 {sT1}, {sHH}, 4
        s_add_u32 {sT0}, {sT0}, {sT1}
        s_lshl_b32 {sT1}, {sT0}, 5
        s_add_u32 {sT1}, {sT1}, {sS}
        s_lshl_b32 {sT1}, {sT1}, 10
        s_lshl_b32 {sT2}, {sW}, 7
        s_add_u32 {sT1}, {sT1}, {sT2}
        s_add_u32 {sT1}, {sT1}, {WS_D}
        v_add_f32 v238, v228, v238             ; lse
        v_mov_b32 v239, {sTAG}
        ''')
        for k in range(16): a(f'v_mul_f32 v{212+k}, v237, v{212+k}')
        for pp in range(2):
            b = 212 + 8 * pp
            a(f'''
            v_cvt_pk_bf16_f32 v{196+4*pp}, v{b}, v{b+1}
            v_cvt_pk_bf16_f32 v{197+4*pp}, v{b+2}, v{b+3}
            v_cvt_pk_bf16_f32 v{198+4*pp}, v{b+4}, v{b+5}
            v_cvt_pk_bf16_f32 v{199+4*pp}, v{b+6}, v{b+7}
            ''')
            off = ' offset:64' if pp else ''
            a(f'buffer_store_dwordx4 {vr(196+4*pp,4)}, v5, {WS}, {sT1} offen{off} sc1')
        self.ts('d_st')
        a(f'''
        s_lshl_b32 {sR2}, {sT0}, 8
        s_lshl_b32 {sT1}, {sS}, 3
        s_add_u32 {sR2}, {sR2}, {sT1}
        s_add_u32 {sR2}, {sR2}, {WS_FL}
        v_lshlrev_b32 v240, 8, {vT}
        ''')
    def d_flag(self, pending):
        a = self.a
        sk = a.label('nofl')
        a(f'''
        s_waitcnt vmcnt({pending})
        s_barrier
        s_cmp_lg_u32 {sW}, 0
        s_cbranch_scc1 {sk}
        s_mov_b64 exec, 0xffff
        buffer_store_dwordx2 v[238:239], v240, {WS}, {sR2} offen sc1
        s_mov_b64 exec, -1
        {sk}:
        ''')
        self.ts('d_flag')

    def p_wuv_issue(self):
        a = self.a
        self.srd(SB, P_WUV, 4 << 20)
        a(f'''
        v_lshlrev_b32 v5, 16, {vG}
        v_lshl_add_u32 v5, {vT}, 4, v5
        s_lshl_b32 {sT0}, {sW}, 19
        s_lshl_b32 {sT1}, {sR1}, 8
        s_add_u32 {sT0}, {sT0}, {sT1}
        ''')
        for k in range(2):
            for e in range(8):
                a(f'buffer_load_dwordx4 {vr(112+32*k+4*e,4)}, v5, {SB}, {sT0} offen{self.nt()}')
                if e < 7: a(f's_add_u32 {sT0}, {sT0}, 8192')
            if k == 0: a(f's_add_u32 {sT0}, {sT0}, {8192*25}')
    def perm_unit(self, src, dst):
        a = self.a
        for q in range(4):
            for p in range(4):
                X = src + 8*q + p; Y = src + 8*q + 4 + p
                a(f'v_perm_b32 v{dst+8*p+q}, v{Y}, v{X}, {sPLO}')
                a(f'v_perm_b32 v{dst+8*p+4+q}, v{Y}, v{X}, {sPHI}')
    def p_post(self):
        a = self.a
        a('; ================= P post')
        self.srd(SA, P_WO, 4 << 20)
        a(f'''
        s_lshl_b32 {sT0}, {sR1}, 17
        s_lshl_b32 {sT2}, {sW}, 7
        s_add_u32 {sT0}, {sT0}, {sT2}
        ''')
        self.dma128(SA, 1024, 16, 0)
        self.d_flag(16)
        self.perm_unit(112, 80)
        self.perm_unit(144, 112)
        a(f'''
        s_lshl_b32 {sT0}, {sR0}, 5
        s_add_u32 {sT0}, {sT0}, {sR1}
        s_lshl_b32 {sT1}, {sT0}, 8
        s_lshl_b32 {sT2}, {sW}, 5
        s_add_u32 {sT1}, {sT1}, {sT2}
        s_add_u32 {sT1}, {sT1}, {WS_FL}
        v_lshlrev_b32 v5, 3, {vB4}
        s_lshl_b32 {sT2}, {sT0}, 15
        s_lshl_b32 {sT3}, {sW}, 12
        s_add_u32 {sT2}, {sT2}, {sT3}
        s_add_u32 {sT2}, {sT2}, {WS_D}
        v_lshlrev_b32 v6, 4, {vL}
        ''')
        l = self.poll_begin()
        a(f'buffer_load_dwordx2 v[176:177], v5, {WS}, {sT1} offen sc1')
        a('s_waitcnt vmcnt(0)')
        self.tagchk('v178', ['v177'])
        self.poll_end(l, 4, self.cfg['sleepD'], 'v178')
        self.ts('dfl_got')
        for k in range(4):
            off = f' offset:{k*1024}' if k else ''
            a(f'buffer_load_dwordx4 {vr(180+4*k,4)}, v6, {WS}, {sT2} offen{off} sc1')
        ad = self.tr128_addr(8)
        self.tr_reads(ad, 4, 128, 16)
        a(f'''
        v_max_f32_dpp v178, v176, v176 quad_perm:[1,0,3,2] row_mask:0xf bank_mask:0xf
        v_max_f32_dpp v178, v178, v178 quad_perm:[2,3,0,1] row_mask:0xf bank_mask:0xf
        v_sub_f32 v176, v176, v178
        v_exp_f32 v176, v176
        v_add_f32_dpp v179, v176, v176 quad_perm:[1,0,3,2] row_mask:0xf bank_mask:0xf
        v_add_f32_dpp v179, v179, v179 quad_perm:[2,3,0,1] row_mask:0xf bank_mask:0xf
        ''')
        for k in range(4): a(f'v_mov_b32_dpp v{196+k}, v176 quad_perm:[{k},{k},{k},{k}] row_mask:0xf bank_mask:0xf')
        a(f'''
        s_lshl_b32 {sT0}, {sW}, 3
        s_add_u32 {sT0}, {sT0}, {MX}
        v_mov_b32 v7, {sT0}
        ds_write_b64 v7, v[178:179]
        s_lshl_b32 {sT0}, {sW}, 11
        s_add_u32 {sT0}, {sT0}, {RED}
        v_lshrrev_b32 v7, 1, {vL}
        v_and_b32 v7, 1, v7
        v_lshlrev_b32 v7, 4, v7
        v_lshl_add_u32 v7, {vL}, 5, v7
        v_add_u32 v7, {sT0}, v7
        v_xor_b32 v6, 16, v7
        ''')
        for k in range(4):
            a(f's_waitcnt vmcnt({3-k})')
            for p in range(4):
                s = 180 + 4*k + p
                a(f'v_lshlrev_b32 v200, 16, v{s}\nv_and_b32 v201, 0xffff0000, v{s}')
                if k == 0:
                    a(f'v_mul_f32 v{204+2*p}, v196, v200\nv_mul_f32 v{205+2*p}, v196, v201')
                else:
                    a(f'v_fmac_f32 v{204+2*p}, v{196+k}, v200\nv_fmac_f32 v{205+2*p}, v{196+k}, v201')
        self.ts('d_got')
        a(f'''
        ds_write_b128 v7, v[204:207]
        ds_write_b128 v6, v[208:211]
        v_lshlrev_b32 v5, 2, v0
        v_add_u32 v5, {RED}, v5
        v_mov_b32 v6, {MX}
        s_waitcnt lgkmcnt(0)
        s_barrier
        ''')
        for k in range(4): a(f'ds_read_b128 {vr(176+4*k,4)}, v6 offset:{k*16}')
        for ww in range(8): a(f'ds_read_b32 v{192+ww}, v5 offset:{ww*2048}')
        a('s_waitcnt lgkmcnt(8)')
        a('''
        v_max3_f32 v200, v176, v178, v180
        v_max3_f32 v200, v200, v182, v184
        v_max3_f32 v200, v200, v186, v188
        v_max_f32 v200, v200, v190
        ''')
        for ww in range(8): a(f'v_sub_f32 v{176+2*ww}, v{176+2*ww}, v200')
        for ww in range(8): a(f'v_exp_f32 v{176+2*ww}, v{176+2*ww}')
        a('v_mul_f32 v201, v176, v177')
        for ww in range(1, 8): a(f'v_fmac_f32 v201, v{176+2*ww}, v{177+2*ww}')
        a('v_rcp_f32 v201, v201\ns_waitcnt lgkmcnt(0)\nv_mul_f32 v202, v176, v192')
        for ww in range(1, 8): a(f'v_fmac_f32 v202, v{176+2*ww}, v{192+ww}')
        a(f'''
        v_mul_f32 v202, v202, v201
        v_cvt_pk_bf16_f32 v202, v202, v202
        v_lshlrev_b32 v5, 1, v0
        v_add_u32 v5, {OB}, v5
        ds_write_b16 v5, v202
        s_lshl_b32 {sT0}, {sW}, 7
        s_add_u32 {sT0}, {sT0}, {OB}
        v_lshl_add_u32 v5, {vG}, 4, {sT0}
        s_waitcnt lgkmcnt(0)
        ds_read_b128 v[176:179], v5
        ds_read_b128 v[180:183], v5 offset:64
        s_waitcnt lgkmcnt(0)
        ''')
        for k in range(2):
            for u in range(8):
                acc = vr(184 + 4*u, 4)
                c = '0' if k == 0 else acc
                a(f'v_mfma_f32_16x16x32_bf16 {acc}, {vr(176+4*k,4)}, {vr(80+32*k+4*u,4)}, {c}')
        mg = self.masks_g()
        a(f'''
        s_lshl_b32 {sT0}, {sW}, 9
        s_add_u32 {sT0}, {sT0}, {RED2}
        v_lshlrev_b32 v5, 5, {vT}
        v_lshl_add_u32 v5, {vG}, 3, v5
        v_add_u32 v5, {sT0}, v5
        ''')
        self.sel4('v216', [f'v{184+4*u}' for u in (0, 2, 4, 6)], mg)
        self.sel4('v217', [f'v{184+4*u}' for u in (1, 3, 5, 7)], mg)
        a(f'''
        ds_write_b64 v5, v[216:217]
        v_lshlrev_b32 v5, 3, {vL}
        v_add_u32 v5, {RED2}, v5
        s_waitcnt lgkmcnt(0)
        s_barrier
        ''')
        for ww in range(8): a(f'ds_read_b64 {vr(176+2*ww,2)}, v5 offset:{ww*512}')
        a(f'''
        v_lshlrev_b32 v6, 6, {vG}
        v_lshrrev_b32 v7, 1, {vL}
        v_and_b32 v7, 3, v7
        v_lshl_add_u32 v6, v7, 4, v6
        v_lshrrev_b32 v7, 3, {vL}
        v_and_b32 v7, 1, v7
        v_lshl_add_u32 v6, v7, 3, v6
        v_and_b32 v7, 1, {vL}
        v_lshl_add_u32 v6, v7, 2, v6
        s_lshl_b32 {sT0}, {sW}, 8
        s_add_u32 {sT0}, {sT0}, {WL}
        v_add_u32 v6, {sT0}, v6
        v_lshl_add_u32 v7, {vG}, 4, {sT0}
        s_waitcnt lgkmcnt(0)
        ''')
        for ww in range(1, 8): a(f'v_add_f32 v176, v176, v{176+2*ww}\nv_add_f32 v177, v177, v{177+2*ww}')
        a('v_cvt_pk_bf16_f32 v176, v176, v177\nds_write_b32 v6, v176\ns_waitcnt lgkmcnt(0)')
        for ks in range(4): a(f'ds_read_b128 {vr(180+4*ks,4)}, v7 offset:{ks*64}')
        a('s_waitcnt lgkmcnt(0)')
        for ks in range(4):
            for ct in range(4):
                acc = vr(196 + 4*ct, 4)
                c = '0' if ks == 0 else acc
                a(f'v_mfma_f32_16x16x32_bf16 {acc}, {vr(16+4*(ks*4+ct),4)}, {vr(180+4*ks,4)}, {c}')
        mt = self.masks_t()
        a(f'''
        s_lshl_b32 {sT0}, {sR0}, 5
        s_add_u32 {sT0}, {sT0}, {sR1}
        s_lshl_b32 {sT0}, {sT0}, 11
        s_lshl_b32 {sT1}, {sW}, 8
        s_add_u32 {sT0}, {sT0}, {sT1}
        s_add_u32 {sT0}, {sT0}, {WS_E}
        v_lshlrev_b32 v5, 6, {vT}
        v_lshl_add_u32 v5, {vG}, 4, v5
        ''')
        for r in range(4): self.sel4(f'v{212+r}', [f'v{196+4*ct+r}' for ct in range(4)], mt)
        a(f'''
        v_cvt_pk_bf16_f32 v216, v212, v213
        v_mov_b32 v217, {sTAG}
        v_cvt_pk_bf16_f32 v218, v214, v215
        v_mov_b32 v219, {sTAG}
        s_mov_b64 exec, {mT4}
        buffer_store_dwordx4 v[216:219], v5, {WS}, {sT0} offen sc1
        s_mov_b64 exec, -1
        ''')
        self.ts('e_pub')

    def mr_load(self, secs, vdst, b_s):
        a = self.a
        a(f'''
        v_lshrrev_b32 v5, 1, v0
        v_lshlrev_b32 v5, 3, v5
        s_lshl_b32 {sT0}, {b_s}, 13
        s_add_u32 {sT0}, {sT0}, {WS_MR}
        ''')
        l = self.poll_begin()
        for k, sec in enumerate(secs):
            off = f' offset:{sec*2048}' if sec else ''
            if sec * 2048 > 4095:
                a(f's_add_u32 {sT1}, {sT0}, {sec*2048}')
                a(f'buffer_load_dwordx2 {vr(vdst+2*k,2)}, v5, {WS}, {sT1} offen sc1')
            else:
                a(f'buffer_load_dwordx2 {vr(vdst+2*k,2)}, v5, {WS}, {sT0} offen{off} sc1')
        a('s_waitcnt vmcnt(0)')
        self.tagchk('v6', [f'v{vdst+2*k+1}' for k in range(len(secs))])
        self.poll_end(l, 5, 4, 'v6')
        a('v_and_b32 v6, 1, v0\nv_cmp_eq_u32 vcc, 1, v6')
        for k in range(len(secs)):
            r = vdst + 2*k
            a(f'v_lshlrev_b32 v{r+1}, 16, v{r}\nv_and_b32 v{r}, 0xffff0000, v{r}\nv_cndmask_b32 v{r}, v{r+1}, v{r}, vcc')

    def ffn(self):
        a = self.a
        self.srd(SA, P_W1, 512 * 2752)
        a(f'''
        s_mul_i32 {sT0}, {sW}, {64*2752}
        s_lshl_b32 {sT2}, {sR1}, 7
        s_add_u32 {sT0}, {sT0}, {sT2}
        ''')
        self.dma128(SA, 2752, 8, 0)
        self.srd(SB, P_W2, 1376 * 1024)
        a(f'''
        s_lshl_b32 {sT0}, {sR1}, 16
        s_lshl_b32 {sT2}, {sW}, 7
        s_add_u32 {sT0}, {sT0}, {sT2}
        ''')
        self.dma128(SB, 1024, 8, 8192)
        self.d_flag(16)
        self.srd(SC, P_X, 4096)
        a(f'''
        v_lshlrev_b32 v5, 1, v0
        s_lshl_b32 {sT0}, {sR0}, 10
        buffer_load_ushort v100, v5, {SC}, {sT0} offen
        ''')
        self.mr_load([0, 1, 2], 102, sR0)
        a('v_lshlrev_b32 v100, 16, v100')
        ad = self.tr128_addr(8)
        self.tr_reads(ad, 2, 128, 16)
        self.tr_reads(ad, 2, 128, 48, 8192)
        a(f'''
        s_lshl_b32 {sT0}, {sR0}, 5
        s_lshl_b32 {sT1}, {sW}, 2
        s_add_u32 {sT0}, {sT0}, {sT1}
        s_lshl_b32 {sT0}, {sT0}, 11
        s_add_u32 {sR2}, {sT0}, {WS_E}
        v_lshlrev_b32 v5, 11, {vB4}
        v_add_u32 v5, 2040, v5
        ''')
        l = self.poll_begin()
        a(f'buffer_load_dwordx2 v[176:177], v5, {WS}, {sR2} offen sc1\ns_waitcnt vmcnt(0)')
        self.tagchk('v178', ['v177'])
        self.poll_end(l, 6, self.cfg['sleepE'], 'v178')
        self.ts('e_trig')
        a(f'v_lshlrev_b32 v5, 4, {vL}\ns_add_u32 {sT1}, {sR2}, 4096')
        l = self.poll_begin()
        for k in range(8):
            so = sR2 if k < 4 else sT1
            off = f' offset:{(k&3)*1024}' if k & 3 else ''
            a(f'buffer_load_dwordx4 {vr(112+4*k,4)}, v5, {WS}, {so} offen{off} sc1')
        a('s_waitcnt vmcnt(0)')
        self.tagchk('v178', [f'v{112+4*k+o}' for k in range(8) for o in (1, 3)])
        self.poll_end(l, 7, 1, 'v178')
        self.ts('e_got')
        a(f's_mov_b32 {sT0}, 0x00003f80\ns_mov_b32 {sT1}, 0x3f800000')
        for k in range(8):
            hf = k & 1; b = 112 + 4*k; acc = 144 + 4*hf
            for j, (src, sel) in enumerate(((b, sT0), (b, sT1), (b+2, sT0), (b+2, sT1))):
                c = '0' if k < 2 else f'v{acc+j}'
                a(f'v_dot2_f32_bf16 v{acc+j}, v{src}, {sel}, {c}')
        a(f'''
        s_lshl_b32 {sT0}, {sW}, 11
        s_add_u32 {sT0}, {sT0}, {RED}
        v_lshl_add_u32 v5, {vL}, 4, {sT0}
        ds_write_b128 v5, v[144:147]
        ds_write_b128 v5, v[148:151] offset:1024
        v_lshlrev_b32 v5, 2, v0
        v_add_u32 v5, {RED}, v5
        s_waitcnt lgkmcnt(0)
        s_barrier
        ''')
        for ww in range(8): a(f'ds_read_b32 v{112+ww}, v5 offset:{ww*2048}')
        a('''
        s_waitcnt lgkmcnt(0)
        v_add_f32 v112, v112, v113
        v_add_f32 v114, v114, v115
        v_add_f32 v116, v116, v117
        v_add_f32 v118, v118, v119
        v_add_f32 v112, v112, v114
        v_add_f32 v116, v116, v118
        v_add_f32 v112, v112, v116
        v_fma_f32 v100, v102, v112, v100       ; x1
        v_mov_b32 v120, v100
        v_mul_f32 v121, v100, v100
        ''')
        self.allsum(['v120', 'v121'], ['v122', 'v123'])
        a(f'''
        s_lshl_b32 {sT0}, {sW}, 3
        s_add_u32 {sT0}, {sT0}, {MX}
        v_mov_b32 v5, {sT0}
        ds_write_b64 v5, v[120:121]
        v_mov_b32 v5, {MX}
        s_waitcnt lgkmcnt(0)
        s_barrier
        ''')
        for k in range(4): a(f'ds_read_b128 {vr(112+4*k,4)}, v5 offset:{k*16}')
        a(f'''
        v_lshrrev_b32 v6, 5, {vL}
        v_lshlrev_b32 v6, 6, v6
        v_lshrrev_b32 v7, 2, {vL}
        v_and_b32 v7, 3, v7
        v_lshl_add_u32 v6, v7, 4, v6
        v_and_b32 v7, 1, {vG}
        v_lshl_add_u32 v6, v7, 3, v6
        v_lshl_add_u32 v6, {vB4}, 1, v6
        s_lshl_b32 {sT0}, {sW}, 8
        s_add_u32 {sT0}, {sT0}, {WL}
        v_add_u32 v6, {sT0}, v6
        v_lshl_add_u32 v7, {vG}, 4, {sT0}
        s_waitcnt lgkmcnt(0)
        ''')
        for k in range(1, 8): a(f'v_add_f32 v112, v112, v{112+2*k}\nv_add_f32 v113, v113, v{113+2*k}')
        a(f'''
        v_mul_f32 v112, {fhex(1/512)}, v112
        v_mul_f32 v113, {fhex(1/512)}, v113
        v_fma_f32 v113, -v112, v112, v113
        v_max_f32 v113, 0, v113
        v_add_f32 v113, {fhex(1e-5)}, v113
        v_rsq_f32 v113, v113
        v_sub_f32 v114, v100, v112
        v_mul_f32 v114, v114, v113
        v_add_f32 v115, v114, v104
        v_fmac_f32 v115, v114, v106
        v_cvt_pk_bf16_f32 v115, v115, v115
        ds_write_b16 v6, v115
        s_waitcnt lgkmcnt(0)
        ds_read_b128 v[112:115], v7
        ds_read_b128 v[116:119], v7 offset:64
        s_waitcnt lgkmcnt(0)
        ''')
        for ks in range(2):
            for ct in range(4):
                acc = vr(120 + 4*ct, 4); c = '0' if ks == 0 else acc
                a(f'v_mfma_f32_16x16x32_bf16 {acc}, {vr(16+4*(ks*4+ct),4)}, {vr(112+4*ks,4)}, {c}')
        mt = self.masks_t()
        a(f'''
        s_lshl_b32 {sT0}, {sW}, 8
        s_add_u32 {sT0}, {sT0}, {RED2}
        v_lshlrev_b32 v5, 6, {vT}
        v_lshl_add_u32 v5, {vG}, 4, v5
        v_add_u32 v5, {sT0}, v5
        ''')
        for r in range(4): self.sel4(f'v{136+r}', [f'v{120+4*ct+r}' for ct in range(4)], mt)
        a(f'''
        s_mov_b64 exec, {mT4}
        ds_write_b128 v5, v[136:139]
        s_mov_b64 exec, -1
        v_lshlrev_b32 v5, 2, {vL}
        v_add_u32 v5, {RED2}, v5
        s_waitcnt lgkmcnt(0)
        s_barrier
        ''')
        for ww in range(8): a(f'ds_read_b32 v{112+ww}, v5 offset:{ww*256}')
        a(f'''
        s_lshl_b32 {sT0}, {sR1}, 6
        v_add_u32 v5, {sT0}, {vL}
        v_cmp_gt_u32 vcc, 1376, v5
        s_waitcnt lgkmcnt(0)
        v_add_f32 v112, v112, v113
        v_add_f32 v114, v114, v115
        v_add_f32 v116, v116, v117
        v_add_f32 v118, v118, v119
        v_add_f32 v112, v112, v114
        v_add_f32 v116, v116, v118
        v_add_f32 v112, v112, v116
        v_max_f32 v112, 0, v112
        v_cndmask_b32 v112, 0, v112, vcc
        v_cvt_pk_bf16_f32 v112, v112, v112
        ds_write_b16 v6, v112 offset:128
        s_waitcnt lgkmcnt(0)
        ds_read_b128 v[112:115], v7 offset:128
        ds_read_b128 v[116:119], v7 offset:192
        s_waitcnt lgkmcnt(0)
        ''')
        for ks in range(2):
            for ct in range(4):
                acc = vr(120 + 4*ct, 4); c = '0' if ks == 0 else acc
                a(f'v_mfma_f32_16x16x32_bf16 {acc}, {vr(48+4*(ks*4+ct),4)}, {vr(112+4*ks,4)}, {c}')
        a(f'''
        s_lshl_b32 {sT0}, {sR0}, 3
        s_add_u32 {sT0}, {sT0}, {sW}
        s_mul_i32 {sT0}, {sT0}, {24*512}
        s_lshl_b32 {sT1}, {sR1}, 9
        s_add_u32 {sT0}, {sT0}, {sT1}
        s_add_u32 {sT0}, {sT0}, {WS_F}
        v_lshlrev_b32 v5, 7, {vT}
        v_lshl_add_u32 v5, {vG}, 5, v5
        ''')
        for r in range(4): self.sel4(f'v{136+r}', [f'v{120+4*ct+r}' for ct in range(4)], mt)
        a(f'''
        v_mov_b32 v140, v136
        v_mov_b32 v141, {sTAG}
        v_mov_b32 v142, v137
        v_mov_b32 v143, {sTAG}
        v_mov_b32 v144, v138
        v_mov_b32 v145, {sTAG}
        v_mov_b32 v146, v139
        v_mov_b32 v147, {sTAG}
        s_mov_b64 exec, {mT4}
        buffer_store_dwordx4 v[140:143], v5, {WS}, {sT0} offen sc1
        buffer_store_dwordx4 v[144:147], v5, {WS}, {sT0} offen offset:16 sc1
        s_mov_b64 exec, -1
        ''')
        self.ts('f_pub')

    def final(self):
        a = self.a
        a(f's_lshl_b32 {sR1}, {sX}, 2\ns_add_u32 {sR1}, {sR1}, {sR0}')
        self.srd(SA, P_WMOD, 512 * 6144)
        a(f'''
        s_mul_i32 {sT0}, {sW}, {64*6144}
        s_lshl_b32 {sT2}, {sR1}, 7
        s_add_u32 {sT0}, {sT0}, {sT2}
        s_add_u32 {sT0}, {sT0}, 2048
        ''')
        self.dma128(SA, 6144, 8, 0)
        self.d_flag(8)
        self.silu_vec()
        a('s_waitcnt vmcnt(0)')
        self.silu_vec2()
        a('s_waitcnt lgkmcnt(0)\ns_barrier')
        self.sv_frags(112)
        ad = self.tr128_addr(8)
        self.tr_reads(ad, 2, 128, 16)
        a('s_waitcnt lgkmcnt(0)')
        for ks in range(2):
            for ct in range(4):
                acc = vr(120 + 4*ct, 4); c = '0' if ks == 0 else acc
                a(f'v_mfma_f32_16x16x32_bf16 {acc}, {vr(16+4*(ks*4+ct),4)}, {vr(112+4*ks,4)}, {c}')
        a(f'''
        s_lshl_b32 {sT0}, {sW}, 10
        s_add_u32 {sT0}, {sT0}, {RED}
        v_lshlrev_b32 v5, 6, {vG}
        v_lshl_add_u32 v5, {vT}, 4, v5
        v_add_u32 v5, {sT0}, v5
        s_mov_b64 exec, {mT4}
        ''')
        for ct in range(4): a(f'ds_write_b128 v5, {vr(120+4*ct,4)} offset:{ct*256}')
        a(f'''
        s_mov_b64 exec, -1
        s_waitcnt lgkmcnt(0)
        s_barrier
        ''')
        sk = a.label('mrskip')
        a(f'''
        s_cmp_ge_u32 {sW}, 2
        s_cbranch_scc1 {sk}
        v_lshlrev_b32 v5, 3, v0
        v_add_u32 v5, {RED}, v5
        ''')
        for ww in range(8): a(f'ds_read_b64 {vr(112+2*ww,2)}, v5 offset:{ww*1024}')
        a(f'''
        v_lshrrev_b32 v6, 1, v0
        v_and_b32 v6, 3, v6
        v_lshlrev_b32 v6, 13, v6               ; b*8192
        v_lshrrev_b32 v7, 3, v0                ; ct*4+g
        v_lshl_add_u32 v6, v7, 4, v6           ; (8ct+2g)*8
        v_and_b32 v7, 1, v0
        v_lshl_add_u32 v6, v7, 3, v6
        s_lshl_b32 {sT0}, {sR1}, 8
        s_add_u32 {sT0}, {sT0}, {WS_MR}
        s_waitcnt lgkmcnt(0)
        ''')
        for ww in range(1, 8): a(f'v_add_f32 v112, v112, v{112+2*ww}\nv_add_f32 v113, v113, v{113+2*ww}')
        a(f'''
        v_cvt_pk_bf16_f32 v112, v112, v113
        v_mov_b32 v113, {sTAG}
        buffer_store_dwordx2 v[112:113], v6, {WS}, {sT0} offen sc1
        {sk}:
        ''')
        self.ts('mr_pub')
        a(f's_cmp_lg_u32 {sW}, 0\ns_cbranch_scc1 L_exit')
        self.srd(SC, P_X, 4096)
        a(f'''
        v_and_b32 v5, 31, {vL}
        v_lshlrev_b32 v6, 2, v5
        s_lshl_b32 {sT0}, {sR0}, 10
        s_lshl_b32 {sT1}, {sX}, 7
        s_add_u32 {sR2}, {sT0}, {sT1}
        buffer_load_dword v100, v6, {SC}, {sR2} offen
        v_lshlrev_b32 v7, 3, v5
        s_lshl_b32 {sT0}, {sR0}, 13
        s_lshl_b32 {sT1}, {sX}, 8
        s_add_u32 {sT0}, {sT0}, {sT1}
        s_add_u32 {sT0}, {sT0}, {WS_MR}
        s_add_u32 {sT1}, {sT0}, {3*2048}
        ''')
        l = self.poll_begin()
        a(f'''
        buffer_load_dwordx2 v[102:103], v7, {WS}, {sT0} offen sc1
        buffer_load_dwordx2 v[104:105], v7, {WS}, {sT1} offen sc1
        s_waitcnt vmcnt(0)
        ''')
        self.tagchk('v8', ['v103', 'v105'])
        self.poll_end(l, 8, 4, 'v8')
        a(f'''
        v_lshrrev_b32 v8, 5, {vL}
        v_lshl_add_u32 v9, v8, 11, v7
        s_lshl_b32 {sT0}, {sR0}, 16
        s_lshl_b32 {sT1}, {sX}, 8
        s_add_u32 {sT0}, {sT0}, {sT1}
        s_add_u32 {sT0}, {sT0}, {WS_E}
        ''')
        l = self.poll_begin()
        a(f's_mov_b32 {sT1}, {sT0}')
        for k in range(16):
            a(f'buffer_load_dwordx2 {vr(112+2*k,2)}, v9, {WS}, {sT1} offen sc1')
            if k < 15: a(f's_add_u32 {sT1}, {sT1}, 4096')
        a('s_waitcnt vmcnt(0)')
        self.tagchk('v10', [f'v{113+2*k}' for k in range(16)])
        self.poll_end(l, 9, self.cfg['sleepE'] + 2, 'v10')
        self.ts('fe_got')
        a(f's_mov_b32 {sT0}, 0x00003f80\ns_mov_b32 {sT1}, 0x3f800000')
        for k in range(16):
            c0 = '0' if k == 0 else 'v144'; c1 = '0' if k == 0 else 'v145'
            a(f'v_dot2_f32_bf16 v144, v{112+2*k}, {sT0}, {c0}\nv_dot2_f32_bf16 v145, v{112+2*k}, {sT1}, {c1}')
        a('''
        v_mov_b32 v146, v144
        v_mov_b32 v147, v145
        v_permlane32_swap_b32 v144, v146
        v_permlane32_swap_b32 v145, v147
        v_add_f32 v144, v144, v146
        v_add_f32 v145, v145, v147
        v_lshlrev_b32 v146, 16, v100
        v_and_b32 v147, 0xffff0000, v100
        v_lshlrev_b32 v148, 16, v102
        v_and_b32 v149, 0xffff0000, v102
        v_fmac_f32 v146, v148, v144            ; x1
        v_fmac_f32 v147, v149, v145
        v_lshlrev_b32 v148, 16, v104           ; gb
        v_and_b32 v149, 0xffff0000, v104
        ''')
        a(f'''
        v_lshlrev_b32 v9, 9, v8
        v_lshl_add_u32 v9, v5, 4, v9
        s_lshl_b32 {sT0}, {sR0}, 3
        s_add_u32 {sT0}, {sT0}, {sX}
        s_mul_i32 {sT0}, {sT0}, {24*512}
        s_add_u32 {sT0}, {sT0}, {WS_F}
        ''')
        l = self.poll_begin()
        a(f's_mov_b32 {sT1}, {sT0}')
        for k in range(11):
            off = f' offset:{(k&3)*1024}' if k & 3 else ''
            a(f'buffer_load_dwordx4 {vr(176+4*k,4)}, v9, {WS}, {sT1} offen{off} sc1')
            if k & 3 == 3: a(f's_add_u32 {sT1}, {sT1}, 4096')
        a('s_waitcnt vmcnt(0)')
        self.tagchk('v10', [f'v{176+4*k+o}' for k in range(11) for o in (1, 3)])
        self.poll_end(l, 10, self.cfg['sleepF'], 'v10')
        self.ts('f_got')
        for k in range(1, 11):
            a(f'v_add_f32 v176, v176, v{176+4*k}\nv_add_f32 v178, v178, v{178+4*k}')
        self.srd(SA, P_OUT, 4096)
        a(f'''
        v_mov_b32 v150, v176
        v_mov_b32 v151, v178
        v_permlane32_swap_b32 v176, v150
        v_permlane32_swap_b32 v178, v151
        v_add_f32 v176, v176, v150
        v_add_f32 v178, v178, v151
        v_fmac_f32 v146, v148, v176
        v_fmac_f32 v147, v149, v178
        v_cvt_pk_bf16_f32 v146, v146, v147
        s_mov_b32 exec_hi, 0
        buffer_store_dword v146, v6, {SA}, {sR2} offen
        s_mov_b64 exec, -1
        ''')
        self.ts('out_st')

    def epoch_update(self):
        a = self.a
        self.d_flag(0)
        a(f's_cmp_lg_u32 {sW}, 0\ns_cbranch_scc1 L_exit')
        a(f'''
        v_and_b32 v5, 7, {vL}
        v_lshlrev_b32 v5, 15, v5
        s_mov_b32 {sT0}, {WS_E}
        ''')
        l = self.poll_begin()
        a(f'buffer_load_dwordx2 v[6:7], v5, {WS}, {sT0} offen sc1\ns_waitcnt vmcnt(0)')
        self.tagchk('v8', ['v7'])
        self.poll_end(l, 11, 8, 'v8')
        a(f'''
        s_add_u32 {sT0}, {sEP}, 1
        v_mov_b32 v6, {sT0}
        v_mov_b32 v5, 0
        s_mov_b64 exec, 1
        buffer_store_dword v6, v5, {WS}, 0 offen sc1
        s_mov_b64 exec, -1
        ''')

    def build(self):
        a = self.a
        self.prologue()
        a(f's_cmp_lt_u32 {sI}, 16\ns_cbranch_scc1 L_qpre')
        self.p_pre()
        a('s_branch L_att\nL_qpre:')
        self.q_pre()
        a('L_att:')
        self.stop_at('pre')
        self.attention_with_hook()
        self.stop_at('att')
        a(f's_cmp_lt_u32 {sI}, 16\ns_cbranch_scc1 L_qpost')
        self.p_post()
        a('s_branch L_exit\nL_qpost:')
        a(f'''
        s_lshr_b32 {sT0}, {sI}, 2
        s_and_b32 {sR0}, {sI}, 3
        s_cmp_eq_u32 {sT0}, 3
        s_cbranch_scc1 L_final
        s_lshl_b32 {sR1}, {sT0}, 3
        s_add_u32 {sR1}, {sR1}, {sX}
        s_cmp_ge_u32 {sR1}, 22
        s_cbranch_scc1 L_idle
        ''')
        self.ffn()
        a('s_branch L_exit\nL_final:')
        self.final()
        a('s_branch L_exit\nL_idle:')
        a(f's_cmp_eq_u32 s2, {7 + 8*11}\ns_cbranch_scc1 L_upd')
        self.d_flag(0)
        a('s_branch L_exit\nL_upd:')
        self.epoch_update()
        a('s_branch L_exit')
        for code in self.failsites:
            a(f'''
            L_fail_{code}:
            s_mov_b32 {sT0}, {code}
            s_branch L_fail
            ''')
        a(f'''
        L_fail:
        s_mov_b32 s12, s{P_DBG}
        s_mov_b32 s13, s{P_DBG+1}
        s_mov_b32 s14, 256
        s_mov_b32 s15, 0x00020000
        s_mov_b64 exec, 1
        s_lshl_b32 {sT1}, {sT0}, 2
        v_mov_b32 v5, {sT1}
        v_mov_b32 v6, s2
        v_add_u32 v6, 1000, v6
        buffer_store_dword v6, v5, s[12:15], 0 offen
        s_mov_b64 exec, -1
        L_exit:
        ''')
        if self.cfg['ts']:
            n = len(TSREG)
            sk = a.label('nots')
            a(f's_cmp_lg_u32 {sW}, {self.cfg.get("tswave",0)}\ns_cbranch_scc1 {sk}')
            a(f's_waitcnt lgkmcnt(0)\ns_mov_b64 exec, 1\ns_lshl_b32 {sT0}, s2, 6\ns_add_u32 {sT0}, {sT0}, {WS_TS}\nv_mov_b32 v5, 0')
            for k in range(n):
                a(f'v_mov_b32 v6, s{TSREG[k]}\nbuffer_store_dword v6, v5, {WS}, {sT0} offen offset:{4*k}')
            a(f'{sk}:')
        a('s_waitcnt vmcnt(0) lgkmcnt(0)\nL_end:\ns_endpgm')
        body = a.finish()
        return body

    def attention_with_hook(self):
        a = self.a
        orig_ts = self.ts
        def ts_hook(name):
            orig_ts(name)
            if name == 'c_got':
                sk = a.label('nouv')
                a(f's_cmp_lt_u32 {sI}, 16\ns_cbranch_scc1 {sk}')
                self.p_wuv_issue()
                a(f'{sk}:')
        self.ts = ts_hook
        self.attention()
        self.ts = orig_ts

HEADER = open('adaLN_cond__compressed_kv_cla__dense_activation_relu__decode.s.ref').read().split('; Override launch')[0]

def generate(cfg):
    g = Gen(cfg)
    if g.cfg['ts']:
        pass
    body = g.build()
    init = ''
    if g.cfg['ts']:
        init = ''.join(f'    s_mov_b32 s{r}, 0\n' for r in TSREG[:12])
    txt = HEADER + f'''; @launch grid=(256,1,1) block=(512,1,1) lds={LDS_BYTES}
.amdgcn_target "amdgcn-amd-amdhsa--gfx950"
.text
.globl {KNAME}
.p2align 8
.type {KNAME},@function
{KNAME}:
{init}{body}.section .rodata,"a"
.p2align 6
.amdhsa_kernel {KNAME}
  .amdhsa_next_free_vgpr 256
  .amdhsa_next_free_sgpr 102
  .amdhsa_accum_offset 256
  .amdhsa_group_segment_fixed_size 0
  .amdhsa_kernarg_size 112
  .amdhsa_user_sgpr_count 2
  .amdhsa_user_sgpr_kernarg_segment_ptr 1
  .amdhsa_system_sgpr_workgroup_id_x 1
.end_amdhsa_kernel
'''
    return txt, g

if __name__ == '__main__':
    cfg = json.loads(sys.argv[2]) if len(sys.argv) > 2 else {}
    txt, g = generate(cfg)
    open(sys.argv[1], 'w').write(txt)
    json.dump(dict(ts=g.tsnames, slot=TSSLOT), open(sys.argv[1] + '.json', 'w'))
    print('written', sys.argv[1], 'lines', txt.count('\n'), 'nops padded', g.a.npad, 'stamps', g.tsnames)
```

```python
import sys, json
from asmlib import Asm

KNAME = 'adaLN_cond__compressed_kv_cla__dense_activation_relu__decode_kernel'

CFG = dict(ts=False, nt=True, limit=20000, stop=None, sleepC=2, sleepE=2, sleepD=1, sleepF=1, sleepA=1)

WS_EPOCH = 0
WS_H  = 0x1000
WS_MR = 0x4000
WS_Q  = 0x10000
WS_FL = 0x50000
WS_E  = 0x60000
WS_F  = 0xA0000
WS_D  = 0x100000
WS_TS = 0x600000
WS_SIZE = 0x700000
SM   = 131072
QT   = SM
RED  = SM
PT   = SM + 16384
WL   = PT
MX   = SM + 20480
LS   = SM + 20992
SV   = SM + 21504
QB   = SM + 25856
OB   = SM + 27136
RED2 = SM + 28160
LDS_BYTES = 163840
SVS = 1088
QBS = 320

TAGMUL = 0x9E3779B1
SCALE = (128 ** -0.5) * 1.4426950408889634
LOG2E = 1.4426950408889634

def fhex(x):
    import struct
    return '0x%08x' % struct.unpack('<I', struct.pack('<f', x))[0]

sX, sI, sW, sTAG, sEP = 's3', 's4', 's5', 's6', 's7'
WS = 's[8:11]'; SA = 's[12:15]'; SB = 's[44:47]'; SC = 's[48:51]'
P_X, P_CKV, P_WQ, P_WUK, P_WUV, P_WO, P_W1, P_W2, P_C, P_WMOD, P_OUT, P_DBG, P_WS = 16, 18, 20, 22, 24, 26, 30, 32, 34, 36, 38, 40, 42
sWB = 's52'
sT0, sT1, sT2, sT3 = 's53', 's54', 's55', 's56'
sPLO, sPHI = 's57', 's58'
sCNT = 's59'
mT4 = 's[60:61]'
mTMP = 's[62:63]'
sCH, sBA, sS, sHH = 's64', 's65', 's66', 's67'
sR0, sR1, sR2, sR3 = 's68', 's69', 's70', 's71'
TSREG = [72,74,76,78,80,82,84,86,88,90,92,94,28,0]
TSSLOT = dict(start=0, hp_loaded=1, hp_pub=2, wq_landed=1, h_got=2, q_pub=3, c_trig=4, c_got=5, b1=6, b3=7, d_st=8, d_flag=9,
              dfl_got=10, d_got=11, e_pub=12, e_trig=10, e_got=11, f_pub=12, mr_pub=10, fe_got=11, f_got=12, out_st=13)
vTID, vL, vG, vT, vB4 = 'v0', 'v1', 'v2', 'v3', 'v4'

def vr(a, n=1):
    return f'v{a}' if n == 1 else f'v[{a}:{a+n-1}]'

class Gen:
    def __init__(self, cfg):
        self.cfg = dict(CFG); self.cfg.update(cfg)
        self.a = Asm()
        self.nts = 0
        self.tsnames = []
        self.failsites = []
    def ts(self, name):
        if not self.cfg['ts']: return
        r = TSREG[TSSLOT[name]]
        if name not in self.tsnames: self.tsnames.append(name)
        self.a(f's_memrealtime s[{r}:{r+1}]')
    def srd(self, quad, ptr, size):
        q = int(quad[2:quad.index(':')])
        self.a(f's_mov_b32 s{q}, s{ptr}\ns_mov_b32 s{q+1}, s{ptr+1}\ns_mov_b32 s{q+2}, {size}\ns_mov_b32 s{q+3}, 0x00020000')
    def nt(self):
        return ' nt' if self.cfg['nt'] else ''
    def poll_begin(self):
        l = self.a.label('poll')
        self.a(f's_mov_b32 {sCNT}, {self.cfg["limit"]}\n{l}:')
        return l
    def poll_end(self, l, code, sleep, vacc):
        a = self.a
        ok = a.label('ok')
        fl = f'L_fail_{code}'
        if code not in self.failsites: self.failsites.append(code)
        a(f'v_cmp_ne_u32 vcc, 0, {vacc}')
        a(f's_cbranch_vccz {ok}')
        a(f's_sub_u32 {sCNT}, {sCNT}, 1')
        a(f's_cbranch_scc1 {fl}')
        if sleep: a(f's_sleep {sleep}')
        a(f's_branch {l}')
        a(f'{ok}:')
    def tagchk(self, vacc, regs, first=True):
        a = self.a
        for k, r in enumerate(regs):
            if k == 0 and first: a(f'v_xor_b32 {vacc}, {sTAG}, {r}')
            else: a(f'v_bitop3_b32 {vacc}, {vacc}, {r}, {sTAG} bitop3:0xf6')
    def allsum(self, regs, tmp, op='v_add_f32'):
        a = self.a
        for n in (8, 4, 2, 1):
            for r in regs: a(f'{op}_dpp {r}, {r}, {r} row_ror:{n} row_mask:0xf bank_mask:0xf')
        self.crossrow(regs, tmp, op)
    def crossrow(self, regs, tmp, op):
        a = self.a
        for sw in ('v_permlane16_swap_b32', 'v_permlane32_swap_b32'):
            for r, t in zip(regs, tmp): a(f'v_mov_b32 {t}, {r}')
            for r, t in zip(regs, tmp): a(f'{sw} {r}, {t}')
            for r, t in zip(regs, tmp): a(f'{op} {r}, {r}, {t}')
    def stop_at(self, name):
        if self.cfg['stop'] == name:
            self.a('s_branch L_exit')

    def prologue(self):
        a = self.a
        a(f'''
        s_cmp_ge_u32 s2, 256
        s_cbranch_scc1 L_end
        s_load_dwordx16 s[16:31], s[0:1], 0
        s_load_dwordx8 s[32:39], s[0:1], 64
        s_load_dwordx4 s[40:43], s[0:1], 96
        ''')
        self.ts('start')
        a(f'''
        v_lshrrev_b32 v5, 6, v0
        v_and_b32 {vL}, 63, v0
        v_readfirstlane_b32 {sW}, v5
        v_lshrrev_b32 {vG}, 4, {vL}
        v_and_b32 {vT}, 15, {vL}
        v_and_b32 {vB4}, 3, {vL}
        s_and_b32 {sX}, s2, 7
        s_lshr_b32 {sI}, s2, 3
        s_lshl_b32 {sWB}, {sW}, 14
        s_mov_b32 {sPLO}, 0x05040100
        s_mov_b32 {sPHI}, 0x07060302
        s_mov_b32 s60, 0x000f000f
        s_mov_b32 s61, 0x000f000f
        s_lshl_b32 {sCH}, {sX}, 4
        s_lshr_b32 {sT0}, {sI}, 1
        s_add_u32 {sCH}, {sCH}, {sT0}
        s_lshr_b32 {sBA}, {sCH}, 5
        s_and_b32 {sS}, {sCH}, 31
        s_and_b32 {sHH}, {sI}, 1
        s_lshl_b32 {sCH}, {sCH}, 17
        s_waitcnt lgkmcnt(0)
        s_load_dword {sEP}, s[{P_WS}:{P_WS+1}], 0
        ''')
        self.srd(WS, P_WS, WS_SIZE)
    def tag(self):
        a = self.a
        a(f'''
        s_waitcnt lgkmcnt(0)
        s_add_u32 {sTAG}, {sEP}, 1
        s_mul_i32 {sTAG}, {sTAG}, {TAGMUL:#x}
        s_add_u32 {sTAG}, {sTAG}, 0x7f4a7c15
        ''')
        if self.cfg.get('dbgtag'): self.ts('c_trig')

    def dma(self, srd, voffs, n, soff0, soff_step, lds0, lds_step=1024, sreg=sT0, mreg=sT1):
        a = self.a
        for k in range(n):
            a(f's_mov_b32 m0, {mreg}')
            if k < n - 1: a(f's_add_u32 {mreg}, {mreg}, {lds_step}')
            else: a('s_nop 0')
            a(f'buffer_load_dwordx4 {voffs[k % len(voffs)]}, {srd}, {sreg} offen{self.nt()} lds')
            if k < n - 1: a(f's_add_u32 {sreg}, {sreg}, {soff_step}')

    def dma_ckv(self):
        a = self.a
        self.srd(SA, P_CKV, 16 << 20)
        a(f'v_lshlrev_b32 v6, 4, {vL}')
        for k in range(1, 8): a(f'v_xor_b32 v{6+k}, {k << 5}, v6')
        a(f's_add_u32 {sT0}, {sCH}, {sWB}')
        a(f's_mov_b32 {sT1}, {sWB}')
        for n in range(16):
            if n % 4 == 0:
                a(f's_mov_b32 m0, {sT1}')
                if n: a(f's_add_u32 {sT0}, {sT0}, 4096')
                a(f's_add_u32 {sT1}, {sT1}, 4096')
            off = f' offset:{(n & 3) * 1024}' if n & 3 else ''
            a(f'buffer_load_dwordx4 v{6 + (n & 7)}, {SA}, {sT0} offen{off}{self.nt()} lds')

    def dma128(self, srd, rowstride, n, lds_off, v=6):
        a = self.a
        a(f'''
        v_lshrrev_b32 v{v}, 3, {vL}
        v_mul_u32_u24 v{v}, {rowstride}, v{v}
        v_and_b32 v{v+1}, 7, {vL}
        v_lshlrev_b32 v{v+2}, 1, {vG}
        v_xor_b32 v{v+1}, v{v+1}, v{v+2}
        v_lshl_add_u32 v{v}, v{v+1}, 4, v{v}
        s_add_u32 {sT1}, {sWB}, {lds_off}
        ''')
        self.dma(srd, [f'v{v}'], n, None, rowstride * 8, None)

    def tr128_addr(self, v, lds_off=0):
        a = self.a
        a(f'''
        v_lshrrev_b32 v{v}, 2, {vT}
        v_lshl_add_u32 v{v}, {vG}, 2, v{v}          ; row = 4g + (t>>2)
        v_lshrrev_b32 v{v+1}, 1, v{v}
        v_and_b32 v{v+1}, 3, v{v+1}                 ; f
        v_lshlrev_b32 v{v+1}, 5, v{v+1}
        v_lshl_add_u32 v{v}, v{v}, 7, v{v+1}
        v_lshrrev_b32 v{v+1}, 1, {vB4}
        v_lshl_add_u32 v{v}, v{v+1}, 4, v{v}
        v_and_b32 v{v+1}, 1, {vB4}
        v_lshl_add_u32 v{v}, v{v+1}, 3, v{v}
        s_add_u32 {sT2}, {sWB}, {lds_off}
        v_add_u32 v{v}, {sT2}, v{v}
        ''')
        for ct in range(1, 4): a(f'v_xor_b32 v{v+ct}, {ct << 5}, v{v}')
        return [f'v{v+ct}' for ct in range(4)]

    def tr_reads(self, addrs, nks, rb, dst, base_off=0):
        a = self.a
        for ks in range(nks):
            for ct, ad in enumerate(addrs):
                d = dst + 4 * (ks * len(addrs) + ct)
                for hi in range(2):
                    off = base_off + (32 * ks + 16 * hi) * rb
                    a(f'ds_read_b64_tr_b16 {vr(d + 2*hi, 2)}, {ad} offset:{off}')

    def sel4(self, dst, srcs, masks):
        a = self.a
        a(f'v_cndmask_b32 {dst}, {srcs[0]}, {srcs[1]}, {masks[0]}')
        a(f'v_cndmask_b32 {dst}, {dst}, {srcs[2]}, {masks[1]}')
        a(f'v_cndmask_b32 {dst}, {dst}, {srcs[3]}, {masks[2]}')
    def masks_t(self):
        a = self.a
        for k, val in enumerate((0x22222222, 0x44444444, 0x88888888)):
            a(f's_mov_b32 s{self.M0+2*k}, {val:#x}\ns_mov_b32 s{self.M0+2*k+1}, {val:#x}')
        return [f's[{self.M0+2*k}:{self.M0+2*k+1}]' for k in range(3)]
    def masks_g(self):
        a = self.a
        vals = ((0xffff0000, 0), (0, 0x0000ffff), (0, 0xffff0000))
        for k, (lo, hi) in enumerate(vals):
            a(f's_mov_b32 s{self.M0+2*k}, {lo:#x}\ns_mov_b32 s{self.M0+2*k+1}, {hi:#x}')
        return [f's[{self.M0+2*k}:{self.M0+2*k+1}]' for k in range(3)]
    M0 = 96

    def silu_vec(self):
        a = self.a
        self.srd(SB, P_C, 4096)
        a(f'''
        v_lshlrev_b32 v16, 3, v0
        buffer_load_dwordx2 v[18:19], v16, {SB}, 0 offen
        v_lshrrev_b32 v20, 7, v0
        v_mul_u32_u24 v20, {SVS}, v20
        v_and_b32 v21, 127, v0
        v_lshrrev_b32 v21, 3, v21
        v_lshl_add_u32 v20, v21, 6, v20
        v_and_b32 v21, 3, v0
        v_lshl_add_u32 v20, v21, 4, v20
        v_lshrrev_b32 v21, 2, v0
        v_and_b32 v21, 1, v21
        v_lshl_add_u32 v20, v21, 3, v20
        v_add_u32 v20, {SV}, v20
        ''')
    def silu_vec2(self):
        a = self.a
        a(f'''
        v_lshlrev_b32 v22, 16, v18
        v_and_b32 v23, 0xffff0000, v18
        v_lshlrev_b32 v24, 16, v19
        v_and_b32 v25, 0xffff0000, v19
        ''')
        for r in range(22, 26): a(f'v_mul_f32 v{r+4}, {fhex(-LOG2E)}, v{r}')
        for r in range(22, 26): a(f'v_exp_f32 v{r+4}, v{r+4}')
        for r in range(22, 26): a(f'v_add_f32 v{r+4}, 1.0, v{r+4}')
        for r in range(22, 26): a(f'v_rcp_f32 v{r+4}, v{r+4}')
        for r in range(22, 26): a(f'v_mul_f32 v{r}, v{r}, v{r+4}')
        a('''
        v_cvt_pk_bf16_f32 v22, v22, v23
        v_cvt_pk_bf16_f32 v23, v24, v25
        ds_write_b64 v20, v[22:23]
        ''')
    def sv_frags(self, dst):
        a = self.a
        a(f'''
        v_mul_u32_u24 v5, {SVS}, {vB4}
        v_lshl_add_u32 v5, {vG}, 4, v5
        s_lshl_b32 {sT2}, {sW}, 7
        s_add_u32 {sT2}, {sT2}, {SV}
        v_add_u32 v5, {sT2}, v5
        ds_read_b128 {vr(dst,4)}, v5
        ds_read_b128 {vr(dst+4,4)}, v5 offset:64
        ''')

    def p_pre(self):
        a = self.a
        a('; ================= P pre')
        skip = a.label('nohp')
        a(f's_sub_u32 {sR0}, {sI}, 16')
        a(f's_cmp_ge_u32 {sR0}, 4')
        a(f's_cbranch_scc1 {skip}')
        a(f's_lshl_b32 {sR1}, {sX}, 2\ns_add_u32 {sR1}, {sR1}, {sR0}')
        self.srd(SA, P_WMOD, 512 * 6144)
        a(f'''
        v_lshrrev_b32 v6, 2, {vL}
        v_mul_u32_u24 v6, 6144, v6
        v_and_b32 v7, 1, {vG}
        v_lshlrev_b32 v7, 1, v7
        v_xor_b32 v7, v7, {vB4}
        v_and_b32 v8, 1, v7
        v_lshl_add_u32 v6, v8, 4, v6
        v_lshrrev_b32 v8, 1, v7
        v_lshl_add_u32 v6, v8, 10, v6
        s_mul_i32 {sT0}, {sW}, {64*6144}
        s_lshl_b32 {sT2}, {sR1}, 5
        s_add_u32 {sT0}, {sT0}, {sT2}
        s_mov_b32 {sT1}, {sWB}
        ''')
        self.dma(SA, ['v6'], 4, None, 16 * 6144, None)
        self.silu_vec()
        self.srd(SC, P_X, 4096)
        a(f'''
        s_and_b32 {sT2}, {sW}, 3
        s_lshl_b32 {sT3}, {sT2}, 10
        v_lshlrev_b32 v30, 4, {vL}
        buffer_load_dwordx4 v[32:35], v30, {SC}, {sT3} offen
        v_lshrrev_b32 v39, 3, {vL}
        v_and_b32 v39, 3, v39
        v_lshlrev_b32 v36, 10, v39
        v_and_b32 v37, 7, {vL}
        v_lshl_add_u32 v36, v37, 2, v36
        s_lshl_b32 {sT3}, {sR1}, 5
        buffer_load_dword v38, v36, {SC}, {sT3} offen
        ''')
        self.tag()
        a('s_waitcnt vmcnt(2)')
        self.silu_vec2()
        a('s_waitcnt vmcnt(1)')
        for k in range(4):
            a(f'v_lshlrev_b32 v{40+2*k}, 16, v{32+k}\nv_and_b32 v{41+2*k}, 0xffff0000, v{32+k}')
        a('v_add_f32 v48, v40, v41\nv_mul_f32 v49, v40, v40\nv_fmac_f32 v49, v41, v41')
        for k in range(42, 48):
            a(f'v_add_f32 v48, v48, v{k}\nv_fmac_f32 v49, v{k}, v{k}')
        self.allsum(['v48', 'v49'], ['v50', 'v51'])
        a(f'''
        v_mul_f32 v48, {fhex(1/512)}, v48
        v_mul_f32 v49, {fhex(1/512)}, v49
        v_fma_f32 v49, -v48, v48, v49
        v_max_f32 v49, 0, v49
        v_add_f32 v49, {fhex(1e-5)}, v49
        v_rsq_f32 v49, v49
        s_lshl_b32 {sT3}, {sT2}, 3
        s_add_u32 {sT3}, {sT3}, {LS}
        v_mov_b32 v50, {sT3}
        ds_write_b64 v50, v[48:49]
        s_waitcnt vmcnt(0) lgkmcnt(0)
        s_barrier
        ''')
        self.ts('hp_loaded')
        self.sv_frags(52)
        a(f'''
        v_lshrrev_b32 v6, 2, {vT}
        v_lshl_add_u32 v6, {vG}, 2, v6          ; row = 4g + (t>>2)
        v_lshlrev_b32 v6, 6, v6
        v_lshrrev_b32 v7, 1, {vB4}
        v_and_b32 v8, 1, {vG}
        v_lshlrev_b32 v8, 1, v8
        v_xor_b32 v7, v7, v8
        v_lshl_add_u32 v6, v7, 4, v6
        v_and_b32 v7, 1, {vB4}
        v_lshl_add_u32 v6, v7, 3, v6
        v_add_u32 v6, {sWB}, v6
        v_xor_b32 v7, 32, v6
        ''')
        self.tr_reads(['v6', 'v7'], 2, 64, 16)
        a('s_waitcnt lgkmcnt(0)')
        for ks in range(2):
            for ct in range(2):
                c = '0' if ks == 0 else vr(60 + 4*ct, 4)
                a(f'v_mfma_f32_16x16x32_bf16 {vr(60+4*ct,4)}, {vr(16+4*(ks*2+ct),4)}, {vr(52+4*ks,4)}, {c}')
        a(f'''
        s_lshl_b32 {sT2}, {sW}, 9
        s_add_u32 {sT2}, {sT2}, {RED}
        v_lshlrev_b32 v6, 6, {vT}
        v_lshl_add_u32 v6, {vG}, 4, v6
        v_add_u32 v6, {sT2}, v6
        s_mov_b64 exec, {mT4}
        ds_write_b128 v6, v[60:63]
        ds_write_b128 v6, v[64:67] offset:256
        s_mov_b64 exec, -1
        s_waitcnt lgkmcnt(0)
        s_barrier
        ''')
        fin = a.label('hpfin')
        a(f's_cmp_lg_u32 {sW}, 0\ns_cbranch_scc1 {fin}')
        a(f'''
        v_lshrrev_b32 v6, 5, {vL}
        v_lshlrev_b32 v6, 8, v6
        v_lshl_add_u32 v6, v39, 6, v6
        v_lshl_add_u32 v6, v37, 3, v6
        v_add_u32 v6, {RED}, v6
        v_lshlrev_b32 v7, 3, v39
        v_add_u32 v7, {LS}, v7
        ds_read_b64 v[32:33], v7
        ''')
        for ww in range(8): a(f'ds_read_b64 {vr(16+2*ww,2)}, v6 offset:{ww*512}')
        a('s_waitcnt lgkmcnt(0)')
        for ww in range(1, 8): a(f'v_add_f32 v16, v16, v{16+2*ww}\nv_add_f32 v17, v17, v{17+2*ww}')
        a(f'''
        v_mov_b32 v18, v16
        v_mov_b32 v19, v17
        v_permlane32_swap_b32 v16, v18
        v_permlane32_swap_b32 v17, v19
        v_lshlrev_b32 v20, 16, v38
        v_and_b32 v21, 0xffff0000, v38
        v_sub_f32 v20, v20, v32
        v_sub_f32 v21, v21, v32
        v_mul_f32 v20, v20, v33
        v_mul_f32 v21, v21, v33
        v_add_f32 v16, v16, v20
        v_add_f32 v17, v17, v21
        v_fmac_f32 v16, v20, v18
        v_fmac_f32 v17, v21, v19
        v_cvt_pk_bf16_f32 v22, v16, v17
        v_mov_b32 v23, {sTAG}
        v_lshlrev_b32 v24, 11, v39
        v_lshl_add_u32 v24, v37, 3, v24
        s_lshl_b32 {sT2}, {sR1}, 6
        s_add_u32 {sT2}, {sT2}, {WS_H}
        s_mov_b32 exec_hi, 0
        buffer_store_dwordx2 v[22:23], v24, {WS}, {sT2} offen sc1
        s_mov_b64 exec, -1
        {fin}:
        ''')
        self.ts('hp_pub')
        done = a.label('hpdone')
        a(f's_branch {done}')
        a(f'{skip}:')
        self.tag()
        a(f'{done}:')
        self.dma_ckv()
        a(f'''
        s_sub_u32 {sR0}, {sI}, 16
        s_lshr_b32 {sR1}, {sR0}, 2
        s_lshl_b32 {sT0}, {sX}, 2
        s_add_u32 {sR1}, {sR1}, {sT0}          ; hp
        s_and_b32 {sR0}, {sR0}, 3              ; bp
        ''')

    def q_pre(self):
        a = self.a
        a('; ================= Q pre')
        a(f'''
        s_lshr_b32 {sR1}, {sI}, 2
        s_lshl_b32 {sT0}, {sX}, 2
        s_add_u32 {sR1}, {sR1}, {sT0}          ; hq
        s_and_b32 {sR0}, {sI}, 3               ; cq
        ''')
        self.srd(SA, P_WQ, 4 << 20)
        a(f'''
        v_and_b32 v8, 15, {vL}
        v_lshlrev_b32 v9, 1, {vG}
        v_xor_b32 v10, v8, v9
        v_lshlrev_b32 v6, 13, {vG}
        v_lshl_add_u32 v7, v10, 4, v6
        v_xor_b32 v7, 128, v7
        v_lshl_add_u32 v6, v10, 4, v6
        s_lshl_b32 {sT0}, {sW}, 19             ; 64 rows * 8192
        s_lshl_b32 {sT2}, {sR1}, 8
        s_add_u32 {sT0}, {sT0}, {sT2}
        s_mov_b32 {sT1}, {sWB}
        ''')
        self.dma(SA, ['v6', 'v7'], 16, None, 32768, None)
        self.srd(SB, P_WUK, 4 << 20)
        a(f'''
        v_lshlrev_b32 v8, 13, {vT}
        v_lshl_add_u32 v8, {vG}, 4, v8
        s_lshl_b32 {sT0}, {sR0}, 20            ; 128*8192*cq
        s_lshl_b32 {sT1}, {sW}, 17             ; 16*8192*w
        s_add_u32 {sT0}, {sT0}, {sT1}
        s_add_u32 {sT0}, {sT0}, {sT2}
        ''')
        for st in range(4):
            off = f' offset:{st*64}' if st else ''
            a(f'buffer_load_dwordx4 {vr(112+4*st,4)}, v8, {SB}, {sT0} offen{off}{self.nt()}')
        self.tag()
        a(f'''
        v_lshrrev_b32 v8, 2, {vT}
        v_lshl_add_u32 v8, {vG}, 2, v8         ; row 0..15
        v_and_b32 v9, 7, v8
        v_lshlrev_b32 v9, 5, v9
        v_lshl_add_u32 v8, v8, 8, v9
        v_lshrrev_b32 v9, 1, {vB4}
        v_lshl_add_u32 v8, v9, 4, v8
        v_and_b32 v9, 1, {vB4}
        v_lshl_add_u32 v8, v9, 3, v8
        v_add_u32 v8, {sWB}, v8
        ''')
        for ct in range(1, 8): a(f'v_xor_b32 v{8+ct}, {ct << 5}, v8')
        a(f'''
        v_lshlrev_b32 v152, 11, {vB4}
        v_lshl_add_u32 v152, {vG}, 4, v152
        s_lshl_b32 {sT3}, {sW}, 8
        s_add_u32 {sT3}, {sT3}, {WS_H}
        s_waitcnt vmcnt(4)
        ''')
        self.ts('wq_landed')
        self.tr_reads([f'v{8+ct}' for ct in range(8)], 2, 256, 16)
        l = self.poll_begin()
        for k in range(4):
            off = f' offset:{k*64}' if k else ''
            a(f'buffer_load_dwordx4 {vr(128+4*k,4)}, v152, {WS}, {sT3} offen{off} sc1')
        a('s_waitcnt vmcnt(0)')
        self.tagchk('v153', [f'v{128+4*k+o}' for k in range(4) for o in (1, 3)])
        self.poll_end(l, 1, self.cfg['sleepA'], 'v153')
        self.ts('h_got')
        for ks in range(2):
            a(f'''
            v_mov_b32 v{144+4*ks}, v{128+8*ks}
            v_mov_b32 v{145+4*ks}, v{130+8*ks}
            v_mov_b32 v{146+4*ks}, v{132+8*ks}
            v_mov_b32 v{147+4*ks}, v{134+8*ks}
            ''')
        a('s_waitcnt lgkmcnt(0)')
        self.dma_ckv()
        for ks in range(2):
            for ct in range(8):
                c = '0' if ks == 0 else vr(80 + 4*ct, 4)
                a(f'v_mfma_f32_16x16x32_bf16 {vr(80+4*ct,4)}, {vr(16+4*(ks*8+ct),4)}, {vr(144+4*ks,4)}, {c}')
        a(f'''
        s_lshl_b32 {sT2}, {sW}, 11
        s_add_u32 {sT2}, {sT2}, {RED}
        v_lshlrev_b32 v5, 6, {vG}
        v_lshl_add_u32 v5, {vT}, 4, v5
        v_add_u32 v5, {sT2}, v5
        s_mov_b64 exec, {mT4}
        ''')
        for ct in range(8): a(f'ds_write_b128 v5, {vr(80+4*ct,4)} offset:{ct*256}')
        a(f'''
        s_mov_b64 exec, -1
        v_lshlrev_b32 v5, 2, v0
        v_add_u32 v5, {RED}, v5
        s_waitcnt lgkmcnt(0)
        s_barrier
        ''')
        for ww in range(8): a(f'ds_read_b32 v{128+ww}, v5 offset:{ww*2048}')
        a(f'''
        v_lshrrev_b32 v154, 2, {vL}
        v_and_b32 v154, 3, v154
        v_mul_u32_u24 v154, {QBS}, v154
        v_lshl_add_u32 v154, {vG}, 3, v154
        v_lshl_add_u32 v154, {vB4}, 1, v154
        s_lshl_b32 {sT2}, {sW}, 5
        s_add_u32 {sT2}, {sT2}, {QB}
        v_add_u32 v154, {sT2}, v154
        v_mul_u32_u24 v155, {QBS}, {vB4}
        v_lshl_add_u32 v155, {vG}, 4, v155
        v_add_u32 v155, {QB}, v155
        s_waitcnt lgkmcnt(0)
        v_add_f32 v128, v128, v129
        v_add_f32 v130, v130, v131
        v_add_f32 v132, v132, v133
        v_add_f32 v134, v134, v135
        v_add_f32 v128, v128, v130
        v_add_f32 v132, v132, v134
        v_add_f32 v128, v128, v132
        v_cvt_pk_bf16_f32 v128, v128, v128
        ds_write_b16 v154, v128
        s_waitcnt lgkmcnt(0)
        s_barrier
        ''')
        for st in range(4): a(f'ds_read_b128 {vr(128+4*st,4)}, v155 offset:{st*64}')
        a('s_waitcnt lgkmcnt(0)')
        for st in range(4):
            c = '0' if st == 0 else 'v[144:147]'
            a(f'v_mfma_f32_16x16x32_bf16 v[144:147], {vr(112+4*st,4)}, {vr(128+4*st,4)}, {c}')
        a(f'''
        v_lshlrev_b32 v5, 16, {vB4}
        v_lshl_add_u32 v5, {vG}, 4, v5
        s_lshl_b32 {sT0}, {sR1}, 11
        s_lshl_b32 {sT1}, {sR0}, 9
        s_add_u32 {sT0}, {sT0}, {sT1}
        s_lshl_b32 {sT1}, {sW}, 6
        s_add_u32 {sT0}, {sT0}, {sT1}
        s_add_u32 {sT0}, {sT0}, {WS_Q}
        s_mov_b32 {sT1}, {fhex(SCALE)}
        v_mul_f32 v144, {sT1}, v144
        v_mul_f32 v145, {sT1}, v145
        v_mul_f32 v146, {sT1}, v146
        v_mul_f32 v147, {sT1}, v147
        v_cvt_pk_bf16_f32 v148, v144, v145
        v_mov_b32 v149, {sTAG}
        v_cvt_pk_bf16_f32 v150, v146, v147
        v_mov_b32 v151, {sTAG}
        s_mov_b64 exec, {mT4}
        buffer_store_dwordx4 v[148:151], v5, {WS}, {sT0} offen sc1
        s_mov_b64 exec, -1
        ''')
        self.ts('q_pub')

    def attention(self):
        a = self.a
        a('; ================= attention')
        a(f'''
        v_and_b32 v5, 7, {vT}
        v_lshlrev_b32 v5, 5, v5                ; sw5
        v_lshlrev_b32 v244, 4, {vG}
        v_xor_b32 v244, v244, v5
        v_lshl_add_u32 v244, {vT}, 10, v244    ; rel(0)
        v_xor_b32 v245, 64, v244
        v_xor_b32 v246, 128, v244
        v_xor_b32 v247, 192, v244
        v_add_u32 v248, {QT}, v244
        v_add_u32 v249, {QT}, v245
        v_add_u32 v250, {QT}, v246
        v_add_u32 v251, {QT}, v247
        v_add_u32 v244, {sWB}, v244
        v_add_u32 v245, {sWB}, v245
        v_add_u32 v246, {sWB}, v246
        v_add_u32 v247, {sWB}, v247
        ''')
        a(f'''
        s_lshl_b32 {sT0}, {sBA}, 16
        s_lshl_b32 {sT1}, {sHH}, 15
        s_add_u32 {sT0}, {sT0}, {sT1}
        s_add_u32 {sR2}, {sT0}, {WS_Q}
        v_lshlrev_b32 v252, 4, v0
        ''')
        a(f'''
        v_lshrrev_b32 v253, 2, {vL}
        v_lshlrev_b32 v253, 11, v253
        v_lshl_add_u32 v253, {vB4}, 9, v253
        v_add_u32 v253, 504, v253
        ''')
        if self.cfg.get('ctrig', True):
            l = self.poll_begin()
            a(f'buffer_load_dwordx2 v[176:177], v253, {WS}, {sR2} offen sc1')
            a('s_waitcnt vmcnt(0)')
            self.tagchk('v254', ['v177'])
            self.poll_end(l, 2, self.cfg['sleepC'], 'v254')
        self.ts('c_trig')
        a(f's_add_u32 {sT1}, {sR2}, 8192\ns_add_u32 {sT2}, {sR2}, 16384\ns_add_u32 {sT3}, {sR2}, 24576')
        l = self.poll_begin()
        for n, so in enumerate((sR2, sT1, sT2, sT3)):
            a(f'buffer_load_dwordx4 {vr(176+4*n,4)}, v252, {WS}, {so} offen sc1')
        a('s_waitcnt vmcnt(0)')
        self.tagchk('v254', [f'v{176+4*n+o}' for n in range(4) for o in (1, 3)])
        self.poll_end(l, 3, 1, 'v254')
        self.ts('c_got')
        for st in range(16):
            a(f'ds_read_b128 {vr(16+4*st,4)}, v{244+(st&3)} offset:{(st>>2)*256}')
        a(f'''
        s_lshr_b32 {sT0}, {sW}, 1
        v_and_b32 v253, 127, v0
        v_lshrrev_b32 v254, 1, v253
        s_lshl_b32 {sT1}, {sT0}, 1
        v_xor_b32 v254, {sT1}, v254
        v_lshlrev_b32 v254, 4, v254
        v_and_b32 v253, 1, v253
        v_lshl_add_u32 v254, v253, 3, v254
        s_lshl_b32 {sT1}, {sT0}, 10
        s_add_u32 {sT1}, {sT1}, {QT}
        v_add_u32 v254, {sT1}, v254
        v_xor_b32 v253, 128, v254
        v_mov_b32 v177, v178
        v_mov_b32 v181, v182
        v_mov_b32 v185, v186
        v_mov_b32 v189, v190
        ds_write_b64 v254, v[176:177]
        ds_write_b64 v253, v[180:181] offset:4096
        ds_write_b64 v254, v[184:185] offset:8192
        ds_write_b64 v253, v[188:189] offset:12288
        s_waitcnt lgkmcnt(0)
        s_barrier
        ''')
        self.ts('b1')
        NB = 8
        for st in range(NB): a(f'ds_read_b128 {vr(196+4*st,4)}, v{248+(st&3)} offset:{(st>>2)*256}')
        for st in range(16):
            outstanding = min(16, st + NB) - st
            a(f's_waitcnt lgkmcnt({outstanding-1})')
            c = '0' if st == 0 else 'v[192:195]'
            a(f'v_mfma_f32_16x16x32_bf16 v[192:195], {vr(16+4*st,4)}, {vr(196+4*(st%NB),4)}, {c}')
            if st + NB < 16:
                s2 = st + NB
                a(f'ds_read_b128 {vr(196+4*(s2%NB),4)}, v{248+(s2&3)} offset:{(s2>>2)*256}')
        a(f'''
        v_lshrrev_b32 v244, 2, {vT}
        v_lshl_add_u32 v244, {vG}, 2, v244     ; key_l
        v_and_b32 v245, 7, v244
        v_lshlrev_b32 v245, 5, v245
        s_lshl_b32 {sT0}, {sW}, 7
        v_lshl_add_u32 v246, {vB4}, 4, {sT0}
        v_xor_b32 v245, v245, v246
        v_lshl_add_u32 v244, v244, 10, v245
        v_lshrrev_b32 v245, 1, {vB4}
        v_lshl_add_u32 v244, v245, 3, v244     ; pp=0,T=0
        v_xor_b32 v245, 8, v244                ; pp=0,T=1
        v_xor_b32 v246, 64, v244               ; pp=1,T=0
        v_xor_b32 v247, 72, v244               ; pp=1,T=1
        ''')
        a(f'''
        v_max_f32 v228, v192, v193
        v_max3_f32 v228, v228, v194, v195
        ''')
        self.crossrow(['v228'], ['v229'], 'v_max_f32')
        a(f'''
        v_lshlrev_b32 v230, 5, {vT}
        s_lshl_b32 {sT0}, {sW}, 2
        s_add_u32 {sT1}, {sT0}, {MX}
        v_add_u32 v231, {sT1}, v230
        ds_write_b32 v231, v228
        v_add_u32 v232, {MX}, v230
        s_waitcnt lgkmcnt(0)
        s_barrier
        ds_read_b128 v[236:239], v232
        ds_read_b128 v[240:243], v232 offset:16
        ''')
        def pva(ks):
            for pp in range(2):
                for T in range(2):
                    d = 16 + 4 * ((ks * 2 + pp) * 2 + T)
                    for hi in range(2):
                        off = (ks & 1) * 32768 + hi * 16384
                        a(f'ds_read_b64_tr_b16 {vr(d+2*hi,2)}, v{244+2*pp+T} offset:{off}')
        pva(0); pva(1)
        for k in range(4): a(f'v_add_u32 v{244+k}, 0x10000, v{244+k}')
        a('s_waitcnt lgkmcnt(15)')
        pva(2); pva(3)
        a(f'''
        v_max3_f32 v236, v236, v237, v238
        v_max3_f32 v240, v240, v241, v242
        v_max3_f32 v228, v236, v239, v240
        v_max_f32 v228, v228, v243             ; M
        v_sub_f32 v192, v192, v228
        v_sub_f32 v193, v193, v228
        v_sub_f32 v194, v194, v228
        v_sub_f32 v195, v195, v228
        v_exp_f32 v192, v192
        v_exp_f32 v193, v193
        v_exp_f32 v194, v194
        v_exp_f32 v195, v195
        v_add_f32 v229, v192, v193
        v_add_f32 v230, v194, v195
        v_cvt_pk_bf16_f32 v234, v192, v193
        v_cvt_pk_bf16_f32 v235, v194, v195
        v_add_f32 v229, v229, v230
        s_lshr_b32 {sT1}, {sW}, 1
        s_lshl_b32 {sT1}, {sT1}, 10
        s_and_b32 {sT2}, {sW}, 1
        s_lshl_b32 {sT2}, {sT2}, 3
        s_add_u32 {sT1}, {sT1}, {sT2}
        s_add_u32 {sT1}, {sT1}, {PT}
        v_lshl_add_u32 v233, {vL}, 4, {sT1}
        ds_write_b64 v233, v[234:235]
        ''')
        self.crossrow(['v229'], ['v230'], 'v_add_f32')
        a(f'''
        v_lshlrev_b32 v230, 5, {vT}
        s_add_u32 {sT1}, {sT0}, {LS}
        v_add_u32 v231, {sT1}, v230
        ds_write_b32 v231, v229
        v_add_u32 v232, {LS}, v230
        v_lshlrev_b32 v233, 4, {vL}
        v_add_u32 v233, {PT}, v233
        s_waitcnt lgkmcnt(0)
        s_barrier
        ''')
        self.ts('b3')
        for ks in range(4): a(f'ds_read_b128 {vr(196+4*ks,4)}, v233 offset:{ks*1024}')
        a('ds_read_b128 v[236:239], v232\nds_read_b128 v[240:243], v232 offset:16')
        for ks in range(4):
            a(f's_waitcnt lgkmcnt({5-ks})')
            for pp in range(2):
                for T in range(2):
                    acc = vr(212 + 4 * (pp * 2 + T), 4)
                    c = '0' if ks == 0 else acc
                    a(f'v_mfma_f32_16x16x32_bf16 {acc}, {vr(16+4*((ks*2+pp)*2+T),4)}, {vr(196+4*ks,4)}, {c}')
        a(f'''
        s_waitcnt lgkmcnt(0)
        v_add_f32 v236, v236, v237
        v_add_f32 v238, v238, v239
        v_add_f32 v240, v240, v241
        v_add_f32 v242, v242, v243
        v_add_f32 v236, v236, v238
        v_add_f32 v240, v240, v242
        v_add_f32 v236, v236, v240             ; l
        v_rcp_f32 v237, v236
        v_log_f32 v238, v236
        v_lshlrev_b32 v5, 15, {vT}
        v_lshl_add_u32 v5, {vG}, 4, v5
        s_lshl_b32 {sT0}, {sBA}, 5
        s_lshl_b32 {sT1}, {sHH}, 4
        s_add_u32 {sT0}, {sT0}, {sT1}
        s_lshl_b32 {sT1}, {sT0}, 5
        s_add_u32 {sT1}, {sT1}, {sS}
        s_lshl_b32 {sT1}, {sT1}, 10
        s_lshl_b32 {sT2}, {sW}, 7
        s_add_u32 {sT1}, {sT1}, {sT2}
        s_add_u32 {sT1}, {sT1}, {WS_D}
        v_add_f32 v238, v228, v238             ; lse
        v_mov_b32 v239, {sTAG}
        ''')
        for k in range(16): a(f'v_mul_f32 v{212+k}, v237, v{212+k}')
        for pp in range(2):
            b = 212 + 8 * pp
            a(f'''
            v_cvt_pk_bf16_f32 v{196+4*pp}, v{b}, v{b+1}
            v_cvt_pk_bf16_f32 v{197+4*pp}, v{b+2}, v{b+3}
            v_cvt_pk_bf16_f32 v{198+4*pp}, v{b+4}, v{b+5}
            v_cvt_pk_bf16_f32 v{199+4*pp}, v{b+6}, v{b+7}
            ''')
            off = ' offset:64' if pp else ''
            a(f'buffer_store_dwordx4 {vr(196+4*pp,4)}, v5, {WS}, {sT1} offen{off} sc1')
        self.ts('d_st')
        a(f'''
        s_lshl_b32 {sR2}, {sT0}, 8
        s_lshl_b32 {sT1}, {sS}, 3
        s_add_u32 {sR2}, {sR2}, {sT1}
        s_add_u32 {sR2}, {sR2}, {WS_FL}
        v_lshlrev_b32 v240, 8, {vT}
        ''')
    def d_flag(self, pending):
        a = self.a
        sk = a.label('nofl')
        a(f'''
        s_waitcnt vmcnt({pending})
        s_barrier
        s_cmp_lg_u32 {sW}, 0
        s_cbranch_scc1 {sk}
        s_mov_b64 exec, 0xffff
        buffer_store_dwordx2 v[238:239], v240, {WS}, {sR2} offen sc1
        s_mov_b64 exec, -1
        {sk}:
        ''')
        self.ts('d_flag')

    def p_wuv_issue(self):
        a = self.a
        self.srd(SB, P_WUV, 4 << 20)
        a(f'''
        v_lshlrev_b32 v5, 16, {vG}
        v_lshl_add_u32 v5, {vT}, 4, v5
        s_lshl_b32 {sT0}, {sW}, 19
        s_lshl_b32 {sT1}, {sR1}, 8
        s_add_u32 {sT0}, {sT0}, {sT1}
        ''')
        for k in range(2):
            for e in range(8):
                a(f'buffer_load_dwordx4 {vr(112+32*k+4*e,4)}, v5, {SB}, {sT0} offen{self.nt()}')
                if e < 7: a(f's_add_u32 {sT0}, {sT0}, 8192')
            if k == 0: a(f's_add_u32 {sT0}, {sT0}, {8192*25}')
    def perm_unit(self, src, dst):
        a = self.a
        for q in range(4):
            for p in range(4):
                X = src + 8*q + p; Y = src + 8*q + 4 + p
                a(f'v_perm_b32 v{dst+8*p+q}, v{Y}, v{X}, {sPLO}')
                a(f'v_perm_b32 v{dst+8*p+4+q}, v{Y}, v{X}, {sPHI}')
    def p_post(self):
        a = self.a
        a('; ================= P post')
        self.srd(SA, P_WO, 4 << 20)
        a(f'''
        s_lshl_b32 {sT0}, {sR1}, 17
        s_lshl_b32 {sT2}, {sW}, 7
        s_add_u32 {sT0}, {sT0}, {sT2}
        ''')
        self.dma128(SA, 1024, 16, 0)
        self.d_flag(16)
        self.perm_unit(112, 80)
        self.perm_unit(144, 112)
        a(f'''
        s_lshl_b32 {sT0}, {sR0}, 5
        s_add_u32 {sT0}, {sT0}, {sR1}
        s_lshl_b32 {sT1}, {sT0}, 8
        s_lshl_b32 {sT2}, {sW}, 5
        s_add_u32 {sT1}, {sT1}, {sT2}
        s_add_u32 {sT1}, {sT1}, {WS_FL}
        v_lshlrev_b32 v5, 3, {vB4}
        s_lshl_b32 {sT2}, {sT0}, 15
        s_lshl_b32 {sT3}, {sW}, 12
        s_add_u32 {sT2}, {sT2}, {sT3}
        s_add_u32 {sT2}, {sT2}, {WS_D}
        v_lshlrev_b32 v6, 4, {vL}
        ''')
        l = self.poll_begin()
        a(f'buffer_load_dwordx2 v[176:177], v5, {WS}, {sT1} offen sc1')
        a('s_waitcnt vmcnt(0)')
        self.tagchk('v178', ['v177'])
        self.poll_end(l, 4, self.cfg['sleepD'], 'v178')
        self.ts('dfl_got')
        for k in range(4):
            off = f' offset:{k*1024}' if k else ''
            a(f'buffer_load_dwordx4 {vr(180+4*k,4)}, v6, {WS}, {sT2} offen{off} sc1')
        ad = self.tr128_addr(8)
        self.tr_reads(ad, 4, 128, 16)
        a(f'''
        v_max_f32_dpp v178, v176, v176 quad_perm:[1,0,3,2] row_mask:0xf bank_mask:0xf
        v_max_f32_dpp v178, v178, v178 quad_perm:[2,3,0,1] row_mask:0xf bank_mask:0xf
        v_sub_f32 v176, v176, v178
        v_exp_f32 v176, v176
        v_add_f32_dpp v179, v176, v176 quad_perm:[1,0,3,2] row_mask:0xf bank_mask:0xf
        v_add_f32_dpp v179, v179, v179 quad_perm:[2,3,0,1] row_mask:0xf bank_mask:0xf
        ''')
        for k in range(4): a(f'v_mov_b32_dpp v{196+k}, v176 quad_perm:[{k},{k},{k},{k}] row_mask:0xf bank_mask:0xf')
        a(f'''
        s_lshl_b32 {sT0}, {sW}, 3
        s_add_u32 {sT0}, {sT0}, {MX}
        v_mov_b32 v7, {sT0}
        ds_write_b64 v7, v[178:179]
        s_lshl_b32 {sT0}, {sW}, 11
        s_add_u32 {sT0}, {sT0}, {RED}
        v_lshrrev_b32 v7, 1, {vL}
        v_and_b32 v7, 1, v7
        v_lshlrev_b32 v7, 4, v7
        v_lshl_add_u32 v7, {vL}, 5, v7
        v_add_u32 v7, {sT0}, v7
        v_xor_b32 v6, 16, v7
        ''')
        for k in range(4):
            a(f's_waitcnt vmcnt({3-k})')
            for p in range(4):
                s = 180 + 4*k + p
                a(f'v_lshlrev_b32 v200, 16, v{s}\nv_and_b32 v201, 0xffff0000, v{s}')
                if k == 0:
                    a(f'v_mul_f32 v{204+2*p}, v196, v200\nv_mul_f32 v{205+2*p}, v196, v201')
                else:
                    a(f'v_fmac_f32 v{204+2*p}, v{196+k}, v200\nv_fmac_f32 v{205+2*p}, v{196+k}, v201')
        self.ts('d_got')
        a(f'''
        ds_write_b128 v7, v[204:207]
        ds_write_b128 v6, v[208:211]
        v_lshlrev_b32 v5, 2, v0
        v_add_u32 v5, {RED}, v5
        v_mov_b32 v6, {MX}
        s_waitcnt lgkmcnt(0)
        s_barrier
        ''')
        for k in range(4): a(f'ds_read_b128 {vr(176+4*k,4)}, v6 offset:{k*16}')
        for ww in range(8): a(f'ds_read_b32 v{192+ww}, v5 offset:{ww*2048}')
        a('s_waitcnt lgkmcnt(8)')
        a('''
        v_max3_f32 v200, v176, v178, v180
        v_max3_f32 v200, v200, v182, v184
        v_max3_f32 v200, v200, v186, v188
        v_max_f32 v200, v200, v190
        ''')
        for ww in range(8): a(f'v_sub_f32 v{176+2*ww}, v{176+2*ww}, v200')
        for ww in range(8): a(f'v_exp_f32 v{176+2*ww}, v{176+2*ww}')
        a('v_mul_f32 v201, v176, v177')
        for ww in range(1, 8): a(f'v_fmac_f32 v201, v{176+2*ww}, v{177+2*ww}')
        a('v_rcp_f32 v201, v201\ns_waitcnt lgkmcnt(0)\nv_mul_f32 v202, v176, v192')
        for ww in range(1, 8): a(f'v_fmac_f32 v202, v{176+2*ww}, v{192+ww}')
        a(f'''
        v_mul_f32 v202, v202, v201
        v_cvt_pk_bf16_f32 v202, v202, v202
        v_lshlrev_b32 v5, 1, v0
        v_add_u32 v5, {OB}, v5
        ds_write_b16 v5, v202
        s_lshl_b32 {sT0}, {sW}, 7
        s_add_u32 {sT0}, {sT0}, {OB}
        v_lshl_add_u32 v5, {vG}, 4, {sT0}
        s_waitcnt lgkmcnt(0)
        ds_read_b128 v[176:179], v5
        ds_read_b128 v[180:183], v5 offset:64
        s_waitcnt lgkmcnt(0)
        ''')
        for k in range(2):
            for u in range(8):
                acc = vr(184 + 4*u, 4)
                c = '0' if k == 0 else acc
                a(f'v_mfma_f32_16x16x32_bf16 {acc}, {vr(176+4*k,4)}, {vr(80+32*k+4*u,4)}, {c}')
        mg = self.masks_g()
        a(f'''
        s_lshl_b32 {sT0}, {sW}, 9
        s_add_u32 {sT0}, {sT0}, {RED2}
        v_lshlrev_b32 v5, 5, {vT}
        v_lshl_add_u32 v5, {vG}, 3, v5
        v_add_u32 v5, {sT0}, v5
        ''')
        self.sel4('v216', [f'v{184+4*u}' for u in (0, 2, 4, 6)], mg)
        self.sel4('v217', [f'v{184+4*u}' for u in (1, 3, 5, 7)], mg)
        a(f'''
        ds_write_b64 v5, v[216:217]
        v_lshlrev_b32 v5, 3, {vL}
        v_add_u32 v5, {RED2}, v5
        s_waitcnt lgkmcnt(0)
        s_barrier
        ''')
        for ww in range(8): a(f'ds_read_b64 {vr(176+2*ww,2)}, v5 offset:{ww*512}')
        a(f'''
        v_lshlrev_b32 v6, 6, {vG}
        v_lshrrev_b32 v7, 1, {vL}
        v_and_b32 v7, 3, v7
        v_lshl_add_u32 v6, v7, 4, v6
        v_lshrrev_b32 v7, 3, {vL}
        v_and_b32 v7, 1, v7
        v_lshl_add_u32 v6, v7, 3, v6
        v_and_b32 v7, 1, {vL}
        v_lshl_add_u32 v6, v7, 2, v6
        s_lshl_b32 {sT0}, {sW}, 8
        s_add_u32 {sT0}, {sT0}, {WL}
        v_add_u32 v6, {sT0}, v6
        v_lshl_add_u32 v7, {vG}, 4, {sT0}
        s_waitcnt lgkmcnt(0)
        ''')
        for ww in range(1, 8): a(f'v_add_f32 v176, v176, v{176+2*ww}\nv_add_f32 v177, v177, v{177+2*ww}')
        a('v_cvt_pk_bf16_f32 v176, v176, v177\nds_write_b32 v6, v176\ns_waitcnt lgkmcnt(0)')
        for ks in range(4): a(f'ds_read_b128 {vr(180+4*ks,4)}, v7 offset:{ks*64}')
        a('s_waitcnt lgkmcnt(0)')
        for ks in range(4):
            for ct in range(4):
                acc = vr(196 + 4*ct, 4)
                c = '0' if ks == 0 else acc
                a(f'v_mfma_f32_16x16x32_bf16 {acc}, {vr(16+4*(ks*4+ct),4)}, {vr(180+4*ks,4)}, {c}')
        mt = self.masks_t()
        a(f'''
        s_lshl_b32 {sT0}, {sR0}, 5
        s_add_u32 {sT0}, {sT0}, {sR1}
        s_lshl_b32 {sT0}, {sT0}, 11
        s_lshl_b32 {sT1}, {sW}, 8
        s_add_u32 {sT0}, {sT0}, {sT1}
        s_add_u32 {sT0}, {sT0}, {WS_E}
        v_lshlrev_b32 v5, 6, {vT}
        v_lshl_add_u32 v5, {vG}, 4, v5
        ''')
        for r in range(4): self.sel4(f'v{212+r}', [f'v{196+4*ct+r}' for ct in range(4)], mt)
        a(f'''
        v_cvt_pk_bf16_f32 v216, v212, v213
        v_mov_b32 v217, {sTAG}
        v_cvt_pk_bf16_f32 v218, v214, v215
        v_mov_b32 v219, {sTAG}
        s_mov_b64 exec, {mT4}
        buffer_store_dwordx4 v[216:219], v5, {WS}, {sT0} offen sc1
        s_mov_b64 exec, -1
        ''')
        self.ts('e_pub')

    def mr_load(self, secs, vdst, b_s):
        a = self.a
        a(f'''
        v_lshrrev_b32 v5, 1, v0
        v_lshlrev_b32 v5, 3, v5
        s_lshl_b32 {sT0}, {b_s}, 13
        s_add_u32 {sT0}, {sT0}, {WS_MR}
        ''')
        l = self.poll_begin()
        for k, sec in enumerate(secs):
            off = f' offset:{sec*2048}' if sec else ''
            if sec * 2048 > 4095:
                a(f's_add_u32 {sT1}, {sT0}, {sec*2048}')
                a(f'buffer_load_dwordx2 {vr(vdst+2*k,2)}, v5, {WS}, {sT1} offen sc1')
            else:
                a(f'buffer_load_dwordx2 {vr(vdst+2*k,2)}, v5, {WS}, {sT0} offen{off} sc1')
        a('s_waitcnt vmcnt(0)')
        self.tagchk('v6', [f'v{vdst+2*k+1}' for k in range(len(secs))])
        self.poll_end(l, 5, 4, 'v6')
        a('v_and_b32 v6, 1, v0\nv_cmp_eq_u32 vcc, 1, v6')
        for k in range(len(secs)):
            r = vdst + 2*k
            a(f'v_lshlrev_b32 v{r+1}, 16, v{r}\nv_and_b32 v{r}, 0xffff0000, v{r}\nv_cndmask_b32 v{r}, v{r+1}, v{r}, vcc')

    def ffn(self):
        a = self.a
        self.srd(SA, P_W1, 512 * 2752)
        a(f'''
        s_mul_i32 {sT0}, {sW}, {64*2752}
        s_lshl_b32 {sT2}, {sR1}, 7
        s_add_u32 {sT0}, {sT0}, {sT2}
        ''')
        self.dma128(SA, 2752, 8, 0)
        self.srd(SB, P_W2, 1376 * 1024)
        a(f'''
        s_lshl_b32 {sT0}, {sR1}, 16
        s_lshl_b32 {sT2}, {sW}, 7
        s_add_u32 {sT0}, {sT0}, {sT2}
        ''')
        self.dma128(SB, 1024, 8, 8192)
        self.d_flag(16)
        self.srd(SC, P_X, 4096)
        a(f'''
        v_lshlrev_b32 v5, 1, v0
        s_lshl_b32 {sT0}, {sR0}, 10
        buffer_load_ushort v100, v5, {SC}, {sT0} offen
        ''')
        self.mr_load([0, 1, 2], 102, sR0)
        a('v_lshlrev_b32 v100, 16, v100')
        ad = self.tr128_addr(8)
        self.tr_reads(ad, 2, 128, 16)
        self.tr_reads(ad, 2, 128, 48, 8192)
        a(f'''
        s_lshl_b32 {sT0}, {sR0}, 5
        s_lshl_b32 {sT1}, {sW}, 2
        s_add_u32 {sT0}, {sT0}, {sT1}
        s_lshl_b32 {sT0}, {sT0}, 11
        s_add_u32 {sR2}, {sT0}, {WS_E}
        v_lshlrev_b32 v5, 11, {vB4}
        v_add_u32 v5, 2040, v5
        ''')
        l = self.poll_begin()
        a(f'buffer_load_dwordx2 v[176:177], v5, {WS}, {sR2} offen sc1\ns_waitcnt vmcnt(0)')
        self.tagchk('v178', ['v177'])
        self.poll_end(l, 6, self.cfg['sleepE'], 'v178')
        self.ts('e_trig')
        a(f'v_lshlrev_b32 v5, 4, {vL}\ns_add_u32 {sT1}, {sR2}, 4096')
        l = self.poll_begin()
        for k in range(8):
            so = sR2 if k < 4 else sT1
            off = f' offset:{(k&3)*1024}' if k & 3 else ''
            a(f'buffer_load_dwordx4 {vr(112+4*k,4)}, v5, {WS}, {so} offen{off} sc1')
        a('s_waitcnt vmcnt(0)')
        self.tagchk('v178', [f'v{112+4*k+o}' for k in range(8) for o in (1, 3)])
        self.poll_end(l, 7, 1, 'v178')
        self.ts('e_got')
        a(f's_mov_b32 {sT0}, 0x00003f80\ns_mov_b32 {sT1}, 0x3f800000')
        for k in range(8):
            hf = k & 1; b = 112 + 4*k; acc = 144 + 4*hf
            for j, (src, sel) in enumerate(((b, sT0), (b, sT1), (b+2, sT0), (b+2, sT1))):
                c = '0' if k < 2 else f'v{acc+j}'
                a(f'v_dot2_f32_bf16 v{acc+j}, v{src}, {sel}, {c}')
        a(f'''
        s_lshl_b32 {sT0}, {sW}, 11
        s_add_u32 {sT0}, {sT0}, {RED}
        v_lshl_add_u32 v5, {vL}, 4, {sT0}
        ds_write_b128 v5, v[144:147]
        ds_write_b128 v5, v[148:151] offset:1024
        v_lshlrev_b32 v5, 2, v0
        v_add_u32 v5, {RED}, v5
        s_waitcnt lgkmcnt(0)
        s_barrier
        ''')
        for ww in range(8): a(f'ds_read_b32 v{112+ww}, v5 offset:{ww*2048}')
        a('''
        s_waitcnt lgkmcnt(0)
        v_add_f32 v112, v112, v113
        v_add_f32 v114, v114, v115
        v_add_f32 v116, v116, v117
        v_add_f32 v118, v118, v119
        v_add_f32 v112, v112, v114
        v_add_f32 v116, v116, v118
        v_add_f32 v112, v112, v116
        v_fma_f32 v100, v102, v112, v100       ; x1
        v_mov_b32 v120, v100
        v_mul_f32 v121, v100, v100
        ''')
        self.allsum(['v120', 'v121'], ['v122', 'v123'])
        a(f'''
        s_lshl_b32 {sT0}, {sW}, 3
        s_add_u32 {sT0}, {sT0}, {MX}
        v_mov_b32 v5, {sT0}
        ds_write_b64 v5, v[120:121]
        v_mov_b32 v5, {MX}
        s_waitcnt lgkmcnt(0)
        s_barrier
        ''')
        for k in range(4): a(f'ds_read_b128 {vr(112+4*k,4)}, v5 offset:{k*16}')
        a(f'''
        v_lshrrev_b32 v6, 5, {vL}
        v_lshlrev_b32 v6, 6, v6
        v_lshrrev_b32 v7, 2, {vL}
        v_and_b32 v7, 3, v7
        v_lshl_add_u32 v6, v7, 4, v6
        v_and_b32 v7, 1, {vG}
        v_lshl_add_u32 v6, v7, 3, v6
        v_lshl_add_u32 v6, {vB4}, 1, v6
        s_lshl_b32 {sT0}, {sW}, 8
        s_add_u32 {sT0}, {sT0}, {WL}
        v_add_u32 v6, {sT0}, v6
        v_lshl_add_u32 v7, {vG}, 4, {sT0}
        s_waitcnt lgkmcnt(0)
        ''')
        for k in range(1, 8): a(f'v_add_f32 v112, v112, v{112+2*k}\nv_add_f32 v113, v113, v{113+2*k}')
        a(f'''
        v_mul_f32 v112, {fhex(1/512)}, v112
        v_mul_f32 v113, {fhex(1/512)}, v113
        v_fma_f32 v113, -v112, v112, v113
        v_max_f32 v113, 0, v113
        v_add_f32 v113, {fhex(1e-5)}, v113
        v_rsq_f32 v113, v113
        v_sub_f32 v114, v100, v112
        v_mul_f32 v114, v114, v113
        v_add_f32 v115, v114, v104
        v_fmac_f32 v115, v114, v106
        v_cvt_pk_bf16_f32 v115, v115, v115
        ds_write_b16 v6, v115
        s_waitcnt lgkmcnt(0)
        ds_read_b128 v[112:115], v7
        ds_read_b128 v[116:119], v7 offset:64
        s_waitcnt lgkmcnt(0)
        ''')
        for ks in range(2):
            for ct in range(4):
                acc = vr(120 + 4*ct, 4); c = '0' if ks == 0 else acc
                a(f'v_mfma_f32_16x16x32_bf16 {acc}, {vr(16+4*(ks*4+ct),4)}, {vr(112+4*ks,4)}, {c}')
        mt = self.masks_t()
        a(f'''
        s_lshl_b32 {sT0}, {sW}, 8
        s_add_u32 {sT0}, {sT0}, {RED2}
        v_lshlrev_b32 v5, 6, {vT}
        v_lshl_add_u32 v5, {vG}, 4, v5
        v_add_u32 v5, {sT0}, v5
        ''')
        for r in range(4): self.sel4(f'v{136+r}', [f'v{120+4*ct+r}' for ct in range(4)], mt)
        a(f'''
        s_mov_b64 exec, {mT4}
        ds_write_b128 v5, v[136:139]
        s_mov_b64 exec, -1
        v_lshlrev_b32 v5, 2, {vL}
        v_add_u32 v5, {RED2}, v5
        s_waitcnt lgkmcnt(0)
        s_barrier
        ''')
        for ww in range(8): a(f'ds_read_b32 v{112+ww}, v5 offset:{ww*256}')
        a(f'''
        s_lshl_b32 {sT0}, {sR1}, 6
        v_add_u32 v5, {sT0}, {vL}
        v_cmp_gt_u32 vcc, 1376, v5
        s_waitcnt lgkmcnt(0)
        v_add_f32 v112, v112, v113
        v_add_f32 v114, v114, v115
        v_add_f32 v116, v116, v117
        v_add_f32 v118, v118, v119
        v_add_f32 v112, v112, v114
        v_add_f32 v116, v116, v118
        v_add_f32 v112, v112, v116
        v_max_f32 v112, 0, v112
        v_cndmask_b32 v112, 0, v112, vcc
        v_cvt_pk_bf16_f32 v112, v112, v112
        ds_write_b16 v6, v112 offset:128
        s_waitcnt lgkmcnt(0)
        ds_read_b128 v[112:115], v7 offset:128
        ds_read_b128 v[116:119], v7 offset:192
        s_waitcnt lgkmcnt(0)
        ''')
        for ks in range(2):
            for ct in range(4):
                acc = vr(120 + 4*ct, 4); c = '0' if ks == 0 else acc
                a(f'v_mfma_f32_16x16x32_bf16 {acc}, {vr(48+4*(ks*4+ct),4)}, {vr(112+4*ks,4)}, {c}')
        a(f'''
        s_lshl_b32 {sT0}, {sR0}, 3
        s_add_u32 {sT0}, {sT0}, {sW}
        s_mul_i32 {sT0}, {sT0}, {24*512}
        s_lshl_b32 {sT1}, {sR1}, 9
        s_add_u32 {sT0}, {sT0}, {sT1}
        s_add_u32 {sT0}, {sT0}, {WS_F}
        v_lshlrev_b32 v5, 7, {vT}
        v_lshl_add_u32 v5, {vG}, 5, v5
        ''')
        for r in range(4): self.sel4(f'v{136+r}', [f'v{120+4*ct+r}' for ct in range(4)], mt)
        a(f'''
        v_mov_b32 v140, v136
        v_mov_b32 v141, {sTAG}
        v_mov_b32 v142, v137
        v_mov_b32 v143, {sTAG}
        v_mov_b32 v144, v138
        v_mov_b32 v145, {sTAG}
        v_mov_b32 v146, v139
        v_mov_b32 v147, {sTAG}
        s_mov_b64 exec, {mT4}
        buffer_store_dwordx4 v[140:143], v5, {WS}, {sT0} offen sc1
        buffer_store_dwordx4 v[144:147], v5, {WS}, {sT0} offen offset:16 sc1
        s_mov_b64 exec, -1
        ''')
        self.ts('f_pub')

    def final(self):
        a = self.a
        a(f's_lshl_b32 {sR1}, {sX}, 2\ns_add_u32 {sR1}, {sR1}, {sR0}')
        self.srd(SA, P_WMOD, 512 * 6144)
        a(f'''
        s_mul_i32 {sT0}, {sW}, {64*6144}
        s_lshl_b32 {sT2}, {sR1}, 7
        s_add_u32 {sT0}, {sT0}, {sT2}
        s_add_u32 {sT0}, {sT0}, 2048
        ''')
        self.dma128(SA, 6144, 8, 0)
        self.d_flag(8)
        self.silu_vec()
        a('s_waitcnt vmcnt(0)')
        self.silu_vec2()
        a('s_waitcnt lgkmcnt(0)\ns_barrier')
        self.sv_frags(112)
        ad = self.tr128_addr(8)
        self.tr_reads(ad, 2, 128, 16)
        a('s_waitcnt lgkmcnt(0)')
        for ks in range(2):
            for ct in range(4):
                acc = vr(120 + 4*ct, 4); c = '0' if ks == 0 else acc
                a(f'v_mfma_f32_16x16x32_bf16 {acc}, {vr(16+4*(ks*4+ct),4)}, {vr(112+4*ks,4)}, {c}')
        a(f'''
        s_lshl_b32 {sT0}, {sW}, 10
        s_add_u32 {sT0}, {sT0}, {RED}
        v_lshlrev_b32 v5, 6, {vG}
        v_lshl_add_u32 v5, {vT}, 4, v5
        v_add_u32 v5, {sT0}, v5
        s_mov_b64 exec, {mT4}
        ''')
        for ct in range(4): a(f'ds_write_b128 v5, {vr(120+4*ct,4)} offset:{ct*256}')
        a(f'''
        s_mov_b64 exec, -1
        s_waitcnt lgkmcnt(0)
        s_barrier
        ''')
        sk = a.label('mrskip')
        a(f'''
        s_cmp_ge_u32 {sW}, 2
        s_cbranch_scc1 {sk}
        v_lshlrev_b32 v5, 3, v0
        v_add_u32 v5, {RED}, v5
        ''')
        for ww in range(8): a(f'ds_read_b64 {vr(112+2*ww,2)}, v5 offset:{ww*1024}')
        a(f'''
        v_lshrrev_b32 v6, 1, v0
        v_and_b32 v6, 3, v6
        v_lshlrev_b32 v6, 13, v6               ; b*8192
        v_lshrrev_b32 v7, 3, v0                ; ct*4+g
        v_lshl_add_u32 v6, v7, 4, v6           ; (8ct+2g)*8
        v_and_b32 v7, 1, v0
        v_lshl_add_u32 v6, v7, 3, v6
        s_lshl_b32 {sT0}, {sR1}, 8
        s_add_u32 {sT0}, {sT0}, {WS_MR}
        s_waitcnt lgkmcnt(0)
        ''')
        for ww in range(1, 8): a(f'v_add_f32 v112, v112, v{112+2*ww}\nv_add_f32 v113, v113, v{113+2*ww}')
        a(f'''
        v_cvt_pk_bf16_f32 v112, v112, v113
        v_mov_b32 v113, {sTAG}
        buffer_store_dwordx2 v[112:113], v6, {WS}, {sT0} offen sc1
        {sk}:
        ''')
        self.ts('mr_pub')
        a(f's_cmp_lg_u32 {sW}, 0\ns_cbranch_scc1 L_exit')
        self.srd(SC, P_X, 4096)
        a(f'''
        v_and_b32 v5, 31, {vL}
        v_lshlrev_b32 v6, 2, v5
        s_lshl_b32 {sT0}, {sR0}, 10
        s_lshl_b32 {sT1}, {sX}, 7
        s_add_u32 {sR2}, {sT0}, {sT1}
        buffer_load_dword v100, v6, {SC}, {sR2} offen
        v_lshlrev_b32 v7, 3, v5
        s_lshl_b32 {sT0}, {sR0}, 13
        s_lshl_b32 {sT1}, {sX}, 8
        s_add_u32 {sT0}, {sT0}, {sT1}
        s_add_u32 {sT0}, {sT0}, {WS_MR}
        s_add_u32 {sT1}, {sT0}, {3*2048}
        ''')
        l = self.poll_begin()
        a(f'''
        buffer_load_dwordx2 v[102:103], v7, {WS}, {sT0} offen sc1
        buffer_load_dwordx2 v[104:105], v7, {WS}, {sT1} offen sc1
        s_waitcnt vmcnt(0)
        ''')
        self.tagchk('v8', ['v103', 'v105'])
        self.poll_end(l, 8, 4, 'v8')
        a(f'''
        v_lshrrev_b32 v8, 5, {vL}
        v_lshl_add_u32 v9, v8, 11, v7
        s_lshl_b32 {sT0}, {sR0}, 16
        s_lshl_b32 {sT1}, {sX}, 8
        s_add_u32 {sT0}, {sT0}, {sT1}
        s_add_u32 {sT0}, {sT0}, {WS_E}
        ''')
        l = self.poll_begin()
        a(f's_mov_b32 {sT1}, {sT0}')
        for k in range(16):
            a(f'buffer_load_dwordx2 {vr(112+2*k,2)}, v9, {WS}, {sT1} offen sc1')
            if k < 15: a(f's_add_u32 {sT1}, {sT1}, 4096')
        a('s_waitcnt vmcnt(0)')
        self.tagchk('v10', [f'v{113+2*k}' for k in range(16)])
        self.poll_end(l, 9, self.cfg['sleepE'] + 2, 'v10')
        self.ts('fe_got')
        a(f's_mov_b32 {sT0}, 0x00003f80\ns_mov_b32 {sT1}, 0x3f800000')
        for k in range(16):
            c0 = '0' if k == 0 else 'v144'; c1 = '0' if k == 0 else 'v145'
            a(f'v_dot2_f32_bf16 v144, v{112+2*k}, {sT0}, {c0}\nv_dot2_f32_bf16 v145, v{112+2*k}, {sT1}, {c1}')
        a('''
        v_mov_b32 v146, v144
        v_mov_b32 v147, v145
        v_permlane32_swap_b32 v144, v146
        v_permlane32_swap_b32 v145, v147
        v_add_f32 v144, v144, v146
        v_add_f32 v145, v145, v147
        v_lshlrev_b32 v146, 16, v100
        v_and_b32 v147, 0xffff0000, v100
        v_lshlrev_b32 v148, 16, v102
        v_and_b32 v149, 0xffff0000, v102
        v_fmac_f32 v146, v148, v144            ; x1
        v_fmac_f32 v147, v149, v145
        v_lshlrev_b32 v148, 16, v104           ; gb
        v_and_b32 v149, 0xffff0000, v104
        ''')
        a(f'''
        v_lshlrev_b32 v9, 9, v8
        v_lshl_add_u32 v9, v5, 4, v9
        s_lshl_b32 {sT0}, {sR0}, 3
        s_add_u32 {sT0}, {sT0}, {sX}
        s_mul_i32 {sT0}, {sT0}, {24*512}
        s_add_u32 {sT0}, {sT0}, {WS_F}
        ''')
        l = self.poll_begin()
        a(f's_mov_b32 {sT1}, {sT0}')
        for k in range(11):
            off = f' offset:{(k&3)*1024}' if k & 3 else ''
            a(f'buffer_load_dwordx4 {vr(176+4*k,4)}, v9, {WS}, {sT1} offen{off} sc1')
            if k & 3 == 3: a(f's_add_u32 {sT1}, {sT1}, 4096')
        a('s_waitcnt vmcnt(0)')
        self.tagchk('v10', [f'v{176+4*k+o}' for k in range(11) for o in (1, 3)])
        self.poll_end(l, 10, self.cfg['sleepF'], 'v10')
        self.ts('f_got')
        for k in range(1, 11):
            a(f'v_add_f32 v176, v176, v{176+4*k}\nv_add_f32 v178, v178, v{178+4*k}')
        self.srd(SA, P_OUT, 4096)
        a(f'''
        v_mov_b32 v150, v176
        v_mov_b32 v151, v178
        v_permlane32_swap_b32 v176, v150
        v_permlane32_swap_b32 v178, v151
        v_add_f32 v176, v176, v150
        v_add_f32 v178, v178, v151
        v_fmac_f32 v146, v148, v176
        v_fmac_f32 v147, v149, v178
        v_cvt_pk_bf16_f32 v146, v146, v147
        s_mov_b32 exec_hi, 0
        buffer_store_dword v146, v6, {SA}, {sR2} offen
        s_mov_b64 exec, -1
        ''')
        self.ts('out_st')

    def epoch_update(self):
        a = self.a
        self.d_flag(0)
        a(f's_cmp_lg_u32 {sW}, 0\ns_cbranch_scc1 L_exit')
        a(f'''
        v_and_b32 v5, 7, {vL}
        v_lshlrev_b32 v5, 15, v5
        s_mov_b32 {sT0}, {WS_E}
        ''')
        l = self.poll_begin()
        a(f'buffer_load_dwordx2 v[6:7], v5, {WS}, {sT0} offen sc1\ns_waitcnt vmcnt(0)')
        self.tagchk('v8', ['v7'])
        self.poll_end(l, 11, 8, 'v8')
        a(f'''
        s_add_u32 {sT0}, {sEP}, 1
        v_mov_b32 v6, {sT0}
        v_mov_b32 v5, 0
        s_mov_b64 exec, 1
        buffer_store_dword v6, v5, {WS}, 0 offen sc1
        s_mov_b64 exec, -1
        ''')

    def build(self):
        a = self.a
        self.prologue()
        a(f's_cmp_lt_u32 {sI}, 16\ns_cbranch_scc1 L_qpre')
        self.p_pre()
        a('s_branch L_att\nL_qpre:')
        self.q_pre()
        a('L_att:')
        self.stop_at('pre')
        self.attention_with_hook()
        self.stop_at('att')
        a(f's_cmp_lt_u32 {sI}, 16\ns_cbranch_scc1 L_qpost')
        self.p_post()
        a('s_branch L_exit\nL_qpost:')
        a(f'''
        s_lshr_b32 {sT0}, {sI}, 2
        s_and_b32 {sR0}, {sI}, 3
        s_cmp_eq_u32 {sT0}, 3
        s_cbranch_scc1 L_final
        s_lshl_b32 {sR1}, {sT0}, 3
        s_add_u32 {sR1}, {sR1}, {sX}
        s_cmp_ge_u32 {sR1}, 22
        s_cbranch_scc1 L_idle
        ''')
        self.ffn()
        a('s_branch L_exit\nL_final:')
        self.final()
        a('s_branch L_exit\nL_idle:')
        a(f's_cmp_eq_u32 s2, {7 + 8*11}\ns_cbranch_scc1 L_upd')
        self.d_flag(0)
        a('s_branch L_exit\nL_upd:')
        self.epoch_update()
        a('s_branch L_exit')
        for code in self.failsites:
            a(f'''
            L_fail_{code}:
            s_mov_b32 {sT0}, {code}
            s_branch L_fail
            ''')
        a(f'''
        L_fail:
        s_mov_b32 s12, s{P_DBG}
        s_mov_b32 s13, s{P_DBG+1}
        s_mov_b32 s14, 256
        s_mov_b32 s15, 0x00020000
        s_mov_b64 exec, 1
        s_lshl_b32 {sT1}, {sT0}, 2
        v_mov_b32 v5, {sT1}
        v_mov_b32 v6, s2
        v_add_u32 v6, 1000, v6
        buffer_store_dword v6, v5, s[12:15], 0 offen
        s_mov_b64 exec, -1
        L_exit:
        ''')
        if self.cfg['ts']:
            n = len(TSREG)
            sk = a.label('nots')
            a(f's_cmp_lg_u32 {sW}, {self.cfg.get("tswave",0)}\ns_cbranch_scc1 {sk}')
            a(f's_waitcnt lgkmcnt(0)\ns_mov_b64 exec, 1\ns_lshl_b32 {sT0}, s2, 6\ns_add_u32 {sT0}, {sT0}, {WS_TS}\nv_mov_b32 v5, 0')
            for k in range(n):
                a(f'v_mov_b32 v6, s{TSREG[k]}\nbuffer_store_dword v6, v5, {WS}, {sT0} offen offset:{4*k}')
            if self.cfg.get('tsdbg'):
                a(f's_mov_b32 s12, s{P_DBG}\ns_mov_b32 s13, s{P_DBG+1}\ns_mov_b32 s14, 256\ns_mov_b32 s15, 0x00020000')
                for k in range(12):
                    a(f'v_mov_b32 v6, s{TSREG[k]}\nbuffer_atomic_umax v6, v5, s[12:15], 0 offen offset:{4*k}')
                a(f's_not_b32 {sT1}, s{TSREG[0]}\nv_mov_b32 v6, {sT1}\nbuffer_atomic_umax v6, v5, s[12:15], 0 offen offset:60')
                a(f's_memrealtime s[62:63]\ns_waitcnt lgkmcnt(0)\nv_mov_b32 v6, s62\nbuffer_atomic_umax v6, v5, s[12:15], 0 offen offset:56')
            a(f'{sk}:')
        a('s_waitcnt vmcnt(0) lgkmcnt(0)\nL_end:\ns_endpgm')
        body = a.finish()
        return body

    def attention_with_hook(self):
        a = self.a
        orig_ts = self.ts
        def ts_hook(name):
            orig_ts(name)
            if name == 'c_got':
                sk = a.label('nouv')
                a(f's_cmp_lt_u32 {sI}, 16\ns_cbranch_scc1 {sk}')
                self.p_wuv_issue()
                a(f'{sk}:')
        self.ts = ts_hook
        self.attention()
        self.ts = orig_ts

HEADER = open('adaLN_cond__compressed_kv_cla__dense_activation_relu__decode.s.ref').read().split('; Override launch')[0]

def generate(cfg):
    g = Gen(cfg)
    if g.cfg['ts']:
        pass
    body = g.build()
    init = ''
    if g.cfg['ts']:
        init = ''.join(f'    s_mov_b32 s{r}, 0\n' for r in TSREG[:12])
    txt = HEADER + f'''; @launch grid=(256,1,1) block=(512,1,1) lds={LDS_BYTES}
.amdgcn_target "amdgcn-amd-amdhsa--gfx950"
.text
.globl {KNAME}
.p2align 8
.type {KNAME},@function
{KNAME}:
{init}{body}.section .rodata,"a"
.p2align 6
.amdhsa_kernel {KNAME}
  .amdhsa_next_free_vgpr 256
  .amdhsa_next_free_sgpr 102
  .amdhsa_accum_offset 256
  .amdhsa_group_segment_fixed_size 0
  .amdhsa_kernarg_size 112
  .amdhsa_user_sgpr_count 2
  .amdhsa_user_sgpr_kernarg_segment_ptr 1
  .amdhsa_system_sgpr_workgroup_id_x 1
.end_amdhsa_kernel
'''
    return txt, g

if __name__ == '__main__':
    cfg = json.loads(sys.argv[2]) if len(sys.argv) > 2 else {}
    txt, g = generate(cfg)
    open(sys.argv[1], 'w').write(txt)
    json.dump(dict(ts=g.tsnames, slot=TSSLOT), open(sys.argv[1] + '.json', 'w'))
    print('written', sys.argv[1], 'lines', txt.count('\n'), 'nops padded', g.a.npad, 'stamps', g.tsnames)
```

```python
import re

def _regs(tok):
    tok = tok.strip()
    neg = tok.lstrip('-')
    if neg.startswith('abs(') or neg.startswith('|'):
        neg = neg.replace('abs(', '').replace(')', '').replace('|', '')
    m = re.fullmatch(r'([vsa])(\d+)', neg)
    if m: return [(m.group(1), int(m.group(2)))]
    m = re.fullmatch(r'([vsa])\[(\d+):(\d+)\]', neg)
    if m: return [(m.group(1), n) for n in range(int(m.group(2)), int(m.group(3)) + 1)]
    if neg == 'vcc': return [('s', 106), ('s', 107)]
    if neg == 'vcc_lo': return [('s', 106)]
    if neg == 'vcc_hi': return [('s', 107)]
    if neg == 'exec': return [('s', 126), ('s', 127)]
    if neg == 'exec_lo': return [('s', 126)]
    if neg == 'exec_hi': return [('s', 127)]
    if neg == 'm0': return [('s', 124)]
    return []

TRANS = ('v_exp_f32', 'v_log_f32', 'v_rcp_f32', 'v_rsq_f32', 'v_sqrt_f32', 'v_sin_f32', 'v_cos_f32', 'v_rcp_iflag_f32')

class Ins:
    __slots__ = ('text', 'op', 'dst', 'src', 'kind', 'dpp', 'sdst')
    def __init__(self, text):
        self.text = text
        t = text.split(';')[0].strip()
        parts = t.split(None, 1)
        self.op = parts[0]
        ops = []
        if len(parts) > 1:
            depth = 0; cur = ''
            for ch in parts[1]:
                if ch == '[': depth += 1
                if ch == ']': depth -= 1
                if ch == ',' and depth == 0:
                    ops.append(cur.strip()); cur = ''
                else: cur += ch
            ops.append(cur.strip())
        mods = ''
        if ops:
            sp = ops[-1].split(None, 1)
            ops[-1] = sp[0]
            if len(sp) > 1: mods = sp[1]
        op = self.op
        self.dpp = ('row_' in mods or 'quad_perm' in mods or 'wave_' in mods or op.endswith('_dpp'))
        self.dst = []; self.src = []; self.sdst = []
        R = [_regs(o) for o in ops]
        if op.startswith('v_mfma'):
            self.kind = 'mfma'; self.dst = R[0]; self.src = R[1] + R[2] + R[3]
        elif op.startswith('v_cmp'):
            self.kind = 'valu'; self.sdst = R[0]; self.src = sum(R[1:], [])
            if op.startswith('v_cmpx'): self.sdst += [('s', 126), ('s', 127)]
        elif op.startswith('v_readlane') or op.startswith('v_readfirstlane'):
            self.kind = 'valu'; self.sdst = R[0]; self.src = sum(R[1:], [])
        elif op.startswith('v_permlane') and 'swap' in op or op.startswith('v_swap'):
            self.kind = 'valu'; self.dst = R[0] + R[1]; self.src = R[0] + R[1]
        elif op.startswith('v_'):
            self.kind = 'valu'; self.dst = R[0]; self.src = sum(R[1:], [])
            if op.startswith(('v_add_co', 'v_sub_co', 'v_addc_co', 'v_subb_co', 'v_subrev_co')):
                self.sdst = R[1]; self.src = sum(R[2:], [])
            if op.startswith(('v_fmac', 'v_dot2c', 'v_pk_fmac', 'v_mac')): self.src += R[0]
            if op.startswith('v_writelane'): self.src += R[0]
            if op.startswith('v_cndmask') and len(ops) == 3: self.src += [('s', 106), ('s', 107)]
        elif op.startswith(('buffer_store', 'global_store', 'buffer_atomic', 'global_atomic')):
            self.kind = 'vmem_st'; self.src = sum(R, [])
            self.dst = []
        elif op.startswith(('buffer_load', 'global_load')):
            if ' lds' in (' ' + mods) or 'load_lds' in op:
                self.kind = 'vmem_lds'; self.src = sum(R, []) + [('s', 124)]
            else:
                self.kind = 'vmem_ld'; self.dst = R[0]; self.src = sum(R[1:], [])
        elif op.startswith('ds_'):
            if op.startswith(('ds_read', 'ds_bpermute', 'ds_permute', 'ds_swizzle')):
                self.kind = 'ds_rd'; self.dst = R[0]; self.src = sum(R[1:], [])
            else:
                self.kind = 'ds_wr'; self.src = sum(R, [])
        elif op.startswith('s_'):
            self.kind = 'salu'
            if op.startswith(('s_cmp', 's_cbranch', 's_branch', 's_waitcnt', 's_barrier', 's_nop', 's_sleep', 's_endpgm', 's_setprio', 's_bitcmp')):
                self.src = sum(R, [])
            else:
                self.sdst = R[0] if R else []; self.src = sum(R[1:], [])
                if 'saveexec' in op: self.sdst = self.sdst + [('s', 126), ('s', 127)]
        else:
            raise ValueError('unknown op: ' + text)

    def states(self):
        if self.op == 's_nop':
            return int(self.text.split(';')[0].split()[1], 0) + 1
        return 1

def need_states(prod, cons):
    n = 0
    pv = set(r for r in prod.dst if r[0] in 'va')
    cs = set(cons.src); cd = set(cons.dst)
    if prod.kind == 'mfma':
        big = '32x32' in prod.op
        if cons.kind == 'mfma':
            t = cons.text.split(';')[0]
            opsrc = Ins_ops(cons)
            ab = set(opsrc[1]) | set(opsrc[2]); c = set(opsrc[3])
            if pv & ab: n = max(n, 12 if big else 8)
            if pv & c and c != pv: n = max(n, 10 if big else 6)
            if pv & cd and cd != pv and not (pv & c): n = max(n, 12 if big else 8)
        else:
            if pv & (cs | cd): n = max(n, 12 if big else 8)
    if cons.kind == 'valu' and False: pass
    if prod.kind == 'valu' and prod.op.startswith('v_dot'):
        if cons.op == prod.op:
            o = Ins_ops(cons)
            if pv & (set(o[1]) | set(o[2])): n = max(n, 3)
        elif pv & (cs | cd): n = max(n, 3)
    if prod.kind == 'valu':
        if cons.kind == 'mfma' and pv & cs: n = max(n, 2)
        if cons.kind == 'valu':
            if cons.dpp and pv & cs: n = max(n, 2)
            if cons.op.startswith('v_permlane') and pv & cs: n = max(n, 2)
            if cons.op.startswith(('v_readlane', 'v_readfirstlane')) and pv & cs: n = max(n, 1)
            if prod.op.replace('_e32', '').replace('_e64', '') in TRANS and pv & cs: n = max(n, 1)
            if 'op_sel' in prod.text and pv & (cs | cd): n = max(n, 1)
        ps = set(prod.sdst)
        if ps:
            if cons.kind == 'valu' and ps & cs:
                n = max(n, 4 if cons.op.startswith(('v_readlane', 'v_writelane')) else 2)
            if cons.kind in ('vmem_ld', 'vmem_st', 'vmem_lds') and ps & cs: n = max(n, 5)
            if cons.kind == 'salu' and ps & cs: n = max(n, 1)
            if (('s', 126) in ps):
                if cons.kind == 'mfma': n = max(n, 4)
                if cons.kind == 'valu' and (cons.dpp): n = max(n, 5)
                if cons.kind == 'valu' and cons.op.startswith(('v_readlane', 'v_readfirstlane', 'v_writelane', 'v_permlane')): n = max(n, 4)
    if prod.kind == 'vmem_st' and ('x4' in prod.op or 'x3' in prod.op):
        data = set(r for r in prod.src if r[0] == 'v')
        if cons.kind == 'valu' and data & cd: n = max(n, 2)
        elif cons.kind in ('vmem_ld', 'ds_rd', 'mfma') and data & cd: n = max(n, 1)
    if prod.kind == 'salu' and ('s', 124) in set(prod.sdst) and cons.kind == 'vmem_lds': n = max(n, 1)
    if prod.kind == 'mfma' and cons.kind == 'valu':
        c = set(Ins_ops(prod)[3])
        if c & cd: n = max(n, 7 if '32x32' in prod.op else 3)
    return n

def Ins_ops(ins):
    t = ins.text.split(';')[0].strip().split(None, 1)[1]
    depth = 0; cur = ''; ops = []
    for ch in t:
        if ch == '[': depth += 1
        if ch == ']': depth -= 1
        if ch == ',' and depth == 0: ops.append(cur.strip()); cur = ''
        else: cur += ch
    ops.append(cur.strip().split()[0])
    return [_regs(o) for o in ops]

class Asm:
    def __init__(self):
        self.lines = []
        self.uid = 0
    def __call__(self, text):
        for ln in text.split('\n'):
            ln = ln.strip()
            if not ln: continue
            if ln.startswith(';'): self.lines.append(('c', ln)); continue
            if ln.endswith(':'): self.lines.append(('l', ln)); continue
            self.lines.append(('i', ln))
    def label(self, base):
        self.uid += 1
        return f'L_{base}_{self.uid}'
    def finish(self):
        out = []; hist = []
        npad = 0
        for kind, text in self.lines:
            if kind != 'i':
                out.append(text if kind == 'l' else '    ' + text)
                continue
            ins = Ins(text)
            need = 0; dist = 0
            for prev in reversed(hist):
                r = need_states(prev, ins)
                if r > dist: need = max(need, r - dist)
                dist += prev.states()
                if dist >= 20: break
            while need > 0:
                k = min(need, 16)
                nop = Ins(f's_nop {k-1}')
                out.append(f'    s_nop {k-1}'); hist.append(nop); need -= k; npad += 1
            out.append('    ' + text); hist.append(ins)
            if len(hist) > 40: hist = hist[-30:]
        self.npad = npad
        return '\n'.join(out) + '\n'
```

```python
import sys, json, struct
from asmlib import Asm

KNAME = 'adaLN_cond__compressed_kv_cla__dense_activation_relu__decode_kernel'
CFG = dict(pthr=0, ckvsplit=False, ts=False, nt=False, nt_ckv_p=False, nt_ckv_q=False, limit=20000,
           sleepA=1, sleepC=2, sleepD=1, sleepE=2, sleepF=1, tswave=0)

WS_H  = 0x500000
WS_MR = 0x510000
WS_Q  = 0x10000
WS_FL = 0x50000
WS_E  = 0x60000
WS_F  = 0xA0000
WS_D  = 0x100000
WS_TS = 0x600000
WS_SIZE = 0x700000
SM   = 131072
QT   = SM
RED  = SM
PT   = SM + 16384
WL   = PT
MX   = SM + 20480
LS   = SM + 20992
SV   = SM + 21504
QB   = SM + 25856
OB   = SM + 27136
RED2 = SM + 28160
LDS_BYTES = 163840
SVS = 1088
QBS = 320

TAGMUL = 0x9E3779B1
LOG2E = 1.4426950408889634
SCALE = (128 ** -0.5) * LOG2E

def fhex(x): return '0x%08x' % struct.unpack('<I', struct.pack('<f', x))[0]

sX, sI, sW, sTAG, sEP = 's3', 's4', 's5', 's6', 's7'
WS = 's[8:11]'; SA = 's[12:15]'; SB = 's[44:47]'; SC = 's[48:51]'
P_X, P_CKV, P_WQ, P_WUK, P_WUV, P_WO, P_W1, P_W2, P_C, P_WMOD, P_OUT, P_DBG, P_WS = 16, 18, 20, 22, 24, 26, 30, 32, 34, 36, 38, 40, 42
sWB = 's52'
sT0, sT1, sT2, sT3 = 's53', 's54', 's55', 's56'
sT4, sT5, sT6, sT7 = 's72', 's73', 's74', 's75'
sPLO, sPHI = 's57', 's58'
sCNT = 's59'
mT4 = 's[60:61]'
sU0, sU1 = 's62', 's63'
sCH, sBA, sS, sHH = 's64', 's65', 's66', 's67'
sR0, sR1, sR2, sR3 = 's68', 's69', 's70', 's71'
MK = 96
TSREG = [76,78,80,82,84,86,88,90,92,94,28,0]
TSSLOT = dict(start=0, hp_loaded=1, hp_pub=2, wq_landed=1, h_got=2, q_pub=3, ckv_iss=3, c_got=4, b1=5, b3=6, d_st=7, d_flag=8,
              dfl_got=9, d_got=10, e_pub=11, e_trig=9, e_got=10, f_pub=11, mr_pub=9, fe_got=10, out_st=11)
vL, vG, vT, vB4 = 'v1', 'v2', 'v3', 'v4'

def vr(a, n=1): return f'v{a}' if n == 1 else f'v[{a}:{a+n-1}]'

class Gen:
    def __init__(self, cfg):
        self.cfg = dict(CFG); self.cfg.update(cfg)
        self.a = Asm(); self.tsnames = []; self.failsites = []
    def ts(self, name):
        if not self.cfg['ts']: return
        slots = self.cfg.get('tsmap') or TSSLOT
        if name not in slots: return
        r = TSREG[slots[name]]
        if name not in self.tsnames: self.tsnames.append(name)
        self.a(f's_memrealtime s[{r}:{r+1}]')
    def srd(self, quad, ptr, size):
        q = int(quad[2:quad.index(':')])
        self.a(f's_mov_b32 s{q}, s{ptr}\ns_mov_b32 s{q+1}, s{ptr+1}\ns_mov_b32 s{q+2}, {size}\ns_mov_b32 s{q+3}, 0x00020000')
    def nt(self, key='nt'): return ' nt' if self.cfg[key] else ''
    def poll_begin(self):
        l = self.a.label('poll')
        self.a(f's_mov_b32 {sCNT}, {self.cfg["limit"]}\n{l}:')
        return l
    def poll_end(self, l, code, sleep, vacc):
        a = self.a; ok = a.label('ok')
        if code not in self.failsites: self.failsites.append(code)
        a(f'v_cmp_ne_u32 vcc, 0, {vacc}')
        a(f's_cbranch_vccz {ok}')
        a(f's_sub_u32 {sCNT}, {sCNT}, 1')
        a(f's_cbranch_scc1 L_fail_{code}')
        if sleep: a(f's_sleep {sleep}')
        a(f's_branch {l}')
        a(f'{ok}:')
    def tagchk(self, vacc, regs):
        a = self.a
        for k, r in enumerate(regs):
            if k == 0: a(f'v_xor_b32 {vacc}, {sTAG}, {r}')
            else: a(f'v_bitop3_b32 {vacc}, {vacc}, {r}, {sTAG} bitop3:0xf6')
    def crossrow(self, regs, tmp, op):
        a = self.a
        for sw in ('v_permlane16_swap_b32', 'v_permlane32_swap_b32'):
            for r, t in zip(regs, tmp): a(f'v_mov_b32 {t}, {r}')
            for r, t in zip(regs, tmp): a(f'{sw} {r}, {t}')
            for r, t in zip(regs, tmp): a(f'{op} {r}, {r}, {t}')
    def allsum(self, regs, tmp, op='v_add_f32'):
        a = self.a
        for n in (8, 4, 2, 1):
            for r in regs: a(f'{op}_dpp {r}, {r}, {r} row_ror:{n} row_mask:0xf bank_mask:0xf')
        self.crossrow(regs, tmp, op)
    def ckv_prep(self, v):
        a = self.a
        self.srd(SA, P_CKV, 16 << 20)
        a(f'v_lshlrev_b32 v{v}, 4, {vL}')
        for k in range(1, 8): a(f'v_xor_b32 v{v+k}, {k << 5}, v{v}')
    def ckv_group(self, gi, v, ntkey):
        a = self.a
        a(f's_add_u32 {sU1}, {sWB}, {gi*4096}\ns_mov_b32 m0, {sU1}\ns_add_u32 {sU0}, {sCH}, {sU1}')
        for k in range(4):
            n = 4*gi + k
            off = f' offset:{k*1024}' if k else ''
            a(f'buffer_load_dwordx4 v{v + (n & 7)}, {SA}, {sU0} offen{off}{self.nt(ntkey)} lds')
    def dma_ckv_p(self):
        a = self.a
        thr = self.cfg.get('pthr', 2)
        self.srd(SA, P_CKV, 16 << 20)
        a(f'v_lshlrev_b32 v6, 4, {vL}')
        for k in range(1, 8): a(f'v_xor_b32 v{6+k}, {k << 5}, v6')
        for n in range(16):
            if n % 4 == 0:
                a(f's_add_u32 {sT1}, {sWB}, {(n>>2)*4096}')
                a(f's_mov_b32 m0, {sT1}')
                a(f's_add_u32 {sT0}, {sCH}, {sT1}')
            off = f' offset:{(n & 3)*1024}' if n & 3 else ''
            a(f'buffer_load_dwordx4 v{6 + (n & 7)}, {SA}, {sT0} offen{off}{self.nt("nt_ckv_p")} lds')
            if thr and n == thr - 1: a('s_waitcnt vmcnt(0)')
    def dma_groups(self, srd, voff4, sregs, mregs, nt):
        a = self.a
        for sr, mr in zip(sregs, mregs):
            a(f's_mov_b32 m0, {mr}\ns_nop 0')
            for k in range(4):
                off = f' offset:{k*1024}' if k else ''
                a(f'buffer_load_dwordx4 {voff4[k]}, {srd}, {sr} offen{off}{nt} lds')
    def rot_groups(self, ng, rot, sbase, step_log2, mbase, sregs, mregs, tmp=sCNT):
        a = self.a
        for j in range(ng):
            if rot is None:
                a(f's_add_u32 {sregs[j]}, {sbase}, {j << step_log2}')
                a(f's_add_u32 {mregs[j]}, {mbase}, {j*4096}')
            else:
                a(f's_add_u32 {tmp}, {rot}, {j}\ns_and_b32 {tmp}, {tmp}, {ng-1}')
                a(f's_lshl_b32 {sregs[j]}, {tmp}, {step_log2}\ns_add_u32 {sregs[j]}, {sregs[j]}, {sbase}')
                a(f's_lshl_b32 {mregs[j]}, {tmp}, 12\ns_add_u32 {mregs[j]}, {mregs[j]}, {mbase}')
    def voff128(self, v, rowstride):
        a = self.a
        a(f'''
        v_lshrrev_b32 v{v}, 3, {vL}
        v_mul_u32_u24 v{v}, {rowstride}, v{v}
        v_and_b32 v{v+1}, 7, {vL}
        v_lshlrev_b32 v{v+2}, 1, {vG}
        v_xor_b32 v{v+1}, v{v+1}, v{v+2}
        v_lshl_add_u32 v{v}, v{v+1}, 4, v{v}
        ''')
        for k in range(1, 4): a(f'v_add_u32 v{v+k}, {k*(8*rowstride-1024)}, v{v}')
        return [f'v{v+k}' for k in range(4)]
    def tr128_addr(self, v, base_s):
        a = self.a
        a(f'''
        v_lshrrev_b32 v{v}, 2, {vT}
        v_lshl_add_u32 v{v}, {vG}, 2, v{v}
        v_lshrrev_b32 v{v+1}, 1, v{v}
        v_and_b32 v{v+1}, 3, v{v+1}
        v_lshlrev_b32 v{v+1}, 5, v{v+1}
        v_lshl_add_u32 v{v}, v{v}, 7, v{v+1}
        v_lshrrev_b32 v{v+1}, 1, {vB4}
        v_lshl_add_u32 v{v}, v{v+1}, 4, v{v}
        v_and_b32 v{v+1}, 1, {vB4}
        v_lshl_add_u32 v{v}, v{v+1}, 3, v{v}
        v_add_u32 v{v}, {base_s}, v{v}
        ''')
        for ct in range(1, 4): a(f'v_xor_b32 v{v+ct}, {ct << 5}, v{v}')
        return [f'v{v+ct}' for ct in range(4)]
    def tr_reads(self, addrs, kss, rb, dst, base_off=0):
        a = self.a
        for ks in kss:
            for ct, ad in enumerate(addrs):
                d = dst + 4 * (ks * len(addrs) + ct)
                for hi in range(2):
                    a(f'ds_read_b64_tr_b16 {vr(d + 2*hi, 2)}, {ad} offset:{base_off + (32*ks + 16*hi)*rb}')
    def sel4(self, dst, srcs, masks):
        a = self.a
        a(f'v_cndmask_b32 {dst}, {srcs[0]}, {srcs[1]}, {masks[0]}')
        a(f'v_cndmask_b32 {dst}, {dst}, {srcs[2]}, {masks[1]}')
        a(f'v_cndmask_b32 {dst}, {dst}, {srcs[3]}, {masks[2]}')
    def masks_t(self):
        for k, val in enumerate((0x22222222, 0x44444444, 0x88888888)):
            self.a(f's_mov_b32 s{MK+2*k}, {val:#x}\ns_mov_b32 s{MK+2*k+1}, {val:#x}')
        return [f's[{MK+2*k}:{MK+2*k+1}]' for k in range(3)]
    def masks_q(self):
        for k, val in enumerate((0x00f000f0, 0x0f000f00, 0xf000f000)):
            self.a(f's_mov_b32 s{MK+2*k}, {val:#x}\ns_mov_b32 s{MK+2*k+1}, {val:#x}')
        return [f's[{MK+2*k}:{MK+2*k+1}]' for k in range(3)]
    def masks_g(self):
        for k, (lo, hi) in enumerate(((0xffff0000, 0), (0, 0x0000ffff), (0, 0xffff0000))):
            self.a(f's_mov_b32 s{MK+2*k}, {lo:#x}\ns_mov_b32 s{MK+2*k+1}, {hi:#x}')
        return [f's[{MK+2*k}:{MK+2*k+1}]' for k in range(3)]
    def mfma(self, acc, A, B, first):
        self.a(f'v_mfma_f32_16x16x32_bf16 {vr(acc,4)}, {vr(A,4)}, {vr(B,4)}, {"0" if first else vr(acc,4)}')
    def tree_add(self, regs):
        a = self.a; n = len(regs); step = 1
        while step < n:
            for k in range(0, n - step, 2*step): a(f'v_add_f32 {regs[k]}, {regs[k]}, {regs[k+step]}')
            step *= 2

    def prologue(self):
        a = self.a
        a('''
        s_cmp_ge_u32 s2, 256
        s_cbranch_scc1 L_end
        s_load_dwordx16 s[16:31], s[0:1], 0
        s_load_dwordx8 s[32:39], s[0:1], 64
        s_load_dwordx4 s[40:43], s[0:1], 96
        ''')
        self.ts('start')
        a(f'''
        v_lshrrev_b32 v5, 6, v0
        v_and_b32 {vL}, 63, v0
        v_readfirstlane_b32 {sW}, v5
        v_lshrrev_b32 {vG}, 4, {vL}
        v_and_b32 {vT}, 15, {vL}
        v_and_b32 {vB4}, 3, {vL}
        s_and_b32 {sX}, s2, 7
        s_lshr_b32 {sI}, s2, 3
        s_lshl_b32 {sWB}, {sW}, 14
        s_mov_b32 s60, 0x000f000f
        s_mov_b32 s61, 0x000f000f
        s_lshl_b32 {sCH}, {sX}, 4
        s_and_b32 {sT0}, {sI}, 15
        s_add_u32 {sCH}, {sCH}, {sT0}
        s_lshr_b32 {sBA}, {sCH}, 5
        s_and_b32 {sS}, {sCH}, 31
        s_lshr_b32 {sHH}, {sI}, 4
        s_lshl_b32 {sCH}, {sCH}, 17
        s_cmp_lt_u32 {sI}, 16
        s_cbranch_scc1 L_qpre
        ''')
    def after_kernarg(self):
        a = self.a
        a(f's_waitcnt lgkmcnt(0)\ns_load_dword {sEP}, s[{P_WS}:{P_WS+1}], 0')
    def tag(self):
        self.srd(WS, P_WS, WS_SIZE)
        self.a(f'''
        s_waitcnt lgkmcnt(0)
        s_add_u32 {sTAG}, {sEP}, 1
        s_mul_i32 {sTAG}, {sTAG}, {TAGMUL:#x}
        s_add_u32 {sTAG}, {sTAG}, 0x7f4a7c15
        ''')
    def dma_ckv(self, ntkey, groups=(0, 1, 2, 3), v=6):
        a = self.a
        self.srd(SA, P_CKV, 16 << 20)
        a(f'v_lshlrev_b32 v{v}, 4, {vL}')
        for k in range(1, 8): a(f'v_xor_b32 v{v+k}, {k << 5}, v{v}')
        for gi in groups:
            a(f's_add_u32 {sT1}, {sWB}, {gi*4096}')
            a(f's_mov_b32 m0, {sT1}')
            a(f's_add_u32 {sT0}, {sCH}, {sT1}')
            for k in range(4):
                n = 4*gi + k
                off = f' offset:{k*1024}' if k else ''
                a(f'buffer_load_dwordx4 v{v + (n & 7)}, {SA}, {sT0} offen{off}{self.nt(ntkey)} lds')

    def silu_addr(self):
        self.a(f'''
        v_lshlrev_b32 v16, 3, v0
        v_lshrrev_b32 v20, 7, v0
        v_mul_u32_u24 v20, {SVS}, v20
        v_and_b32 v21, 127, v0
        v_lshrrev_b32 v21, 3, v21
        v_lshl_add_u32 v20, v21, 6, v20
        v_and_b32 v21, 3, v0
        v_lshl_add_u32 v20, v21, 4, v20
        v_lshrrev_b32 v21, 2, v0
        v_and_b32 v21, 1, v21
        v_lshl_add_u32 v20, v21, 3, v20
        v_add_u32 v20, {SV}, v20
        ''')
    def silu_calc(self):
        a = self.a
        a('''
        v_lshlrev_b32 v22, 16, v18
        v_and_b32 v23, 0xffff0000, v18
        v_lshlrev_b32 v24, 16, v19
        v_and_b32 v25, 0xffff0000, v19
        ''')
        for r in range(22, 26): a(f'v_mul_f32 v{r+4}, {fhex(-LOG2E)}, v{r}')
        for r in range(22, 26): a(f'v_exp_f32 v{r+4}, v{r+4}')
        for r in range(22, 26): a(f'v_add_f32 v{r+4}, 1.0, v{r+4}')
        for r in range(22, 26): a(f'v_rcp_f32 v{r+4}, v{r+4}')
        for r in range(22, 26): a(f'v_mul_f32 v{r}, v{r}, v{r+4}')
        a('v_cvt_pk_bf16_f32 v22, v22, v23\nv_cvt_pk_bf16_f32 v23, v24, v25\nds_write_b64 v20, v[22:23]')
    def sv_frag_addr(self, v):
        self.a(f'''
        v_mul_u32_u24 {v}, {SVS}, {vB4}
        v_lshl_add_u32 {v}, {vG}, 4, {v}
        s_lshl_b32 {sT2}, {sW}, 7
        s_add_u32 {sT2}, {sT2}, {SV}
        v_add_u32 {v}, {sT2}, {v}
        ''')

    def p_pre(self):
        a = self.a
        a('; ================= P pre')
        if self.cfg.get('stopq'):
            self.after_kernarg(); self.tag(); a('s_branch L_exit')
        skip = a.label('nohp'); done = a.label('hpdone')
        a(f's_sub_u32 {sR0}, {sI}, 16\ns_cmp_ge_u32 {sR0}, 4\ns_cbranch_scc1 {skip}')
        vo = self.voff128(6, 6144)
        a(f"""
        s_lshl_b32 {sT0}, {sR0}, 2
        s_and_b32 {sT4}, {sW}, 3
        s_add_u32 {sT0}, {sT0}, {sT4}
        s_mul_i32 {sT0}, {sT0}, {32*6144}
        s_lshr_b32 {sT1}, {sW}, 2
        s_lshl_b32 {sT1}, {sT1}, 10
        s_add_u32 {sT0}, {sT0}, {sT1}
        s_lshl_b32 {sT3}, {sX}, 7
        s_add_u32 {sT0}, {sT0}, {sT3}
        v_lshrrev_b32 v16, 7, v0
        v_and_b32 v17, 127, v0
        v_lshlrev_b32 v18, 10, v16
        v_lshl_add_u32 v18, v17, 1, v18
        s_lshl_b32 {sT2}, {sR0}, 8
        s_lshl_b32 {sT5}, {sT4}, 10
        v_lshlrev_b32 v30, 4, {vL}
        v_lshrrev_b32 v39, 1, v0
        v_and_b32 v39, 3, v39
        v_lshrrev_b32 v37, 3, v0
        v_and_b32 v36, 1, v0
        v_lshlrev_b32 v35, 10, v39
        v_lshl_add_u32 v35, v37, 3, v35
        v_lshl_add_u32 v35, v36, 2, v35
        """)
        self.after_kernarg()
        self.srd(SB, P_C, 4096); self.srd(SC, P_X, 4096); self.srd(SA, P_WMOD, 512 * 6144)
        self.ts('hp_karg')
        a(f"""
        buffer_load_ushort v20, v18, {SB}, {sT2} offen
        buffer_load_dwordx4 v[40:43], v30, {SC}, {sT5} offen
        buffer_load_dword v38, v35, {SC}, {sT3} offen
        """)
        self.dma_groups(SA, vo, [sT0], [sWB], self.nt())
        self.tag()
        ad = self.tr128_addr(6, sWB)
        mq = self.masks_q()
        a(f"""
        v_mul_u32_u24 v10, {QBS}, v16
        v_lshrrev_b32 v11, 5, v17
        v_lshl_add_u32 v10, v11, 6, v10
        v_lshrrev_b32 v11, 2, v17
        v_and_b32 v11, 3, v11
        v_lshl_add_u32 v10, v11, 4, v10
        v_lshrrev_b32 v11, 4, v17
        v_and_b32 v11, 1, v11
        v_lshl_add_u32 v10, v11, 3, v10
        v_and_b32 v11, 3, v17
        v_lshl_add_u32 v10, v11, 1, v10
        v_add_u32 v10, {SV}, v10
        v_mul_u32_u24 v11, {QBS}, {vB4}
        v_lshl_add_u32 v11, {vG}, 4, v11
        s_lshl_b32 {sT0}, {sT4}, 6
        s_add_u32 {sT0}, {sT0}, {SV}
        v_add_u32 v11, {sT0}, v11
        s_lshl_b32 {sT0}, {sW}, 10
        s_add_u32 {sT0}, {sT0}, {RED}
        v_lshrrev_b32 v12, 2, {vT}
        v_lshlrev_b32 v12, 8, v12
        v_lshl_add_u32 v12, {vG}, 6, v12
        v_lshl_add_u32 v12, {vB4}, 4, v12
        v_add_u32 v12, {sT0}, v12
        v_lshlrev_b32 v13, 3, v0
        v_add_u32 v13, {RED}, v13
        v_lshlrev_b32 v14, 3, v39
        v_add_u32 v14, {LS}, v14
        v_lshlrev_b32 v15, 11, v39
        v_lshl_add_u32 v15, v37, 4, v15
        v_lshl_add_u32 v15, v36, 3, v15
        s_lshl_b32 {sT6}, {sR0}, 13
        s_lshl_b32 {sT0}, {sX}, 8
        s_add_u32 {sT6}, {sT6}, {sT0}
        s_add_u32 {sT6}, {sT6}, {WS_H}
        s_lshl_b32 {sT3}, {sT4}, 3
        s_add_u32 {sT3}, {sT3}, {LS}
        v_mov_b32 v50, {sT3}
        s_cmp_eq_u32 {sR0}, 0
        s_cselect_b32 {sT7}, 1.0, 0
        v_mov_b32 v45, {sTAG}
        s_waitcnt vmcnt(6)
        v_lshlrev_b32 v20, 16, v20
        v_mul_f32 v21, {fhex(-LOG2E)}, v20
        v_exp_f32 v21, v21
        s_nop 0
        v_add_f32 v21, 1.0, v21
        v_rcp_f32 v21, v21
        s_nop 0
        v_mul_f32 v20, v20, v21
        v_cvt_pk_bf16_f32 v20, v20, v20
        ds_write_b16 v10, v20
        s_waitcnt vmcnt(5)
        """)
        self.ts('hp_c')
        for k in range(4):
            a(f'v_lshlrev_b32 v{52+2*k}, 16, v{40+k}\nv_and_b32 v{53+2*k}, 0xffff0000, v{40+k}')
        a('v_add_f32 v48, v52, v53\nv_mul_f32 v49, v52, v52\nv_fmac_f32 v49, v53, v53')
        for k in range(54, 60): a(f'v_add_f32 v48, v48, v{k}\nv_fmac_f32 v49, v{k}, v{k}')
        self.allsum(['v48', 'v49'], ['v51', 'v52'])
        a(f"""
        v_mul_f32 v48, {fhex(1/512)}, v48
        v_mul_f32 v49, {fhex(1/512)}, v49
        v_fma_f32 v49, -v48, v48, v49
        v_max_f32 v49, 0, v49
        v_add_f32 v49, {fhex(1e-5)}, v49
        v_rsq_f32 v49, v49
        s_nop 0
        ds_write_b64 v50, v[48:49]
        s_waitcnt lgkmcnt(0)
        """)
        self.ts('hp_ln')
        a('s_barrier\nds_read_b128 v[52:55], v11\ns_waitcnt vmcnt(0)')
        self.ts('hp_loaded')
        self.tr_reads(ad, range(1), 128, 16)
        a('s_waitcnt lgkmcnt(0)')
        for ct in range(4): self.mfma(60+4*ct, 16+4*ct, 52, True)
        for r in range(4): self.sel4(f'v{76+r}', [f'v{60+4*ct+r}' for ct in range(4)], mq)
        a('ds_write_b128 v12, v[76:79]\ns_waitcnt lgkmcnt(0)\ns_barrier')
        fin = a.label('hpfin')
        a(f's_cmp_ge_u32 {sW}, 2\ns_cbranch_scc1 {fin}')
        for ww in range(8): a(f'ds_read_b64 {vr(16+2*ww,2)}, v13 offset:{ww*1024}')
        a("""
        ds_read_b64 v[32:33], v14
        v_lshlrev_b32 v40, 16, v38
        v_and_b32 v41, 0xffff0000, v38
        s_waitcnt lgkmcnt(0)
        v_sub_f32 v40, v40, v32
        v_sub_f32 v41, v41, v32
        v_mul_f32 v40, v40, v33
        v_mul_f32 v41, v41, v33
        """)
        self.tree_add(['v16', 'v18', 'v20', 'v22'])
        self.tree_add(['v17', 'v19', 'v21', 'v23'])
        self.tree_add(['v24', 'v26', 'v28', 'v30'])
        self.tree_add(['v25', 'v27', 'v29', 'v31'])
        a(f"""
        v_add_f32 v24, {sT7}, v24
        v_add_f32 v25, {sT7}, v25
        v_fmac_f32 v16, v40, v24
        v_fmac_f32 v17, v41, v25
        v_cvt_pk_bf16_f32 v44, v16, v17
        buffer_store_dwordx2 v[44:45], v15, {WS}, {sT6} offen sc1
        {fin}:
        s_barrier
        """)
        self.ts('hp_pub')
        a(f's_branch {done}\n{skip}:')
        self.after_kernarg()
        self.tag()
        if self.cfg.get('pdelay'):
            a(f's_lshl_b32 {sT0}, {sX}, 8\ns_add_u32 {sT0}, {sT0}, {WS_H + 3*8192}\nv_mov_b32 v5, 0')
            l = self.poll_begin()
            a(f'buffer_load_dwordx2 v[6:7], v5, {WS}, {sT0} offen sc1\ns_waitcnt vmcnt(0)')
            self.tagchk('v8', ['v7'])
            self.poll_end(l, 12, 4, 'v8')
        a(f'{done}:')
        self.dma_ckv_p()
        self.ts('ckv_iss')
        a(f"""
        s_sub_u32 {sR0}, {sI}, 16
        s_lshr_b32 {sR1}, {sR0}, 2
        s_lshl_b32 {sT0}, {sX}, 2
        s_add_u32 {sR1}, {sR1}, {sT0}          ; hp
        s_and_b32 {sR0}, {sR0}, 3              ; bp
        s_mov_b32 {sPLO}, 0x05040100
        s_mov_b32 {sPHI}, 0x07060302
        """)
        self.srd(SB, P_WUV, 4 << 20)
        a(f"""
        v_lshlrev_b32 v96, 16, {vG}
        v_lshl_add_u32 v96, {vT}, 4, v96
        s_lshl_b32 {sU0}, {sW}, 19
        s_lshl_b32 {sU1}, {sR1}, 8
        s_add_u32 {sU0}, {sU0}, {sU1}
        """)
        if self.cfg.get('pfuv', True): self.l2_prefetch('uv')
        if self.cfg.get('pfo_early', True): self.l2_prefetch('o')

    def wuv_group(self, gi):
        a = self.a
        sk = a.label('nouv')
        a(f's_cmp_lt_u32 {sI}, 16\ns_cbranch_scc1 {sk}')
        a(f's_add_u32 {sU1}, {sU0}, {((gi >> 1) * 32 + (gi & 1) * 4) * 8192}')
        for e in range(4):
            n = 4*gi + e
            a(f'buffer_load_dwordx4 {vr(112+4*n,4)}, v96, {SB}, {sU1} offen{self.nt()}')
            if e < 3: a(f's_add_u32 {sU1}, {sU1}, 8192')
        a(f'{sk}:')
    def wuv_unit(self, k):
        a = self.a
        a(f's_add_u32 {sU1}, {sU0}, {k * 32 * 8192}')
        for e in range(8):
            a(f'buffer_load_dwordx4 {vr(112+32*k+4*e,4)}, v96, {SB}, {sU1} offen{self.nt()}')
            if e < 7: a(f's_add_u32 {sU1}, {sU1}, 8192')

    def q_pre(self):
        a = self.a
        a('; ================= Q pre')
        a(f'''
        s_lshr_b32 {sR1}, {sI}, 2
        s_lshl_b32 {sT0}, {sX}, 2
        s_add_u32 {sR1}, {sR1}, {sT0}          ; hq
        s_and_b32 {sR0}, {sI}, 3               ; cq
        v_lshlrev_b32 v9, 1, {vG}
        v_xor_b32 v10, {vT}, v9
        v_lshlrev_b32 v6, 13, {vG}
        v_lshl_add_u32 v6, v10, 4, v6          ; k=0
        v_xor_b32 v7, 128, v6
        v_add_u32 v8, {2*31744}, v6            ; k=2
        v_add_u32 v9, {3*31744}, v7            ; k=3
        v_add_u32 v7, 31744, v7                ; k=1
        s_lshl_b32 {sU0}, {sW}, 19
        s_lshl_b32 {sU1}, {sR1}, 8
        s_add_u32 {sU0}, {sU0}, {sU1}
        ''')
        self.rot_groups(4, sR0, sU0, 17, sWB, [sT0, sT1, sT2, sT3], [sT4, sT5, sT6, sT7])
        a(f'''
        s_lshl_b32 {sU0}, {sR0}, 20
        s_add_u32 {sU0}, {sU0}, {sU1}
        s_lshl_b32 {sU1}, {sW}, 17
        s_add_u32 {sU0}, {sU0}, {sU1}
        ''')
        self.after_kernarg()
        self.ts('q_karg')
        self.srd(SA, P_WQ, 4 << 20)
        self.dma_groups(SA, ['v6', 'v7', 'v8', 'v9'], [sT0, sT1, sT2, sT3], [sT4, sT5, sT6, sT7], self.nt())
        self.ts('q_iss')
        self.srd(SB, P_WUK, 4 << 20)
        a(f's_lshl_b32 {sU1}, {sW}, 12\ns_add_u32 {sU1}, {sU1}, {SM}')
        self.dma_groups(SB, ['v6', 'v7', 'v8', 'v9'], [sU0], [sU1], self.nt())
        self.tag()
        a(f'''
        v_lshrrev_b32 v8, 2, {vT}
        v_lshl_add_u32 v8, {vG}, 2, v8
        v_and_b32 v9, 7, v8
        v_lshlrev_b32 v9, 5, v9
        v_lshl_add_u32 v8, v8, 8, v9
        v_lshrrev_b32 v9, 1, {vB4}
        v_lshl_add_u32 v8, v9, 4, v8
        v_and_b32 v9, 1, {vB4}
        v_lshl_add_u32 v8, v9, 3, v8
        v_add_u32 v8, {sWB}, v8
        ''')
        for ct in range(1, 8): a(f'v_xor_b32 v{8+ct}, {ct << 5}, v8')
        a(f'''
        v_lshlrev_b32 v152, 11, {vG}
        v_lshl_add_u32 v152, {vT}, 4, v152
        v_mul_u32_u24 v170, 192, {vG}
        v_lshrrev_b32 v171, 3, {vT}
        v_lshl_add_u32 v170, v171, 6, v170
        v_lshl_add_u32 v170, {vB4}, 4, v170
        v_lshrrev_b32 v171, 2, {vT}
        v_and_b32 v171, 1, v171
        v_lshl_add_u32 v170, v171, 3, v170
        v_add_u32 v170, {sWB}, v170
        v_mul_u32_u24 v174, 192, {vB4}
        v_lshl_add_u32 v174, {vG}, 4, v174
        v_add_u32 v174, {sWB}, v174
        s_lshl_b32 {sT3}, {sW}, 8
        s_add_u32 {sT3}, {sT3}, {WS_H}
        s_add_u32 {sT2}, {sWB}, 2048
        v_lshrrev_b32 v156, 2, {vT}
        v_lshlrev_b32 v156, 8, v156
        v_lshl_add_u32 v156, {vG}, 6, v156
        v_lshl_add_u32 v156, {vB4}, 4, v156
        v_add_u32 v156, {sT2}, v156
        v_lshlrev_b32 v157, 2, v0
        v_add_u32 v157, 2048, v157
        v_add_u32 v159, 0x10000, v157          ; regions 4..7
        v_lshrrev_b32 v154, 2, {vL}
        v_and_b32 v154, 3, v154
        v_mul_u32_u24 v154, {QBS}, v154
        v_lshl_add_u32 v154, {vG}, 3, v154
        v_lshl_add_u32 v154, {vB4}, 1, v154
        s_lshl_b32 {sT2}, {sW}, 5
        s_add_u32 {sT2}, {sT2}, {QB}
        v_add_u32 v154, {sT2}, v154
        v_mul_u32_u24 v155, {QBS}, {vB4}
        v_lshl_add_u32 v155, {vG}, 4, v155
        v_add_u32 v155, {QB}, v155
        v_lshlrev_b32 v158, 16, {vB4}
        v_lshl_add_u32 v158, {vG}, 4, v158
        s_lshl_b32 {sT4}, {sR1}, 11
        s_lshl_b32 {sT1}, {sR0}, 9
        s_add_u32 {sT4}, {sT4}, {sT1}
        s_lshl_b32 {sT1}, {sW}, 6
        s_add_u32 {sT4}, {sT4}, {sT1}
        s_add_u32 {sT4}, {sT4}, {WS_Q}
        s_mov_b32 {sT5}, {fhex(SCALE)}
        v_mov_b32 v149, {sTAG}
        v_mov_b32 v151, {sTAG}
        v_and_b32 v5, 7, {vT}
        v_lshlrev_b32 v5, 5, v5
        v_lshlrev_b32 v160, 4, {vG}
        v_xor_b32 v160, v160, v5
        v_lshl_add_u32 v160, {vT}, 8, v160
        v_add_u32 v160, {sU1}, v160
        v_xor_b32 v161, 64, v160
        v_xor_b32 v162, 128, v160
        v_xor_b32 v163, 192, v160
        s_waitcnt vmcnt(4)
        ''')
        self.ts('wq_landed')
        if self.cfg.get('stopq'):
            a('s_waitcnt vmcnt(0)'); self.ts('q_atrig'); a('s_branch L_exit')
        self.tr_reads([f'v{8+ct}' for ct in range(8)], range(2), 256, 16)
        mq = self.masks_q()
        a('s_waitcnt vmcnt(0)')
        for st in range(4): a(f'ds_read_b128 {vr(112+4*st,4)}, v{160+st}')
        a('s_waitcnt lgkmcnt(0)')
        self.ckv_prep(176)
        if self.cfg.get('atrig', False):
            sk = a.label('noatrig')
            a(f's_cmp_lg_u32 {sW}, 0\ns_cbranch_scc1 {sk}')
            a(f'''
            v_lshrrev_b32 v168, 3, {vL}
            v_and_b32 v168, 3, v168
            v_lshlrev_b32 v168, 13, v168
            v_and_b32 v169, 7, {vL}
            v_lshl_add_u32 v168, v169, 8, v168
            v_add_u32 v168, {3*2048+248}, v168
            s_mov_b32 {sT2}, {WS_H}
            ''')
            l = self.poll_begin()
            a(f'buffer_load_dwordx2 v[128:129], v168, {WS}, {sT2} offen sc1\ns_waitcnt vmcnt(0)')
            self.tagchk('v153', ['v129'])
            self.poll_end(l, 13, self.cfg['sleepA'], 'v153')
            a(f'{sk}:\ns_barrier')
            self.ts('q_atrig')
        a(f's_add_u32 {sT0}, {sT3}, 8192\ns_add_u32 {sT1}, {sT3}, 16384\ns_add_u32 {sT2}, {sT3}, 24576')
        l = self.poll_begin()
        for k, so in enumerate((sT3, sT0, sT1, sT2)):
            a(f'buffer_load_dwordx4 {vr(128+4*k,4)}, v152, {WS}, {so} offen sc1')
        a('s_waitcnt vmcnt(0)')
        self.tagchk('v153', [f'v{128+4*k+o}' for k in range(4) for o in (1, 3)])
        self.poll_end(l, 1, self.cfg['sleepA'], 'v153')
        self.ts('h_got')
        a(f's_mov_b32 {sT0}, 0x00003f80\ns_mov_b32 {sT1}, 0x3f800000')
        for k in range(4):
            for j, (src, sel) in enumerate(((128+4*k, sT0), (128+4*k, sT1), (130+4*k, sT0), (130+4*k, sT1))):
                a(f'v_dot2_f32_bf16 v{144+j}, v{src}, {sel}, {"0" if k == 0 else f"v{144+j}"}')
        a('v_cvt_pk_bf16_f32 v144, v144, v145\nv_cvt_pk_bf16_f32 v145, v146, v147\nds_write_b64 v170, v[144:145]\ns_waitcnt lgkmcnt(0)')
        a('ds_read_b128 v[128:131], v174\nds_read_b128 v[136:139], v174 offset:64')
        if self.cfg.get('ckvA', True): self.ckv_group(1, 176, 'nt_ckv_q')
        a('s_waitcnt lgkmcnt(0)')
        for ks in range(2):
            for ct in range(8): self.mfma(80+4*ct, 16+4*(ks*8+ct), 128+8*ks, ks == 0)
        self.ts('q_mfma')
        for hf in range(2):
            for r in range(4): self.sel4(f'v{136+4*hf+r}', [f'v{80+16*hf+4*ct+r}' for ct in range(4)], mq)
            a(f'ds_write_b128 v156, {vr(136+4*hf,4)} offset:{hf*1024}')
        a('s_waitcnt lgkmcnt(0)')
        self.ts('q_wr')
        a('s_barrier')
        self.ts('q_bar1')
        if self.cfg.get('ckvB', True): self.ckv_group(2, 176, 'nt_ckv_q')
        for ww in range(8): a(f'ds_read_b32 v{128+ww}, v{157 if ww < 4 else 159} offset:{(ww&3)*16384}')
        a('s_waitcnt lgkmcnt(0)')
        self.tree_add([f'v{128+k}' for k in range(8)])
        a('''
        v_cvt_pk_bf16_f32 v128, v128, v128
        ds_write_b16 v154, v128
        s_waitcnt lgkmcnt(0)
        s_barrier
        ''')
        self.ts('q_bar2')
        for st in range(4): a(f'ds_read_b128 {vr(128+4*st,4)}, v155 offset:{st*64}')
        for st in range(4):
            a(f's_waitcnt lgkmcnt({3-st})')
            self.mfma(144, 112+4*st, 128+4*st, st == 0)
        a(f'''
        v_mul_f32 v144, {sT5}, v144
        v_mul_f32 v145, {sT5}, v145
        v_mul_f32 v146, {sT5}, v146
        v_mul_f32 v147, {sT5}, v147
        v_cvt_pk_bf16_f32 v148, v144, v145
        v_cvt_pk_bf16_f32 v150, v146, v147
        s_mov_b64 exec, {mT4}
        buffer_store_dwordx4 v[148:151], v158, {WS}, {sT4} offen sc1
        s_mov_b64 exec, -1
        ''')
        self.ts('q_pub')
        a('s_barrier')
        for gi in [0, 3] + ([] if self.cfg.get('ckvA', True) else [1]) + ([] if self.cfg.get('ckvB', True) else [2]):
            self.ckv_group(gi, 176, 'nt_ckv_q')

    def att_addr(self):
        a = self.a
        a(f'''
        v_and_b32 v5, 7, {vT}
        v_lshlrev_b32 v5, 5, v5
        v_lshlrev_b32 v244, 4, {vG}
        v_xor_b32 v244, v244, v5
        v_lshl_add_u32 v244, {vT}, 10, v244
        v_xor_b32 v245, 64, v244
        v_xor_b32 v246, 128, v244
        v_xor_b32 v247, 192, v244
        v_add_u32 v248, {QT}, v244
        v_add_u32 v249, {QT}, v245
        v_add_u32 v250, {QT}, v246
        v_add_u32 v251, {QT}, v247
        v_add_u32 v244, {sWB}, v244
        v_add_u32 v245, {sWB}, v245
        v_add_u32 v246, {sWB}, v246
        v_add_u32 v247, {sWB}, v247
        v_lshrrev_b32 v80, 2, {vT}
        v_lshl_add_u32 v80, {vG}, 2, v80
        v_and_b32 v81, 7, v80
        v_lshlrev_b32 v81, 5, v81
        s_lshl_b32 {sT0}, {sW}, 7
        v_lshl_add_u32 v82, {vB4}, 4, {sT0}
        v_xor_b32 v81, v81, v82
        v_lshl_add_u32 v80, v80, 10, v81
        v_lshrrev_b32 v81, 1, {vB4}
        v_lshl_add_u32 v80, v81, 3, v80
        v_xor_b32 v81, 8, v80
        v_xor_b32 v82, 64, v80
        v_xor_b32 v83, 72, v80
        v_lshlrev_b32 v84, 4, v0
        v_lshrrev_b32 v85, 2, {vL}
        v_lshlrev_b32 v85, 11, v85
        v_lshl_add_u32 v85, {vB4}, 9, v85
        v_add_u32 v85, 504, v85
        s_lshr_b32 {sT0}, {sW}, 1
        v_and_b32 v86, 127, v0
        v_lshrrev_b32 v87, 1, v86
        s_lshl_b32 {sT1}, {sT0}, 1
        v_xor_b32 v87, {sT1}, v87
        v_lshlrev_b32 v87, 4, v87
        v_and_b32 v86, 1, v86
        v_lshl_add_u32 v86, v86, 3, v87
        s_lshl_b32 {sT1}, {sT0}, 10
        s_add_u32 {sT1}, {sT1}, {QT}
        v_add_u32 v86, {sT1}, v86
        v_xor_b32 v87, 128, v86
        v_lshlrev_b32 v89, 5, {vT}
        s_lshl_b32 {sT1}, {sW}, 2
        s_add_u32 {sT2}, {sT1}, {MX}
        v_add_u32 v88, {sT2}, v89
        s_add_u32 {sT2}, {sT1}, {LS}
        v_add_u32 v91, {sT2}, v89
        v_add_u32 v92, {LS}, v89
        v_add_u32 v89, {MX}, v89
        s_lshl_b32 {sT0}, {sT0}, 10
        s_and_b32 {sT1}, {sW}, 1
        s_lshl_b32 {sT1}, {sT1}, 3
        s_add_u32 {sT0}, {sT0}, {sT1}
        s_add_u32 {sT0}, {sT0}, {PT}
        v_lshl_add_u32 v90, {vL}, 4, {sT0}
        v_lshlrev_b32 v93, 4, {vL}
        v_add_u32 v93, {PT}, v93
        v_lshlrev_b32 v94, 15, {vT}
        v_lshl_add_u32 v94, {vG}, 4, v94
        v_lshlrev_b32 v95, 8, {vT}
        s_lshl_b32 {sT0}, {sBA}, 5
        s_lshl_b32 {sT1}, {sHH}, 4
        s_add_u32 {sT0}, {sT0}, {sT1}          ; row0
        s_lshl_b32 {sR3}, {sT0}, 8
        s_lshl_b32 {sT1}, {sS}, 3
        s_add_u32 {sR3}, {sR3}, {sT1}
        s_add_u32 {sR3}, {sR3}, {WS_FL}
        s_lshl_b32 {sR2}, {sT0}, 5
        s_add_u32 {sR2}, {sR2}, {sS}
        s_lshl_b32 {sR2}, {sR2}, 10
        s_lshl_b32 {sT1}, {sW}, 7
        s_add_u32 {sR2}, {sR2}, {sT1}
        s_add_u32 {sR2}, {sR2}, {WS_D}
        s_lshl_b32 {sT4}, {sBA}, 16
        s_lshl_b32 {sT1}, {sHH}, 15
        s_add_u32 {sT4}, {sT4}, {sT1}
        s_add_u32 {sT4}, {sT4}, {WS_Q}
        s_add_u32 {sT5}, {sT4}, 8192
        s_add_u32 {sT6}, {sT4}, 16384
        s_add_u32 {sT7}, {sT4}, 24576
        ''')
    def wuv_prep(self):
        a = self.a
        self.srd(SB, P_WUV, 4 << 20)
        a(f'''
        v_lshlrev_b32 v96, 16, {vG}
        v_lshl_add_u32 v96, {vT}, 4, v96
        s_lshl_b32 {sU0}, {sW}, 19
        s_lshl_b32 {sU1}, {sR1}, 8
        s_add_u32 {sU0}, {sU0}, {sU1}
        ''')
    def l2_prefetch(self, which):
        a = self.a
        q = a.label('pfq'); fin = a.label('pffin'); done = a.label('pfdone')
        a(f's_cmp_lt_u32 {sI}, 16\ns_cbranch_scc1 {q}')
        if which == 'uv':
            a(f's_cmp_ge_u32 {sW}, 4\ns_cbranch_scc1 {done}')
            self.srd(SC, P_WUV, 4 << 20)
            a(f'''
            v_lshrrev_b32 v97, 1, {vL}
            v_lshlrev_b32 v97, 13, v97
            v_and_b32 v98, 1, {vL}
            v_lshl_add_u32 v97, v98, 7, v97
            s_lshl_b32 {sT0}, {sR1}, 8
            s_lshl_b32 {sT1}, {sR0}, 20
            s_add_u32 {sT0}, {sT0}, {sT1}
            s_lshl_b32 {sT1}, {sW}, 18
            s_add_u32 {sT0}, {sT0}, {sT1}
            ''')
        else:
            a(f's_cmp_lt_u32 {sW}, 4\ns_cbranch_scc1 {done}')
            self.srd(SC, P_WO, 4 << 20)
            a(f'''
            v_lshlrev_b32 v97, 7, {vL}
            s_lshl_b32 {sT0}, {sR1}, 17
            s_lshl_b32 {sT1}, {sR0}, 15
            s_add_u32 {sT0}, {sT0}, {sT1}
            s_sub_u32 {sT1}, {sW}, 4
            s_lshl_b32 {sT1}, {sT1}, 13
            s_add_u32 {sT0}, {sT0}, {sT1}
            ''')
        a(f'''
        buffer_load_dword v98, v97, {SC}, {sT0} offen
        s_branch {done}
        {q}:
        ''')
        if not self.cfg.get('l2pfq', False):
            a(f'{done}:')
            return
        a(f'''
        s_lshr_b32 {sT0}, {sI}, 2
        s_and_b32 {sT2}, {sI}, 3               ; b
        s_cmp_eq_u32 {sT0}, 3
        s_cbranch_scc1 {fin}
        s_lshl_b32 {sT0}, {sT0}, 3
        s_add_u32 {sT0}, {sT0}, {sX}           ; js
        s_cmp_ge_u32 {sT0}, 22
        s_cbranch_scc1 {done}
        s_cmp_ge_u32 {sW}, 6
        s_cbranch_scc1 {done}
        ''')
        w2 = a.label('pfw2')
        a(f's_cmp_ge_u32 {sW}, 4\ns_cbranch_scc1 {w2}')
        self.srd(SC, P_W1, 512 * 2752)
        a(f'''
        v_lshrrev_b32 v97, 1, {vL}
        v_mul_u32_u24 v97, 2752, v97
        v_and_b32 v98, 1, {vL}
        v_mul_u32_u24 v98, 124, v98
        v_add_u32 v97, v97, v98
        s_lshl_b32 {sT1}, {sT2}, 2
        s_add_u32 {sT1}, {sT1}, {sW}
        s_mul_i32 {sT1}, {sT1}, {32*2752}
        s_lshl_b32 {sT0}, {sT0}, 7
        s_add_u32 {sT0}, {sT0}, {sT1}
        buffer_load_dword v98, v97, {SC}, {sT0} offen
        s_branch {done}
        {w2}:
        ''')
        self.srd(SC, P_W2, 1376 * 1024)
        a(f'''
        v_lshlrev_b32 v97, 7, {vL}
        s_lshl_b32 {sT0}, {sT0}, 16
        s_lshl_b32 {sT1}, {sT2}, 14
        s_add_u32 {sT0}, {sT0}, {sT1}
        s_sub_u32 {sT1}, {sW}, 4
        s_lshl_b32 {sT1}, {sT1}, 13
        s_add_u32 {sT0}, {sT0}, {sT1}
        buffer_load_dword v98, v97, {SC}, {sT0} offen
        s_branch {done}
        {fin}:
        ''')
        self.srd(SC, P_WMOD, 512 * 6144)
        a(f'''
        v_mul_u32_u24 v97, 6144, {vL}
        s_lshl_b32 {sT0}, {sX}, 2
        s_add_u32 {sT0}, {sT0}, {sT2}
        s_lshl_b32 {sT0}, {sT0}, 7
        s_add_u32 {sT0}, {sT0}, 2048
        s_mul_i32 {sT1}, {sW}, {64*6144}
        s_add_u32 {sT0}, {sT0}, {sT1}
        buffer_load_dword v98, v97, {SC}, {sT0} offen
        {done}:
        ''')
    def attention(self):
        a = self.a
        a('; ================= attention')
        sk = a.label('notrig'); sq = a.label('qnotrig')
        a(f's_cmp_lt_u32 {sI}, 16\ns_cbranch_scc1 {sq}')
        a(f's_cmp_lg_u32 {sW}, 0\ns_cbranch_scc1 {sk}')
        l = self.poll_begin()
        a(f'buffer_load_dwordx2 v[176:177], v85, {WS}, {sT4} offen sc1\ns_waitcnt vmcnt(0)')
        self.tagchk('v192', ['v177'])
        self.poll_end(l, 2, self.cfg['sleepC'], 'v192')
        a(f'{sk}:\ns_barrier')
        self.ts('p_ctrig')
        a(f'{sq}:')
        l = self.poll_begin()
        for n, so in enumerate((sT4, sT5, sT6, sT7)):
            a(f'buffer_load_dwordx4 {vr(176+4*n,4)}, v84, {WS}, {so} offen sc1')
        a('s_waitcnt vmcnt(4)')
        for st in range(16): a(f'ds_read_b128 {vr(16+4*st,4)}, v{244+(st&3)} offset:{(st>>2)*256}')
        a('s_waitcnt vmcnt(0)')
        self.tagchk('v192', [f'v{176+4*n+o}' for n in range(4) for o in (1, 3)])
        self.poll_end(l, 3, 1, 'v192')
        self.ts('c_got')
        a('''
        v_mov_b32 v177, v178
        v_mov_b32 v181, v182
        v_mov_b32 v185, v186
        v_mov_b32 v189, v190
        ds_write_b64 v86, v[176:177]
        ds_write_b64 v87, v[180:181] offset:4096
        ds_write_b64 v86, v[184:185] offset:8192
        ds_write_b64 v87, v[188:189] offset:12288
        ''')
        self.wuv_group(0)

        a('s_waitcnt lgkmcnt(0)\ns_barrier')
        self.ts('b1')
        NB = 8
        for st in range(NB): a(f'ds_read_b128 {vr(196+4*st,4)}, v{248+(st&3)} offset:{(st>>2)*256}')
        for st in range(16):
            a(f's_waitcnt lgkmcnt({min(16, st+NB) - st - 1})')
            self.mfma(192, 16+4*st, 196+4*(st % NB), st == 0)
            if st + NB < 16:
                s2 = st + NB
                a(f'ds_read_b128 {vr(196+4*(s2%NB),4)}, v{248+(s2&3)} offset:{(s2>>2)*256}')
        self.ts('a_sdone')
        self.wuv_group(1)
        a('v_max_f32 v228, v192, v193\nv_max3_f32 v228, v228, v194, v195')
        self.crossrow(['v228'], ['v229'], 'v_max_f32')
        a('ds_write_b32 v88, v228\ns_waitcnt lgkmcnt(0)')
        self.ts('a_preb2')
        a('s_barrier')
        self.ts('a_b2')
        self.wuv_group(2)
        a('ds_read_b128 v[236:239], v89\nds_read_b128 v[240:243], v89 offset:16')
        def pva(ks):
            for pp in range(2):
                for T in range(2):
                    d = 16 + 4 * ((ks * 2 + pp) * 2 + T)
                    for hi in range(2):
                        a(f'ds_read_b64_tr_b16 {vr(d+2*hi,2)}, v{80+2*pp+T} offset:{(ks & 1)*32768 + hi*16384}')
        pva(0)
        a('s_waitcnt lgkmcnt(8)')
        a('''
        v_max3_f32 v236, v236, v237, v238
        v_max3_f32 v240, v240, v241, v242
        v_max3_f32 v228, v236, v239, v240
        v_max_f32 v228, v228, v243
        v_sub_f32 v192, v192, v228
        v_sub_f32 v193, v193, v228
        v_sub_f32 v194, v194, v228
        v_sub_f32 v195, v195, v228
        v_exp_f32 v192, v192
        v_exp_f32 v193, v193
        v_exp_f32 v194, v194
        v_exp_f32 v195, v195
        v_add_f32 v229, v192, v193
        v_cvt_pk_bf16_f32 v234, v192, v193
        v_add_f32 v230, v194, v195
        v_cvt_pk_bf16_f32 v235, v194, v195
        v_add_f32 v229, v229, v230
        ds_write_b64 v90, v[234:235]
        ''')
        pva(1)
        for k in range(4): a(f'v_add_u32 v{80+k}, 0x10000, v{80+k}')
        self.crossrow(['v229'], ['v230'], 'v_add_f32')
        a('ds_write_b32 v91, v229')
        pva(2); pva(3)
        self.wuv_group(3)
        self.ts('a_pvaiss')
        a('s_waitcnt lgkmcnt(0)')
        self.ts('a_preb3')
        a('s_barrier')
        self.ts('b3')
        for ks in range(4): a(f'ds_read_b128 {vr(196+4*ks,4)}, v93 offset:{ks*1024}')
        a('ds_read_b128 v[236:239], v92\nds_read_b128 v[240:243], v92 offset:16')
        for ks in range(4):
            a(f's_waitcnt lgkmcnt({5-ks})')
            for pp in range(2):
                for T in range(2): self.mfma(212+4*(pp*2+T), 16+4*((ks*2+pp)*2+T), 196+4*ks, ks == 0)
        self.ts('a_pvdone')
        a('s_waitcnt lgkmcnt(0)')
        self.tree_add([f'v{236+k}' for k in range(8)])
        a(f'''
        v_rcp_f32 v237, v236
        v_log_f32 v238, v236
        v_mov_b32 v239, {sTAG}
        v_add_f32 v238, v228, v238
        ''')
        for pp in range(2):
            b = 212 + 8*pp
            for k in range(8): a(f'v_mul_f32 v{b+k}, v237, v{b+k}')
            for k in range(4): a(f'v_cvt_pk_bf16_f32 v{196+4*pp+k}, v{b+2*k}, v{b+2*k+1}')
            off = ' offset:64' if pp else ''
            a(f'buffer_store_dwordx4 {vr(196+4*pp,4)}, v94, {WS}, {sR2} offen{off} sc1')
        self.ts('d_st')
    def d_flag(self):
        a = self.a; sk = a.label('nofl')
        a(f'''
        s_barrier
        s_cmp_lg_u32 {sW}, 0
        s_cbranch_scc1 {sk}
        s_mov_b64 exec, 0xffff
        buffer_store_dwordx2 v[238:239], v95, {WS}, {sR3} offen sc1
        s_mov_b64 exec, -1
        {sk}:
        ''')
        self.ts('d_flag')

    def loader(self, srd, vo, kind, steps=(0, 1, 2, 3)):
        a = self.a
        a(f's_sub_u32 {sU0}, {sW}, 4')
        for st in steps:
            a(f"""
            s_add_u32 {sT0}, {sR0}, {st}
            s_and_b32 {sT0}, {sT0}, 3
            s_lshl_b32 {sT0}, {sT0}, 1
            s_lshr_b32 {sT1}, {sU0}, 1
            s_add_u32 {sT0}, {sT0}, {sT1}          ; region
            s_and_b32 {sT1}, {sU0}, 1
            s_lshl_b32 {sT1}, {sT1}, 3             ; n0
            s_lshl_b32 {sT4}, {sT0}, 14
            s_lshl_b32 {sT2}, {sT1}, 10
            s_add_u32 {sT4}, {sT4}, {sT2}          ; m0
            s_add_u32 {sT5}, {sT4}, 4096
            """)
            if kind == 'uv':
                a(f"""
                s_lshl_b32 {sT2}, {sT0}, 19
                s_lshl_b32 {sT3}, {sT1}, 15
                s_add_u32 {sT2}, {sT2}, {sT3}
                s_lshl_b32 {sT3}, {sR1}, 8
                s_add_u32 {sT2}, {sT2}, {sT3}
                s_add_u32 {sT3}, {sT2}, {4 << 15}
                """)
            else:
                a(f"""
                s_lshl_b32 {sT2}, {sT0}, 7
                s_lshl_b32 {sT3}, {sT1}, 13
                s_add_u32 {sT2}, {sT2}, {sT3}
                s_lshl_b32 {sT3}, {sR1}, 17
                s_add_u32 {sT2}, {sT2}, {sT3}
                s_add_u32 {sT3}, {sT2}, {4 << 13}
                """)
            self.dma_groups(srd, vo, [sT2, sT3], [sT4, sT5], self.nt())
    def perm_unit(self, src, dst):
        a = self.a
        for q in range(4):
            for p in range(4):
                X = src + 8*q + p; Y = src + 8*q + 4 + p
                a(f'v_perm_b32 v{dst+8*p+q}, v{Y}, v{X}, {sPLO}')
                a(f'v_perm_b32 v{dst+8*p+4+q}, v{Y}, v{X}, {sPHI}')
    def p_post(self):
        a = self.a
        a('; ================= P post')
        a('s_barrier')
        early = self.cfg.get('wo_pre', 2)
        lo = a.label('plo'); j1 = a.label('pj1')
        a(f's_cmp_lt_u32 {sW}, 4\ns_cbranch_scc1 {lo}')
        self.srd(SA, P_WO, 4 << 20)
        vo = self.voff128(6, 1024)
        self.loader(SA, vo, 'o', tuple(range(early)))
        a(f's_waitcnt vmcnt({8*early})\ns_branch {j1}\n{lo}:\ns_waitcnt vmcnt(0)\n{j1}:')
        self.d_flag()
        lo = a.label('plo')
        a(f's_cmp_lt_u32 {sW}, 4\ns_cbranch_scc1 {lo}')
        self.loader(SA, vo, 'o', tuple(range(early, 4)))
        self.ts('p_ldiss')
        a(f'{lo}:')
        ad = self.tr128_addr(220, sWB)
        a(f"""
        s_lshl_b32 {sT0}, {sR0}, 5
        s_add_u32 {sT0}, {sT0}, {sR1}
        s_lshl_b32 {sT1}, {sT0}, 8
        s_lshl_b32 {sT2}, {sW}, 6
        s_add_u32 {sT1}, {sT1}, {sT2}
        s_add_u32 {sT1}, {sT1}, {WS_FL}
        s_lshl_b32 {sT2}, {sT0}, 15
        s_lshl_b32 {sT3}, {sW}, 13
        s_add_u32 {sT2}, {sT2}, {sT3}
        s_add_u32 {sT2}, {sT2}, {WS_D}
        s_add_u32 {sT3}, {sT2}, 4096
        s_lshl_b32 {sR2}, {sT0}, 11
        s_lshl_b32 {sT5}, {sW}, 8
        s_add_u32 {sR2}, {sR2}, {sT5}
        s_add_u32 {sR2}, {sR2}, {WS_E}         ; E soff
        v_and_b32 v5, 7, {vL}
        v_lshlrev_b32 v5, 3, v5
        v_lshlrev_b32 v6, 4, {vL}
        s_lshl_b32 {sT0}, {sW}, 11
        s_add_u32 {sT0}, {sT0}, {RED}
        v_lshrrev_b32 v7, 1, {vL}
        v_and_b32 v7, 1, v7
        v_lshlrev_b32 v7, 4, v7
        v_lshl_add_u32 v7, {vL}, 5, v7
        v_add_u32 v7, {sT0}, v7
        v_xor_b32 v8, 16, v7
        s_lshl_b32 {sT0}, {sW}, 3
        s_add_u32 {sT0}, {sT0}, {MX}
        v_mov_b32 v9, {sT0}
        v_lshlrev_b32 v10, 2, v0
        v_add_u32 v10, {RED}, v10
        v_mov_b32 v11, {MX}
        v_lshlrev_b32 v12, 1, v0
        v_add_u32 v12, {OB}, v12
        s_lshl_b32 {sT0}, {sW}, 7
        s_add_u32 {sT0}, {sT0}, {OB}
        v_lshl_add_u32 v13, {vG}, 4, {sT0}
        s_lshl_b32 {sT0}, {sW}, 9
        s_add_u32 {sT0}, {sT0}, {RED2}
        v_lshlrev_b32 v14, 5, {vT}
        v_lshl_add_u32 v14, {vG}, 3, v14
        v_add_u32 v14, {sT0}, v14
        v_lshlrev_b32 v15, 3, {vL}
        v_add_u32 v15, {RED2}, v15
        v_lshlrev_b32 v232, 6, {vG}
        v_lshrrev_b32 v233, 1, {vL}
        v_and_b32 v233, 3, v233
        v_lshl_add_u32 v232, v233, 4, v232
        v_lshrrev_b32 v233, 3, {vL}
        v_and_b32 v233, 1, v233
        v_lshl_add_u32 v232, v233, 3, v232
        v_and_b32 v233, 1, {vL}
        v_lshl_add_u32 v232, v233, 2, v232
        s_lshl_b32 {sT0}, {sW}, 8
        s_add_u32 {sT0}, {sT0}, {WL}
        v_add_u32 v232, {sT0}, v232
        v_lshl_add_u32 v233, {vG}, 4, {sT0}
        v_lshlrev_b32 v234, 6, {vT}
        v_lshl_add_u32 v234, {vG}, 4, v234     ; E voff
        v_mov_b32 v229, {sTAG}
        v_mov_b32 v231, {sTAG}
        """)
        mg = self.masks_g()
        hi = a.label('phi'); j2 = a.label('pj2')
        a(f's_cmp_ge_u32 {sW}, 4\ns_cbranch_scc1 {hi}')
        a('s_waitcnt vmcnt(0)')
        self.perm_unit(112, 80)
        self.perm_unit(144, 112)
        l = self.poll_begin()
        a(f'buffer_load_dwordx2 v[176:177], v5, {WS}, {sT1} offen sc1\ns_waitcnt vmcnt(0)')
        self.tagchk('v178', ['v177'])
        self.poll_end(l, 4, self.cfg['sleepD'], 'v178')
        self.ts('dfl_got')
        for k in range(8):
            so = sT2 if k < 4 else sT3
            off = f' offset:{(k&3)*1024}' if k & 3 else ''
            a(f'buffer_load_dwordx4 {vr(180+4*k,4)}, v6, {WS}, {so} offen{off} sc1')
        a("""
        v_max_f32_dpp v178, v176, v176 quad_perm:[1,0,3,2] row_mask:0xf bank_mask:0xf
        v_max_f32_dpp v178, v178, v178 quad_perm:[2,3,0,1] row_mask:0xf bank_mask:0xf
        v_max_f32_dpp v178, v178, v178 row_half_mirror row_mask:0xf bank_mask:0xf
        v_sub_f32 v176, v176, v178
        v_exp_f32 v176, v176
        s_nop 0
        v_cvt_pk_bf16_f32 v177, v176, v176
        v_and_b32 v176, 0xffff0000, v177
        v_and_b32 v177, 0xffff, v177
        v_add_f32_dpp v179, v176, v176 quad_perm:[1,0,3,2] row_mask:0xf bank_mask:0xf
        v_add_f32_dpp v179, v179, v179 quad_perm:[2,3,0,1] row_mask:0xf bank_mask:0xf
        v_add_f32_dpp v179, v179, v179 row_half_mirror row_mask:0xf bank_mask:0xf
        """)
        for k in range(8): a(f'v_readlane_b32 s{16+k}, v177, {k}')
        for k in range(8): a(f'v_readlane_b32 s{32+k}, v176, {k}')
        a('ds_write_b64 v9, v[178:179]')
        for k in range(8):
            a(f's_waitcnt vmcnt({7-k})')
            for p in range(4):
                sreg = 180 + 4*k + p
                c0 = '0' if k == 0 else f'v{212+2*p}'; c1 = '0' if k == 0 else f'v{213+2*p}'
                a(f'v_dot2_f32_bf16 v{212+2*p}, v{sreg}, s{16+k}, {c0}')
                a(f'v_dot2_f32_bf16 v{213+2*p}, v{sreg}, s{32+k}, {c1}')
        self.ts('d_got')
        a('ds_write_b128 v7, v[212:215]\nds_write_b128 v8, v[216:219]')
        a(f's_branch {j2}\n{hi}:')
        a('s_waitcnt vmcnt(32)')
        self.perm_unit(112, 80)
        self.perm_unit(144, 112)
        a('s_waitcnt vmcnt(0)')
        self.ts('p_ldland')
        a(f'{j2}:')
        a('s_waitcnt lgkmcnt(0)\ns_barrier')
        self.ts('p_b1')
        for k in range(2): a(f'ds_read_b128 {vr(176+4*k,4)}, v11 offset:{k*16}')
        for ww in range(4): a(f'ds_read_b32 v{192+ww}, v10 offset:{ww*2048}')
        a("""
        s_waitcnt lgkmcnt(4)
        v_max3_f32 v200, v176, v178, v180
        v_max_f32 v200, v200, v182
        """)
        for ww in range(4): a(f'v_sub_f32 v{176+2*ww}, v{176+2*ww}, v200')
        for ww in range(4): a(f'v_exp_f32 v{176+2*ww}, v{176+2*ww}')
        a('v_mul_f32 v201, v176, v177')
        for ww in range(1, 4): a(f'v_fmac_f32 v201, v{176+2*ww}, v{177+2*ww}')
        a('v_rcp_f32 v201, v201\ns_waitcnt lgkmcnt(0)\nv_mul_f32 v202, v176, v192')
        for ww in range(1, 4): a(f'v_fmac_f32 v202, v{176+2*ww}, v{192+ww}')
        a("""
        v_mul_f32 v202, v202, v201
        v_cvt_pk_bf16_f32 v202, v202, v202
        ds_write_b16 v12, v202
        s_waitcnt lgkmcnt(0)
        ds_read_b128 v[176:179], v13
        ds_read_b128 v[180:183], v13 offset:64
        """)
        self.ts('p_o')
        self.tr_reads(ad, range(2), 128, 16)
        a('s_waitcnt lgkmcnt(15)')
        for u in range(8): self.mfma(184+4*u, 176, 80+4*u, True)
        self.tr_reads(ad, range(2, 4), 128, 16)
        for u in range(8): self.mfma(184+4*u, 180, 112+4*u, False)
        self.sel4('v216', [f'v{184+4*u}' for u in (0, 2, 4, 6)], mg)
        self.sel4('v217', [f'v{184+4*u}' for u in (1, 3, 5, 7)], mg)
        self.ts('p_uv')
        a('ds_write_b64 v14, v[216:217]\ns_waitcnt lgkmcnt(0)\ns_barrier')
        self.ts('p_b2')
        for ww in range(8): a(f'ds_read_b64 {vr(176+2*ww,2)}, v15 offset:{ww*512}')
        mt = self.masks_t()
        a('s_waitcnt lgkmcnt(0)')
        self.tree_add([f'v{176+2*k}' for k in range(8)])
        self.tree_add([f'v{177+2*k}' for k in range(8)])
        a('v_cvt_pk_bf16_f32 v176, v176, v177\nds_write_b32 v232, v176\ns_waitcnt lgkmcnt(0)')
        for ks in range(4): a(f'ds_read_b128 {vr(180+4*ks,4)}, v233 offset:{ks*64}')
        for ks in range(4):
            a(f's_waitcnt lgkmcnt({3-ks})')
            for ct in range(4): self.mfma(196+4*ct, 16+4*(ks*4+ct), 180+4*ks, ks == 0)
        self.ts('p_omf')
        for r in range(4): self.sel4(f'v{212+r}', [f'v{196+4*ct+r}' for ct in range(4)], mt)
        a(f"""
        v_cvt_pk_bf16_f32 v228, v212, v213
        v_cvt_pk_bf16_f32 v230, v214, v215
        s_mov_b64 exec, {mT4}
        buffer_store_dwordx4 v[228:231], v234, {WS}, {sR2} offen sc1
        s_mov_b64 exec, -1
        """)
        self.ts('e_pub')

    def ffn(self):
        a = self.a
        a('s_waitcnt vmcnt(0)')
        self.d_flag()
        self.srd(SA, P_W1, 512 * 2752)
        vo = self.voff128(6, 2752)
        a(f'''
        s_mul_i32 {sU0}, {sW}, {64*2752}
        s_lshl_b32 {sT2}, {sR1}, 7
        s_add_u32 {sU0}, {sU0}, {sT2}
        s_add_u32 {sT0}, {sU0}, {32*2752}
        s_add_u32 {sT1}, {sWB}, 4096
        ''')
        self.dma_groups(SA, vo, [sU0, sT0], [sWB, sT1], self.nt())
        self.srd(SB, P_W2, 1376 * 1024)
        vo = self.voff128(10, 1024)
        a(f'''
        s_lshl_b32 {sU0}, {sR1}, 16
        s_lshl_b32 {sT2}, {sW}, 7
        s_add_u32 {sU0}, {sU0}, {sT2}
        s_add_u32 {sT0}, {sU0}, 32768
        s_add_u32 {sT1}, {sWB}, 8192
        s_add_u32 {sT2}, {sWB}, 12288
        ''')
        self.dma_groups(SB, vo, [sU0, sT0], [sT1, sT2], self.nt())
        self.srd(SC, P_X, 4096)
        a(f'''
        v_lshlrev_b32 v5, 1, v0
        s_lshl_b32 {sT0}, {sR0}, 10
        buffer_load_ushort v100, v5, {SC}, {sT0} offen
        v_lshrrev_b32 v5, 1, v0
        v_lshlrev_b32 v5, 3, v5
        s_lshl_b32 {sT0}, {sR0}, 13
        s_add_u32 {sT0}, {sT0}, {WS_MR}
        s_add_u32 {sT1}, {sT0}, 4096
        ''')
        ad = self.tr128_addr(8, sWB)
        mt = self.masks_t()
        a(f'''
        s_lshl_b32 {sT2}, {sR0}, 5
        s_lshl_b32 {sT4}, {sT2}, 11
        s_add_u32 {sT4}, {sT4}, {WS_E}
        s_lshl_b32 {sT3}, {sW}, 13
        s_add_u32 {sT5}, {sT4}, {sT3}
        s_add_u32 {sT6}, {sT5}, 4096
        v_and_b32 v12, 31, {vL}
        v_lshlrev_b32 v12, 11, v12
        v_add_u32 v12, 2040, v12
        v_lshlrev_b32 v13, 4, {vL}
        s_lshl_b32 {sT2}, {sW}, 11
        s_add_u32 {sT2}, {sT2}, {RED}
        v_lshl_add_u32 v14, {vL}, 4, {sT2}
        v_lshlrev_b32 v15, 2, v0
        v_add_u32 v15, {RED}, v15
        s_lshl_b32 {sT2}, {sW}, 3
        s_add_u32 {sT2}, {sT2}, {MX}
        v_mov_b32 v220, {sT2}
        v_mov_b32 v221, {MX}
        v_lshrrev_b32 v222, 5, {vL}
        v_lshlrev_b32 v222, 6, v222
        v_lshrrev_b32 v223, 2, {vL}
        v_and_b32 v223, 3, v223
        v_lshl_add_u32 v222, v223, 4, v222
        v_and_b32 v223, 1, {vG}
        v_lshl_add_u32 v222, v223, 3, v222
        v_lshl_add_u32 v222, {vB4}, 1, v222
        s_lshl_b32 {sT2}, {sW}, 8
        s_add_u32 {sT2}, {sT2}, {WL}
        v_add_u32 v222, {sT2}, v222
        v_lshl_add_u32 v223, {vG}, 4, {sT2}
        s_lshl_b32 {sT2}, {sW}, 8
        s_add_u32 {sT2}, {sT2}, {RED2}
        v_lshlrev_b32 v224, 6, {vT}
        v_lshl_add_u32 v224, {vG}, 4, v224
        v_add_u32 v224, {sT2}, v224
        v_lshlrev_b32 v225, 2, {vL}
        v_add_u32 v225, {RED2}, v225
        s_lshl_b32 {sT2}, {sR0}, 3
        s_add_u32 {sT2}, {sT2}, {sW}
        s_mul_i32 {sT2}, {sT2}, {24*512}
        s_lshl_b32 {sT3}, {sR1}, 9
        s_add_u32 {sT2}, {sT2}, {sT3}
        s_add_u32 {sT7}, {sT2}, {WS_F}         ; F soff
        v_lshlrev_b32 v226, 7, {vT}
        v_lshl_add_u32 v226, {vG}, 5, v226     ; F voff
        s_lshl_b32 {sT2}, {sR1}, 6
        v_add_u32 v227, {sT2}, {vL}
        s_movk_i32 {sT3}, 1376
        v_cmp_gt_u32 s[62:63], {sT3}, v227
        v_mov_b32 v141, {sTAG}
        v_mov_b32 v143, {sTAG}
        v_mov_b32 v145, {sTAG}
        v_mov_b32 v147, {sTAG}
        ''')
        l = self.poll_begin()
        a(f'''
        buffer_load_dwordx2 v[102:103], v5, {WS}, {sT0} offen sc1
        buffer_load_dwordx2 v[104:105], v5, {WS}, {sT0} offen offset:2048 sc1
        buffer_load_dwordx2 v[106:107], v5, {WS}, {sT1} offen sc1
        s_waitcnt vmcnt(0)
        ''')
        self.tagchk('v6', ['v103', 'v105', 'v107'])
        self.poll_end(l, 5, 4, 'v6')
        a('v_and_b32 v6, 1, v0\nv_cmp_eq_u32 vcc, 1, v6\nv_lshlrev_b32 v100, 16, v100')
        for r in (102, 104, 106):
            a(f'v_lshlrev_b32 v{r+1}, 16, v{r}\nv_and_b32 v{r}, 0xffff0000, v{r}\nv_cndmask_b32 v{r}, v{r+1}, v{r}, vcc')
        self.tr_reads(ad, range(2), 128, 16)
        self.tr_reads(ad, range(2), 128, 48, 8192)
        a(f's_mov_b32 {sT0}, 0x00003f80\ns_mov_b32 {sT1}, 0x3f800000')
        sk = a.label('noet')
        a(f's_cmp_lg_u32 {sW}, 0\ns_cbranch_scc1 {sk}')
        l = self.poll_begin()
        a(f'buffer_load_dwordx2 v[176:177], v12, {WS}, {sT4} offen sc1\ns_waitcnt vmcnt(0)')
        self.tagchk('v178', ['v177'])
        self.poll_end(l, 6, self.cfg['sleepE'], 'v178')
        a(f'{sk}:\ns_barrier')
        self.ts('e_trig')
        l = self.poll_begin()
        for k in range(8):
            so = sT5 if k < 4 else sT6
            off = f' offset:{(k&3)*1024}' if k & 3 else ''
            a(f'buffer_load_dwordx4 {vr(176+4*k,4)}, v13, {WS}, {so} offen{off} sc1')
        a('s_waitcnt vmcnt(0)')
        self.tagchk('v208', [f'v{176+4*k+o}' for k in range(8) for o in (1, 3)])
        self.poll_end(l, 7, 1, 'v208')
        self.ts('e_got')
        for k in range(8):
            hf = k & 1; b = 176 + 4*k; acc = 112 + 4*hf
            for j, (src, sel) in enumerate(((b, sT0), (b, sT1), (b+2, sT0), (b+2, sT1))):
                c = '0' if k < 2 else f'v{acc+j}'
                a(f'v_dot2_f32_bf16 v{acc+j}, v{src}, {sel}, {c}')
        a('''
        ds_write_b128 v14, v[112:115]
        ds_write_b128 v14, v[116:119] offset:1024
        s_waitcnt lgkmcnt(0)
        s_barrier
        ''')
        self.ts('f_b1')
        for ww in range(8): a(f'ds_read_b32 v{112+ww}, v15 offset:{ww*2048}')
        a('s_waitcnt lgkmcnt(0)')
        self.tree_add([f'v{112+k}' for k in range(8)])
        a('v_fma_f32 v100, v102, v112, v100\nv_mov_b32 v120, v100\nv_mul_f32 v121, v100, v100')
        self.allsum(['v120', 'v121'], ['v122', 'v123'])
        a('ds_write_b64 v220, v[120:121]\ns_waitcnt lgkmcnt(0)\ns_barrier')
        self.ts('f_b2')
        for k in range(4): a(f'ds_read_b128 {vr(112+4*k,4)}, v221 offset:{k*16}')
        a('s_waitcnt lgkmcnt(0)')
        self.tree_add([f'v{112+2*k}' for k in range(8)])
        self.tree_add([f'v{113+2*k}' for k in range(8)])
        a(f'''
        v_mul_f32 v112, {fhex(1/512)}, v112
        v_mul_f32 v113, {fhex(1/512)}, v113
        v_fma_f32 v113, -v112, v112, v113
        v_max_f32 v113, 0, v113
        v_add_f32 v113, {fhex(1e-5)}, v113
        v_rsq_f32 v113, v113
        v_sub_f32 v114, v100, v112
        v_mul_f32 v114, v114, v113
        v_add_f32 v115, v114, v104
        v_fmac_f32 v115, v114, v106
        v_cvt_pk_bf16_f32 v115, v115, v115
        ds_write_b16 v222, v115
        s_waitcnt lgkmcnt(0)
        ds_read_b128 v[112:115], v223
        ds_read_b128 v[116:119], v223 offset:64
        ''')
        for ks in range(2):
            a(f's_waitcnt lgkmcnt({1-ks})')
            for ct in range(4): self.mfma(120+4*ct, 16+4*(ks*4+ct), 112+4*ks, ks == 0)
        for r in range(4): self.sel4(f'v{136+r}', [f'v{120+4*ct+r}' for ct in range(4)], mt)
        a(f'''
        s_mov_b64 exec, {mT4}
        ds_write_b128 v224, v[136:139]
        s_mov_b64 exec, -1
        s_waitcnt lgkmcnt(0)
        s_barrier
        ''')
        self.ts('f_b3')
        for ww in range(8): a(f'ds_read_b32 v{112+ww}, v225 offset:{ww*256}')
        a('s_waitcnt lgkmcnt(0)')
        self.tree_add([f'v{112+k}' for k in range(8)])
        a('''
        v_max_f32 v112, 0, v112
        v_cndmask_b32 v112, 0, v112, s[62:63]
        v_cvt_pk_bf16_f32 v112, v112, v112
        ds_write_b16 v222, v112 offset:128
        s_waitcnt lgkmcnt(0)
        ds_read_b128 v[112:115], v223 offset:128
        ds_read_b128 v[116:119], v223 offset:192
        ''')
        for ks in range(2):
            a(f's_waitcnt lgkmcnt({1-ks})')
            for ct in range(4): self.mfma(120+4*ct, 48+4*(ks*4+ct), 112+4*ks, ks == 0)
        for r, d in enumerate((140, 142, 144, 146)): self.sel4(f'v{d}', [f'v{120+4*ct+r}' for ct in range(4)], mt)
        a(f'''
        s_mov_b64 exec, {mT4}
        buffer_store_dwordx4 v[140:143], v226, {WS}, {sT7} offen sc1
        buffer_store_dwordx4 v[144:147], v226, {WS}, {sT7} offen offset:16 sc1
        s_mov_b64 exec, -1
        ''')
        self.ts('f_pub')

    def final(self):
        a = self.a
        a('s_waitcnt vmcnt(0)')
        self.d_flag()
        a(f's_lshl_b32 {sR1}, {sX}, 2\ns_add_u32 {sR1}, {sR1}, {sR0}')
        self.silu_addr()
        self.srd(SB, P_C, 4096)
        a(f'buffer_load_dwordx2 v[18:19], v16, {SB}, 0 offen')
        self.srd(SA, P_WMOD, 512 * 6144)
        vo = self.voff128(6, 6144)
        a(f'''
        s_mul_i32 {sU0}, {sW}, {64*6144}
        s_lshl_b32 {sT2}, {sR1}, 7
        s_add_u32 {sU0}, {sU0}, {sT2}
        s_add_u32 {sU0}, {sU0}, 2048
        s_add_u32 {sT0}, {sU0}, {32*6144}
        s_add_u32 {sT1}, {sWB}, 4096
        ''')
        self.dma_groups(SA, vo, [sU0, sT0], [sWB, sT1], self.nt())
        self.sv_frag_addr('v12')
        ad = self.tr128_addr(8, sWB)
        a('s_waitcnt vmcnt(8)')
        self.silu_calc()
        a('s_waitcnt lgkmcnt(0)\ns_barrier')
        a('ds_read_b128 v[112:115], v12\nds_read_b128 v[116:119], v12 offset:64\ns_waitcnt vmcnt(0)')
        self.tr_reads(ad, range(2), 128, 24)
        a('s_waitcnt lgkmcnt(0)')
        for ks in range(2):
            for ct in range(4): self.mfma(120+4*ct, 24+4*(ks*4+ct), 112+4*ks, ks == 0)
        a(f'''
        s_lshl_b32 {sT0}, {sW}, 10
        s_add_u32 {sT0}, {sT0}, {RED}
        v_lshlrev_b32 v5, 6, {vG}
        v_lshl_add_u32 v5, {vT}, 4, v5
        v_add_u32 v5, {sT0}, v5
        s_mov_b64 exec, {mT4}
        ''')
        for ct in range(4): a(f'ds_write_b128 v5, {vr(120+4*ct,4)} offset:{ct*256}')
        a('s_mov_b64 exec, -1\ns_waitcnt lgkmcnt(0)\ns_barrier')
        sk = a.label('mrskip')
        a(f's_cmp_ge_u32 {sW}, 2\ns_cbranch_scc1 {sk}')
        a(f'v_lshlrev_b32 v5, 3, v0\nv_add_u32 v5, {RED}, v5')
        for ww in range(8): a(f'ds_read_b64 {vr(112+2*ww,2)}, v5 offset:{ww*1024}')
        a(f'''
        v_lshrrev_b32 v6, 1, v0
        v_and_b32 v6, 3, v6
        v_lshlrev_b32 v6, 13, v6
        v_lshrrev_b32 v7, 3, v0
        v_lshl_add_u32 v6, v7, 4, v6
        v_and_b32 v7, 1, v0
        v_lshl_add_u32 v6, v7, 3, v6
        s_lshl_b32 {sT0}, {sR1}, 8
        s_add_u32 {sT0}, {sT0}, {WS_MR}
        s_waitcnt lgkmcnt(0)
        ''')
        self.tree_add([f'v{112+2*k}' for k in range(8)])
        self.tree_add([f'v{113+2*k}' for k in range(8)])
        a(f'''
        v_cvt_pk_bf16_f32 v112, v112, v113
        v_mov_b32 v113, {sTAG}
        buffer_store_dwordx2 v[112:113], v6, {WS}, {sT0} offen sc1
        {sk}:
        ''')
        self.ts('mr_pub')
        a(f's_cmp_lg_u32 {sW}, 0\ns_cbranch_scc1 L_exit')
        self.srd(SC, P_X, 4096)
        self.srd(SA, P_OUT, 4096)
        a(f'''
        v_and_b32 v5, 31, {vL}
        v_lshlrev_b32 v6, 2, v5
        s_lshl_b32 {sT0}, {sR0}, 10
        s_lshl_b32 {sT1}, {sX}, 7
        s_add_u32 {sR2}, {sT0}, {sT1}
        buffer_load_dword v100, v6, {SC}, {sR2} offen
        v_lshlrev_b32 v7, 3, v5
        s_lshl_b32 {sT0}, {sR0}, 13
        s_lshl_b32 {sT1}, {sX}, 8
        s_add_u32 {sT0}, {sT0}, {sT1}
        s_add_u32 {sT0}, {sT0}, {WS_MR}
        s_add_u32 {sT1}, {sT0}, {3*2048}
        ''')
        l = self.poll_begin()
        a(f'''
        buffer_load_dwordx2 v[102:103], v7, {WS}, {sT0} offen sc1
        buffer_load_dwordx2 v[104:105], v7, {WS}, {sT1} offen sc1
        s_waitcnt vmcnt(0)
        ''')
        self.tagchk('v8', ['v103', 'v105'])
        self.poll_end(l, 8, 4, 'v8')
        a(f'''
        v_lshrrev_b32 v8, 5, {vL}
        v_lshl_add_u32 v9, v8, 11, v7
        s_lshl_b32 {sT0}, {sR0}, 16
        s_lshl_b32 {sT1}, {sX}, 8
        s_add_u32 {sT0}, {sT0}, {sT1}
        s_add_u32 {sT0}, {sT0}, {WS_E}
        v_lshlrev_b32 v11, 9, v8
        v_lshl_add_u32 v11, v5, 4, v11
        s_lshl_b32 {sT4}, {sR0}, 3
        s_add_u32 {sT4}, {sT4}, {sX}
        s_mul_i32 {sT4}, {sT4}, {24*512}
        s_add_u32 {sT4}, {sT4}, {WS_F}
        s_add_u32 {sT5}, {sT4}, 4096
        s_add_u32 {sT6}, {sT4}, 8192
        v_lshlrev_b32 v146, 16, v100
        v_and_b32 v147, 0xffff0000, v100
        v_lshlrev_b32 v152, 16, v102
        v_and_b32 v153, 0xffff0000, v102
        v_lshlrev_b32 v148, 16, v104
        v_and_b32 v149, 0xffff0000, v104
        ''')
        l = self.poll_begin()
        a(f's_mov_b32 {sT1}, {sT0}')
        for k in range(16):
            a(f'buffer_load_dwordx2 {vr(112+2*k,2)}, v9, {WS}, {sT1} offen sc1')
            if k < 15: a(f's_add_u32 {sT1}, {sT1}, 4096')
        a('s_waitcnt vmcnt(0)')
        self.tagchk('v10', [f'v{113+2*k}' for k in range(16)])
        self.poll_end(l, 9, self.cfg['sleepE'] + 6, 'v10')
        self.ts('fe_got')
        a(f's_mov_b32 {sT0}, 0x00003f80\ns_mov_b32 {sT1}, 0x3f800000')
        for k in range(16):
            c0 = '0' if k == 0 else 'v144'; c1 = '0' if k == 0 else 'v145'
            a(f'v_dot2_f32_bf16 v144, v{112+2*k}, {sT0}, {c0}\nv_dot2_f32_bf16 v145, v{112+2*k}, {sT1}, {c1}')
        a('''
        v_mov_b32 v150, v144
        v_mov_b32 v151, v145
        s_nop 0
        v_permlane32_swap_b32 v144, v150
        v_permlane32_swap_b32 v145, v151
        v_add_f32 v144, v144, v150
        v_add_f32 v145, v145, v151
        v_fmac_f32 v146, v152, v144
        v_fmac_f32 v147, v153, v145
        ''')
        l = self.poll_begin()
        for k in range(11):
            so = (sT4, sT5, sT6)[k >> 2]
            off = f' offset:{(k&3)*1024}' if k & 3 else ''
            a(f'buffer_load_dwordx4 {vr(176+4*k,4)}, v11, {WS}, {so} offen{off} sc1')
        a('s_waitcnt vmcnt(0)')
        self.tagchk('v10', [f'v{176+4*k+o}' for k in range(11) for o in (1, 3)])
        self.poll_end(l, 10, self.cfg['sleepF'], 'v10')
        self.tree_add([f'v{176+4*k}' for k in range(11)])
        self.tree_add([f'v{178+4*k}' for k in range(11)])
        a(f'''
        v_mov_b32 v150, v176
        v_mov_b32 v151, v178
        s_nop 0
        v_permlane32_swap_b32 v176, v150
        v_permlane32_swap_b32 v178, v151
        v_add_f32 v176, v176, v150
        v_add_f32 v178, v178, v151
        v_fmac_f32 v146, v148, v176
        v_fmac_f32 v147, v149, v178
        v_cvt_pk_bf16_f32 v146, v146, v147
        s_mov_b32 exec_hi, 0
        buffer_store_dword v146, v6, {SA}, {sR2} offen
        s_mov_b64 exec, -1
        ''')
        self.ts('out_st')

    def epoch_update(self):
        a = self.a
        a(f's_cmp_lg_u32 {sW}, 0\ns_cbranch_scc1 L_exit')
        a(f'v_and_b32 v5, 7, {vL}\nv_lshlrev_b32 v5, 15, v5\ns_mov_b32 {sT0}, {WS_E}')
        l = self.poll_begin()
        a(f'buffer_load_dwordx2 v[6:7], v5, {WS}, {sT0} offen sc1\ns_waitcnt vmcnt(0)')
        self.tagchk('v8', ['v7'])
        self.poll_end(l, 11, 8, 'v8')
        a(f'''
        s_add_u32 {sT0}, {sEP}, 1
        v_mov_b32 v6, {sT0}
        v_mov_b32 v5, 0
        s_mov_b64 exec, 1
        buffer_store_dword v6, v5, {WS}, 0 offen sc1
        s_mov_b64 exec, -1
        ''')

    def build(self):
        a = self.a
        self.prologue()
        self.p_pre()
        a('s_branch L_att\nL_qpre:')
        self.q_pre()
        a('L_att:')
        self.att_addr()
        self.attention()
        a(f's_cmp_lt_u32 {sI}, 16\ns_cbranch_scc1 L_qpost')
        self.p_post()
        a('s_branch L_exit\nL_qpost:')
        a(f'''
        s_lshr_b32 {sT0}, {sI}, 2
        s_and_b32 {sR0}, {sI}, 3
        s_cmp_eq_u32 {sT0}, 3
        s_cbranch_scc1 L_final
        s_lshl_b32 {sR1}, {sT0}, 3
        s_add_u32 {sR1}, {sR1}, {sX}
        s_cmp_ge_u32 {sR1}, 22
        s_cbranch_scc1 L_idle
        ''')
        self.ffn()
        a('s_branch L_exit\nL_final:')
        self.final()
        a('s_branch L_exit\nL_idle:')
        a('s_waitcnt vmcnt(0)')
        self.d_flag()
        a(f's_cmp_eq_u32 s2, {7 + 8*11}\ns_cbranch_scc0 L_exit')
        self.epoch_update()
        a('s_branch L_exit')
        for code in self.failsites:
            a(f'L_fail_{code}:\ns_mov_b32 {sT0}, {code}\ns_branch L_fail')
        a(f'''
        L_fail:
        s_mov_b32 s12, s{P_DBG}
        s_mov_b32 s13, s{P_DBG+1}
        s_mov_b32 s14, 256
        s_mov_b32 s15, 0x00020000
        s_mov_b64 exec, 1
        s_lshl_b32 {sT1}, {sT0}, 2
        v_mov_b32 v5, {sT1}
        v_mov_b32 v6, s2
        v_add_u32 v6, 1000, v6
        buffer_store_dword v6, v5, s[12:15], 0 offen
        s_mov_b64 exec, -1
        L_exit:
        ''')
        if self.cfg['ts']:
            sk = a.label('nots')
            a(f's_cmp_lg_u32 {sW}, {self.cfg["tswave"]}\ns_cbranch_scc1 {sk}')
            a(f's_waitcnt lgkmcnt(0)\ns_mov_b64 exec, 1\ns_lshl_b32 {sT0}, s2, 6\ns_add_u32 {sT0}, {sT0}, {WS_TS}\nv_mov_b32 v5, 0')
            for k in range(len(TSREG)):
                a(f'v_mov_b32 v6, s{TSREG[k]}\nbuffer_store_dword v6, v5, {WS}, {sT0} offen offset:{4*k}')
            a(f'{sk}:')
        a('s_waitcnt vmcnt(0) lgkmcnt(0)\nL_end:\ns_endpgm')
        return a.finish()

HEADER = open('adaLN_cond__compressed_kv_cla__dense_activation_relu__decode.s.ref').read().split('; Override launch')[0]

def generate(cfg):
    g = Gen(cfg)
    body = g.build()
    init = ''
    if g.cfg['ts']:
        init = ''.join(f'    s_mov_b32 s{r}, 0\n' for r in TSREG[:10])
    txt = HEADER + f'''; @launch grid=(256,1,1) block=(512,1,1) lds={LDS_BYTES}
.amdgcn_target "amdgcn-amd-amdhsa--gfx950"
.text
.globl {KNAME}
.p2align 8
.type {KNAME},@function
{KNAME}:
{init}{body}.section .rodata,"a"
.p2align 6
.amdhsa_kernel {KNAME}
  .amdhsa_next_free_vgpr 256
  .amdhsa_next_free_sgpr 102
  .amdhsa_accum_offset 256
  .amdhsa_group_segment_fixed_size 0
  .amdhsa_kernarg_size 112
  .amdhsa_user_sgpr_count 2
  .amdhsa_user_sgpr_kernarg_segment_ptr 1
  .amdhsa_system_sgpr_workgroup_id_x 1
.end_amdhsa_kernel
'''
    return txt, g

if __name__ == '__main__':
    cfg = json.loads(sys.argv[2]) if len(sys.argv) > 2 else {}
    txt, g = generate(cfg)
    open(sys.argv[1], 'w').write(txt)
    json.dump(dict(ts=g.tsnames, slot=(g.cfg.get('tsmap') or TSSLOT), gen='gen11'), open(sys.argv[1] + '.json', 'w'))
    print('written', sys.argv[1], 'lines', txt.count('\n'), 'nops padded', g.a.npad)
```

```python
import sys, json, struct
from asmlib import Asm
KNAME = 'adaLN_cond__compressed_kv_cla__dense_activation_relu__decode_kernel'
CFG = dict(ptrig=False, gpl=['c','s','b','p'], wofirst=1, wo_pre=0, pthr=0, ckvsplit=False, ts=False, nt=False, nt_ckv_p=False, nt_ckv_q=False, limit=20000,
           sleepA=1, sleepA2=1, sleepC=2, sleepD=1, sleepE=2, sleepF=1, tswave=0)
WS_H  = 0x500000
WS_MR = 0x510000
WS_Q  = 0x10000
WS_FL = 0x50000
WS_E  = 0x60000
WS_F  = 0xA0000
WS_D  = 0x100000
WS_TS = 0x600000
WS_SIZE = 0x700000
SM   = 131072
QT   = SM
RED  = SM
PT   = SM + 16384
WL   = PT
MX   = SM + 20480
LS   = SM + 20992
SV   = SM + 21504
QB   = SM + 25856
OB   = SM + 27136
RED2 = SM + 28160
LDS_BYTES = 163840
SVS = 1088
QBS = 320
TAGMUL = 0x9E3779B1
LOG2E = 1.4426950408889634
SCALE = (128 ** -0.5) * LOG2E
def fhex(x): return '0x%08x' % struct.unpack('<I', struct.pack('<f', x))[0]
sX, sI, sW, sTAG, sEP = 's3', 's4', 's5', 's6', 's7'
WS = 's[8:11]'; SA = 's[12:15]'; SB = 's[44:47]'; SC = 's[48:51]'
P_X, P_CKV, P_WQ, P_WUK, P_WUV, P_WO, P_W1, P_W2, P_C, P_WMOD, P_OUT, P_DBG, P_WS = 16, 18, 20, 22, 24, 26, 30, 32, 34, 36, 38, 40, 42
sWB = 's52'
sT0, sT1, sT2, sT3 = 's53', 's54', 's55', 's56'
sT4, sT5, sT6, sT7 = 's72', 's73', 's74', 's75'
sPLO, sPHI = 's57', 's58'
sCNT = 's59'
mT4 = 's[60:61]'
sU0, sU1 = 's62', 's63'
sCH, sBA, sS, sHH = 's64', 's65', 's66', 's67'
sR0, sR1, sR2, sR3 = 's68', 's69', 's70', 's71'
MK = 96
TSREG = [76,78,80,82,84,86,88,90,92,94,28,0]
TSSLOT = dict(start=0, hp_loaded=1, hp_pub=2, wq_landed=1, h_got=2, q_pub=3, ckv_iss=3, c_got=4, b1=5, b3=6, d_st=7, d_flag=8,
              dfl_got=9, d_got=10, e_pub=11, e_trig=9, e_got=10, f_pub=11, mr_pub=9, fe_got=10, out_st=11)
vL, vG, vT, vB4 = 'v1', 'v2', 'v3', 'v4'
def vr(a, n=1): return f'v{a}' if n == 1 else f'v[{a}:{a+n-1}]'
class Gen:
    def __init__(self, cfg):
        self.cfg = dict(CFG); self.cfg.update(cfg)
        self.a = Asm(); self.tsnames = []; self.failsites = []
    def ts(self, name):
        if not self.cfg['ts']: return
        slots = self.cfg.get('tsmap') or TSSLOT
        if name not in slots: return
        r = TSREG[slots[name]]
        if name not in self.tsnames: self.tsnames.append(name)
        self.a(f's_memrealtime s[{r}:{r+1}]')
    def srd(self, quad, ptr, size):
        q = int(quad[2:quad.index(':')])
        self.a(f's_mov_b32 s{q}, s{ptr}\ns_mov_b32 s{q+1}, s{ptr+1}\ns_mov_b32 s{q+2}, {size}\ns_mov_b32 s{q+3}, 0x00020000')
    def nt(self, key='nt'): return ' nt' if self.cfg[key] else ''
    def poll_begin(self):
        l = self.a.label('poll')
        self.a(f's_mov_b32 {sCNT}, {self.cfg["limit"]}\n{l}:')
        return l
    def poll_end(self, l, code, sleep, vacc):
        a = self.a; ok = a.label('ok')
        if code not in self.failsites: self.failsites.append(code)
        a(f'v_cmp_ne_u32 vcc, 0, {vacc}')
        a(f's_cbranch_vccz {ok}')
        a(f's_sub_u32 {sCNT}, {sCNT}, 1')
        a(f's_cbranch_scc1 L_fail_{code}')
        if sleep: a(f's_sleep {sleep}')
        a(f's_branch {l}')
        a(f'{ok}:')
    def poll_trig(self, voff, soff, ra, code, vacc):
        a = self.a
        if code not in self.failsites: self.failsites.append(code)
        l = a.label('pt'); ok = a.label('ptok')
        ld = lambda r: a(f'buffer_load_dwordx2 {vr(r,2)}, {voff}, {WS}, {soff} offen sc1')
        a(f's_mov_b32 {sCNT}, {self.cfg["limit"]}')
        ld(ra)
        a(f'{l}:')
        ld(ra+2)
        a(f's_waitcnt vmcnt(1)\nv_cmp_ne_u32 vcc, {sTAG}, v{ra+1}\ns_cbranch_vccz {ok}')
        ld(ra)
        a(f's_waitcnt vmcnt(1)\nv_cmp_ne_u32 vcc, {sTAG}, v{ra+3}\ns_cbranch_vccz {ok}')
        a(f's_sub_u32 {sCNT}, {sCNT}, 1\ns_cbranch_scc1 L_fail_{code}\ns_branch {l}\n{ok}:')
    def tagchk(self, vacc, regs):
        a = self.a
        for k, r in enumerate(regs):
            if k == 0: a(f'v_xor_b32 {vacc}, {sTAG}, {r}')
            else: a(f'v_bitop3_b32 {vacc}, {vacc}, {r}, {sTAG} bitop3:0xf6')
    def crossrow(self, regs, tmp, op):
        a = self.a
        for sw in ('v_permlane16_swap_b32', 'v_permlane32_swap_b32'):
            for r, t in zip(regs, tmp): a(f'v_mov_b32 {t}, {r}')
            for r, t in zip(regs, tmp): a(f'{sw} {r}, {t}')
            for r, t in zip(regs, tmp): a(f'{op} {r}, {r}, {t}')
    def allsum(self, regs, tmp, op='v_add_f32'):
        a = self.a
        for n in (8, 4, 2, 1):
            for r in regs: a(f'{op}_dpp {r}, {r}, {r} row_ror:{n} row_mask:0xf bank_mask:0xf')
        self.crossrow(regs, tmp, op)
    def ckv_prep(self, v):
        a = self.a
        self.srd(SA, P_CKV, 16 << 20)
        a(f'v_lshlrev_b32 v{v}, 4, {vL}')
        for k in range(1, 8): a(f'v_xor_b32 v{v+k}, {k << 5}, v{v}')
    def ckv_group(self, gi, v, ntkey):
        a = self.a
        a(f's_add_u32 {sU1}, {sWB}, {gi*4096}\ns_mov_b32 m0, {sU1}\ns_add_u32 {sU0}, {sCH}, {sU1}')
        for k in range(4):
            n = 4*gi + k
            off = f' offset:{k*1024}' if k else ''
            a(f'buffer_load_dwordx4 v{v + (n & 7)}, {SA}, {sU0} offen{off}{self.nt(ntkey)} lds')
    def dma_ckv_p(self):
        a = self.a
        thr = self.cfg.get('pthr', 2)
        self.srd(SA, P_CKV, 16 << 20)
        a(f'v_lshlrev_b32 v6, 4, {vL}')
        for k in range(1, 8): a(f'v_xor_b32 v{6+k}, {k << 5}, v6')
        for n in range(16):
            if n % 4 == 0:
                a(f's_add_u32 {sT1}, {sWB}, {(n>>2)*4096}')
                a(f's_mov_b32 m0, {sT1}')
                a(f's_add_u32 {sT0}, {sCH}, {sT1}')
            off = f' offset:{(n & 3)*1024}' if n & 3 else ''
            a(f'buffer_load_dwordx4 v{6 + (n & 7)}, {SA}, {sT0} offen{off}{self.nt("nt_ckv_p")} lds')
            if thr and n == thr - 1: a('s_waitcnt vmcnt(0)')
    def dma_groups(self, srd, voff4, sregs, mregs, nt):
        a = self.a
        for sr, mr in zip(sregs, mregs):
            a(f's_mov_b32 m0, {mr}\ns_nop 0')
            for k in range(4):
                off = f' offset:{k*1024}' if k else ''
                a(f'buffer_load_dwordx4 {voff4[k]}, {srd}, {sr} offen{off}{nt} lds')
    def rot_groups(self, ng, rot, sbase, step_log2, mbase, sregs, mregs, tmp=sCNT):
        a = self.a
        for j in range(ng):
            if rot is None:
                a(f's_add_u32 {sregs[j]}, {sbase}, {j << step_log2}')
                a(f's_add_u32 {mregs[j]}, {mbase}, {j*4096}')
            else:
                a(f's_add_u32 {tmp}, {rot}, {j}\ns_and_b32 {tmp}, {tmp}, {ng-1}')
                a(f's_lshl_b32 {sregs[j]}, {tmp}, {step_log2}\ns_add_u32 {sregs[j]}, {sregs[j]}, {sbase}')
                a(f's_lshl_b32 {mregs[j]}, {tmp}, 12\ns_add_u32 {mregs[j]}, {mregs[j]}, {mbase}')
    def voff128(self, v, rowstride):
        a = self.a
        a(f'''
        v_lshrrev_b32 v{v}, 3, {vL}
        v_mul_u32_u24 v{v}, {rowstride}, v{v}
        v_and_b32 v{v+1}, 7, {vL}
        v_lshlrev_b32 v{v+2}, 1, {vG}
        v_xor_b32 v{v+1}, v{v+1}, v{v+2}
        v_lshl_add_u32 v{v}, v{v+1}, 4, v{v}
        ''')
        for k in range(1, 4): a(f'v_add_u32 v{v+k}, {k*(8*rowstride-1024)}, v{v}')
        return [f'v{v+k}' for k in range(4)]
    def tr128_addr(self, v, base_s):
        a = self.a
        a(f'''
        v_lshrrev_b32 v{v}, 2, {vT}
        v_lshl_add_u32 v{v}, {vG}, 2, v{v}
        v_lshrrev_b32 v{v+1}, 1, v{v}
        v_and_b32 v{v+1}, 3, v{v+1}
        v_lshlrev_b32 v{v+1}, 5, v{v+1}
        v_lshl_add_u32 v{v}, v{v}, 7, v{v+1}
        v_lshrrev_b32 v{v+1}, 1, {vB4}
        v_lshl_add_u32 v{v}, v{v+1}, 4, v{v}
        v_and_b32 v{v+1}, 1, {vB4}
        v_lshl_add_u32 v{v}, v{v+1}, 3, v{v}
        v_add_u32 v{v}, {base_s}, v{v}
        ''')
        for ct in range(1, 4): a(f'v_xor_b32 v{v+ct}, {ct << 5}, v{v}')
        return [f'v{v+ct}' for ct in range(4)]
    def tr_reads(self, addrs, kss, rb, dst, base_off=0):
        a = self.a
        for ks in kss:
            for ct, ad in enumerate(addrs):
                d = dst + 4 * (ks * len(addrs) + ct)
                for hi in range(2):
                    a(f'ds_read_b64_tr_b16 {vr(d + 2*hi, 2)}, {ad} offset:{base_off + (32*ks + 16*hi)*rb}')
    def sel4(self, dst, srcs, masks):
        a = self.a
        a(f'v_cndmask_b32 {dst}, {srcs[0]}, {srcs[1]}, {masks[0]}')
        a(f'v_cndmask_b32 {dst}, {dst}, {srcs[2]}, {masks[1]}')
        a(f'v_cndmask_b32 {dst}, {dst}, {srcs[3]}, {masks[2]}')
    def masks_t(self):
        for k, val in enumerate((0x22222222, 0x44444444, 0x88888888)):
            self.a(f's_mov_b32 s{MK+2*k}, {val:#x}\ns_mov_b32 s{MK+2*k+1}, {val:#x}')
        return [f's[{MK+2*k}:{MK+2*k+1}]' for k in range(3)]
    def masks_q(self):
        for k, val in enumerate((0x00f000f0, 0x0f000f00, 0xf000f000)):
            self.a(f's_mov_b32 s{MK+2*k}, {val:#x}\ns_mov_b32 s{MK+2*k+1}, {val:#x}')
        return [f's[{MK+2*k}:{MK+2*k+1}]' for k in range(3)]
    def masks_g(self):
        for k, (lo, hi) in enumerate(((0xffff0000, 0), (0, 0x0000ffff), (0, 0xffff0000))):
            self.a(f's_mov_b32 s{MK+2*k}, {lo:#x}\ns_mov_b32 s{MK+2*k+1}, {hi:#x}')
        return [f's[{MK+2*k}:{MK+2*k+1}]' for k in range(3)]
    def mfma(self, acc, A, B, first):
        self.a(f'v_mfma_f32_16x16x32_bf16 {vr(acc,4)}, {vr(A,4)}, {vr(B,4)}, {"0" if first else vr(acc,4)}')
    def tree_add(self, regs):
        a = self.a; n = len(regs); step = 1
        while step < n:
            for k in range(0, n - step, 2*step): a(f'v_add_f32 {regs[k]}, {regs[k]}, {regs[k+step]}')
            step *= 2
    def prologue(self):
        a = self.a
        a('''
        s_cmp_ge_u32 s2, 256
        s_cbranch_scc1 L_end
        s_load_dwordx16 s[16:31], s[0:1], 0
        s_load_dwordx8 s[32:39], s[0:1], 64
        s_load_dwordx4 s[40:43], s[0:1], 96
        ''')
        self.ts('start')
        a(f'''
        v_lshrrev_b32 v5, 6, v0
        v_and_b32 {vL}, 63, v0
        v_readfirstlane_b32 {sW}, v5
        v_lshrrev_b32 {vG}, 4, {vL}
        v_and_b32 {vT}, 15, {vL}
        v_and_b32 {vB4}, 3, {vL}
        s_and_b32 {sX}, s2, 7
        s_lshr_b32 {sI}, s2, 3
        s_lshl_b32 {sWB}, {sW}, 14
        s_mov_b32 s60, 0x000f000f
        s_mov_b32 s61, 0x000f000f
        s_lshl_b32 {sCH}, {sX}, 4
        s_and_b32 {sT0}, {sI}, 15
        s_add_u32 {sCH}, {sCH}, {sT0}
        s_lshr_b32 {sBA}, {sCH}, 5
        s_and_b32 {sS}, {sCH}, 31
        s_lshr_b32 {sHH}, {sI}, 4
        s_lshl_b32 {sCH}, {sCH}, 17
        s_cmp_lt_u32 {sI}, 16
        s_cbranch_scc1 L_qpre
        ''')
    def after_kernarg(self):
        a = self.a
        a(f's_waitcnt lgkmcnt(0)\ns_load_dword {sEP}, s[{P_WS}:{P_WS+1}], 0')
    def tag(self):
        self.srd(WS, P_WS, WS_SIZE)
        self.a(f'''
        s_waitcnt lgkmcnt(0)
        s_add_u32 {sTAG}, {sEP}, 1
        s_mul_i32 {sTAG}, {sTAG}, {TAGMUL:#x}
        s_add_u32 {sTAG}, {sTAG}, 0x7f4a7c15
        ''')
    def dma_ckv(self, ntkey, groups=(0, 1, 2, 3), v=6):
        a = self.a
        self.srd(SA, P_CKV, 16 << 20)
        a(f'v_lshlrev_b32 v{v}, 4, {vL}')
        for k in range(1, 8): a(f'v_xor_b32 v{v+k}, {k << 5}, v{v}')
        for gi in groups:
            a(f's_add_u32 {sT1}, {sWB}, {gi*4096}')
            a(f's_mov_b32 m0, {sT1}')
            a(f's_add_u32 {sT0}, {sCH}, {sT1}')
            for k in range(4):
                n = 4*gi + k
                off = f' offset:{k*1024}' if k else ''
                a(f'buffer_load_dwordx4 v{v + (n & 7)}, {SA}, {sT0} offen{off}{self.nt(ntkey)} lds')
    def silu_addr(self):
        self.a(f'''
        v_lshlrev_b32 v16, 3, v0
        v_lshrrev_b32 v20, 7, v0
        v_mul_u32_u24 v20, {SVS}, v20
        v_and_b32 v21, 127, v0
        v_lshrrev_b32 v21, 3, v21
        v_lshl_add_u32 v20, v21, 6, v20
        v_and_b32 v21, 3, v0
        v_lshl_add_u32 v20, v21, 4, v20
        v_lshrrev_b32 v21, 2, v0
        v_and_b32 v21, 1, v21
        v_lshl_add_u32 v20, v21, 3, v20
        v_add_u32 v20, {SV}, v20
        ''')
    def silu_calc(self):
        a = self.a
        a('''
        v_lshlrev_b32 v22, 16, v18
        v_and_b32 v23, 0xffff0000, v18
        v_lshlrev_b32 v24, 16, v19
        v_and_b32 v25, 0xffff0000, v19
        ''')
        for r in range(22, 26): a(f'v_mul_f32 v{r+4}, {fhex(-LOG2E)}, v{r}')
        for r in range(22, 26): a(f'v_exp_f32 v{r+4}, v{r+4}')
        for r in range(22, 26): a(f'v_add_f32 v{r+4}, 1.0, v{r+4}')
        for r in range(22, 26): a(f'v_rcp_f32 v{r+4}, v{r+4}')
        for r in range(22, 26): a(f'v_mul_f32 v{r}, v{r}, v{r+4}')
        a('v_cvt_pk_bf16_f32 v22, v22, v23\nv_cvt_pk_bf16_f32 v23, v24, v25\nds_write_b64 v20, v[22:23]')
    def sv_frag_addr(self, v):
        self.a(f'''
        v_mul_u32_u24 {v}, {SVS}, {vB4}
        v_lshl_add_u32 {v}, {vG}, 4, {v}
        s_lshl_b32 {sT2}, {sW}, 7
        s_add_u32 {sT2}, {sT2}, {SV}
        v_add_u32 {v}, {sT2}, {v}
        ''')
    def p_pre(self):
        a = self.a
        a('; ================= P pre')
        if self.cfg.get('stopq'):
            self.after_kernarg(); self.tag(); a('s_branch L_exit')
        skip = a.label('nohp'); done = a.label('hpdone')
        a(f's_sub_u32 {sR0}, {sI}, 16\ns_cmp_ge_u32 {sR0}, 4\ns_cbranch_scc1 {skip}')
        vo = self.voff128(6, 6144)
        a(f"""
        s_lshl_b32 {sT0}, {sR0}, 2
        s_and_b32 {sT4}, {sW}, 3
        s_add_u32 {sT0}, {sT0}, {sT4}
        s_mul_i32 {sT0}, {sT0}, {32*6144}
        s_lshr_b32 {sT1}, {sW}, 2
        s_lshl_b32 {sT1}, {sT1}, 10
        s_add_u32 {sT0}, {sT0}, {sT1}
        s_lshl_b32 {sT3}, {sX}, 7
        s_add_u32 {sT0}, {sT0}, {sT3}
        v_lshrrev_b32 v16, 7, v0
        v_and_b32 v17, 127, v0
        v_lshlrev_b32 v18, 10, v16
        v_lshl_add_u32 v18, v17, 1, v18
        s_lshl_b32 {sT2}, {sR0}, 8
        s_lshl_b32 {sT5}, {sT4}, 10
        v_lshlrev_b32 v30, 4, {vL}
        v_lshrrev_b32 v39, 1, v0
        v_and_b32 v39, 3, v39
        v_lshrrev_b32 v37, 3, v0
        v_and_b32 v36, 1, v0
        v_lshlrev_b32 v35, 10, v39
        v_lshl_add_u32 v35, v37, 3, v35
        v_lshl_add_u32 v35, v36, 2, v35
        """)
        self.after_kernarg()
        self.srd(SB, P_C, 4096); self.srd(SC, P_X, 4096); self.srd(SA, P_WMOD, 512 * 6144)
        self.ts('hp_karg')
        a(f"""
        buffer_load_ushort v20, v18, {SB}, {sT2} offen
        buffer_load_dwordx4 v[40:43], v30, {SC}, {sT5} offen
        buffer_load_dword v38, v35, {SC}, {sT3} offen
        """)
        self.dma_groups(SA, vo, [sT0], [sWB], self.nt())
        self.tag()
        ad = self.tr128_addr(6, sWB)
        mq = self.masks_q()
        a(f"""
        v_mul_u32_u24 v10, {QBS}, v16
        v_lshrrev_b32 v11, 5, v17
        v_lshl_add_u32 v10, v11, 6, v10
        v_lshrrev_b32 v11, 2, v17
        v_and_b32 v11, 3, v11
        v_lshl_add_u32 v10, v11, 4, v10
        v_lshrrev_b32 v11, 4, v17
        v_and_b32 v11, 1, v11
        v_lshl_add_u32 v10, v11, 3, v10
        v_and_b32 v11, 3, v17
        v_lshl_add_u32 v10, v11, 1, v10
        v_add_u32 v10, {SV}, v10
        v_mul_u32_u24 v11, {QBS}, {vB4}
        v_lshl_add_u32 v11, {vG}, 4, v11
        s_lshl_b32 {sT0}, {sT4}, 6
        s_add_u32 {sT0}, {sT0}, {SV}
        v_add_u32 v11, {sT0}, v11
        s_lshl_b32 {sT0}, {sW}, 10
        s_add_u32 {sT0}, {sT0}, {RED}
        v_lshrrev_b32 v12, 2, {vT}
        v_lshlrev_b32 v12, 8, v12
        v_lshl_add_u32 v12, {vG}, 6, v12
        v_lshl_add_u32 v12, {vB4}, 4, v12
        v_add_u32 v12, {sT0}, v12
        v_lshlrev_b32 v13, 3, v0
        v_add_u32 v13, {RED}, v13
        v_lshlrev_b32 v14, 3, v39
        v_add_u32 v14, {LS}, v14
        v_lshlrev_b32 v15, 11, v39
        v_lshl_add_u32 v15, v37, 4, v15
        v_lshl_add_u32 v15, v36, 3, v15
        s_lshl_b32 {sT6}, {sR0}, 13
        s_lshl_b32 {sT0}, {sX}, 8
        s_add_u32 {sT6}, {sT6}, {sT0}
        s_add_u32 {sT6}, {sT6}, {WS_H}
        s_lshl_b32 {sT3}, {sT4}, 3
        s_add_u32 {sT3}, {sT3}, {LS}
        v_mov_b32 v50, {sT3}
        s_cmp_eq_u32 {sR0}, 0
        s_cselect_b32 {sT7}, 1.0, 0
        v_mov_b32 v45, {sTAG}
        s_waitcnt vmcnt(6)
        v_lshlrev_b32 v20, 16, v20
        v_mul_f32 v21, {fhex(-LOG2E)}, v20
        v_exp_f32 v21, v21
        s_nop 0
        v_add_f32 v21, 1.0, v21
        v_rcp_f32 v21, v21
        s_nop 0
        v_mul_f32 v20, v20, v21
        v_cvt_pk_bf16_f32 v20, v20, v20
        ds_write_b16 v10, v20
        s_waitcnt vmcnt(5)
        """)
        self.ts('hp_c')
        for k in range(4):
            a(f'v_lshlrev_b32 v{52+2*k}, 16, v{40+k}\nv_and_b32 v{53+2*k}, 0xffff0000, v{40+k}')
        a('v_add_f32 v48, v52, v53\nv_mul_f32 v49, v52, v52\nv_fmac_f32 v49, v53, v53')
        for k in range(54, 60): a(f'v_add_f32 v48, v48, v{k}\nv_fmac_f32 v49, v{k}, v{k}')
        self.allsum(['v48', 'v49'], ['v51', 'v52'])
        a(f"""
        v_mul_f32 v48, {fhex(1/512)}, v48
        v_mul_f32 v49, {fhex(1/512)}, v49
        v_fma_f32 v49, -v48, v48, v49
        v_max_f32 v49, 0, v49
        v_add_f32 v49, {fhex(1e-5)}, v49
        v_rsq_f32 v49, v49
        s_nop 0
        ds_write_b64 v50, v[48:49]
        s_waitcnt lgkmcnt(0)
        """)
        self.ts('hp_ln')
        a('s_barrier\nds_read_b128 v[52:55], v11\ns_waitcnt vmcnt(0)')
        self.ts('hp_loaded')
        self.tr_reads(ad, range(1), 128, 16)
        a('s_waitcnt lgkmcnt(0)')
        for ct in range(4): self.mfma(60+4*ct, 16+4*ct, 52, True)
        for r in range(4): self.sel4(f'v{76+r}', [f'v{60+4*ct+r}' for ct in range(4)], mq)
        a('ds_write_b128 v12, v[76:79]\ns_waitcnt lgkmcnt(0)\ns_barrier')
        fin = a.label('hpfin')
        a(f's_cmp_ge_u32 {sW}, 2\ns_cbranch_scc1 {fin}')
        for ww in range(8): a(f'ds_read_b64 {vr(16+2*ww,2)}, v13 offset:{ww*1024}')
        a("""
        ds_read_b64 v[32:33], v14
        v_lshlrev_b32 v40, 16, v38
        v_and_b32 v41, 0xffff0000, v38
        s_waitcnt lgkmcnt(0)
        v_sub_f32 v40, v40, v32
        v_sub_f32 v41, v41, v32
        v_mul_f32 v40, v40, v33
        v_mul_f32 v41, v41, v33
        """)
        self.tree_add(['v16', 'v18', 'v20', 'v22'])
        self.tree_add(['v17', 'v19', 'v21', 'v23'])
        self.tree_add(['v24', 'v26', 'v28', 'v30'])
        self.tree_add(['v25', 'v27', 'v29', 'v31'])
        a(f"""
        v_add_f32 v24, {sT7}, v24
        v_add_f32 v25, {sT7}, v25
        v_fmac_f32 v16, v40, v24
        v_fmac_f32 v17, v41, v25
        v_cvt_pk_bf16_f32 v44, v16, v17
        buffer_store_dwordx2 v[44:45], v15, {WS}, {sT6} offen sc1
        {fin}:
        s_barrier
        """)
        self.ts('hp_pub')
        a(f's_branch {done}\n{skip}:')
        if self.cfg.get('pfuk', True):
            a(f'''
            s_sub_u32 {sT0}, {sI}, 20
            s_mul_i32 {sT0}, {sT0}, 6
            s_add_u32 {sT0}, {sT0}, {sW}
            s_lshl_b32 {sT0}, {sT0}, 3
            s_lshl_b32 {sT0}, {sT0}, 13
            s_lshl_b32 {sT1}, {sX}, 10
            s_add_u32 {sT0}, {sT0}, {sT1}
            v_lshrrev_b32 v6, 3, {vL}
            v_lshlrev_b32 v6, 13, v6
            v_and_b32 v7, 7, {vL}
            v_lshl_add_u32 v6, v7, 7, v6
            ''')
        self.after_kernarg()
        if self.cfg.get('pfuk', True):
            sk2 = a.label('nouk')
            self.srd(SB, P_WUK, 4 << 20)
            a(f's_cmp_ge_u32 {sW}, 6\ns_cbranch_scc1 {sk2}\nbuffer_load_dword v98, v6, {SB}, {sT0} offen\n{sk2}:')
        self.tag()
        if self.cfg.get('pdelay'):
            a(f's_lshl_b32 {sT0}, {sX}, 8\ns_add_u32 {sT0}, {sT0}, {WS_H + 3*8192}\nv_mov_b32 v5, 0')
            l = self.poll_begin()
            a(f'buffer_load_dwordx2 v[6:7], v5, {WS}, {sT0} offen sc1\ns_waitcnt vmcnt(0)')
            self.tagchk('v8', ['v7'])
            self.poll_end(l, 12, 4, 'v8')
        a(f'{done}:')
        a(f"""
        s_sub_u32 {sR0}, {sI}, 16
        s_lshr_b32 {sR1}, {sR0}, 2
        s_lshl_b32 {sT0}, {sX}, 2
        s_add_u32 {sR1}, {sR1}, {sT0}          ; hp
        s_and_b32 {sR0}, {sR0}, 3              ; bp
        s_mov_b32 {sPLO}, 0x05040100
        s_mov_b32 {sPHI}, 0x07060302
        """)
        self.touch_uv()
        self.dma_ckv_p()
        self.ts('ckv_iss')
        self.srd(SB, P_WUV, 4 << 20)
        a(f"""
        v_lshlrev_b32 v96, 16, {vG}
        v_lshl_add_u32 v96, {vT}, 4, v96
        s_lshl_b32 {sU0}, {sW}, 19
        s_lshl_b32 {sU1}, {sR1}, 8
        s_add_u32 {sU0}, {sU0}, {sU1}
        """)
        self.wuv_at('e', False)
    def wuv_group(self, gi, guard=True):
        a = self.a
        sk = a.label('nouv')
        if guard: a(f's_cmp_lt_u32 {sI}, 16\ns_cbranch_scc1 {sk}')
        a(f's_add_u32 {sU1}, {sU0}, {((gi >> 1) * 32 + (gi & 1) * 4) * 8192}')
        for e in range(4):
            n = 4*gi + e
            a(f'buffer_load_dwordx4 {vr(112+4*n,4)}, v96, {SB}, {sU1} offen{self.nt()}')
            if e < 3: a(f's_add_u32 {sU1}, {sU1}, 8192')
        a(f'{sk}:')
    def wuv_at(self, pos, guard=True):
        n = 0
        for gi, p in enumerate(self.cfg['gpl']):
            if p == pos: self.wuv_group(gi, guard); n += 1
        return n
    def wuv_unit(self, k):
        a = self.a
        a(f's_add_u32 {sU1}, {sU0}, {k * 32 * 8192}')
        for e in range(8):
            a(f'buffer_load_dwordx4 {vr(112+32*k+4*e,4)}, v96, {SB}, {sU1} offen{self.nt()}')
            if e < 7: a(f's_add_u32 {sU1}, {sU1}, 8192')
    def q_pre(self):
        a = self.a
        a('; ================= Q pre')
        a(f'''
        s_lshr_b32 {sR1}, {sI}, 2
        s_lshl_b32 {sT0}, {sX}, 2
        s_add_u32 {sR1}, {sR1}, {sT0}          ; hq
        s_and_b32 {sR0}, {sI}, 3               ; cq
        v_lshlrev_b32 v9, 1, {vG}
        v_xor_b32 v10, {vT}, v9
        v_lshlrev_b32 v6, 13, {vG}
        v_lshl_add_u32 v6, v10, 4, v6          ; k=0
        v_xor_b32 v7, 128, v6
        v_add_u32 v8, {2*31744}, v6            ; k=2
        v_add_u32 v9, {3*31744}, v7            ; k=3
        v_add_u32 v7, 31744, v7                ; k=1
        s_lshl_b32 {sU0}, {sW}, 19
        s_lshl_b32 {sU1}, {sR1}, 8
        s_add_u32 {sU0}, {sU0}, {sU1}
        ''')
        self.rot_groups(4, sR0, sU0, 17, sWB, [sT0, sT1, sT2, sT3], [sT4, sT5, sT6, sT7])
        a(f'''
        s_lshl_b32 {sU0}, {sR0}, 20
        s_add_u32 {sU0}, {sU0}, {sU1}
        s_lshl_b32 {sU1}, {sW}, 17
        s_add_u32 {sU0}, {sU0}, {sU1}
        ''')
        self.after_kernarg()
        self.ts('q_karg')
        self.srd(SA, P_WQ, 4 << 20)
        self.dma_groups(SA, ['v6', 'v7', 'v8', 'v9'], [sT0, sT1, sT2, sT3], [sT4, sT5, sT6, sT7], self.nt())
        self.ts('q_iss')
        self.srd(SB, P_WUK, 4 << 20)
        a(f's_lshl_b32 {sU1}, {sW}, 12\ns_add_u32 {sU1}, {sU1}, {SM}')
        self.dma_groups(SB, ['v6', 'v7', 'v8', 'v9'], [sU0], [sU1], self.nt())
        self.tag()
        a(f'''
        v_lshrrev_b32 v8, 2, {vT}
        v_lshl_add_u32 v8, {vG}, 2, v8
        v_and_b32 v9, 7, v8
        v_lshlrev_b32 v9, 5, v9
        v_lshl_add_u32 v8, v8, 8, v9
        v_lshrrev_b32 v9, 1, {vB4}
        v_lshl_add_u32 v8, v9, 4, v8
        v_and_b32 v9, 1, {vB4}
        v_lshl_add_u32 v8, v9, 3, v8
        v_add_u32 v8, {sWB}, v8
        ''')
        for ct in range(1, 8): a(f'v_xor_b32 v{8+ct}, {ct << 5}, v8')
        a(f'''
        v_lshlrev_b32 v152, 11, {vG}
        v_lshl_add_u32 v152, {vT}, 4, v152
        v_mul_u32_u24 v170, 192, {vG}
        v_lshrrev_b32 v171, 3, {vT}
        v_lshl_add_u32 v170, v171, 6, v170
        v_lshl_add_u32 v170, {vB4}, 4, v170
        v_lshrrev_b32 v171, 2, {vT}
        v_and_b32 v171, 1, v171
        v_lshl_add_u32 v170, v171, 3, v170
        v_add_u32 v170, {sWB}, v170
        v_mul_u32_u24 v174, 192, {vB4}
        v_lshl_add_u32 v174, {vG}, 4, v174
        v_add_u32 v174, {sWB}, v174
        s_lshl_b32 {sT3}, {sW}, 8
        s_add_u32 {sT3}, {sT3}, {WS_H}
        s_add_u32 {sT2}, {sWB}, 2048
        v_lshrrev_b32 v156, 2, {vT}
        v_lshlrev_b32 v156, 8, v156
        v_lshl_add_u32 v156, {vG}, 6, v156
        v_lshl_add_u32 v156, {vB4}, 4, v156
        v_add_u32 v156, {sT2}, v156
        v_lshlrev_b32 v157, 2, v0
        v_add_u32 v157, 2048, v157
        v_add_u32 v159, 0x10000, v157          ; regions 4..7
        v_lshrrev_b32 v154, 2, {vL}
        v_and_b32 v154, 3, v154
        v_mul_u32_u24 v154, {QBS}, v154
        v_lshl_add_u32 v154, {vG}, 3, v154
        v_lshl_add_u32 v154, {vB4}, 1, v154
        s_lshl_b32 {sT2}, {sW}, 5
        s_add_u32 {sT2}, {sT2}, {QB}
        v_add_u32 v154, {sT2}, v154
        v_mul_u32_u24 v155, {QBS}, {vB4}
        v_lshl_add_u32 v155, {vG}, 4, v155
        v_add_u32 v155, {QB}, v155
        v_lshlrev_b32 v158, 16, {vB4}
        v_lshl_add_u32 v158, {vG}, 4, v158
        s_lshl_b32 {sT4}, {sR1}, 11
        s_lshl_b32 {sT1}, {sR0}, 9
        s_add_u32 {sT4}, {sT4}, {sT1}
        s_lshl_b32 {sT1}, {sW}, 6
        s_add_u32 {sT4}, {sT4}, {sT1}
        s_add_u32 {sT4}, {sT4}, {WS_Q}
        s_mov_b32 {sT5}, {fhex(SCALE)}
        v_mov_b32 v149, {sTAG}
        v_mov_b32 v151, {sTAG}
        v_and_b32 v5, 7, {vT}
        v_lshlrev_b32 v5, 5, v5
        v_lshlrev_b32 v160, 4, {vG}
        v_xor_b32 v160, v160, v5
        v_lshl_add_u32 v160, {vT}, 8, v160
        v_add_u32 v160, {sU1}, v160
        v_xor_b32 v161, 64, v160
        v_xor_b32 v162, 128, v160
        v_xor_b32 v163, 192, v160
        s_waitcnt vmcnt(4)
        ''')
        self.ts('wq_landed')
        a(f's_add_u32 {sT0}, {sT3}, 8192\ns_add_u32 {sT1}, {sT3}, 16384\ns_add_u32 {sT2}, {sT3}, 24576')
        def hloads():
            for k, so in enumerate((sT3, sT0, sT1, sT2)):
                a(f'buffer_load_dwordx4 {vr(128+4*k,4)}, v152, {WS}, {so} offen sc1')
        atrig = self.cfg.get('atrig', False)
        if not atrig: hloads()
        self.tr_reads([f'v{8+ct}' for ct in range(8)], range(2), 256, 16)
        mq = self.masks_q()
        self.ckv_prep(176)
        a(f's_waitcnt vmcnt({0 if atrig else 4})')
        for st in range(4): a(f'ds_read_b128 {vr(112+4*st,4)}, v{160+st}')
        if atrig:
            sk = a.label('noatrig')
            a(f's_cmp_lg_u32 {sW}, 0\ns_cbranch_scc1 {sk}')
            a(f'''
            v_lshrrev_b32 v168, 3, {vL}
            v_and_b32 v168, 3, v168
            v_lshlrev_b32 v168, 13, v168
            v_and_b32 v169, 7, {vL}
            v_lshl_add_u32 v168, v169, 8, v168
            v_add_u32 v168, {3*2048+248}, v168
            s_mov_b32 {sU0}, {WS_H}
            ''')
            l = self.poll_begin()
            a(f'buffer_load_dwordx2 v[128:129], v168, {WS}, {sU0} offen sc1\ns_waitcnt vmcnt(0)')
            self.tagchk('v153', ['v129'])
            self.poll_end(l, 13, self.cfg['sleepA'], 'v153')
            a(f'{sk}:\ns_barrier')
            self.ts('q_atrig')
            l = self.poll_begin()
            hloads()
            a('s_waitcnt vmcnt(0)')
        else:
            first = a.label('hfirst')
            a(f's_mov_b32 {sCNT}, {self.cfg["limit"]}\ns_branch {first}')
            l = a.label('poll'); a(f'{l}:')
            hloads()
            a(f'{first}:\ns_waitcnt vmcnt(0)')
        self.tagchk('v153', [f'v{128+4*k+o}' for k in range(4) for o in (1, 3)])
        self.poll_end(l, 1, self.cfg['sleepA2'], 'v153')
        self.ts('h_got')
        a(f's_mov_b32 {sT0}, 0x00003f80\ns_mov_b32 {sT1}, 0x3f800000')
        for k in range(4):
            for j, (src, sel) in enumerate(((128+4*k, sT0), (128+4*k, sT1), (130+4*k, sT0), (130+4*k, sT1))):
                a(f'v_dot2_f32_bf16 v{144+j}, v{src}, {sel}, {"0" if k == 0 else f"v{144+j}"}')
        a('v_cvt_pk_bf16_f32 v144, v144, v145\nv_cvt_pk_bf16_f32 v145, v146, v147\nds_write_b64 v170, v[144:145]\ns_waitcnt lgkmcnt(0)')
        a('ds_read_b128 v[128:131], v174\nds_read_b128 v[136:139], v174 offset:64')
        if self.cfg.get('ckvA', True): self.ckv_group(1, 176, 'nt_ckv_q')
        a('s_waitcnt lgkmcnt(0)')
        for ks in range(2):
            for ct in range(8): self.mfma(80+4*ct, 16+4*(ks*8+ct), 128+8*ks, ks == 0)
        self.ts('q_mfma')
        for hf in range(2):
            for r in range(4): self.sel4(f'v{136+4*hf+r}', [f'v{80+16*hf+4*ct+r}' for ct in range(4)], mq)
            a(f'ds_write_b128 v156, {vr(136+4*hf,4)} offset:{hf*1024}')
        a('s_waitcnt lgkmcnt(0)')
        self.ts('q_wr')
        a('s_barrier')
        self.ts('q_bar1')
        if self.cfg.get('ckvB', True): self.ckv_group(2, 176, 'nt_ckv_q')
        for ww in range(8): a(f'ds_read_b32 v{128+ww}, v{157 if ww < 4 else 159} offset:{(ww&3)*16384}')
        a('s_waitcnt lgkmcnt(0)')
        self.tree_add([f'v{128+k}' for k in range(8)])
        a('''
        v_cvt_pk_bf16_f32 v128, v128, v128
        ds_write_b16 v154, v128
        s_waitcnt lgkmcnt(0)
        s_barrier
        ''')
        self.ts('q_bar2')
        for st in range(4): a(f'ds_read_b128 {vr(128+4*st,4)}, v155 offset:{st*64}')
        for st in range(4):
            a(f's_waitcnt lgkmcnt({3-st})')
            self.mfma(144, 112+4*st, 128+4*st, st == 0)
        a(f'''
        v_mul_f32 v144, {sT5}, v144
        v_mul_f32 v145, {sT5}, v145
        v_mul_f32 v146, {sT5}, v146
        v_mul_f32 v147, {sT5}, v147
        v_cvt_pk_bf16_f32 v148, v144, v145
        v_cvt_pk_bf16_f32 v150, v146, v147
        s_mov_b64 exec, {mT4}
        buffer_store_dwordx4 v[148:151], v158, {WS}, {sT4} offen sc1
        s_mov_b64 exec, -1
        ''')
        self.ts('q_pub')
        a('s_barrier')
        for gi in [0, 3]: self.ckv_group(gi, 176, 'nt_ckv_q')
        self.touch_o_prep()
    def att_addr(self):
        a = self.a
        a(f'''
        v_and_b32 v5, 7, {vT}
        v_lshlrev_b32 v5, 5, v5
        v_lshlrev_b32 v244, 4, {vG}
        v_xor_b32 v244, v244, v5
        v_lshl_add_u32 v244, {vT}, 10, v244
        v_xor_b32 v245, 64, v244
        v_xor_b32 v246, 128, v244
        v_xor_b32 v247, 192, v244
        v_add_u32 v248, {QT}, v244
        v_add_u32 v249, {QT}, v245
        v_add_u32 v250, {QT}, v246
        v_add_u32 v251, {QT}, v247
        v_add_u32 v244, {sWB}, v244
        v_add_u32 v245, {sWB}, v245
        v_add_u32 v246, {sWB}, v246
        v_add_u32 v247, {sWB}, v247
        v_lshrrev_b32 v80, 2, {vT}
        v_lshl_add_u32 v80, {vG}, 2, v80
        v_and_b32 v81, 7, v80
        v_lshlrev_b32 v81, 5, v81
        s_lshl_b32 {sT0}, {sW}, 7
        v_lshl_add_u32 v82, {vB4}, 4, {sT0}
        v_xor_b32 v81, v81, v82
        v_lshl_add_u32 v80, v80, 10, v81
        v_lshrrev_b32 v81, 1, {vB4}
        v_lshl_add_u32 v80, v81, 3, v80
        v_xor_b32 v81, 8, v80
        v_xor_b32 v82, 64, v80
        v_xor_b32 v83, 72, v80
        v_add_u32 v100, 0x10000, v80
        v_add_u32 v101, 0x10000, v81
        v_add_u32 v102, 0x10000, v82
        v_add_u32 v103, 0x10000, v83
        v_mov_b32 v240, 0x3f803f80
        v_mov_b32 v241, 0x3f803f80
        v_mov_b32 v242, 0x3f803f80
        v_mov_b32 v243, 0x3f803f80
        v_lshlrev_b32 v84, 4, v0
        v_lshrrev_b32 v85, 2, {vL}
        v_lshlrev_b32 v85, 11, v85
        v_lshl_add_u32 v85, {vB4}, 9, v85
        v_add_u32 v85, 504, v85
        s_lshr_b32 {sT0}, {sW}, 1
        v_and_b32 v86, 127, v0
        v_lshrrev_b32 v87, 1, v86
        s_lshl_b32 {sT1}, {sT0}, 1
        v_xor_b32 v87, {sT1}, v87
        v_lshlrev_b32 v87, 4, v87
        v_and_b32 v86, 1, v86
        v_lshl_add_u32 v86, v86, 3, v87
        s_lshl_b32 {sT1}, {sT0}, 10
        s_add_u32 {sT1}, {sT1}, {QT}
        v_add_u32 v86, {sT1}, v86
        v_xor_b32 v87, 128, v86
        v_lshlrev_b32 v89, 5, {vT}
        s_lshl_b32 {sT1}, {sW}, 2
        s_add_u32 {sT2}, {sT1}, {MX}
        v_add_u32 v88, {sT2}, v89
        s_add_u32 {sT2}, {sT1}, {LS}
        v_add_u32 v91, {sT2}, v89
        v_add_u32 v92, {LS}, v89
        v_add_u32 v89, {MX}, v89
        s_lshl_b32 {sT0}, {sT0}, 10
        s_and_b32 {sT1}, {sW}, 1
        s_lshl_b32 {sT1}, {sT1}, 3
        s_add_u32 {sT0}, {sT0}, {sT1}
        s_add_u32 {sT0}, {sT0}, {PT}
        v_lshl_add_u32 v90, {vL}, 4, {sT0}
        v_lshlrev_b32 v93, 4, {vL}
        v_add_u32 v93, {PT}, v93
        v_lshlrev_b32 v94, 15, {vT}
        v_lshl_add_u32 v94, {vG}, 4, v94
        v_lshlrev_b32 v95, 8, {vT}
        s_lshl_b32 {sT0}, {sBA}, 5
        s_lshl_b32 {sT1}, {sHH}, 4
        s_add_u32 {sT0}, {sT0}, {sT1}          ; row0
        s_lshl_b32 {sR3}, {sT0}, 8
        s_lshl_b32 {sT1}, {sS}, 3
        s_add_u32 {sR3}, {sR3}, {sT1}
        s_add_u32 {sR3}, {sR3}, {WS_FL}
        s_lshl_b32 {sR2}, {sT0}, 5
        s_add_u32 {sR2}, {sR2}, {sS}
        s_lshl_b32 {sR2}, {sR2}, 10
        s_lshl_b32 {sT1}, {sW}, 7
        s_add_u32 {sR2}, {sR2}, {sT1}
        s_add_u32 {sR2}, {sR2}, {WS_D}
        s_lshl_b32 {sT4}, {sBA}, 16
        s_lshl_b32 {sT1}, {sHH}, 15
        s_add_u32 {sT4}, {sT4}, {sT1}
        s_add_u32 {sT4}, {sT4}, {WS_Q}
        s_add_u32 {sT5}, {sT4}, 8192
        s_add_u32 {sT6}, {sT4}, 16384
        s_add_u32 {sT7}, {sT4}, 24576
        ''')
    def wuv_prep(self):
        a = self.a
        self.srd(SB, P_WUV, 4 << 20)
        a(f'''
        v_lshlrev_b32 v96, 16, {vG}
        v_lshl_add_u32 v96, {vT}, 4, v96
        s_lshl_b32 {sU0}, {sW}, 19
        s_lshl_b32 {sU1}, {sR1}, 8
        s_add_u32 {sU0}, {sU0}, {sU1}
        ''')
    def touch_uv(self):
        a = self.a; done = a.label('tuv')
        a(f's_cmp_ge_u32 {sW}, 4\ns_cbranch_scc1 {done}')
        self.srd(SC, P_WUV, 4 << 20)
        a(f"""
        v_lshrrev_b32 v97, 1, {vL}
        v_lshlrev_b32 v97, 13, v97
        v_and_b32 v99, 1, {vL}
        v_lshl_add_u32 v97, v99, 7, v97
        s_lshl_b32 {sT0}, {sR1}, 8
        s_lshl_b32 {sT1}, {sR0}, 20
        s_add_u32 {sT0}, {sT0}, {sT1}
        s_lshl_b32 {sT1}, {sW}, 18
        s_add_u32 {sT0}, {sT0}, {sT1}
        buffer_load_dword v98, v97, {SC}, {sT0} offen
        {done}:
        """)
    def touch_o_prep(self):
        a = self.a
        self.srd(SC, P_WO, 4 << 20)
        a(f"""
        v_lshlrev_b32 v97, 7, {vL}
        s_lshl_b32 {sU0}, {sR1}, 17
        s_lshl_b32 {sU1}, {sR0}, 15
        s_add_u32 {sU0}, {sU0}, {sU1}
        s_lshl_b32 {sU1}, {sW}, 13
        s_add_u32 {sU0}, {sU0}, {sU1}
        """)
    def touch_o(self):
        a = self.a; done = a.label('to')
        a(f's_cmp_ge_u32 {sI}, 16\ns_cbranch_scc1 {done}\ns_cmp_ge_u32 {sW}, 4\ns_cbranch_scc1 {done}')
        a(f'buffer_load_dword v98, v97, {SC}, {sU0} offen\n{done}:')
    def attention(self):
        a = self.a
        a('; ================= attention')
        sk = a.label('notrig'); sq = a.label('qnotrig')
        a(f's_cmp_lt_u32 {sI}, 16\ns_cbranch_scc1 {sq}')
        a(f's_cmp_lg_u32 {sW}, 0\ns_cbranch_scc1 {sk}')
        if self.cfg.get('ptrig', True):
            self.poll_trig('v85', sT4, 176, 2, 'v192')
        else:
            l = self.poll_begin()
            a(f'buffer_load_dwordx2 v[176:177], v85, {WS}, {sT4} offen sc1\ns_waitcnt vmcnt(0)')
            self.tagchk('v192', ['v177'])
            self.poll_end(l, 2, self.cfg['sleepC'], 'v192')
        a(f'{sk}:\ns_barrier')
        self.ts('p_ctrig')
        a(f'{sq}:')
        l = self.poll_begin()
        for n, so in enumerate((sT4, sT5, sT6, sT7)):
            a(f'buffer_load_dwordx4 {vr(176+4*n,4)}, v84, {WS}, {so} offen sc1')
        a('s_waitcnt vmcnt(4)')
        for st in range(16): a(f'ds_read_b128 {vr(16+4*st,4)}, v{244+(st&3)} offset:{(st>>2)*256}')
        a('s_waitcnt vmcnt(0)')
        self.tagchk('v192', [f'v{176+4*n+o}' for n in range(4) for o in (1, 3)])
        self.poll_end(l, 3, 1, 'v192')
        self.ts('c_got')
        for n in range(4):
            a(f'v_mov_b32 v{177+4*n}, v{178+4*n}')
            a(f'ds_write_b64 v{86 + (n & 1)}, {vr(176+4*n,2)} offset:{n*4096}')
        self.wuv_at('c')
        a('s_waitcnt lgkmcnt(0)\ns_barrier')
        self.ts('b1')
        NB = 8
        for st in range(NB): a(f'ds_read_b128 {vr(196+4*st,4)}, v{248+(st&3)} offset:{(st>>2)*256}')
        if self.cfg.get('pfQo', True): self.touch_o()
        for st in range(16):
            a(f's_waitcnt lgkmcnt({min(16, st+NB) - st - 1})')
            self.mfma(192, 16+4*st, 196+4*(st % NB), st == 0)
            if st + NB < 16:
                s2 = st + NB
                a(f'ds_read_b128 {vr(196+4*(s2%NB),4)}, v{248+(s2&3)} offset:{(s2>>2)*256}')
        self.ts('a_sdone')
        def pva(ks):
            for pp in range(2):
                for T in range(2):
                    d = 16 + 4 * ((ks * 2 + pp) * 2 + T)
                    base = (80 if ks < 2 else 100) + 2*pp + T
                    for hi in range(2):
                        a(f'ds_read_b64_tr_b16 {vr(d+2*hi,2)}, v{base} offset:{(ks & 1)*32768 + hi*16384}')
        pva(0); pva(1)
        self.wuv_at('s')
        a('v_max_f32 v228, v192, v193\nv_max3_f32 v228, v228, v194, v195')
        self.crossrow(['v228'], ['v229'], 'v_max_f32')
        a('ds_write_b32 v88, v228')
        pva(2); pva(3)
        a('s_waitcnt lgkmcnt(15)')
        self.ts('a_preb2')
        a('s_barrier')
        self.ts('a_b2')
        a('ds_read_b128 v[236:239], v89\nds_read_b128 v[232:235], v89 offset:16')
        self.wuv_at('b')
        a("""
        s_waitcnt lgkmcnt(0)
        v_max3_f32 v236, v236, v237, v238
        v_max3_f32 v232, v232, v233, v234
        v_max3_f32 v228, v236, v239, v232
        v_max_f32 v228, v228, v235
        v_sub_f32 v192, v192, v228
        v_sub_f32 v193, v193, v228
        v_sub_f32 v194, v194, v228
        v_sub_f32 v195, v195, v228
        v_exp_f32 v192, v192
        v_exp_f32 v193, v193
        v_exp_f32 v194, v194
        v_exp_f32 v195, v195
        s_nop 0
        v_cvt_pk_bf16_f32 v234, v192, v193
        v_cvt_pk_bf16_f32 v235, v194, v195
        ds_write_b64 v90, v[234:235]
        """)
        self.wuv_at('p')
        self.ts('a_pvaiss')
        a('s_waitcnt lgkmcnt(0)')
        self.ts('a_preb3')
        a('s_barrier')
        self.ts('b3')
        for ks in range(4): a(f'ds_read_b128 {vr(196+4*ks,4)}, v93 offset:{ks*1024}')
        for ks in range(4):
            a(f's_waitcnt lgkmcnt({3-ks})')
            self.mfma(236, 240, 196+4*ks, ks == 0)
            for pp in range(2):
                for T in range(2): self.mfma(212+4*(pp*2+T), 16+4*((ks*2+pp)*2+T), 196+4*ks, ks == 0)
        self.ts('a_pvdone')
        a(f"""
        v_rcp_f32 v232, v236
        v_log_f32 v238, v236
        v_mov_b32 v239, {sTAG}
        v_add_f32 v238, v228, v238
        """)
        for pp in range(2):
            b = 212 + 8*pp
            for k in range(4): a(f'v_pk_mul_f32 {vr(b+2*k,2)}, {vr(b+2*k,2)}, v[232:233] op_sel_hi:[1,0]')
            for k in range(4): a(f'v_cvt_pk_bf16_f32 v{196+4*pp+k}, v{b+2*k}, v{b+2*k+1}')
            off = ' offset:64' if pp else ''
            a(f'buffer_store_dwordx4 {vr(196+4*pp,4)}, v94, {WS}, {sR2} offen{off} sc1')
        self.ts('d_st')
    def d_flag(self):
        a = self.a; sk = a.label('nofl')
        a(f'''
        s_barrier
        s_cmp_lg_u32 {sW}, 0
        s_cbranch_scc1 {sk}
        s_mov_b64 exec, 0xffff
        buffer_store_dwordx2 v[238:239], v95, {WS}, {sR3} offen sc1
        s_mov_b64 exec, -1
        {sk}:
        ''')
        self.ts('d_flag')
    def loader(self, srd, vo, kind, steps=(0, 1, 2, 3)):
        a = self.a
        a(f's_sub_u32 {sU0}, {sW}, 4')
        for st in steps:
            a(f"""
            s_add_u32 {sT0}, {sR0}, {st}
            s_and_b32 {sT0}, {sT0}, 3
            s_lshl_b32 {sT0}, {sT0}, 1
            s_lshr_b32 {sT1}, {sU0}, 1
            s_add_u32 {sT0}, {sT0}, {sT1}          ; region
            s_and_b32 {sT1}, {sU0}, 1
            s_lshl_b32 {sT1}, {sT1}, 3             ; n0
            s_lshl_b32 {sT4}, {sT0}, 14
            s_lshl_b32 {sT2}, {sT1}, 10
            s_add_u32 {sT4}, {sT4}, {sT2}          ; m0
            s_add_u32 {sT5}, {sT4}, 4096
            """)
            if kind == 'uv':
                a(f"""
                s_lshl_b32 {sT2}, {sT0}, 19
                s_lshl_b32 {sT3}, {sT1}, 15
                s_add_u32 {sT2}, {sT2}, {sT3}
                s_lshl_b32 {sT3}, {sR1}, 8
                s_add_u32 {sT2}, {sT2}, {sT3}
                s_add_u32 {sT3}, {sT2}, {4 << 15}
                """)
            else:
                a(f"""
                s_lshl_b32 {sT2}, {sT0}, 7
                s_lshl_b32 {sT3}, {sT1}, 13
                s_add_u32 {sT2}, {sT2}, {sT3}
                s_lshl_b32 {sT3}, {sR1}, 17
                s_add_u32 {sT2}, {sT2}, {sT3}
                s_add_u32 {sT3}, {sT2}, {4 << 13}
                """)
            self.dma_groups(srd, vo, [sT2, sT3], [sT4, sT5], self.nt())
    def perm_unit(self, src, dst):
        a = self.a
        for q in range(4):
            for p in range(4):
                X = src + 8*q + p; Y = src + 8*q + 4 + p
                a(f'v_perm_b32 v{dst+8*p+q}, v{Y}, v{X}, {sPLO}')
                a(f'v_perm_b32 v{dst+8*p+4+q}, v{Y}, v{X}, {sPHI}')
    def p_post(self):
        a = self.a
        a('; ================= P post')
        a('s_barrier')
        ng = self.wuv_at('x', False)
        self.srd(SA, P_WO, 4 << 20)
        vo = self.voff128(6, 1024)
        a(f"""
        s_lshl_b32 s98, {sR1}, 17
        s_lshl_b32 s99, {sW}, 7
        s_add_u32 s98, s98, s99
        """)
        self.rot_groups(4, sR0, 's98', 15, sWB, [sT0, sT1, sT2, sT3], [sT4, sT5, sT6, sT7])
        wf = self.cfg.get('wofirst', 0)
        SR = [sT0, sT1, sT2, sT3]; MR = [sT4, sT5, sT6, sT7]
        if wf: self.dma_groups(SA, vo, SR[:wf], MR[:wf], self.nt())
        a(f's_waitcnt vmcnt({4*ng + 4*wf})')
        self.d_flag()
        ny = self.wuv_at('y', False)
        if wf < 4: self.dma_groups(SA, vo, SR[wf:], MR[wf:], self.nt())
        self.ts('p_ldiss')
        ad = self.tr128_addr(220, sWB)
        a(f"""
        s_lshl_b32 {sT0}, {sR0}, 5
        s_add_u32 {sT0}, {sT0}, {sR1}
        s_lshl_b32 {sT1}, {sT0}, 8
        s_lshl_b32 {sT2}, {sW}, 5
        s_add_u32 {sT1}, {sT1}, {sT2}
        s_add_u32 {sT1}, {sT1}, {WS_FL}
        s_lshl_b32 {sT2}, {sT0}, 15
        s_lshl_b32 {sT3}, {sW}, 12
        s_add_u32 {sT2}, {sT2}, {sT3}
        s_add_u32 {sT2}, {sT2}, {WS_D}
        s_lshl_b32 {sR2}, {sT0}, 11
        s_lshl_b32 {sT5}, {sW}, 8
        s_add_u32 {sR2}, {sR2}, {sT5}
        s_add_u32 {sR2}, {sR2}, {WS_E}         ; E soff
        v_lshlrev_b32 v5, 3, {vB4}
        v_lshlrev_b32 v6, 4, {vL}
        s_lshl_b32 {sT0}, {sW}, 11
        s_add_u32 {sT0}, {sT0}, {RED}
        v_lshrrev_b32 v7, 1, {vL}
        v_and_b32 v7, 1, v7
        v_lshlrev_b32 v7, 4, v7
        v_lshl_add_u32 v7, {vL}, 5, v7
        v_add_u32 v7, {sT0}, v7
        v_xor_b32 v8, 16, v7
        s_lshl_b32 {sT0}, {sW}, 3
        s_add_u32 {sT0}, {sT0}, {MX}
        v_mov_b32 v9, {sT0}
        v_lshlrev_b32 v10, 2, v0
        v_add_u32 v10, {RED}, v10
        v_and_b32 v11, 7, {vL}
        v_lshlrev_b32 v11, 3, v11
        v_add_u32 v11, {MX}, v11
        v_lshlrev_b32 v12, 1, v0
        v_add_u32 v12, {OB}, v12
        s_lshl_b32 {sT0}, {sW}, 7
        s_add_u32 {sT0}, {sT0}, {OB}
        v_lshl_add_u32 v13, {vG}, 4, {sT0}
        s_lshl_b32 {sT0}, {sW}, 9
        s_add_u32 {sT0}, {sT0}, {RED2}
        v_lshlrev_b32 v14, 5, {vT}
        v_lshl_add_u32 v14, {vG}, 3, v14
        v_add_u32 v14, {sT0}, v14
        v_lshlrev_b32 v15, 3, {vL}
        v_add_u32 v15, {RED2}, v15
        v_lshlrev_b32 v232, 6, {vG}
        v_lshrrev_b32 v233, 1, {vL}
        v_and_b32 v233, 3, v233
        v_lshl_add_u32 v232, v233, 4, v232
        v_lshrrev_b32 v233, 3, {vL}
        v_and_b32 v233, 1, v233
        v_lshl_add_u32 v232, v233, 3, v232
        v_and_b32 v233, 1, {vL}
        v_lshl_add_u32 v232, v233, 2, v232
        s_lshl_b32 {sT0}, {sW}, 8
        s_add_u32 {sT0}, {sT0}, {WL}
        v_add_u32 v232, {sT0}, v232
        v_lshl_add_u32 v233, {vG}, 4, {sT0}
        v_lshlrev_b32 v234, 6, {vT}
        v_lshl_add_u32 v234, {vG}, 4, v234     ; E voff
        v_mov_b32 v229, {sTAG}
        v_mov_b32 v231, {sTAG}
        """)
        mg = self.masks_g()
        a(f's_waitcnt vmcnt({4*(4-wf)})')
        self.perm_unit(112, 80)
        self.perm_unit(144, 112)
        l = self.poll_begin()
        a(f'buffer_load_dwordx2 v[176:177], v5, {WS}, {sT1} offen sc1\ns_waitcnt vmcnt(0)')
        self.tagchk('v178', ['v177'])
        self.poll_end(l, 4, self.cfg['sleepD'], 'v178')
        self.ts('dfl_got')
        for k in range(4):
            off = f' offset:{k*1024}' if k else ''
            a(f'buffer_load_dwordx4 {vr(180+4*k,4)}, v6, {WS}, {sT2} offen{off} sc1')
        self.tr_reads(ad, range(4), 128, 16)
        a("""
        v_max_f32_dpp v178, v176, v176 quad_perm:[1,0,3,2] row_mask:0xf bank_mask:0xf
        v_max_f32_dpp v178, v178, v178 quad_perm:[2,3,0,1] row_mask:0xf bank_mask:0xf
        v_sub_f32 v176, v176, v178
        v_exp_f32 v176, v176
        s_nop 0
        v_cvt_pk_bf16_f32 v177, v176, v176
        v_and_b32 v176, 0xffff0000, v177
        v_and_b32 v177, 0xffff, v177
        v_add_f32_dpp v179, v176, v176 quad_perm:[1,0,3,2] row_mask:0xf bank_mask:0xf
        v_add_f32_dpp v179, v179, v179 quad_perm:[2,3,0,1] row_mask:0xf bank_mask:0xf
        """)
        for k in range(4): a(f'v_readlane_b32 s{16+k}, v177, {k}')
        for k in range(4): a(f'v_readlane_b32 s{32+k}, v176, {k}')
        a('ds_write_b64 v9, v[178:179]')
        for k in range(4):
            a(f's_waitcnt vmcnt({3-k})')
            for p in range(4):
                sreg = 180 + 4*k + p
                c0 = '0' if k == 0 else f'v{212+2*p}'; c1 = '0' if k == 0 else f'v{213+2*p}'
                a(f'v_dot2_f32_bf16 v{212+2*p}, v{sreg}, s{16+k}, {c0}')
                a(f'v_dot2_f32_bf16 v{213+2*p}, v{sreg}, s{32+k}, {c1}')
        self.ts('d_got')
        a('ds_write_b128 v7, v[212:215]\nds_write_b128 v8, v[216:219]')
        a('s_waitcnt lgkmcnt(0)\ns_barrier')
        self.ts('p_b1')
        a('ds_read_b64 v[176:177], v11')
        for ww in range(8): a(f'ds_read_b32 v{192+ww}, v10 offset:{ww*2048}')
        a("""
        s_waitcnt lgkmcnt(8)
        v_max_f32_dpp v178, v176, v176 quad_perm:[1,0,3,2] row_mask:0xf bank_mask:0xf
        v_max_f32_dpp v178, v178, v178 quad_perm:[2,3,0,1] row_mask:0xf bank_mask:0xf
        v_max_f32_dpp v178, v178, v178 row_half_mirror row_mask:0xf bank_mask:0xf
        v_sub_f32 v176, v176, v178
        v_exp_f32 v176, v176
        s_nop 0
        v_mul_f32 v177, v176, v177
        v_add_f32_dpp v177, v177, v177 quad_perm:[1,0,3,2] row_mask:0xf bank_mask:0xf
        v_add_f32_dpp v177, v177, v177 quad_perm:[2,3,0,1] row_mask:0xf bank_mask:0xf
        v_add_f32_dpp v177, v177, v177 row_half_mirror row_mask:0xf bank_mask:0xf
        v_rcp_f32 v177, v177
        s_nop 0
        v_mul_f32 v176, v176, v177
        """)
        for k in range(8): a(f'v_readlane_b32 s{16+k}, v176, {k}')
        a('s_waitcnt lgkmcnt(0)\nv_mul_f32 v202, s16, v192')
        for ww in range(1, 8): a(f'v_fmac_f32 v202, s{16+ww}, v{192+ww}')
        a("""
        v_cvt_pk_bf16_f32 v202, v202, v202
        ds_write_b16 v12, v202
        s_waitcnt lgkmcnt(0)
        ds_read_b128 v[176:179], v13
        ds_read_b128 v[180:183], v13 offset:64
        """)
        self.ts('p_o')
        for k in range(2):
            a(f's_waitcnt lgkmcnt({1-k})')
            for u in range(8): self.mfma(184+4*u, 176+4*k, 80+32*k+4*u, k == 0)
        self.sel4('v216', [f'v{184+4*u}' for u in (0, 2, 4, 6)], mg)
        self.sel4('v217', [f'v{184+4*u}' for u in (1, 3, 5, 7)], mg)
        self.ts('p_uv')
        a('ds_write_b64 v14, v[216:217]\ns_waitcnt lgkmcnt(0)\ns_barrier')
        self.ts('p_b2')
        for ww in range(8): a(f'ds_read_b64 {vr(176+2*ww,2)}, v15 offset:{ww*512}')
        mt = self.masks_t()
        a('s_waitcnt lgkmcnt(0)')
        self.tree_add([f'v{176+2*k}' for k in range(8)])
        self.tree_add([f'v{177+2*k}' for k in range(8)])
        a('v_cvt_pk_bf16_f32 v176, v176, v177\nds_write_b32 v232, v176\ns_waitcnt lgkmcnt(0)')
        for ks in range(4): a(f'ds_read_b128 {vr(180+4*ks,4)}, v233 offset:{ks*64}')
        for ks in range(4):
            a(f's_waitcnt lgkmcnt({3-ks})')
            for ct in range(4): self.mfma(196+4*ct, 16+4*(ks*4+ct), 180+4*ks, ks == 0)
        self.ts('p_omf')
        for r in range(4): self.sel4(f'v{212+r}', [f'v{196+4*ct+r}' for ct in range(4)], mt)
        a(f"""
        v_cvt_pk_bf16_f32 v228, v212, v213
        v_cvt_pk_bf16_f32 v230, v214, v215
        s_mov_b64 exec, {mT4}
        buffer_store_dwordx4 v[228:231], v234, {WS}, {sR2} offen sc1
        s_mov_b64 exec, -1
        """)
        self.ts('e_pub')
    def ffn(self):
        a = self.a
        a('s_waitcnt vmcnt(0)')
        self.d_flag()
        self.srd(SA, P_W1, 512 * 2752)
        vo = self.voff128(6, 2752)
        a(f'''
        s_mul_i32 {sU0}, {sW}, {64*2752}
        s_lshl_b32 {sT2}, {sR1}, 7
        s_add_u32 {sU0}, {sU0}, {sT2}
        s_add_u32 {sT0}, {sU0}, {32*2752}
        s_add_u32 {sT1}, {sWB}, 4096
        ''')
        self.dma_groups(SA, vo, [sU0, sT0], [sWB, sT1], self.nt())
        self.srd(SB, P_W2, 1376 * 1024)
        vo = self.voff128(10, 1024)
        a(f'''
        s_lshl_b32 {sU0}, {sR1}, 16
        s_lshl_b32 {sT2}, {sW}, 7
        s_add_u32 {sU0}, {sU0}, {sT2}
        s_add_u32 {sT0}, {sU0}, 32768
        s_add_u32 {sT1}, {sWB}, 8192
        s_add_u32 {sT2}, {sWB}, 12288
        ''')
        self.dma_groups(SB, vo, [sU0, sT0], [sT1, sT2], self.nt())
        self.srd(SC, P_X, 4096)
        a(f'''
        v_lshlrev_b32 v5, 1, v0
        s_lshl_b32 {sT0}, {sR0}, 10
        buffer_load_ushort v100, v5, {SC}, {sT0} offen
        v_lshrrev_b32 v5, 1, v0
        v_lshlrev_b32 v5, 3, v5
        s_lshl_b32 {sT0}, {sR0}, 13
        s_add_u32 {sT0}, {sT0}, {WS_MR}
        s_add_u32 {sT1}, {sT0}, 4096
        ''')
        ad = self.tr128_addr(8, sWB)
        mt = self.masks_t()
        a(f'''
        s_lshl_b32 {sT2}, {sR0}, 5
        s_lshl_b32 {sT4}, {sT2}, 11
        s_add_u32 {sT4}, {sT4}, {WS_E}
        s_lshl_b32 {sT3}, {sW}, 13
        s_add_u32 {sT5}, {sT4}, {sT3}
        s_add_u32 {sT6}, {sT5}, 4096
        v_and_b32 v12, 31, {vL}
        v_lshlrev_b32 v12, 11, v12
        v_add_u32 v12, 2040, v12
        v_lshlrev_b32 v13, 4, {vL}
        s_lshl_b32 {sT2}, {sW}, 11
        s_add_u32 {sT2}, {sT2}, {RED}
        v_lshl_add_u32 v14, {vL}, 4, {sT2}
        v_lshlrev_b32 v15, 2, v0
        v_add_u32 v15, {RED}, v15
        s_lshl_b32 {sT2}, {sW}, 3
        s_add_u32 {sT2}, {sT2}, {MX}
        v_mov_b32 v220, {sT2}
        v_mov_b32 v221, {MX}
        v_lshrrev_b32 v222, 5, {vL}
        v_lshlrev_b32 v222, 6, v222
        v_lshrrev_b32 v223, 2, {vL}
        v_and_b32 v223, 3, v223
        v_lshl_add_u32 v222, v223, 4, v222
        v_and_b32 v223, 1, {vG}
        v_lshl_add_u32 v222, v223, 3, v222
        v_lshl_add_u32 v222, {vB4}, 1, v222
        s_lshl_b32 {sT2}, {sW}, 8
        s_add_u32 {sT2}, {sT2}, {WL}
        v_add_u32 v222, {sT2}, v222
        v_lshl_add_u32 v223, {vG}, 4, {sT2}
        s_lshl_b32 {sT2}, {sW}, 8
        s_add_u32 {sT2}, {sT2}, {RED2}
        v_lshlrev_b32 v224, 6, {vT}
        v_lshl_add_u32 v224, {vG}, 4, v224
        v_add_u32 v224, {sT2}, v224
        v_lshlrev_b32 v225, 2, {vL}
        v_add_u32 v225, {RED2}, v225
        s_lshl_b32 {sT2}, {sR0}, 3
        s_add_u32 {sT2}, {sT2}, {sW}
        s_mul_i32 {sT2}, {sT2}, {24*512}
        s_lshl_b32 {sT3}, {sR1}, 9
        s_add_u32 {sT2}, {sT2}, {sT3}
        s_add_u32 {sT7}, {sT2}, {WS_F}         ; F soff
        v_lshlrev_b32 v226, 7, {vT}
        v_lshl_add_u32 v226, {vG}, 5, v226     ; F voff
        s_lshl_b32 {sT2}, {sR1}, 6
        v_add_u32 v227, {sT2}, {vL}
        s_movk_i32 {sT3}, 1376
        v_cmp_gt_u32 s[62:63], {sT3}, v227
        v_mov_b32 v141, {sTAG}
        v_mov_b32 v143, {sTAG}
        v_mov_b32 v145, {sTAG}
        v_mov_b32 v147, {sTAG}
        ''')
        l = self.poll_begin()
        a(f'''
        buffer_load_dwordx2 v[102:103], v5, {WS}, {sT0} offen sc1
        buffer_load_dwordx2 v[104:105], v5, {WS}, {sT0} offen offset:2048 sc1
        buffer_load_dwordx2 v[106:107], v5, {WS}, {sT1} offen sc1
        s_waitcnt vmcnt(0)
        ''')
        self.tagchk('v6', ['v103', 'v105', 'v107'])
        self.poll_end(l, 5, 4, 'v6')
        a('v_and_b32 v6, 1, v0\nv_cmp_eq_u32 vcc, 1, v6\nv_lshlrev_b32 v100, 16, v100')
        for r in (102, 104, 106):
            a(f'v_lshlrev_b32 v{r+1}, 16, v{r}\nv_and_b32 v{r}, 0xffff0000, v{r}\nv_cndmask_b32 v{r}, v{r+1}, v{r}, vcc')
        self.tr_reads(ad, range(2), 128, 16)
        self.tr_reads(ad, range(2), 128, 48, 8192)
        a(f's_mov_b32 {sT0}, 0x00003f80\ns_mov_b32 {sT1}, 0x3f800000')
        sk = a.label('noet')
        a(f's_cmp_lg_u32 {sW}, 0\ns_cbranch_scc1 {sk}')
        l = self.poll_begin()
        a(f'buffer_load_dwordx2 v[176:177], v12, {WS}, {sT4} offen sc1\ns_waitcnt vmcnt(0)')
        self.tagchk('v178', ['v177'])
        self.poll_end(l, 6, self.cfg['sleepE'], 'v178')
        a(f'{sk}:\ns_barrier')
        self.ts('e_trig')
        l = self.poll_begin()
        for k in range(8):
            so = sT5 if k < 4 else sT6
            off = f' offset:{(k&3)*1024}' if k & 3 else ''
            a(f'buffer_load_dwordx4 {vr(176+4*k,4)}, v13, {WS}, {so} offen{off} sc1')
        a('s_waitcnt vmcnt(0)')
        self.tagchk('v208', [f'v{176+4*k+o}' for k in range(8) for o in (1, 3)])
        self.poll_end(l, 7, 1, 'v208')
        self.ts('e_got')
        for k in range(8):
            hf = k & 1; b = 176 + 4*k; acc = 112 + 4*hf
            for j, (src, sel) in enumerate(((b, sT0), (b, sT1), (b+2, sT0), (b+2, sT1))):
                c = '0' if k < 2 else f'v{acc+j}'
                a(f'v_dot2_f32_bf16 v{acc+j}, v{src}, {sel}, {c}')
        a('''
        ds_write_b128 v14, v[112:115]
        ds_write_b128 v14, v[116:119] offset:1024
        s_waitcnt lgkmcnt(0)
        s_barrier
        ''')
        self.ts('f_b1')
        for ww in range(8): a(f'ds_read_b32 v{112+ww}, v15 offset:{ww*2048}')
        a('s_waitcnt lgkmcnt(0)')
        self.tree_add([f'v{112+k}' for k in range(8)])
        a('v_fma_f32 v100, v102, v112, v100\nv_mov_b32 v120, v100\nv_mul_f32 v121, v100, v100')
        self.allsum(['v120', 'v121'], ['v122', 'v123'])
        a('ds_write_b64 v220, v[120:121]\ns_waitcnt lgkmcnt(0)\ns_barrier')
        self.ts('f_b2')
        for k in range(4): a(f'ds_read_b128 {vr(112+4*k,4)}, v221 offset:{k*16}')
        a('s_waitcnt lgkmcnt(0)')
        self.tree_add([f'v{112+2*k}' for k in range(8)])
        self.tree_add([f'v{113+2*k}' for k in range(8)])
        a(f'''
        v_mul_f32 v112, {fhex(1/512)}, v112
        v_mul_f32 v113, {fhex(1/512)}, v113
        v_fma_f32 v113, -v112, v112, v113
        v_max_f32 v113, 0, v113
        v_add_f32 v113, {fhex(1e-5)}, v113
        v_rsq_f32 v113, v113
        v_sub_f32 v114, v100, v112
        v_mul_f32 v114, v114, v113
        v_add_f32 v115, v114, v104
        v_fmac_f32 v115, v114, v106
        v_cvt_pk_bf16_f32 v115, v115, v115
        ds_write_b16 v222, v115
        s_waitcnt lgkmcnt(0)
        ds_read_b128 v[112:115], v223
        ds_read_b128 v[116:119], v223 offset:64
        ''')
        for ks in range(2):
            a(f's_waitcnt lgkmcnt({1-ks})')
            for ct in range(4): self.mfma(120+4*ct, 16+4*(ks*4+ct), 112+4*ks, ks == 0)
        for r in range(4): self.sel4(f'v{136+r}', [f'v{120+4*ct+r}' for ct in range(4)], mt)
        a(f'''
        s_mov_b64 exec, {mT4}
        ds_write_b128 v224, v[136:139]
        s_mov_b64 exec, -1
        s_waitcnt lgkmcnt(0)
        s_barrier
        ''')
        self.ts('f_b3')
        for ww in range(8): a(f'ds_read_b32 v{112+ww}, v225 offset:{ww*256}')
        a('s_waitcnt lgkmcnt(0)')
        self.tree_add([f'v{112+k}' for k in range(8)])
        a('''
        v_max_f32 v112, 0, v112
        v_cndmask_b32 v112, 0, v112, s[62:63]
        v_cvt_pk_bf16_f32 v112, v112, v112
        ds_write_b16 v222, v112 offset:128
        s_waitcnt lgkmcnt(0)
        ds_read_b128 v[112:115], v223 offset:128
        ds_read_b128 v[116:119], v223 offset:192
        ''')
        for ks in range(2):
            a(f's_waitcnt lgkmcnt({1-ks})')
            for ct in range(4): self.mfma(120+4*ct, 48+4*(ks*4+ct), 112+4*ks, ks == 0)
        for r, d in enumerate((140, 142, 144, 146)): self.sel4(f'v{d}', [f'v{120+4*ct+r}' for ct in range(4)], mt)
        a(f'''
        s_mov_b64 exec, {mT4}
        buffer_store_dwordx4 v[140:143], v226, {WS}, {sT7} offen sc1
        buffer_store_dwordx4 v[144:147], v226, {WS}, {sT7} offen offset:16 sc1
        s_mov_b64 exec, -1
        ''')
        self.ts('f_pub')
    def final(self):
        a = self.a
        a('s_waitcnt vmcnt(0)')
        self.d_flag()
        a(f's_lshl_b32 {sR1}, {sX}, 2\ns_add_u32 {sR1}, {sR1}, {sR0}')
        self.silu_addr()
        self.srd(SB, P_C, 4096)
        a(f'buffer_load_dwordx2 v[18:19], v16, {SB}, 0 offen')
        self.srd(SA, P_WMOD, 512 * 6144)
        vo = self.voff128(6, 6144)
        a(f'''
        s_mul_i32 {sU0}, {sW}, {64*6144}
        s_lshl_b32 {sT2}, {sR1}, 7
        s_add_u32 {sU0}, {sU0}, {sT2}
        s_add_u32 {sU0}, {sU0}, 2048
        s_add_u32 {sT0}, {sU0}, {32*6144}
        s_add_u32 {sT1}, {sWB}, 4096
        ''')
        self.dma_groups(SA, vo, [sU0, sT0], [sWB, sT1], self.nt())
        self.sv_frag_addr('v12')
        ad = self.tr128_addr(8, sWB)
        a('s_waitcnt vmcnt(8)')
        self.silu_calc()
        a('s_waitcnt lgkmcnt(0)\ns_barrier')
        a('ds_read_b128 v[112:115], v12\nds_read_b128 v[116:119], v12 offset:64\ns_waitcnt vmcnt(0)')
        self.tr_reads(ad, range(2), 128, 24)
        a('s_waitcnt lgkmcnt(0)')
        for ks in range(2):
            for ct in range(4): self.mfma(120+4*ct, 24+4*(ks*4+ct), 112+4*ks, ks == 0)
        a(f'''
        s_lshl_b32 {sT0}, {sW}, 10
        s_add_u32 {sT0}, {sT0}, {RED}
        v_lshlrev_b32 v5, 6, {vG}
        v_lshl_add_u32 v5, {vT}, 4, v5
        v_add_u32 v5, {sT0}, v5
        s_mov_b64 exec, {mT4}
        ''')
        for ct in range(4): a(f'ds_write_b128 v5, {vr(120+4*ct,4)} offset:{ct*256}')
        a('s_mov_b64 exec, -1\ns_waitcnt lgkmcnt(0)\ns_barrier')
        sk = a.label('mrskip')
        a(f's_cmp_ge_u32 {sW}, 2\ns_cbranch_scc1 {sk}')
        a(f'v_lshlrev_b32 v5, 3, v0\nv_add_u32 v5, {RED}, v5')
        for ww in range(8): a(f'ds_read_b64 {vr(112+2*ww,2)}, v5 offset:{ww*1024}')
        a(f'''
        v_lshrrev_b32 v6, 1, v0
        v_and_b32 v6, 3, v6
        v_lshlrev_b32 v6, 13, v6
        v_lshrrev_b32 v7, 3, v0
        v_lshl_add_u32 v6, v7, 4, v6
        v_and_b32 v7, 1, v0
        v_lshl_add_u32 v6, v7, 3, v6
        s_lshl_b32 {sT0}, {sR1}, 8
        s_add_u32 {sT0}, {sT0}, {WS_MR}
        s_waitcnt lgkmcnt(0)
        ''')
        self.tree_add([f'v{112+2*k}' for k in range(8)])
        self.tree_add([f'v{113+2*k}' for k in range(8)])
        a(f'''
        v_cvt_pk_bf16_f32 v112, v112, v113
        v_mov_b32 v113, {sTAG}
        buffer_store_dwordx2 v[112:113], v6, {WS}, {sT0} offen sc1
        {sk}:
        ''')
        self.ts('mr_pub')
        a(f's_cmp_lg_u32 {sW}, 0\ns_cbranch_scc1 L_exit')
        self.srd(SC, P_X, 4096)
        self.srd(SA, P_OUT, 4096)
        a(f'''
        v_and_b32 v5, 31, {vL}
        v_lshlrev_b32 v6, 2, v5
        s_lshl_b32 {sT0}, {sR0}, 10
        s_lshl_b32 {sT1}, {sX}, 7
        s_add_u32 {sR2}, {sT0}, {sT1}
        buffer_load_dword v100, v6, {SC}, {sR2} offen
        v_lshlrev_b32 v7, 3, v5
        s_lshl_b32 {sT0}, {sR0}, 13
        s_lshl_b32 {sT1}, {sX}, 8
        s_add_u32 {sT0}, {sT0}, {sT1}
        s_add_u32 {sT0}, {sT0}, {WS_MR}
        s_add_u32 {sT1}, {sT0}, {3*2048}
        ''')
        l = self.poll_begin()
        a(f'''
        buffer_load_dwordx2 v[102:103], v7, {WS}, {sT0} offen sc1
        buffer_load_dwordx2 v[104:105], v7, {WS}, {sT1} offen sc1
        s_waitcnt vmcnt(0)
        ''')
        self.tagchk('v8', ['v103', 'v105'])
        self.poll_end(l, 8, 4, 'v8')
        a(f'''
        v_lshrrev_b32 v8, 5, {vL}
        v_lshl_add_u32 v9, v8, 11, v7
        s_lshl_b32 {sT0}, {sR0}, 16
        s_lshl_b32 {sT1}, {sX}, 8
        s_add_u32 {sT0}, {sT0}, {sT1}
        s_add_u32 {sT0}, {sT0}, {WS_E}
        v_lshlrev_b32 v11, 9, v8
        v_lshl_add_u32 v11, v5, 4, v11
        s_lshl_b32 {sT4}, {sR0}, 3
        s_add_u32 {sT4}, {sT4}, {sX}
        s_mul_i32 {sT4}, {sT4}, {24*512}
        s_add_u32 {sT4}, {sT4}, {WS_F}
        s_add_u32 {sT5}, {sT4}, 4096
        s_add_u32 {sT6}, {sT4}, 8192
        v_lshlrev_b32 v146, 16, v100
        v_and_b32 v147, 0xffff0000, v100
        v_lshlrev_b32 v152, 16, v102
        v_and_b32 v153, 0xffff0000, v102
        v_lshlrev_b32 v148, 16, v104
        v_and_b32 v149, 0xffff0000, v104
        ''')
        l = self.poll_begin()
        a(f's_mov_b32 {sT1}, {sT0}')
        for k in range(16):
            a(f'buffer_load_dwordx2 {vr(112+2*k,2)}, v9, {WS}, {sT1} offen sc1')
            if k < 15: a(f's_add_u32 {sT1}, {sT1}, 4096')
        a('s_waitcnt vmcnt(0)')
        self.tagchk('v10', [f'v{113+2*k}' for k in range(16)])
        self.poll_end(l, 9, self.cfg['sleepE'] + 6, 'v10')
        self.ts('fe_got')
        a(f's_mov_b32 {sT0}, 0x00003f80\ns_mov_b32 {sT1}, 0x3f800000')
        for k in range(16):
            c0 = '0' if k == 0 else 'v144'; c1 = '0' if k == 0 else 'v145'
            a(f'v_dot2_f32_bf16 v144, v{112+2*k}, {sT0}, {c0}\nv_dot2_f32_bf16 v145, v{112+2*k}, {sT1}, {c1}')
        a('''
        v_mov_b32 v150, v144
        v_mov_b32 v151, v145
        s_nop 0
        v_permlane32_swap_b32 v144, v150
        v_permlane32_swap_b32 v145, v151
        v_add_f32 v144, v144, v150
        v_add_f32 v145, v145, v151
        v_fmac_f32 v146, v152, v144
        v_fmac_f32 v147, v153, v145
        ''')
        l = self.poll_begin()
        for k in range(11):
            so = (sT4, sT5, sT6)[k >> 2]
            off = f' offset:{(k&3)*1024}' if k & 3 else ''
            a(f'buffer_load_dwordx4 {vr(176+4*k,4)}, v11, {WS}, {so} offen{off} sc1')
        a('s_waitcnt vmcnt(0)')
        self.tagchk('v10', [f'v{176+4*k+o}' for k in range(11) for o in (1, 3)])
        self.poll_end(l, 10, self.cfg['sleepF'], 'v10')
        self.tree_add([f'v{176+4*k}' for k in range(11)])
        self.tree_add([f'v{178+4*k}' for k in range(11)])
        a(f'''
        v_mov_b32 v150, v176
        v_mov_b32 v151, v178
        s_nop 0
        v_permlane32_swap_b32 v176, v150
        v_permlane32_swap_b32 v178, v151
        v_add_f32 v176, v176, v150
        v_add_f32 v178, v178, v151
        v_fmac_f32 v146, v148, v176
        v_fmac_f32 v147, v149, v178
        v_cvt_pk_bf16_f32 v146, v146, v147
        s_mov_b32 exec_hi, 0
        buffer_store_dword v146, v6, {SA}, {sR2} offen
        s_mov_b64 exec, -1
        ''')
        self.ts('out_st')
    def epoch_update(self):
        a = self.a
        a(f's_cmp_lg_u32 {sW}, 0\ns_cbranch_scc1 L_exit')
        a(f'v_and_b32 v5, 7, {vL}\nv_lshlrev_b32 v5, 15, v5\ns_mov_b32 {sT0}, {WS_E}')
        l = self.poll_begin()
        a(f'buffer_load_dwordx2 v[6:7], v5, {WS}, {sT0} offen sc1\ns_waitcnt vmcnt(0)')
        self.tagchk('v8', ['v7'])
        self.poll_end(l, 11, 8, 'v8')
        a(f'''
        s_add_u32 {sT0}, {sEP}, 1
        v_mov_b32 v6, {sT0}
        v_mov_b32 v5, 0
        s_mov_b64 exec, 1
        buffer_store_dword v6, v5, {WS}, 0 offen sc1
        s_mov_b64 exec, -1
        ''')
    def build(self):
        a = self.a
        self.prologue()
        self.p_pre()
        a('s_branch L_att\nL_qpre:')
        self.q_pre()
        a('L_att:')
        self.att_addr()
        self.attention()
        a(f's_cmp_lt_u32 {sI}, 16\ns_cbranch_scc1 L_qpost')
        self.p_post()
        a('s_branch L_exit\nL_qpost:')
        a(f'''
        s_lshr_b32 {sT0}, {sI}, 2
        s_and_b32 {sR0}, {sI}, 3
        s_cmp_eq_u32 {sT0}, 3
        s_cbranch_scc1 L_final
        s_lshl_b32 {sR1}, {sT0}, 3
        s_add_u32 {sR1}, {sR1}, {sX}
        s_cmp_ge_u32 {sR1}, 22
        s_cbranch_scc1 L_idle
        ''')
        self.ffn()
        a('s_branch L_exit\nL_final:')
        self.final()
        a('s_branch L_exit\nL_idle:')
        a('s_waitcnt vmcnt(0)')
        self.d_flag()
        a(f's_cmp_eq_u32 s2, {7 + 8*11}\ns_cbranch_scc0 L_exit')
        self.epoch_update()
        a('s_branch L_exit')
        for code in self.failsites:
            a(f'L_fail_{code}:\ns_mov_b32 {sT0}, {code}\ns_branch L_fail')
        a(f'''
        L_fail:
        s_mov_b32 s12, s{P_DBG}
        s_mov_b32 s13, s{P_DBG+1}
        s_mov_b32 s14, 256
        s_mov_b32 s15, 0x00020000
        s_mov_b64 exec, 1
        s_lshl_b32 {sT1}, {sT0}, 2
        v_mov_b32 v5, {sT1}
        v_mov_b32 v6, s2
        v_add_u32 v6, 1000, v6
        buffer_store_dword v6, v5, s[12:15], 0 offen
        s_mov_b64 exec, -1
        L_exit:
        ''')
        self.ts('end')
        if self.cfg['ts']:
            sk = a.label('nots')
            a(f's_cmp_lg_u32 {sW}, {self.cfg["tswave"]}\ns_cbranch_scc1 {sk}')
            a(f's_waitcnt lgkmcnt(0)\ns_mov_b64 exec, 1\ns_lshl_b32 {sT0}, s2, 6\ns_add_u32 {sT0}, {sT0}, {WS_TS}\nv_mov_b32 v5, 0')
            for k in range(len(TSREG)):
                a(f'v_mov_b32 v6, s{TSREG[k]}\nbuffer_store_dword v6, v5, {WS}, {sT0} offen offset:{4*k}')
            a(f'{sk}:')
        a('s_waitcnt vmcnt(0) lgkmcnt(0)\nL_end:\ns_endpgm')
        return a.finish()
HEADER = open('adaLN_cond__compressed_kv_cla__dense_activation_relu__decode.s.ref').read().split('; Override launch')[0]
def generate(cfg):
    g = Gen(cfg)
    body = g.build()
    init = ''
    if g.cfg['ts']:
        init = ''.join(f'    s_mov_b32 s{r}, 0\n' for r in TSREG[:10])
    txt = HEADER + f'''; @launch grid=(256,1,1) block=(512,1,1) lds={LDS_BYTES}
.amdgcn_target "amdgcn-amd-amdhsa--gfx950"
.text
.globl {KNAME}
.p2align 8
.type {KNAME},@function
{KNAME}:
{init}{body}.section .rodata,"a"
.p2align 6
.amdhsa_kernel {KNAME}
  .amdhsa_next_free_vgpr 256
  .amdhsa_next_free_sgpr 102
  .amdhsa_accum_offset 256
  .amdhsa_group_segment_fixed_size 0
  .amdhsa_kernarg_size 112
  .amdhsa_user_sgpr_count 2
  .amdhsa_user_sgpr_kernarg_segment_ptr 1
  .amdhsa_system_sgpr_workgroup_id_x 1
.end_amdhsa_kernel
'''
    return txt, g
if __name__ == '__main__':
    cfg = json.loads(sys.argv[2]) if len(sys.argv) > 2 else {}
    txt, g = generate(cfg)
    open(sys.argv[1], 'w').write(txt)
    json.dump(dict(ts=g.tsnames, slot=(g.cfg.get('tsmap') or TSSLOT), gen='g'), open(sys.argv[1] + '.json', 'w'))
    print('written', sys.argv[1], 'lines', txt.count('\n'), 'nops padded', g.a.npad)
```

```python
import sys, json, struct
from asmlib import Asm
KNAME = 'adaLN_cond__compressed_kv_cla__dense_activation_relu__decode_kernel'
CFG = dict(ptrig=False, gpl=['e','e','e','e'], gplhp=['c','s','b','p'], wofirst=2, wo_pre=0, pthr=0, ckvsplit=False, ts=False, nt=False, nt_ckv_p=False, nt_ckv_q=True, limit=20000,
           sleepA=1, sleepA2=1, sleepM=16, ftrig=False, sleepC=2, sleepD=1, sleepE=2, sleepF=1, tswave=0)
WS_H  = 0x500000
WS_MR = 0x510000
WS_Q  = 0x10000
WS_FL = 0x50000
WS_E  = 0x60000
WS_F  = 0xA0000
WS_D  = 0x100000
WS_TS = 0x600000
WS_SIZE = 0x700000
SM   = 131072
QT   = SM
RED  = SM
PT   = SM + 16384
WL   = PT
MX   = SM + 20480
LS   = SM + 20992
SV   = SM + 21504
QB   = SM + 25856
OB   = SM + 27136
RED2 = SM + 28160
LDS_BYTES = 163840
SVS = 1088
QBS = 320
TAGMUL = 0x9E3779B1
LOG2E = 1.4426950408889634
SCALE = (128 ** -0.5) * LOG2E
def fhex(x): return '0x%08x' % struct.unpack('<I', struct.pack('<f', x))[0]
sX, sI, sW, sTAG, sEP = 's3', 's4', 's5', 's6', 's7'
WS = 's[8:11]'; SA = 's[12:15]'; SB = 's[44:47]'; SC = 's[48:51]'
P_X, P_CKV, P_WQ, P_WUK, P_WUV, P_WO, P_W1, P_W2, P_C, P_WMOD, P_OUT, P_DBG, P_WS = 16, 18, 20, 22, 24, 26, 30, 32, 34, 36, 38, 40, 42
sWB = 's52'
sT0, sT1, sT2, sT3 = 's53', 's54', 's55', 's56'
sT4, sT5, sT6, sT7 = 's72', 's73', 's74', 's75'
sPLO, sPHI = 's57', 's58'
sCNT = 's59'
mT4 = 's[60:61]'
sU0, sU1 = 's62', 's63'
sCH, sBA, sS, sHH = 's64', 's65', 's66', 's67'
sR0, sR1, sR2, sR3 = 's68', 's69', 's70', 's71'
MK = 96
TSREG = [76,78,80,82,84,86,88,90,92,94,28,0]
TSSLOT = dict(start=0, hp_loaded=1, hp_pub=2, wq_landed=1, h_got=2, q_pub=3, ckv_iss=3, c_got=4, b1=5, b3=6, d_st=7, d_flag=8,
              dfl_got=9, d_got=10, e_pub=11, e_trig=9, e_got=10, f_pub=11, mr_pub=9, fe_got=10, out_st=11)
vL, vG, vT, vB4 = 'v1', 'v2', 'v3', 'v4'
def vr(a, n=1): return f'v{a}' if n == 1 else f'v[{a}:{a+n-1}]'
class Gen:
    def __init__(self, cfg):
        self.cfg = dict(CFG); self.cfg.update(cfg)
        self.a = Asm(); self.tsnames = []; self.failsites = []
    def ts(self, name):
        if not self.cfg['ts']: return
        slots = self.cfg.get('tsmap') or TSSLOT
        if name not in slots: return
        r = TSREG[slots[name]]
        if name not in self.tsnames: self.tsnames.append(name)
        self.a(f's_memrealtime s[{r}:{r+1}]')
    def srd(self, quad, ptr, size):
        q = int(quad[2:quad.index(':')])
        self.a(f's_mov_b32 s{q}, s{ptr}\ns_mov_b32 s{q+1}, s{ptr+1}\ns_mov_b32 s{q+2}, {size}\ns_mov_b32 s{q+3}, 0x00020000')
    def nt(self, key='nt'): return ' nt' if self.cfg[key] else ''
    def poll_begin(self):
        l = self.a.label('poll')
        self.a(f's_mov_b32 {sCNT}, {self.cfg["limit"]}\n{l}:')
        return l
    def poll_end(self, l, code, sleep, vacc):
        a = self.a; ok = a.label('ok')
        if code not in self.failsites: self.failsites.append(code)
        a(f'v_cmp_ne_u32 vcc, 0, {vacc}')
        a(f's_cbranch_vccz {ok}')
        a(f's_sub_u32 {sCNT}, {sCNT}, 1')
        a(f's_cbranch_scc1 L_fail_{code}')
        if sleep: a(f's_sleep {sleep}')
        a(f's_branch {l}')
        a(f'{ok}:')
    def poll_trig(self, voff, soff, ra, code, vacc):
        a = self.a
        if code not in self.failsites: self.failsites.append(code)
        l = a.label('pt'); ok = a.label('ptok')
        ld = lambda r: a(f'buffer_load_dwordx2 {vr(r,2)}, {voff}, {WS}, {soff} offen sc1')
        a(f's_mov_b32 {sCNT}, {self.cfg["limit"]}')
        ld(ra)
        a(f'{l}:')
        ld(ra+2)
        a(f's_waitcnt vmcnt(1)\nv_cmp_ne_u32 vcc, {sTAG}, v{ra+1}\ns_cbranch_vccz {ok}')
        ld(ra)
        a(f's_waitcnt vmcnt(1)\nv_cmp_ne_u32 vcc, {sTAG}, v{ra+3}\ns_cbranch_vccz {ok}')
        a(f's_sub_u32 {sCNT}, {sCNT}, 1\ns_cbranch_scc1 L_fail_{code}\ns_branch {l}\n{ok}:')
    def tagchk(self, vacc, regs):
        a = self.a
        for k, r in enumerate(regs):
            if k == 0: a(f'v_xor_b32 {vacc}, {sTAG}, {r}')
            else: a(f'v_bitop3_b32 {vacc}, {vacc}, {r}, {sTAG} bitop3:0xf6')
    def crossrow(self, regs, tmp, op):
        a = self.a
        for sw in ('v_permlane16_swap_b32', 'v_permlane32_swap_b32'):
            for r, t in zip(regs, tmp): a(f'v_mov_b32 {t}, {r}')
            for r, t in zip(regs, tmp): a(f'{sw} {r}, {t}')
            for r, t in zip(regs, tmp): a(f'{op} {r}, {r}, {t}')
    def allsum(self, regs, tmp, op='v_add_f32'):
        a = self.a
        for n in (8, 4, 2, 1):
            for r in regs: a(f'{op}_dpp {r}, {r}, {r} row_ror:{n} row_mask:0xf bank_mask:0xf')
        self.crossrow(regs, tmp, op)
    def ckv_prep(self, v):
        a = self.a
        self.srd(SA, P_CKV, 16 << 20)
        a(f'v_lshlrev_b32 v{v}, 4, {vL}')
        for k in range(1, 8): a(f'v_xor_b32 v{v+k}, {k << 5}, v{v}')
    def ckv_group(self, gi, v, ntkey):
        a = self.a
        a(f's_add_u32 {sU1}, {sWB}, {gi*4096}\ns_mov_b32 m0, {sU1}\ns_add_u32 {sU0}, {sCH}, {sU1}')
        for k in range(4):
            n = 4*gi + k
            off = f' offset:{k*1024}' if k else ''
            a(f'buffer_load_dwordx4 v{v + (n & 7)}, {SA}, {sU0} offen{off}{self.nt(ntkey)} lds')
    def dma_ckv_p(self):
        a = self.a
        thr = self.cfg.get('pthr', 2)
        self.srd(SA, P_CKV, 16 << 20)
        a(f'v_lshlrev_b32 v6, 4, {vL}')
        for k in range(1, 8): a(f'v_xor_b32 v{6+k}, {k << 5}, v6')
        for n in range(16):
            if n % 4 == 0:
                a(f's_add_u32 {sT1}, {sWB}, {(n>>2)*4096}')
                a(f's_mov_b32 m0, {sT1}')
                a(f's_add_u32 {sT0}, {sCH}, {sT1}')
            off = f' offset:{(n & 3)*1024}' if n & 3 else ''
            a(f'buffer_load_dwordx4 v{6 + (n & 7)}, {SA}, {sT0} offen{off}{self.nt("nt_ckv_p")} lds')
            if thr and n == thr - 1: a('s_waitcnt vmcnt(0)')
    def dma_groups(self, srd, voff4, sregs, mregs, nt):
        a = self.a
        for sr, mr in zip(sregs, mregs):
            a(f's_mov_b32 m0, {mr}\ns_nop 0')
            for k in range(4):
                off = f' offset:{k*1024}' if k else ''
                a(f'buffer_load_dwordx4 {voff4[k]}, {srd}, {sr} offen{off}{nt} lds')
    def rot_groups(self, ng, rot, sbase, step_log2, mbase, sregs, mregs, tmp=sCNT):
        a = self.a
        for j in range(ng):
            if rot is None:
                a(f's_add_u32 {sregs[j]}, {sbase}, {j << step_log2}')
                a(f's_add_u32 {mregs[j]}, {mbase}, {j*4096}')
            else:
                a(f's_add_u32 {tmp}, {rot}, {j}\ns_and_b32 {tmp}, {tmp}, {ng-1}')
                a(f's_lshl_b32 {sregs[j]}, {tmp}, {step_log2}\ns_add_u32 {sregs[j]}, {sregs[j]}, {sbase}')
                a(f's_lshl_b32 {mregs[j]}, {tmp}, 12\ns_add_u32 {mregs[j]}, {mregs[j]}, {mbase}')
    def voff128(self, v, rowstride):
        a = self.a
        a(f'''
        v_lshrrev_b32 v{v}, 3, {vL}
        v_mul_u32_u24 v{v}, {rowstride}, v{v}
        v_and_b32 v{v+1}, 7, {vL}
        v_lshlrev_b32 v{v+2}, 1, {vG}
        v_xor_b32 v{v+1}, v{v+1}, v{v+2}
        v_lshl_add_u32 v{v}, v{v+1}, 4, v{v}
        ''')
        for k in range(1, 4): a(f'v_add_u32 v{v+k}, {k*(8*rowstride-1024)}, v{v}')
        return [f'v{v+k}' for k in range(4)]
    def tr128_addr(self, v, base_s):
        a = self.a
        a(f'''
        v_lshrrev_b32 v{v}, 2, {vT}
        v_lshl_add_u32 v{v}, {vG}, 2, v{v}
        v_lshrrev_b32 v{v+1}, 1, v{v}
        v_and_b32 v{v+1}, 3, v{v+1}
        v_lshlrev_b32 v{v+1}, 5, v{v+1}
        v_lshl_add_u32 v{v}, v{v}, 7, v{v+1}
        v_lshrrev_b32 v{v+1}, 1, {vB4}
        v_lshl_add_u32 v{v}, v{v+1}, 4, v{v}
        v_and_b32 v{v+1}, 1, {vB4}
        v_lshl_add_u32 v{v}, v{v+1}, 3, v{v}
        v_add_u32 v{v}, {base_s}, v{v}
        ''')
        for ct in range(1, 4): a(f'v_xor_b32 v{v+ct}, {ct << 5}, v{v}')
        return [f'v{v+ct}' for ct in range(4)]
    def tr_reads(self, addrs, kss, rb, dst, base_off=0):
        a = self.a
        for ks in kss:
            for ct, ad in enumerate(addrs):
                d = dst + 4 * (ks * len(addrs) + ct)
                for hi in range(2):
                    a(f'ds_read_b64_tr_b16 {vr(d + 2*hi, 2)}, {ad} offset:{base_off + (32*ks + 16*hi)*rb}')
    def sel4(self, dst, srcs, masks):
        a = self.a
        a(f'v_cndmask_b32 {dst}, {srcs[0]}, {srcs[1]}, {masks[0]}')
        a(f'v_cndmask_b32 {dst}, {dst}, {srcs[2]}, {masks[1]}')
        a(f'v_cndmask_b32 {dst}, {dst}, {srcs[3]}, {masks[2]}')
    def masks_t(self):
        for k, val in enumerate((0x22222222, 0x44444444, 0x88888888)):
            self.a(f's_mov_b32 s{MK+2*k}, {val:#x}\ns_mov_b32 s{MK+2*k+1}, {val:#x}')
        return [f's[{MK+2*k}:{MK+2*k+1}]' for k in range(3)]
    def masks_q(self):
        for k, val in enumerate((0x00f000f0, 0x0f000f00, 0xf000f000)):
            self.a(f's_mov_b32 s{MK+2*k}, {val:#x}\ns_mov_b32 s{MK+2*k+1}, {val:#x}')
        return [f's[{MK+2*k}:{MK+2*k+1}]' for k in range(3)]
    def masks_g(self):
        for k, (lo, hi) in enumerate(((0xffff0000, 0), (0, 0x0000ffff), (0, 0xffff0000))):
            self.a(f's_mov_b32 s{MK+2*k}, {lo:#x}\ns_mov_b32 s{MK+2*k+1}, {hi:#x}')
        return [f's[{MK+2*k}:{MK+2*k+1}]' for k in range(3)]
    def mfma(self, acc, A, B, first):
        self.a(f'v_mfma_f32_16x16x32_bf16 {vr(acc,4)}, {vr(A,4)}, {vr(B,4)}, {"0" if first else vr(acc,4)}')
    def tree_add(self, regs):
        a = self.a; n = len(regs); step = 1
        while step < n:
            for k in range(0, n - step, 2*step): a(f'v_add_f32 {regs[k]}, {regs[k]}, {regs[k+step]}')
            step *= 2
    def prologue(self):
        a = self.a
        a('''
        s_cmp_ge_u32 s2, 256
        s_cbranch_scc1 L_end
        s_load_dwordx16 s[16:31], s[0:1], 0
        s_load_dwordx8 s[32:39], s[0:1], 64
        s_load_dwordx4 s[40:43], s[0:1], 96
        ''')
        self.ts('start')
        a(f'''
        v_lshrrev_b32 v5, 6, v0
        v_and_b32 {vL}, 63, v0
        v_readfirstlane_b32 {sW}, v5
        v_lshrrev_b32 {vG}, 4, {vL}
        v_and_b32 {vT}, 15, {vL}
        v_and_b32 {vB4}, 3, {vL}
        s_and_b32 {sX}, s2, 7
        s_lshr_b32 {sI}, s2, 3
        s_lshl_b32 {sWB}, {sW}, 14
        s_mov_b32 s60, 0x000f000f
        s_mov_b32 s61, 0x000f000f
        s_lshl_b32 {sCH}, {sX}, 4
        s_and_b32 {sT0}, {sI}, 15
        s_add_u32 {sCH}, {sCH}, {sT0}
        s_lshr_b32 {sBA}, {sCH}, 5
        s_and_b32 {sS}, {sCH}, 31
        s_lshr_b32 {sHH}, {sI}, 4
        s_lshl_b32 {sCH}, {sCH}, 17
        s_cmp_lt_u32 {sI}, 16
        s_cbranch_scc1 L_qpre
        ''')
    def after_kernarg(self):
        a = self.a
        a(f's_waitcnt lgkmcnt(0)\ns_load_dword {sEP}, s[{P_WS}:{P_WS+1}], 0')
    def tag(self):
        self.srd(WS, P_WS, WS_SIZE)
        self.a(f'''
        s_waitcnt lgkmcnt(0)
        s_add_u32 {sTAG}, {sEP}, 1
        s_mul_i32 {sTAG}, {sTAG}, {TAGMUL:#x}
        s_add_u32 {sTAG}, {sTAG}, 0x7f4a7c15
        ''')
    def dma_ckv(self, ntkey, groups=(0, 1, 2, 3), v=6):
        a = self.a
        self.srd(SA, P_CKV, 16 << 20)
        a(f'v_lshlrev_b32 v{v}, 4, {vL}')
        for k in range(1, 8): a(f'v_xor_b32 v{v+k}, {k << 5}, v{v}')
        for gi in groups:
            a(f's_add_u32 {sT1}, {sWB}, {gi*4096}')
            a(f's_mov_b32 m0, {sT1}')
            a(f's_add_u32 {sT0}, {sCH}, {sT1}')
            for k in range(4):
                n = 4*gi + k
                off = f' offset:{k*1024}' if k else ''
                a(f'buffer_load_dwordx4 v{v + (n & 7)}, {SA}, {sT0} offen{off}{self.nt(ntkey)} lds')
    def silu_addr(self):
        self.a(f'''
        v_lshlrev_b32 v16, 3, v0
        v_lshrrev_b32 v20, 7, v0
        v_mul_u32_u24 v20, {SVS}, v20
        v_and_b32 v21, 127, v0
        v_lshrrev_b32 v21, 3, v21
        v_lshl_add_u32 v20, v21, 6, v20
        v_and_b32 v21, 3, v0
        v_lshl_add_u32 v20, v21, 4, v20
        v_lshrrev_b32 v21, 2, v0
        v_and_b32 v21, 1, v21
        v_lshl_add_u32 v20, v21, 3, v20
        v_add_u32 v20, {SV}, v20
        ''')
    def silu_calc(self):
        a = self.a
        a('''
        v_lshlrev_b32 v22, 16, v18
        v_and_b32 v23, 0xffff0000, v18
        v_lshlrev_b32 v24, 16, v19
        v_and_b32 v25, 0xffff0000, v19
        ''')
        for r in range(22, 26): a(f'v_mul_f32 v{r+4}, {fhex(-LOG2E)}, v{r}')
        for r in range(22, 26): a(f'v_exp_f32 v{r+4}, v{r+4}')
        for r in range(22, 26): a(f'v_add_f32 v{r+4}, 1.0, v{r+4}')
        for r in range(22, 26): a(f'v_rcp_f32 v{r+4}, v{r+4}')
        for r in range(22, 26): a(f'v_mul_f32 v{r}, v{r}, v{r+4}')
        a('v_cvt_pk_bf16_f32 v22, v22, v23\nv_cvt_pk_bf16_f32 v23, v24, v25\nds_write_b64 v20, v[22:23]')
    def sv_frag_addr(self, v):
        self.a(f'''
        v_mul_u32_u24 {v}, {SVS}, {vB4}
        v_lshl_add_u32 {v}, {vG}, 4, {v}
        s_lshl_b32 {sT2}, {sW}, 7
        s_add_u32 {sT2}, {sT2}, {SV}
        v_add_u32 {v}, {sT2}, {v}
        ''')
    def p_pre(self):
        a = self.a
        a('; ================= P pre')
        if self.cfg.get('stopq'):
            self.after_kernarg(); self.tag(); a('s_branch L_exit')
        skip = a.label('nohp'); done = a.label('hpdone')
        a(f's_sub_u32 {sR0}, {sI}, 16\ns_cmp_ge_u32 {sR0}, 4\ns_cbranch_scc1 {skip}')
        vo = self.voff128(6, 6144)
        a(f"""
        s_lshl_b32 {sT0}, {sR0}, 2
        s_and_b32 {sT4}, {sW}, 3
        s_add_u32 {sT0}, {sT0}, {sT4}
        s_mul_i32 {sT0}, {sT0}, {32*6144}
        s_lshr_b32 {sT1}, {sW}, 2
        s_lshl_b32 {sT1}, {sT1}, 10
        s_add_u32 {sT0}, {sT0}, {sT1}
        s_lshl_b32 {sT3}, {sX}, 7
        s_add_u32 {sT0}, {sT0}, {sT3}
        v_lshrrev_b32 v16, 7, v0
        v_and_b32 v17, 127, v0
        v_lshlrev_b32 v18, 10, v16
        v_lshl_add_u32 v18, v17, 1, v18
        s_lshl_b32 {sT2}, {sR0}, 8
        s_lshl_b32 {sT5}, {sT4}, 10
        v_lshlrev_b32 v30, 4, {vL}
        v_lshrrev_b32 v39, 1, v0
        v_and_b32 v39, 3, v39
        v_lshrrev_b32 v37, 3, v0
        v_and_b32 v36, 1, v0
        v_lshlrev_b32 v35, 10, v39
        v_lshl_add_u32 v35, v37, 3, v35
        v_lshl_add_u32 v35, v36, 2, v35
        """)
        self.after_kernarg()
        self.srd(SB, P_C, 4096); self.srd(SC, P_X, 4096); self.srd(SA, P_WMOD, 512 * 6144)
        self.ts('hp_karg')
        a(f"""
        buffer_load_ushort v20, v18, {SB}, {sT2} offen
        buffer_load_dwordx4 v[40:43], v30, {SC}, {sT5} offen
        buffer_load_dword v38, v35, {SC}, {sT3} offen
        """)
        self.dma_groups(SA, vo, [sT0], [sWB], self.nt())
        self.tag()
        ad = self.tr128_addr(6, sWB)
        mq = self.masks_q()
        a(f"""
        v_mul_u32_u24 v10, {QBS}, v16
        v_lshrrev_b32 v11, 5, v17
        v_lshl_add_u32 v10, v11, 6, v10
        v_lshrrev_b32 v11, 2, v17
        v_and_b32 v11, 3, v11
        v_lshl_add_u32 v10, v11, 4, v10
        v_lshrrev_b32 v11, 4, v17
        v_and_b32 v11, 1, v11
        v_lshl_add_u32 v10, v11, 3, v10
        v_and_b32 v11, 3, v17
        v_lshl_add_u32 v10, v11, 1, v10
        v_add_u32 v10, {SV}, v10
        v_mul_u32_u24 v11, {QBS}, {vB4}
        v_lshl_add_u32 v11, {vG}, 4, v11
        s_lshl_b32 {sT0}, {sT4}, 6
        s_add_u32 {sT0}, {sT0}, {SV}
        v_add_u32 v11, {sT0}, v11
        s_lshl_b32 {sT0}, {sW}, 10
        s_add_u32 {sT0}, {sT0}, {RED}
        v_lshrrev_b32 v12, 2, {vT}
        v_lshlrev_b32 v12, 8, v12
        v_lshl_add_u32 v12, {vG}, 6, v12
        v_lshl_add_u32 v12, {vB4}, 4, v12
        v_add_u32 v12, {sT0}, v12
        v_lshlrev_b32 v13, 3, v0
        v_add_u32 v13, {RED}, v13
        v_lshlrev_b32 v14, 3, v39
        v_add_u32 v14, {LS}, v14
        v_lshlrev_b32 v15, 11, v39
        v_lshl_add_u32 v15, v37, 4, v15
        v_lshl_add_u32 v15, v36, 3, v15
        s_lshl_b32 {sT6}, {sR0}, 13
        s_lshl_b32 {sT0}, {sX}, 8
        s_add_u32 {sT6}, {sT6}, {sT0}
        s_add_u32 {sT6}, {sT6}, {WS_H}
        s_lshl_b32 {sT3}, {sT4}, 3
        s_add_u32 {sT3}, {sT3}, {LS}
        v_mov_b32 v50, {sT3}
        s_cmp_eq_u32 {sR0}, 0
        s_cselect_b32 {sT7}, 1.0, 0
        v_mov_b32 v45, {sTAG}
        s_waitcnt vmcnt(6)
        v_lshlrev_b32 v20, 16, v20
        v_mul_f32 v21, {fhex(-LOG2E)}, v20
        v_exp_f32 v21, v21
        s_nop 0
        v_add_f32 v21, 1.0, v21
        v_rcp_f32 v21, v21
        s_nop 0
        v_mul_f32 v20, v20, v21
        v_cvt_pk_bf16_f32 v20, v20, v20
        ds_write_b16 v10, v20
        s_waitcnt vmcnt(5)
        """)
        self.ts('hp_c')
        for k in range(4):
            a(f'v_lshlrev_b32 v{52+2*k}, 16, v{40+k}\nv_and_b32 v{53+2*k}, 0xffff0000, v{40+k}')
        a('v_add_f32 v48, v52, v53\nv_mul_f32 v49, v52, v52\nv_fmac_f32 v49, v53, v53')
        for k in range(54, 60): a(f'v_add_f32 v48, v48, v{k}\nv_fmac_f32 v49, v{k}, v{k}')
        self.allsum(['v48', 'v49'], ['v51', 'v52'])
        a(f"""
        v_mul_f32 v48, {fhex(1/512)}, v48
        v_mul_f32 v49, {fhex(1/512)}, v49
        v_fma_f32 v49, -v48, v48, v49
        v_max_f32 v49, 0, v49
        v_add_f32 v49, {fhex(1e-5)}, v49
        v_rsq_f32 v49, v49
        s_nop 0
        ds_write_b64 v50, v[48:49]
        s_waitcnt lgkmcnt(0)
        """)
        self.ts('hp_ln')
        a('s_barrier\nds_read_b128 v[52:55], v11\ns_waitcnt vmcnt(0)')
        self.ts('hp_loaded')
        self.tr_reads(ad, range(1), 128, 16)
        a('s_waitcnt lgkmcnt(0)')
        for ct in range(4): self.mfma(60+4*ct, 16+4*ct, 52, True)
        for r in range(4): self.sel4(f'v{76+r}', [f'v{60+4*ct+r}' for ct in range(4)], mq)
        a('ds_write_b128 v12, v[76:79]\ns_waitcnt lgkmcnt(0)\ns_barrier')
        fin = a.label('hpfin')
        a(f's_cmp_ge_u32 {sW}, 2\ns_cbranch_scc1 {fin}')
        for ww in range(8): a(f'ds_read_b64 {vr(16+2*ww,2)}, v13 offset:{ww*1024}')
        a("""
        ds_read_b64 v[32:33], v14
        v_lshlrev_b32 v40, 16, v38
        v_and_b32 v41, 0xffff0000, v38
        s_waitcnt lgkmcnt(0)
        v_sub_f32 v40, v40, v32
        v_sub_f32 v41, v41, v32
        v_mul_f32 v40, v40, v33
        v_mul_f32 v41, v41, v33
        """)
        self.tree_add(['v16', 'v18', 'v20', 'v22'])
        self.tree_add(['v17', 'v19', 'v21', 'v23'])
        self.tree_add(['v24', 'v26', 'v28', 'v30'])
        self.tree_add(['v25', 'v27', 'v29', 'v31'])
        a(f"""
        v_add_f32 v24, {sT7}, v24
        v_add_f32 v25, {sT7}, v25
        v_fmac_f32 v16, v40, v24
        v_fmac_f32 v17, v41, v25
        v_cvt_pk_bf16_f32 v44, v16, v17
        buffer_store_dwordx2 v[44:45], v15, {WS}, {sT6} offen sc1
        {fin}:
        s_barrier
        """)
        self.ts('hp_pub')
        a(f's_branch {done}\n{skip}:')
        if self.cfg.get('pfuk', True):
            a(f'''
            s_sub_u32 {sT0}, {sI}, 20
            s_mul_i32 {sT0}, {sT0}, 6
            s_add_u32 {sT0}, {sT0}, {sW}
            s_lshl_b32 {sT0}, {sT0}, 3
            s_lshl_b32 {sT0}, {sT0}, 13
            s_lshl_b32 {sT1}, {sX}, 10
            s_add_u32 {sT0}, {sT0}, {sT1}
            v_lshrrev_b32 v6, 3, {vL}
            v_lshlrev_b32 v6, 13, v6
            v_and_b32 v7, 7, {vL}
            v_lshl_add_u32 v6, v7, 7, v6
            ''')
        self.after_kernarg()
        if self.cfg.get('pfuk', True):
            sk2 = a.label('nouk')
            self.srd(SB, P_WUK, 4 << 20)
            a(f's_cmp_ge_u32 {sW}, 6\ns_cbranch_scc1 {sk2}\nbuffer_load_dword v98, v6, {SB}, {sT0} offen\n{sk2}:')
        self.tag()
        if self.cfg.get('pdelay'):
            a(f's_lshl_b32 {sT0}, {sX}, 8\ns_add_u32 {sT0}, {sT0}, {WS_H + 3*8192}\nv_mov_b32 v5, 0')
            l = self.poll_begin()
            a(f'buffer_load_dwordx2 v[6:7], v5, {WS}, {sT0} offen sc1\ns_waitcnt vmcnt(0)')
            self.tagchk('v8', ['v7'])
            self.poll_end(l, 12, 4, 'v8')
        a(f'{done}:')
        a(f"""
        s_sub_u32 {sR0}, {sI}, 16
        s_lshr_b32 {sR1}, {sR0}, 2
        s_lshl_b32 {sT0}, {sX}, 2
        s_add_u32 {sR1}, {sR1}, {sT0}          ; hp
        s_and_b32 {sR0}, {sR0}, 3              ; bp
        s_mov_b32 {sPLO}, 0x05040100
        s_mov_b32 {sPHI}, 0x07060302
        """)
        self.touch_uv()
        self.dma_ckv_p()
        self.ts('ckv_iss')
        self.srd(SB, P_WUV, 4 << 20)
        a(f"""
        v_lshlrev_b32 v96, 16, {vG}
        v_lshl_add_u32 v96, {vT}, 4, v96
        s_lshl_b32 {sU0}, {sW}, 19
        s_lshl_b32 {sU1}, {sR1}, 8
        s_add_u32 {sU0}, {sU0}, {sU1}
        """)
        self.wuv_at('e', False)
    def wuv_group(self, gi):
        a = self.a
        a(f's_add_u32 {sU1}, {sU0}, {((gi >> 1) * 32 + (gi & 1) * 4) * 8192}')
        for e in range(4):
            n = 4*gi + e
            a(f'buffer_load_dwordx4 {vr(112+4*n,4)}, v96, {SB}, {sU1} offen{self.nt()}')
            if e < 3: a(f's_add_u32 {sU1}, {sU1}, 8192')
    def wuv_at(self, pos, guard=True):
        a = self.a
        g1 = [gi for gi, p in enumerate(self.cfg['gpl']) if p == pos]
        g2 = [gi for gi, p in enumerate(self.cfg['gplhp']) if p == pos]
        if g1 == g2:
            if not g1: return len(g1)
            sk = a.label('nouv')
            if guard: a(f's_cmp_lt_u32 {sI}, 16\ns_cbranch_scc1 {sk}')
            for gi in g1: self.wuv_group(gi)
            a(f'{sk}:')
            return len(g1)
        done = a.label('uvd'); hp = a.label('uvhp')
        if guard: a(f's_cmp_lt_u32 {sI}, 16\ns_cbranch_scc1 {done}')
        a(f's_cmp_lt_u32 {sI}, 20\ns_cbranch_scc1 {hp}')
        for gi in g1: self.wuv_group(gi)
        a(f's_branch {done}\n{hp}:')
        for gi in g2: self.wuv_group(gi)
        a(f'{done}:')
        assert pos not in ('x', 'y')
        return 0
    def wuv_unit(self, k):
        a = self.a
        a(f's_add_u32 {sU1}, {sU0}, {k * 32 * 8192}')
        for e in range(8):
            a(f'buffer_load_dwordx4 {vr(112+32*k+4*e,4)}, v96, {SB}, {sU1} offen{self.nt()}')
            if e < 7: a(f's_add_u32 {sU1}, {sU1}, 8192')
    def q_pre(self):
        a = self.a
        a('; ================= Q pre')
        a(f'''
        s_lshr_b32 {sR1}, {sI}, 2
        s_lshl_b32 {sT0}, {sX}, 2
        s_add_u32 {sR1}, {sR1}, {sT0}          ; hq
        s_and_b32 {sR0}, {sI}, 3               ; cq
        v_lshlrev_b32 v9, 1, {vG}
        v_xor_b32 v10, {vT}, v9
        v_lshlrev_b32 v6, 13, {vG}
        v_lshl_add_u32 v6, v10, 4, v6          ; k=0
        v_xor_b32 v7, 128, v6
        v_add_u32 v8, {2*31744}, v6            ; k=2
        v_add_u32 v9, {3*31744}, v7            ; k=3
        v_add_u32 v7, 31744, v7                ; k=1
        s_lshl_b32 {sU0}, {sW}, 19
        s_lshl_b32 {sU1}, {sR1}, 8
        s_add_u32 {sU0}, {sU0}, {sU1}
        ''')
        self.rot_groups(4, sR0, sU0, 17, sWB, [sT0, sT1, sT2, sT3], [sT4, sT5, sT6, sT7])
        a(f'''
        s_lshl_b32 {sU0}, {sR0}, 20
        s_add_u32 {sU0}, {sU0}, {sU1}
        s_lshl_b32 {sU1}, {sW}, 17
        s_add_u32 {sU0}, {sU0}, {sU1}
        ''')
        self.after_kernarg()
        self.ts('q_karg')
        self.srd(SA, P_WQ, 4 << 20)
        self.dma_groups(SA, ['v6', 'v7', 'v8', 'v9'], [sT0, sT1, sT2, sT3], [sT4, sT5, sT6, sT7], self.nt())
        self.ts('q_iss')
        self.srd(SB, P_WUK, 4 << 20)
        a(f's_lshl_b32 {sU1}, {sW}, 12\ns_add_u32 {sU1}, {sU1}, {SM}')
        self.dma_groups(SB, ['v6', 'v7', 'v8', 'v9'], [sU0], [sU1], self.nt())
        self.tag()
        a(f'''
        v_lshrrev_b32 v8, 2, {vT}
        v_lshl_add_u32 v8, {vG}, 2, v8
        v_and_b32 v9, 7, v8
        v_lshlrev_b32 v9, 5, v9
        v_lshl_add_u32 v8, v8, 8, v9
        v_lshrrev_b32 v9, 1, {vB4}
        v_lshl_add_u32 v8, v9, 4, v8
        v_and_b32 v9, 1, {vB4}
        v_lshl_add_u32 v8, v9, 3, v8
        v_add_u32 v8, {sWB}, v8
        ''')
        for ct in range(1, 8): a(f'v_xor_b32 v{8+ct}, {ct << 5}, v8')
        a(f'''
        v_lshlrev_b32 v152, 11, {vG}
        v_lshl_add_u32 v152, {vT}, 4, v152
        v_mul_u32_u24 v170, 192, {vG}
        v_lshrrev_b32 v171, 3, {vT}
        v_lshl_add_u32 v170, v171, 6, v170
        v_lshl_add_u32 v170, {vB4}, 4, v170
        v_lshrrev_b32 v171, 2, {vT}
        v_and_b32 v171, 1, v171
        v_lshl_add_u32 v170, v171, 3, v170
        v_add_u32 v170, {sWB}, v170
        v_mul_u32_u24 v174, 192, {vB4}
        v_lshl_add_u32 v174, {vG}, 4, v174
        v_add_u32 v174, {sWB}, v174
        s_lshl_b32 {sT3}, {sW}, 8
        s_add_u32 {sT3}, {sT3}, {WS_H}
        s_add_u32 {sT2}, {sWB}, 2048
        v_lshrrev_b32 v156, 2, {vT}
        v_lshlrev_b32 v156, 8, v156
        v_lshl_add_u32 v156, {vG}, 6, v156
        v_lshl_add_u32 v156, {vB4}, 4, v156
        v_add_u32 v156, {sT2}, v156
        v_lshlrev_b32 v157, 2, v0
        v_add_u32 v157, 2048, v157
        v_add_u32 v159, 0x10000, v157          ; regions 4..7
        v_lshrrev_b32 v154, 2, {vL}
        v_and_b32 v154, 3, v154
        v_mul_u32_u24 v154, {QBS}, v154
        v_lshl_add_u32 v154, {vG}, 3, v154
        v_lshl_add_u32 v154, {vB4}, 1, v154
        s_lshl_b32 {sT2}, {sW}, 5
        s_add_u32 {sT2}, {sT2}, {QB}
        v_add_u32 v154, {sT2}, v154
        v_mul_u32_u24 v155, {QBS}, {vB4}
        v_lshl_add_u32 v155, {vG}, 4, v155
        v_add_u32 v155, {QB}, v155
        v_lshlrev_b32 v158, 16, {vB4}
        v_lshl_add_u32 v158, {vG}, 4, v158
        s_lshl_b32 {sT4}, {sR1}, 11
        s_lshl_b32 {sT1}, {sR0}, 9
        s_add_u32 {sT4}, {sT4}, {sT1}
        s_lshl_b32 {sT1}, {sW}, 6
        s_add_u32 {sT4}, {sT4}, {sT1}
        s_add_u32 {sT4}, {sT4}, {WS_Q}
        s_mov_b32 {sT5}, {fhex(SCALE)}
        v_mov_b32 v149, {sTAG}
        v_mov_b32 v151, {sTAG}
        v_and_b32 v5, 7, {vT}
        v_lshlrev_b32 v5, 5, v5
        v_lshlrev_b32 v160, 4, {vG}
        v_xor_b32 v160, v160, v5
        v_lshl_add_u32 v160, {vT}, 8, v160
        v_add_u32 v160, {sU1}, v160
        v_xor_b32 v161, 64, v160
        v_xor_b32 v162, 128, v160
        v_xor_b32 v163, 192, v160
        s_waitcnt vmcnt(4)
        ''')
        self.ts('wq_landed')
        a(f's_add_u32 {sT0}, {sT3}, 8192\ns_add_u32 {sT1}, {sT3}, 16384\ns_add_u32 {sT2}, {sT3}, 24576')
        def hloads():
            for k, so in enumerate((sT3, sT0, sT1, sT2)):
                a(f'buffer_load_dwordx4 {vr(128+4*k,4)}, v152, {WS}, {so} offen sc1')
        atrig = self.cfg.get('atrig', False)
        if not atrig: hloads()
        self.tr_reads([f'v{8+ct}' for ct in range(8)], range(2), 256, 16)
        mq = self.masks_q()
        self.ckv_prep(176)
        a(f's_waitcnt vmcnt({0 if atrig else 4})')
        for st in range(4): a(f'ds_read_b128 {vr(112+4*st,4)}, v{160+st}')
        if atrig:
            sk = a.label('noatrig')
            a(f's_cmp_lg_u32 {sW}, 0\ns_cbranch_scc1 {sk}')
            a(f'''
            v_lshrrev_b32 v168, 3, {vL}
            v_and_b32 v168, 3, v168
            v_lshlrev_b32 v168, 13, v168
            v_and_b32 v169, 7, {vL}
            v_lshl_add_u32 v168, v169, 8, v168
            v_add_u32 v168, {3*2048+248}, v168
            s_mov_b32 {sU0}, {WS_H}
            ''')
            l = self.poll_begin()
            a(f'buffer_load_dwordx2 v[128:129], v168, {WS}, {sU0} offen sc1\ns_waitcnt vmcnt(0)')
            self.tagchk('v153', ['v129'])
            self.poll_end(l, 13, self.cfg['sleepA'], 'v153')
            a(f'{sk}:\ns_barrier')
            self.ts('q_atrig')
            l = self.poll_begin()
            hloads()
            a('s_waitcnt vmcnt(0)')
        else:
            first = a.label('hfirst')
            a(f's_mov_b32 {sCNT}, {self.cfg["limit"]}\ns_branch {first}')
            l = a.label('poll'); a(f'{l}:')
            hloads()
            a(f'{first}:\ns_waitcnt vmcnt(0)')
        self.tagchk('v153', [f'v{128+4*k+o}' for k in range(4) for o in (1, 3)])
        self.poll_end(l, 1, self.cfg['sleepA2'], 'v153')
        self.ts('h_got')
        a(f's_mov_b32 {sT0}, 0x00003f80\ns_mov_b32 {sT1}, 0x3f800000')
        for k in range(4):
            for j, (src, sel) in enumerate(((128+4*k, sT0), (128+4*k, sT1), (130+4*k, sT0), (130+4*k, sT1))):
                a(f'v_dot2_f32_bf16 v{144+j}, v{src}, {sel}, {"0" if k == 0 else f"v{144+j}"}')
        a('v_cvt_pk_bf16_f32 v144, v144, v145\nv_cvt_pk_bf16_f32 v145, v146, v147\nds_write_b64 v170, v[144:145]\ns_waitcnt lgkmcnt(0)')
        a('ds_read_b128 v[128:131], v174\nds_read_b128 v[136:139], v174 offset:64')
        if self.cfg.get('ckvA', True): self.ckv_group(1, 176, 'nt_ckv_q')
        a('s_waitcnt lgkmcnt(0)')
        for ks in range(2):
            for ct in range(8): self.mfma(80+4*ct, 16+4*(ks*8+ct), 128+8*ks, ks == 0)
        self.ts('q_mfma')
        for hf in range(2):
            for r in range(4): self.sel4(f'v{136+4*hf+r}', [f'v{80+16*hf+4*ct+r}' for ct in range(4)], mq)
            a(f'ds_write_b128 v156, {vr(136+4*hf,4)} offset:{hf*1024}')
        a('s_waitcnt lgkmcnt(0)')
        self.ts('q_wr')
        a('s_barrier')
        self.ts('q_bar1')
        if self.cfg.get('ckvB', True): self.ckv_group(2, 176, 'nt_ckv_q')
        for ww in range(8): a(f'ds_read_b32 v{128+ww}, v{157 if ww < 4 else 159} offset:{(ww&3)*16384}')
        a('s_waitcnt lgkmcnt(0)')
        self.tree_add([f'v{128+k}' for k in range(8)])
        a('''
        v_cvt_pk_bf16_f32 v128, v128, v128
        ds_write_b16 v154, v128
        s_waitcnt lgkmcnt(0)
        s_barrier
        ''')
        self.ts('q_bar2')
        for st in range(4): a(f'ds_read_b128 {vr(128+4*st,4)}, v155 offset:{st*64}')
        for st in range(4):
            a(f's_waitcnt lgkmcnt({3-st})')
            self.mfma(144, 112+4*st, 128+4*st, st == 0)
        a(f'''
        v_mul_f32 v144, {sT5}, v144
        v_mul_f32 v145, {sT5}, v145
        v_mul_f32 v146, {sT5}, v146
        v_mul_f32 v147, {sT5}, v147
        v_cvt_pk_bf16_f32 v148, v144, v145
        v_cvt_pk_bf16_f32 v150, v146, v147
        s_mov_b64 exec, {mT4}
        buffer_store_dwordx4 v[148:151], v158, {WS}, {sT4} offen sc1
        s_mov_b64 exec, -1
        ''')
        self.ts('q_pub')
        a('s_barrier')
        for gi in [0, 3]: self.ckv_group(gi, 176, 'nt_ckv_q')
        self.touch_o_prep()
    def att_addr(self):
        a = self.a
        a(f'''
        v_and_b32 v5, 7, {vT}
        v_lshlrev_b32 v5, 5, v5
        v_lshlrev_b32 v244, 4, {vG}
        v_xor_b32 v244, v244, v5
        v_lshl_add_u32 v244, {vT}, 10, v244
        v_xor_b32 v245, 64, v244
        v_xor_b32 v246, 128, v244
        v_xor_b32 v247, 192, v244
        v_add_u32 v248, {QT}, v244
        v_add_u32 v249, {QT}, v245
        v_add_u32 v250, {QT}, v246
        v_add_u32 v251, {QT}, v247
        v_add_u32 v244, {sWB}, v244
        v_add_u32 v245, {sWB}, v245
        v_add_u32 v246, {sWB}, v246
        v_add_u32 v247, {sWB}, v247
        v_lshrrev_b32 v80, 2, {vT}
        v_lshl_add_u32 v80, {vG}, 2, v80
        v_and_b32 v81, 7, v80
        v_lshlrev_b32 v81, 5, v81
        s_lshl_b32 {sT0}, {sW}, 7
        v_lshl_add_u32 v82, {vB4}, 4, {sT0}
        v_xor_b32 v81, v81, v82
        v_lshl_add_u32 v80, v80, 10, v81
        v_lshrrev_b32 v81, 1, {vB4}
        v_lshl_add_u32 v80, v81, 3, v80
        v_xor_b32 v81, 8, v80
        v_xor_b32 v82, 64, v80
        v_xor_b32 v83, 72, v80
        v_add_u32 v100, 0x10000, v80
        v_add_u32 v101, 0x10000, v81
        v_add_u32 v102, 0x10000, v82
        v_add_u32 v103, 0x10000, v83
        v_mov_b32 v240, 0x3f803f80
        v_mov_b32 v241, 0x3f803f80
        v_mov_b32 v242, 0x3f803f80
        v_mov_b32 v243, 0x3f803f80
        v_lshlrev_b32 v84, 4, v0
        v_lshrrev_b32 v85, 2, {vL}
        v_lshlrev_b32 v85, 11, v85
        v_lshl_add_u32 v85, {vB4}, 9, v85
        v_add_u32 v85, 504, v85
        s_lshr_b32 {sT0}, {sW}, 1
        v_and_b32 v86, 127, v0
        v_lshrrev_b32 v87, 1, v86
        s_lshl_b32 {sT1}, {sT0}, 1
        v_xor_b32 v87, {sT1}, v87
        v_lshlrev_b32 v87, 4, v87
        v_and_b32 v86, 1, v86
        v_lshl_add_u32 v86, v86, 3, v87
        s_lshl_b32 {sT1}, {sT0}, 10
        s_add_u32 {sT1}, {sT1}, {QT}
        v_add_u32 v86, {sT1}, v86
        v_xor_b32 v87, 128, v86
        v_lshlrev_b32 v89, 5, {vT}
        s_lshl_b32 {sT1}, {sW}, 2
        s_add_u32 {sT2}, {sT1}, {MX}
        v_add_u32 v88, {sT2}, v89
        s_add_u32 {sT2}, {sT1}, {LS}
        v_add_u32 v91, {sT2}, v89
        v_add_u32 v92, {LS}, v89
        v_add_u32 v89, {MX}, v89
        s_lshl_b32 {sT0}, {sT0}, 10
        s_and_b32 {sT1}, {sW}, 1
        s_lshl_b32 {sT1}, {sT1}, 3
        s_add_u32 {sT0}, {sT0}, {sT1}
        s_add_u32 {sT0}, {sT0}, {PT}
        v_lshl_add_u32 v90, {vL}, 4, {sT0}
        v_lshlrev_b32 v93, 4, {vL}
        v_add_u32 v93, {PT}, v93
        v_lshlrev_b32 v94, 15, {vT}
        v_lshl_add_u32 v94, {vG}, 4, v94
        v_lshlrev_b32 v95, 8, {vT}
        s_lshl_b32 {sT0}, {sBA}, 5
        s_lshl_b32 {sT1}, {sHH}, 4
        s_add_u32 {sT0}, {sT0}, {sT1}          ; row0
        s_lshl_b32 {sR3}, {sT0}, 8
        s_lshl_b32 {sT1}, {sS}, 3
        s_add_u32 {sR3}, {sR3}, {sT1}
        s_add_u32 {sR3}, {sR3}, {WS_FL}
        s_lshl_b32 {sR2}, {sT0}, 5
        s_add_u32 {sR2}, {sR2}, {sS}
        s_lshl_b32 {sR2}, {sR2}, 10
        s_lshl_b32 {sT1}, {sW}, 7
        s_add_u32 {sR2}, {sR2}, {sT1}
        s_add_u32 {sR2}, {sR2}, {WS_D}
        s_lshl_b32 {sT4}, {sBA}, 16
        s_lshl_b32 {sT1}, {sHH}, 15
        s_add_u32 {sT4}, {sT4}, {sT1}
        s_add_u32 {sT4}, {sT4}, {WS_Q}
        s_add_u32 {sT5}, {sT4}, 8192
        s_add_u32 {sT6}, {sT4}, 16384
        s_add_u32 {sT7}, {sT4}, 24576
        ''')
    def wuv_prep(self):
        a = self.a
        self.srd(SB, P_WUV, 4 << 20)
        a(f'''
        v_lshlrev_b32 v96, 16, {vG}
        v_lshl_add_u32 v96, {vT}, 4, v96
        s_lshl_b32 {sU0}, {sW}, 19
        s_lshl_b32 {sU1}, {sR1}, 8
        s_add_u32 {sU0}, {sU0}, {sU1}
        ''')
    def touch_uv(self):
        a = self.a; done = a.label('tuv')
        a(f's_cmp_ge_u32 {sW}, 4\ns_cbranch_scc1 {done}')
        self.srd(SC, P_WUV, 4 << 20)
        a(f"""
        v_lshrrev_b32 v97, 1, {vL}
        v_lshlrev_b32 v97, 13, v97
        v_and_b32 v99, 1, {vL}
        v_lshl_add_u32 v97, v99, 7, v97
        s_lshl_b32 {sT0}, {sR1}, 8
        s_lshl_b32 {sT1}, {sR0}, 20
        s_add_u32 {sT0}, {sT0}, {sT1}
        s_lshl_b32 {sT1}, {sW}, 18
        s_add_u32 {sT0}, {sT0}, {sT1}
        buffer_load_dword v98, v97, {SC}, {sT0} offen
        {done}:
        """)
    def touch_o_prep(self):
        a = self.a
        self.srd(SC, P_WO, 4 << 20)
        a(f"""
        v_lshlrev_b32 v97, 7, {vL}
        s_lshl_b32 {sU0}, {sR1}, 17
        s_lshl_b32 {sU1}, {sR0}, 15
        s_add_u32 {sU0}, {sU0}, {sU1}
        s_lshl_b32 {sU1}, {sW}, 13
        s_add_u32 {sU0}, {sU0}, {sU1}
        """)
    def touch_o(self):
        a = self.a; done = a.label('to')
        a(f's_cmp_ge_u32 {sI}, 16\ns_cbranch_scc1 {done}\ns_cmp_ge_u32 {sW}, 4\ns_cbranch_scc1 {done}')
        a(f'buffer_load_dword v98, v97, {SC}, {sU0} offen\n{done}:')
    def attention(self):
        a = self.a
        a('; ================= attention')
        sk = a.label('notrig'); sq = a.label('qnotrig')
        a(f's_cmp_lt_u32 {sI}, 16\ns_cbranch_scc1 {sq}')
        a(f's_cmp_lg_u32 {sW}, 0\ns_cbranch_scc1 {sk}')
        if self.cfg.get('ptrig', True):
            self.poll_trig('v85', sT4, 176, 2, 'v192')
        else:
            l = self.poll_begin()
            a(f'buffer_load_dwordx2 v[176:177], v85, {WS}, {sT4} offen sc1\ns_waitcnt vmcnt(0)')
            self.tagchk('v192', ['v177'])
            self.poll_end(l, 2, self.cfg['sleepC'], 'v192')
        a(f'{sk}:\ns_barrier')
        self.ts('p_ctrig')
        a(f'{sq}:')
        l = self.poll_begin()
        for n, so in enumerate((sT4, sT5, sT6, sT7)):
            a(f'buffer_load_dwordx4 {vr(176+4*n,4)}, v84, {WS}, {so} offen sc1')
        a('s_waitcnt vmcnt(4)')
        for st in range(16): a(f'ds_read_b128 {vr(16+4*st,4)}, v{244+(st&3)} offset:{(st>>2)*256}')
        a('s_waitcnt vmcnt(0)')
        self.tagchk('v192', [f'v{176+4*n+o}' for n in range(4) for o in (1, 3)])
        self.poll_end(l, 3, 1, 'v192')
        self.ts('c_got')
        for n in range(4):
            a(f'v_mov_b32 v{177+4*n}, v{178+4*n}')
            a(f'ds_write_b64 v{86 + (n & 1)}, {vr(176+4*n,2)} offset:{n*4096}')
        self.wuv_at('c')
        a('s_waitcnt lgkmcnt(0)\ns_barrier')
        self.ts('b1')
        NB = 8
        for st in range(NB): a(f'ds_read_b128 {vr(196+4*st,4)}, v{248+(st&3)} offset:{(st>>2)*256}')
        if self.cfg.get('pfQo', True): self.touch_o()
        for st in range(16):
            a(f's_waitcnt lgkmcnt({min(16, st+NB) - st - 1})')
            self.mfma(192, 16+4*st, 196+4*(st % NB), st == 0)
            if st + NB < 16:
                s2 = st + NB
                a(f'ds_read_b128 {vr(196+4*(s2%NB),4)}, v{248+(s2&3)} offset:{(s2>>2)*256}')
        self.ts('a_sdone')
        def pva(ks):
            for pp in range(2):
                for T in range(2):
                    d = 16 + 4 * ((ks * 2 + pp) * 2 + T)
                    base = (80 if ks < 2 else 100) + 2*pp + T
                    for hi in range(2):
                        a(f'ds_read_b64_tr_b16 {vr(d+2*hi,2)}, v{base} offset:{(ks & 1)*32768 + hi*16384}')
        pva(0); pva(1)
        self.wuv_at('s')
        a('v_max_f32 v228, v192, v193\nv_max3_f32 v228, v228, v194, v195')
        self.crossrow(['v228'], ['v229'], 'v_max_f32')
        a('ds_write_b32 v88, v228')
        pva(2); pva(3)
        a('s_waitcnt lgkmcnt(15)')
        self.ts('a_preb2')
        a('s_barrier')
        self.ts('a_b2')
        a('ds_read_b128 v[236:239], v89\nds_read_b128 v[232:235], v89 offset:16')
        self.wuv_at('b')
        a("""
        s_waitcnt lgkmcnt(0)
        v_max3_f32 v236, v236, v237, v238
        v_max3_f32 v232, v232, v233, v234
        v_max3_f32 v228, v236, v239, v232
        v_max_f32 v228, v228, v235
        v_sub_f32 v192, v192, v228
        v_sub_f32 v193, v193, v228
        v_sub_f32 v194, v194, v228
        v_sub_f32 v195, v195, v228
        v_exp_f32 v192, v192
        v_exp_f32 v193, v193
        v_exp_f32 v194, v194
        v_exp_f32 v195, v195
        s_nop 0
        v_cvt_pk_bf16_f32 v234, v192, v193
        v_cvt_pk_bf16_f32 v235, v194, v195
        ds_write_b64 v90, v[234:235]
        """)
        self.wuv_at('p')
        self.ts('a_pvaiss')
        a('s_waitcnt lgkmcnt(0)')
        self.ts('a_preb3')
        a('s_barrier')
        self.ts('b3')
        for ks in range(4): a(f'ds_read_b128 {vr(196+4*ks,4)}, v93 offset:{ks*1024}')
        for ks in range(4):
            a(f's_waitcnt lgkmcnt({3-ks})')
            self.mfma(236, 240, 196+4*ks, ks == 0)
            for pp in range(2):
                for T in range(2): self.mfma(212+4*(pp*2+T), 16+4*((ks*2+pp)*2+T), 196+4*ks, ks == 0)
        self.ts('a_pvdone')
        a(f"""
        v_rcp_f32 v232, v236
        v_log_f32 v238, v236
        v_mov_b32 v239, {sTAG}
        v_add_f32 v238, v228, v238
        """)
        for pp in range(2):
            b = 212 + 8*pp
            for k in range(4): a(f'v_pk_mul_f32 {vr(b+2*k,2)}, {vr(b+2*k,2)}, v[232:233] op_sel_hi:[1,0]')
            for k in range(4): a(f'v_cvt_pk_bf16_f32 v{196+4*pp+k}, v{b+2*k}, v{b+2*k+1}')
            off = ' offset:64' if pp else ''
            a(f'buffer_store_dwordx4 {vr(196+4*pp,4)}, v94, {WS}, {sR2} offen{off} sc1')
        self.ts('d_st')
    def d_flag(self):
        a = self.a; sk = a.label('nofl')
        a(f'''
        s_barrier
        s_cmp_lg_u32 {sW}, 0
        s_cbranch_scc1 {sk}
        s_mov_b64 exec, 0xffff
        buffer_store_dwordx2 v[238:239], v95, {WS}, {sR3} offen sc1
        s_mov_b64 exec, -1
        {sk}:
        ''')
        self.ts('d_flag')
    def loader(self, srd, vo, kind, steps=(0, 1, 2, 3)):
        a = self.a
        a(f's_sub_u32 {sU0}, {sW}, 4')
        for st in steps:
            a(f"""
            s_add_u32 {sT0}, {sR0}, {st}
            s_and_b32 {sT0}, {sT0}, 3
            s_lshl_b32 {sT0}, {sT0}, 1
            s_lshr_b32 {sT1}, {sU0}, 1
            s_add_u32 {sT0}, {sT0}, {sT1}          ; region
            s_and_b32 {sT1}, {sU0}, 1
            s_lshl_b32 {sT1}, {sT1}, 3             ; n0
            s_lshl_b32 {sT4}, {sT0}, 14
            s_lshl_b32 {sT2}, {sT1}, 10
            s_add_u32 {sT4}, {sT4}, {sT2}          ; m0
            s_add_u32 {sT5}, {sT4}, 4096
            """)
            if kind == 'uv':
                a(f"""
                s_lshl_b32 {sT2}, {sT0}, 19
                s_lshl_b32 {sT3}, {sT1}, 15
                s_add_u32 {sT2}, {sT2}, {sT3}
                s_lshl_b32 {sT3}, {sR1}, 8
                s_add_u32 {sT2}, {sT2}, {sT3}
                s_add_u32 {sT3}, {sT2}, {4 << 15}
                """)
            else:
                a(f"""
                s_lshl_b32 {sT2}, {sT0}, 7
                s_lshl_b32 {sT3}, {sT1}, 13
                s_add_u32 {sT2}, {sT2}, {sT3}
                s_lshl_b32 {sT3}, {sR1}, 17
                s_add_u32 {sT2}, {sT2}, {sT3}
                s_add_u32 {sT3}, {sT2}, {4 << 13}
                """)
            self.dma_groups(srd, vo, [sT2, sT3], [sT4, sT5], self.nt())
    def perm_unit(self, src, dst):
        a = self.a
        for q in range(4):
            for p in range(4):
                X = src + 8*q + p; Y = src + 8*q + 4 + p
                a(f'v_perm_b32 v{dst+8*p+q}, v{Y}, v{X}, {sPLO}')
                a(f'v_perm_b32 v{dst+8*p+4+q}, v{Y}, v{X}, {sPHI}')
    def p_post(self):
        a = self.a
        a('; ================= P post')
        a('s_barrier')
        ng = self.wuv_at('x', False)
        self.srd(SA, P_WO, 4 << 20)
        vo = self.voff128(6, 1024)
        a(f"""
        s_lshl_b32 s98, {sR1}, 17
        s_lshl_b32 s99, {sW}, 7
        s_add_u32 s98, s98, s99
        """)
        self.rot_groups(4, sR0, 's98', 15, sWB, [sT0, sT1, sT2, sT3], [sT4, sT5, sT6, sT7])
        wf = self.cfg.get('wofirst', 0)
        SR = [sT0, sT1, sT2, sT3]; MR = [sT4, sT5, sT6, sT7]
        if wf: self.dma_groups(SA, vo, SR[:wf], MR[:wf], self.nt())
        a(f's_waitcnt vmcnt({4*ng + 4*wf})')
        self.d_flag()
        ny = self.wuv_at('y', False)
        if wf < 4: self.dma_groups(SA, vo, SR[wf:], MR[wf:], self.nt())
        self.ts('p_ldiss')
        ad = self.tr128_addr(220, sWB)
        a(f"""
        s_lshl_b32 {sT0}, {sR0}, 5
        s_add_u32 {sT0}, {sT0}, {sR1}
        s_lshl_b32 {sT1}, {sT0}, 8
        s_lshl_b32 {sT2}, {sW}, 5
        s_add_u32 {sT1}, {sT1}, {sT2}
        s_add_u32 {sT1}, {sT1}, {WS_FL}
        s_lshl_b32 {sT2}, {sT0}, 15
        s_lshl_b32 {sT3}, {sW}, 12
        s_add_u32 {sT2}, {sT2}, {sT3}
        s_add_u32 {sT2}, {sT2}, {WS_D}
        s_lshl_b32 {sR2}, {sT0}, 11
        s_lshl_b32 {sT5}, {sW}, 8
        s_add_u32 {sR2}, {sR2}, {sT5}
        s_add_u32 {sR2}, {sR2}, {WS_E}         ; E soff
        v_lshlrev_b32 v5, 3, {vB4}
        v_lshlrev_b32 v6, 4, {vL}
        s_lshl_b32 {sT0}, {sW}, 11
        s_add_u32 {sT0}, {sT0}, {RED}
        v_lshrrev_b32 v7, 1, {vL}
        v_and_b32 v7, 1, v7
        v_lshlrev_b32 v7, 4, v7
        v_lshl_add_u32 v7, {vL}, 5, v7
        v_add_u32 v7, {sT0}, v7
        v_xor_b32 v8, 16, v7
        s_lshl_b32 {sT0}, {sW}, 3
        s_add_u32 {sT0}, {sT0}, {MX}
        v_mov_b32 v9, {sT0}
        v_lshlrev_b32 v10, 2, v0
        v_add_u32 v10, {RED}, v10
        v_and_b32 v11, 7, {vL}
        v_lshlrev_b32 v11, 3, v11
        v_add_u32 v11, {MX}, v11
        v_lshlrev_b32 v12, 1, v0
        v_add_u32 v12, {OB}, v12
        s_lshl_b32 {sT0}, {sW}, 7
        s_add_u32 {sT0}, {sT0}, {OB}
        v_lshl_add_u32 v13, {vG}, 4, {sT0}
        s_lshl_b32 {sT0}, {sW}, 9
        s_add_u32 {sT0}, {sT0}, {RED2}
        v_lshlrev_b32 v14, 5, {vT}
        v_lshl_add_u32 v14, {vG}, 3, v14
        v_add_u32 v14, {sT0}, v14
        v_lshlrev_b32 v15, 3, {vL}
        v_add_u32 v15, {RED2}, v15
        v_lshlrev_b32 v232, 6, {vG}
        v_lshrrev_b32 v233, 1, {vL}
        v_and_b32 v233, 3, v233
        v_lshl_add_u32 v232, v233, 4, v232
        v_lshrrev_b32 v233, 3, {vL}
        v_and_b32 v233, 1, v233
        v_lshl_add_u32 v232, v233, 3, v232
        v_and_b32 v233, 1, {vL}
        v_lshl_add_u32 v232, v233, 2, v232
        s_lshl_b32 {sT0}, {sW}, 8
        s_add_u32 {sT0}, {sT0}, {WL}
        v_add_u32 v232, {sT0}, v232
        v_lshl_add_u32 v233, {vG}, 4, {sT0}
        v_lshlrev_b32 v234, 6, {vT}
        v_lshl_add_u32 v234, {vG}, 4, v234     ; E voff
        v_mov_b32 v229, {sTAG}
        v_mov_b32 v231, {sTAG}
        """)
        mg = self.masks_g()
        a(f's_waitcnt vmcnt({4*(4-wf)})')
        self.perm_unit(112, 80)
        self.perm_unit(144, 112)
        l = self.poll_begin()
        a(f'buffer_load_dwordx2 v[176:177], v5, {WS}, {sT1} offen sc1\ns_waitcnt vmcnt(0)')
        self.tagchk('v178', ['v177'])
        self.poll_end(l, 4, self.cfg['sleepD'], 'v178')
        self.ts('dfl_got')
        for k in range(4):
            off = f' offset:{k*1024}' if k else ''
            a(f'buffer_load_dwordx4 {vr(180+4*k,4)}, v6, {WS}, {sT2} offen{off} sc1')
        self.tr_reads(ad, range(4), 128, 16)
        a("""
        v_max_f32_dpp v178, v176, v176 quad_perm:[1,0,3,2] row_mask:0xf bank_mask:0xf
        v_max_f32_dpp v178, v178, v178 quad_perm:[2,3,0,1] row_mask:0xf bank_mask:0xf
        v_sub_f32 v176, v176, v178
        v_exp_f32 v176, v176
        s_nop 0
        v_cvt_pk_bf16_f32 v177, v176, v176
        v_and_b32 v176, 0xffff0000, v177
        v_and_b32 v177, 0xffff, v177
        v_add_f32_dpp v179, v176, v176 quad_perm:[1,0,3,2] row_mask:0xf bank_mask:0xf
        v_add_f32_dpp v179, v179, v179 quad_perm:[2,3,0,1] row_mask:0xf bank_mask:0xf
        """)
        for k in range(4): a(f'v_readlane_b32 s{16+k}, v177, {k}')
        for k in range(4): a(f'v_readlane_b32 s{32+k}, v176, {k}')
        a('ds_write_b64 v9, v[178:179]')
        for k in range(4):
            a(f's_waitcnt vmcnt({3-k})')
            for p in range(4):
                sreg = 180 + 4*k + p
                c0 = '0' if k == 0 else f'v{212+2*p}'; c1 = '0' if k == 0 else f'v{213+2*p}'
                a(f'v_dot2_f32_bf16 v{212+2*p}, v{sreg}, s{16+k}, {c0}')
                a(f'v_dot2_f32_bf16 v{213+2*p}, v{sreg}, s{32+k}, {c1}')
        self.ts('d_got')
        a('ds_write_b128 v7, v[212:215]\nds_write_b128 v8, v[216:219]')
        a('s_waitcnt lgkmcnt(0)\ns_barrier')
        self.ts('p_b1')
        a('ds_read_b64 v[176:177], v11')
        for ww in range(8): a(f'ds_read_b32 v{192+ww}, v10 offset:{ww*2048}')
        a("""
        s_waitcnt lgkmcnt(8)
        v_max_f32_dpp v178, v176, v176 quad_perm:[1,0,3,2] row_mask:0xf bank_mask:0xf
        v_max_f32_dpp v178, v178, v178 quad_perm:[2,3,0,1] row_mask:0xf bank_mask:0xf
        v_max_f32_dpp v178, v178, v178 row_half_mirror row_mask:0xf bank_mask:0xf
        v_sub_f32 v176, v176, v178
        v_exp_f32 v176, v176
        s_nop 0
        v_mul_f32 v177, v176, v177
        v_add_f32_dpp v177, v177, v177 quad_perm:[1,0,3,2] row_mask:0xf bank_mask:0xf
        v_add_f32_dpp v177, v177, v177 quad_perm:[2,3,0,1] row_mask:0xf bank_mask:0xf
        v_add_f32_dpp v177, v177, v177 row_half_mirror row_mask:0xf bank_mask:0xf
        v_rcp_f32 v177, v177
        s_nop 0
        v_mul_f32 v176, v176, v177
        """)
        for k in range(8): a(f'v_readlane_b32 s{16+k}, v176, {k}')
        a('s_waitcnt lgkmcnt(0)\nv_mul_f32 v202, s16, v192')
        for ww in range(1, 8): a(f'v_fmac_f32 v202, s{16+ww}, v{192+ww}')
        a("""
        v_cvt_pk_bf16_f32 v202, v202, v202
        ds_write_b16 v12, v202
        s_waitcnt lgkmcnt(0)
        ds_read_b128 v[176:179], v13
        ds_read_b128 v[180:183], v13 offset:64
        """)
        self.ts('p_o')
        for k in range(2):
            a(f's_waitcnt lgkmcnt({1-k})')
            for u in range(8): self.mfma(184+4*u, 176+4*k, 80+32*k+4*u, k == 0)
        self.sel4('v216', [f'v{184+4*u}' for u in (0, 2, 4, 6)], mg)
        self.sel4('v217', [f'v{184+4*u}' for u in (1, 3, 5, 7)], mg)
        self.ts('p_uv')
        a('ds_write_b64 v14, v[216:217]\ns_waitcnt lgkmcnt(0)\ns_barrier')
        self.ts('p_b2')
        for ww in range(8): a(f'ds_read_b64 {vr(176+2*ww,2)}, v15 offset:{ww*512}')
        mt = self.masks_t()
        a('s_waitcnt lgkmcnt(0)')
        self.tree_add([f'v{176+2*k}' for k in range(8)])
        self.tree_add([f'v{177+2*k}' for k in range(8)])
        a('v_cvt_pk_bf16_f32 v176, v176, v177\nds_write_b32 v232, v176\ns_waitcnt lgkmcnt(0)')
        for ks in range(4): a(f'ds_read_b128 {vr(180+4*ks,4)}, v233 offset:{ks*64}')
        for ks in range(4):
            a(f's_waitcnt lgkmcnt({3-ks})')
            for ct in range(4): self.mfma(196+4*ct, 16+4*(ks*4+ct), 180+4*ks, ks == 0)
        self.ts('p_omf')
        for r in range(4): self.sel4(f'v{212+r}', [f'v{196+4*ct+r}' for ct in range(4)], mt)
        a(f"""
        v_cvt_pk_bf16_f32 v228, v212, v213
        v_cvt_pk_bf16_f32 v230, v214, v215
        s_mov_b64 exec, {mT4}
        buffer_store_dwordx4 v[228:231], v234, {WS}, {sR2} offen sc1
        s_mov_b64 exec, -1
        """)
        self.ts('e_pub')
    def ffn(self):
        a = self.a
        a('s_waitcnt vmcnt(0)')
        self.d_flag()
        self.srd(SA, P_W1, 512 * 2752)
        vo = self.voff128(6, 2752)
        a(f'''
        s_mul_i32 {sU0}, {sW}, {64*2752}
        s_lshl_b32 {sT2}, {sR1}, 7
        s_add_u32 {sU0}, {sU0}, {sT2}
        s_add_u32 {sT0}, {sU0}, {32*2752}
        s_add_u32 {sT1}, {sWB}, 4096
        ''')
        self.dma_groups(SA, vo, [sU0, sT0], [sWB, sT1], self.nt())
        self.srd(SB, P_W2, 1376 * 1024)
        vo = self.voff128(10, 1024)
        a(f'''
        s_lshl_b32 {sU0}, {sR1}, 16
        s_lshl_b32 {sT2}, {sW}, 7
        s_add_u32 {sU0}, {sU0}, {sT2}
        s_add_u32 {sT0}, {sU0}, 32768
        s_add_u32 {sT1}, {sWB}, 8192
        s_add_u32 {sT2}, {sWB}, 12288
        ''')
        self.dma_groups(SB, vo, [sU0, sT0], [sT1, sT2], self.nt())
        self.srd(SC, P_X, 4096)
        a(f'''
        v_lshlrev_b32 v5, 1, v0
        s_lshl_b32 {sT0}, {sR0}, 10
        buffer_load_ushort v100, v5, {SC}, {sT0} offen
        v_lshrrev_b32 v5, 1, v0
        v_lshlrev_b32 v5, 3, v5
        s_lshl_b32 {sT0}, {sR0}, 13
        s_add_u32 {sT0}, {sT0}, {WS_MR}
        s_add_u32 {sT1}, {sT0}, 4096
        ''')
        ad = self.tr128_addr(8, sWB)
        mt = self.masks_t()
        a(f'''
        s_lshl_b32 {sT2}, {sR0}, 5
        s_lshl_b32 {sT4}, {sT2}, 11
        s_add_u32 {sT4}, {sT4}, {WS_E}
        s_lshl_b32 {sT3}, {sW}, 13
        s_add_u32 {sT5}, {sT4}, {sT3}
        s_add_u32 {sT6}, {sT5}, 4096
        v_and_b32 v12, 31, {vL}
        v_lshlrev_b32 v12, 11, v12
        v_add_u32 v12, 2040, v12
        v_lshlrev_b32 v13, 4, {vL}
        s_lshl_b32 {sT2}, {sW}, 11
        s_add_u32 {sT2}, {sT2}, {RED}
        v_lshl_add_u32 v14, {vL}, 4, {sT2}
        v_lshlrev_b32 v15, 2, v0
        v_add_u32 v15, {RED}, v15
        s_lshl_b32 {sT2}, {sW}, 3
        s_add_u32 {sT2}, {sT2}, {MX}
        v_mov_b32 v220, {sT2}
        v_mov_b32 v221, {MX}
        v_lshrrev_b32 v222, 5, {vL}
        v_lshlrev_b32 v222, 6, v222
        v_lshrrev_b32 v223, 2, {vL}
        v_and_b32 v223, 3, v223
        v_lshl_add_u32 v222, v223, 4, v222
        v_and_b32 v223, 1, {vG}
        v_lshl_add_u32 v222, v223, 3, v222
        v_lshl_add_u32 v222, {vB4}, 1, v222
        s_lshl_b32 {sT2}, {sW}, 8
        s_add_u32 {sT2}, {sT2}, {WL}
        v_add_u32 v222, {sT2}, v222
        v_lshl_add_u32 v223, {vG}, 4, {sT2}
        s_lshl_b32 {sT2}, {sW}, 8
        s_add_u32 {sT2}, {sT2}, {RED2}
        v_lshlrev_b32 v224, 6, {vT}
        v_lshl_add_u32 v224, {vG}, 4, v224
        v_add_u32 v224, {sT2}, v224
        v_lshlrev_b32 v225, 2, {vL}
        v_add_u32 v225, {RED2}, v225
        s_lshl_b32 {sT2}, {sR0}, 3
        s_add_u32 {sT2}, {sT2}, {sW}
        s_mul_i32 {sT2}, {sT2}, {24*512}
        s_lshl_b32 {sT3}, {sR1}, 9
        s_add_u32 {sT2}, {sT2}, {sT3}
        s_add_u32 {sT7}, {sT2}, {WS_F}         ; F soff
        v_lshlrev_b32 v226, 7, {vT}
        v_lshl_add_u32 v226, {vG}, 5, v226     ; F voff
        s_lshl_b32 {sT2}, {sR1}, 6
        v_add_u32 v227, {sT2}, {vL}
        s_movk_i32 {sT3}, 1376
        v_cmp_gt_u32 s[62:63], {sT3}, v227
        v_mov_b32 v141, {sTAG}
        v_mov_b32 v143, {sTAG}
        v_mov_b32 v145, {sTAG}
        v_mov_b32 v147, {sTAG}
        ''')
        a(f'v_and_b32 v6, 1, v0\nv_lshlrev_b32 v6, 4, v6')
        a('s_waitcnt vmcnt(0)\nv_lshlrev_b32 v100, 16, v100')
        self.tr_reads(ad, range(2), 128, 16)
        self.tr_reads(ad, range(2), 128, 48, 8192)
        l = self.poll_begin()
        a(f'''
        buffer_load_dwordx2 v[102:103], v5, {WS}, {sT0} offen sc1
        buffer_load_dwordx2 v[104:105], v5, {WS}, {sT0} offen offset:2048 sc1
        buffer_load_dwordx2 v[106:107], v5, {WS}, {sT1} offen sc1
        s_waitcnt vmcnt(0)
        ''')
        self.tagchk('v208', ['v103', 'v105', 'v107'])
        self.poll_end(l, 5, self.cfg['sleepM'], 'v208')
        for r in (102, 104, 106):
            a(f'v_lshrrev_b32 v{r}, v6, v{r}\nv_lshlrev_b32 v{r}, 16, v{r}')
        a(f's_mov_b32 {sT0}, 0x00003f80\ns_mov_b32 {sT1}, 0x3f800000')
        sk = a.label('noet')
        a(f's_cmp_lg_u32 {sW}, 0\ns_cbranch_scc1 {sk}')
        l = self.poll_begin()
        a(f'buffer_load_dwordx2 v[176:177], v12, {WS}, {sT4} offen sc1\ns_waitcnt vmcnt(0)')
        self.tagchk('v178', ['v177'])
        self.poll_end(l, 6, self.cfg['sleepE'], 'v178')
        a(f'{sk}:\ns_barrier')
        self.ts('e_trig')
        l = self.poll_begin()
        for k in range(8):
            so = sT5 if k < 4 else sT6
            off = f' offset:{(k&3)*1024}' if k & 3 else ''
            a(f'buffer_load_dwordx4 {vr(176+4*k,4)}, v13, {WS}, {so} offen{off} sc1')
        for k in range(8):
            a(f's_waitcnt vmcnt({7-k})')
            hf = k & 1; b = 176 + 4*k; acc = 112 + 4*hf
            for j, (src, sel) in enumerate(((b, sT0), (b, sT1), (b+2, sT0), (b+2, sT1))):
                c = '0' if k < 2 else f'v{acc+j}'
                a(f'v_dot2_f32_bf16 v{acc+j}, v{src}, {sel}, {c}')
            if k == 0: a(f'v_xor_b32 v208, {sTAG}, v{b+1}\nv_bitop3_b32 v208, v208, v{b+3}, {sTAG} bitop3:0xf6')
            else:
                for o in (1, 3): a(f'v_bitop3_b32 v208, v208, v{b+o}, {sTAG} bitop3:0xf6')
        self.poll_end(l, 7, 1, 'v208')
        self.ts('e_got')
        a('''
        ds_write_b128 v14, v[112:115]
        ds_write_b128 v14, v[116:119] offset:1024
        s_waitcnt lgkmcnt(0)
        s_barrier
        ''')
        self.ts('f_b1')
        for ww in range(8): a(f'ds_read_b32 v{112+ww}, v15 offset:{ww*2048}')
        a('s_waitcnt lgkmcnt(0)')
        self.tree_add([f'v{112+k}' for k in range(8)])
        a('v_fma_f32 v100, v102, v112, v100\nv_mov_b32 v120, v100\nv_mul_f32 v121, v100, v100')
        self.allsum(['v120', 'v121'], ['v122', 'v123'])
        a('ds_write_b64 v220, v[120:121]\ns_waitcnt lgkmcnt(0)\ns_barrier')
        self.ts('f_b2')
        for k in range(4): a(f'ds_read_b128 {vr(112+4*k,4)}, v221 offset:{k*16}')
        a('s_waitcnt lgkmcnt(0)')
        self.tree_add([f'v{112+2*k}' for k in range(8)])
        self.tree_add([f'v{113+2*k}' for k in range(8)])
        a(f'''
        v_mul_f32 v112, {fhex(1/512)}, v112
        v_mul_f32 v113, {fhex(1/512)}, v113
        v_fma_f32 v113, -v112, v112, v113
        v_max_f32 v113, 0, v113
        v_add_f32 v113, {fhex(1e-5)}, v113
        v_rsq_f32 v113, v113
        v_sub_f32 v114, v100, v112
        v_mul_f32 v114, v114, v113
        v_add_f32 v115, v114, v104
        v_fmac_f32 v115, v114, v106
        v_cvt_pk_bf16_f32 v115, v115, v115
        ds_write_b16 v222, v115
        s_waitcnt lgkmcnt(0)
        ds_read_b128 v[112:115], v223
        ds_read_b128 v[116:119], v223 offset:64
        ''')
        for ks in range(2):
            a(f's_waitcnt lgkmcnt({1-ks})')
            for ct in range(4): self.mfma(120+4*ct, 16+4*(ks*4+ct), 112+4*ks, ks == 0)
        for r in range(4): self.sel4(f'v{136+r}', [f'v{120+4*ct+r}' for ct in range(4)], mt)
        a(f'''
        s_mov_b64 exec, {mT4}
        ds_write_b128 v224, v[136:139]
        s_mov_b64 exec, -1
        s_waitcnt lgkmcnt(0)
        s_barrier
        ''')
        self.ts('f_b3')
        for ww in range(8): a(f'ds_read_b32 v{112+ww}, v225 offset:{ww*256}')
        a('s_waitcnt lgkmcnt(0)')
        self.tree_add([f'v{112+k}' for k in range(8)])
        a('''
        v_max_f32 v112, 0, v112
        v_cndmask_b32 v112, 0, v112, s[62:63]
        v_cvt_pk_bf16_f32 v112, v112, v112
        ds_write_b16 v222, v112 offset:128
        s_waitcnt lgkmcnt(0)
        ds_read_b128 v[112:115], v223 offset:128
        ds_read_b128 v[116:119], v223 offset:192
        ''')
        for ks in range(2):
            a(f's_waitcnt lgkmcnt({1-ks})')
            for ct in range(4): self.mfma(120+4*ct, 48+4*(ks*4+ct), 112+4*ks, ks == 0)
        for r, d in enumerate((140, 142, 144, 146)): self.sel4(f'v{d}', [f'v{120+4*ct+r}' for ct in range(4)], mt)
        a(f'''
        s_mov_b64 exec, {mT4}
        buffer_store_dwordx4 v[140:143], v226, {WS}, {sT7} offen sc1
        buffer_store_dwordx4 v[144:147], v226, {WS}, {sT7} offen offset:16 sc1
        s_mov_b64 exec, -1
        ''')
        self.ts('f_pub')
    def final(self):
        a = self.a
        a('s_waitcnt vmcnt(0)')
        self.d_flag()
        a(f's_lshl_b32 {sR1}, {sX}, 2\ns_add_u32 {sR1}, {sR1}, {sR0}')
        self.silu_addr()
        self.srd(SB, P_C, 4096)
        a(f'buffer_load_dwordx2 v[18:19], v16, {SB}, 0 offen')
        self.srd(SA, P_WMOD, 512 * 6144)
        vo = self.voff128(6, 6144)
        a(f'''
        s_mul_i32 {sU0}, {sW}, {64*6144}
        s_lshl_b32 {sT2}, {sR1}, 7
        s_add_u32 {sU0}, {sU0}, {sT2}
        s_add_u32 {sU0}, {sU0}, 2048
        s_add_u32 {sT0}, {sU0}, {32*6144}
        s_add_u32 {sT1}, {sWB}, 4096
        ''')
        self.dma_groups(SA, vo, [sU0, sT0], [sWB, sT1], self.nt())
        self.sv_frag_addr('v12')
        ad = self.tr128_addr(8, sWB)
        a('s_waitcnt vmcnt(8)')
        self.silu_calc()
        a('s_waitcnt lgkmcnt(0)\ns_barrier')
        a('ds_read_b128 v[112:115], v12\nds_read_b128 v[116:119], v12 offset:64\ns_waitcnt vmcnt(0)')
        self.tr_reads(ad, range(2), 128, 24)
        a('s_waitcnt lgkmcnt(0)')
        for ks in range(2):
            for ct in range(4): self.mfma(120+4*ct, 24+4*(ks*4+ct), 112+4*ks, ks == 0)
        a(f'''
        s_lshl_b32 {sT0}, {sW}, 10
        s_add_u32 {sT0}, {sT0}, {RED}
        v_lshlrev_b32 v5, 6, {vG}
        v_lshl_add_u32 v5, {vT}, 4, v5
        v_add_u32 v5, {sT0}, v5
        s_mov_b64 exec, {mT4}
        ''')
        for ct in range(4): a(f'ds_write_b128 v5, {vr(120+4*ct,4)} offset:{ct*256}')
        a('s_mov_b64 exec, -1\ns_waitcnt lgkmcnt(0)\ns_barrier')
        sk = a.label('mrskip')
        a(f's_cmp_ge_u32 {sW}, 2\ns_cbranch_scc1 {sk}')
        a(f'v_lshlrev_b32 v5, 3, v0\nv_add_u32 v5, {RED}, v5')
        for ww in range(8): a(f'ds_read_b64 {vr(112+2*ww,2)}, v5 offset:{ww*1024}')
        a(f'''
        v_lshrrev_b32 v6, 1, v0
        v_and_b32 v6, 3, v6
        v_lshlrev_b32 v6, 13, v6
        v_lshrrev_b32 v7, 3, v0
        v_lshl_add_u32 v6, v7, 4, v6
        v_and_b32 v7, 1, v0
        v_lshl_add_u32 v6, v7, 3, v6
        s_lshl_b32 {sT0}, {sR1}, 8
        s_add_u32 {sT0}, {sT0}, {WS_MR}
        s_waitcnt lgkmcnt(0)
        ''')
        self.tree_add([f'v{112+2*k}' for k in range(8)])
        self.tree_add([f'v{113+2*k}' for k in range(8)])
        a(f'''
        v_cvt_pk_bf16_f32 v112, v112, v113
        v_mov_b32 v113, {sTAG}
        buffer_store_dwordx2 v[112:113], v6, {WS}, {sT0} offen sc1
        {sk}:
        ''')
        self.ts('mr_pub')
        a(f's_cmp_lg_u32 {sW}, 0\ns_cbranch_scc1 L_exit')
        self.srd(SC, P_X, 4096)
        self.srd(SA, P_OUT, 4096)
        a(f'''
        v_and_b32 v5, 31, {vL}
        v_lshlrev_b32 v6, 2, v5
        s_lshl_b32 {sT0}, {sR0}, 10
        s_lshl_b32 {sT1}, {sX}, 7
        s_add_u32 {sR2}, {sT0}, {sT1}
        buffer_load_dword v100, v6, {SC}, {sR2} offen
        v_lshlrev_b32 v7, 3, v5
        s_lshl_b32 {sT0}, {sR0}, 13
        s_lshl_b32 {sT1}, {sX}, 8
        s_add_u32 {sT0}, {sT0}, {sT1}
        s_add_u32 {sT0}, {sT0}, {WS_MR}
        s_add_u32 {sT1}, {sT0}, {3*2048}
        ''')
        a(f'''
        s_mov_b32 {sU0}, {sT0}
        s_mov_b32 {sU1}, {sT1}
        v_lshrrev_b32 v8, 5, {vL}
        v_lshl_add_u32 v9, v8, 11, v7
        s_lshl_b32 {sT7}, {sR0}, 16
        s_add_u32 {sT7}, {sT7}, {WS_E}
        s_lshl_b32 {sT1}, {sX}, 8
        s_add_u32 {sT0}, {sT7}, {sT1}
        v_lshlrev_b32 v11, 9, v8
        v_lshl_add_u32 v11, v5, 4, v11
        v_lshlrev_b32 v12, 11, v5
        v_add_u32 v12, 2040, v12
        v_min_u32 v13, 21, v5
        v_lshlrev_b32 v13, 9, v13
        v_add_u32 v13, 504, v13
        s_lshl_b32 {sT4}, {sR0}, 3
        s_add_u32 {sT4}, {sT4}, {sX}
        s_mul_i32 {sT4}, {sT4}, {24*512}
        s_add_u32 {sT4}, {sT4}, {WS_F}
        s_add_u32 {sT5}, {sT4}, 4096
        s_add_u32 {sT6}, {sT4}, 8192
        ''')
        l = self.poll_begin()
        a(f'buffer_load_dwordx2 v[112:113], v12, {WS}, {sT7} offen sc1\ns_waitcnt vmcnt(0)')
        self.tagchk('v10', ['v113'])
        self.poll_end(l, 12, self.cfg['sleepE'] + 2, 'v10')
        l = self.poll_begin()
        a(f'''
        buffer_load_dwordx2 v[102:103], v7, {WS}, {sU0} offen sc1
        buffer_load_dwordx2 v[104:105], v7, {WS}, {sU1} offen sc1
        s_mov_b32 {sT1}, {sT0}
        ''')
        for k in range(16):
            a(f'buffer_load_dwordx2 {vr(112+2*k,2)}, v9, {WS}, {sT1} offen sc1')
            if k < 15: a(f's_add_u32 {sT1}, {sT1}, 4096')
        a('s_waitcnt vmcnt(0)')
        self.tagchk('v10', ['v103', 'v105'] + [f'v{113+2*k}' for k in range(16)])
        self.poll_end(l, 9, 2, 'v10')
        a('''
        v_lshlrev_b32 v146, 16, v100
        v_and_b32 v147, 0xffff0000, v100
        v_lshlrev_b32 v152, 16, v102
        v_and_b32 v153, 0xffff0000, v102
        v_lshlrev_b32 v148, 16, v104
        v_and_b32 v149, 0xffff0000, v104
        ''')
        self.ts('fe_got')
        a(f's_mov_b32 {sT0}, 0x00003f80\ns_mov_b32 {sT1}, 0x3f800000')
        for k in range(16):
            c0 = '0' if k == 0 else 'v144'; c1 = '0' if k == 0 else 'v145'
            a(f'v_dot2_f32_bf16 v144, v{112+2*k}, {sT0}, {c0}\nv_dot2_f32_bf16 v145, v{112+2*k}, {sT1}, {c1}')
        a('''
        v_mov_b32 v150, v144
        v_mov_b32 v151, v145
        s_nop 0
        v_permlane32_swap_b32 v144, v150
        v_permlane32_swap_b32 v145, v151
        v_add_f32 v144, v144, v150
        v_add_f32 v145, v145, v151
        v_fmac_f32 v146, v152, v144
        v_fmac_f32 v147, v153, v145
        ''')
        if self.cfg.get('ftrig', False):
            l = self.poll_begin()
            a(f'buffer_load_dwordx2 v[112:113], v13, {WS}, {sT4} offen sc1\ns_waitcnt vmcnt(0)')
            self.tagchk('v10', ['v113'])
            self.poll_end(l, 14, self.cfg['sleepF'], 'v10')
        l = self.poll_begin()
        for k in range(11):
            so = (sT4, sT5, sT6)[k >> 2]
            off = f' offset:{(k&3)*1024}' if k & 3 else ''
            a(f'buffer_load_dwordx4 {vr(176+4*k,4)}, v11, {WS}, {so} offen{off} sc1')
        a('s_waitcnt vmcnt(0)')
        self.tagchk('v10', [f'v{176+4*k+o}' for k in range(11) for o in (1, 3)])
        self.poll_end(l, 10, self.cfg['sleepF'], 'v10')
        self.tree_add([f'v{176+4*k}' for k in range(11)])
        self.tree_add([f'v{178+4*k}' for k in range(11)])
        a(f'''
        v_mov_b32 v150, v176
        v_mov_b32 v151, v178
        s_nop 0
        v_permlane32_swap_b32 v176, v150
        v_permlane32_swap_b32 v178, v151
        v_add_f32 v176, v176, v150
        v_add_f32 v178, v178, v151
        v_fmac_f32 v146, v148, v176
        v_fmac_f32 v147, v149, v178
        v_cvt_pk_bf16_f32 v146, v146, v147
        s_mov_b32 exec_hi, 0
        buffer_store_dword v146, v6, {SA}, {sR2} offen
        s_mov_b64 exec, -1
        ''')
        self.ts('out_st')
    def epoch_update(self):
        a = self.a
        a(f's_cmp_lg_u32 {sW}, 0\ns_cbranch_scc1 L_exit')
        a(f'v_and_b32 v5, 7, {vL}\nv_lshlrev_b32 v5, 15, v5\nv_add_u32 v5, 2040, v5\ns_mov_b32 {sT0}, {WS_E}')
        l = self.poll_begin()
        a(f'buffer_load_dwordx2 v[6:7], v5, {WS}, {sT0} offen sc1\ns_waitcnt vmcnt(0)')
        self.tagchk('v8', ['v7'])
        self.poll_end(l, 11, 8, 'v8')
        a(f'''
        s_add_u32 {sT0}, {sEP}, 1
        v_mov_b32 v6, {sT0}
        v_mov_b32 v5, 0
        s_mov_b64 exec, 1
        buffer_store_dword v6, v5, {WS}, 0 offen sc1
        s_mov_b64 exec, -1
        ''')
    def build(self):
        a = self.a
        self.prologue()
        self.p_pre()
        a('s_branch L_att\nL_qpre:')
        self.q_pre()
        a('L_att:')
        self.att_addr()
        self.attention()
        a(f's_cmp_lt_u32 {sI}, 16\ns_cbranch_scc1 L_qpost')
        self.p_post()
        a('s_branch L_exit\nL_qpost:')
        a(f'''
        s_lshr_b32 {sT0}, {sI}, 2
        s_and_b32 {sR0}, {sI}, 3
        s_cmp_eq_u32 {sT0}, 3
        s_cbranch_scc1 L_final
        s_lshl_b32 {sR1}, {sT0}, 3
        s_add_u32 {sR1}, {sR1}, {sX}
        s_cmp_ge_u32 {sR1}, 22
        s_cbranch_scc1 L_idle
        ''')
        self.ffn()
        a('s_branch L_exit\nL_final:')
        self.final()
        a('s_branch L_exit\nL_idle:')
        a('s_waitcnt vmcnt(0)')
        self.d_flag()
        a(f's_cmp_eq_u32 s2, {7 + 8*11}\ns_cbranch_scc0 L_exit')
        self.epoch_update()
        a('s_branch L_exit')
        for code in self.failsites:
            a(f'L_fail_{code}:\ns_mov_b32 {sT0}, {code}\ns_branch L_fail')
        a(f'''
        L_fail:
        s_mov_b32 s12, s{P_DBG}
        s_mov_b32 s13, s{P_DBG+1}
        s_mov_b32 s14, 256
        s_mov_b32 s15, 0x00020000
        s_mov_b64 exec, 1
        s_lshl_b32 {sT1}, {sT0}, 2
        v_mov_b32 v5, {sT1}
        v_mov_b32 v6, s2
        v_add_u32 v6, 1000, v6
        buffer_store_dword v6, v5, s[12:15], 0 offen
        s_mov_b64 exec, -1
        L_exit:
        ''')
        self.ts('end')
        if self.cfg['ts']:
            sk = a.label('nots')
            a(f's_cmp_lg_u32 {sW}, {self.cfg["tswave"]}\ns_cbranch_scc1 {sk}')
            a(f's_waitcnt lgkmcnt(0)\ns_mov_b64 exec, 1\ns_lshl_b32 {sT0}, s2, 6\ns_add_u32 {sT0}, {sT0}, {WS_TS}\nv_mov_b32 v5, 0')
            for k in range(len(TSREG)):
                a(f'v_mov_b32 v6, s{TSREG[k]}\nbuffer_store_dword v6, v5, {WS}, {sT0} offen offset:{4*k}')
            a(f'{sk}:')
        a('s_waitcnt vmcnt(0) lgkmcnt(0)\nL_end:\ns_endpgm')
        return a.finish()
HEADER = open('adaLN_cond__compressed_kv_cla__dense_activation_relu__decode.s.ref').read().split('; Override launch')[0]
def generate(cfg):
    g = Gen(cfg)
    body = g.build()
    init = ''
    if g.cfg['ts']:
        init = ''.join(f'    s_mov_b32 s{r}, 0\n' for r in TSREG[:10])
    txt = HEADER + f'''; @launch grid=(256,1,1) block=(512,1,1) lds={LDS_BYTES}
.amdgcn_target "amdgcn-amd-amdhsa--gfx950"
.text
.globl {KNAME}
.p2align 8
.type {KNAME},@function
{KNAME}:
{init}{body}.section .rodata,"a"
.p2align 6
.amdhsa_kernel {KNAME}
  .amdhsa_next_free_vgpr 256
  .amdhsa_next_free_sgpr 102
  .amdhsa_accum_offset 256
  .amdhsa_group_segment_fixed_size 0
  .amdhsa_kernarg_size 112
  .amdhsa_user_sgpr_count 2
  .amdhsa_user_sgpr_kernarg_segment_ptr 1
  .amdhsa_system_sgpr_workgroup_id_x 1
.end_amdhsa_kernel
'''
    return txt, g
if __name__ == '__main__':
    cfg = json.loads(sys.argv[2]) if len(sys.argv) > 2 else {}
    txt, g = generate(cfg)
    open(sys.argv[1], 'w').write(txt)
    json.dump(dict(ts=g.tsnames, slot=(g.cfg.get('tsmap') or TSSLOT), gen='g'), open(sys.argv[1] + '.json', 'w'))
    print('written', sys.argv[1], 'lines', txt.count('\n'), 'nops padded', g.a.npad)
```

```python
import sys, json, struct
from asmlib import Asm
KNAME = 'adaLN_cond__compressed_kv_cla__dense_activation_relu__decode_kernel'
CFG = dict(ptrig=False, gpl=['e','e','e','e'], gplhp=['c','s','b','p'], wofirst=2, wo_pre=0, pthr=0, ckvsplit=False, ts=False, nt=False, nt_ckv_p=False, nt_ckv_q=True, limit=20000,
           sleepA=1, sleepA2=1, sleepM=16, sleepC2=1, ftrig=False, sleepC=2, sleepD=1, sleepE=2, sleepF=1, tswave=0)
WS_H  = 0x500000
WS_MR = 0x510000
WS_Q  = 0x10000
WS_FL = 0x50000
WS_E  = 0x60000
WS_F  = 0xA0000
WS_D  = 0x100000
WS_TS = 0x600000
WS_SIZE = 0x700000
SM   = 131072
QT   = SM
RED  = SM
PT   = SM + 16384
WL   = PT
MX   = SM + 20480
LS   = SM + 20992
SV   = SM + 21504
QB   = SM + 25856
OB   = SM + 27136
RED2 = SM + 28160
LDS_BYTES = 163840
SVS = 1088
QBS = 320
TAGMUL = 0x9E3779B1
LOG2E = 1.4426950408889634
SCALE = (128 ** -0.5) * LOG2E
def fhex(x): return '0x%08x' % struct.unpack('<I', struct.pack('<f', x))[0]
sX, sI, sW, sTAG, sEP = 's3', 's4', 's5', 's6', 's7'
WS = 's[8:11]'; SA = 's[12:15]'; SB = 's[44:47]'; SC = 's[48:51]'
P_X, P_CKV, P_WQ, P_WUK, P_WUV, P_WO, P_W1, P_W2, P_C, P_WMOD, P_OUT, P_DBG, P_WS = 16, 18, 20, 22, 24, 26, 30, 32, 34, 36, 38, 40, 42
sWB = 's52'
sT0, sT1, sT2, sT3 = 's53', 's54', 's55', 's56'
sT4, sT5, sT6, sT7 = 's72', 's73', 's74', 's75'
sPLO, sPHI = 's57', 's58'
sCNT = 's59'
mT4 = 's[60:61]'
sU0, sU1 = 's62', 's63'
sCH, sBA, sS, sHH = 's64', 's65', 's66', 's67'
sR0, sR1, sR2, sR3 = 's68', 's69', 's70', 's71'
MK = 96
TSREG = [76,78,80,82,84,86,88,90,92,94,28,0]
TSSLOT = dict(start=0, hp_loaded=1, hp_pub=2, wq_landed=1, h_got=2, q_pub=3, ckv_iss=3, c_got=4, b1=5, b3=6, d_st=7, d_flag=8,
              dfl_got=9, d_got=10, e_pub=11, e_trig=9, e_got=10, f_pub=11, mr_pub=9, fe_got=10, out_st=11)
vL, vG, vT, vB4 = 'v1', 'v2', 'v3', 'v4'
def vr(a, n=1): return f'v{a}' if n == 1 else f'v[{a}:{a+n-1}]'
class Gen:
    def __init__(self, cfg):
        self.cfg = dict(CFG); self.cfg.update(cfg)
        self.a = Asm(); self.tsnames = []; self.failsites = []
    def ts(self, name):
        if not self.cfg['ts']: return
        slots = self.cfg.get('tsmap') or TSSLOT
        if name not in slots: return
        r = TSREG[slots[name]]
        if name not in self.tsnames: self.tsnames.append(name)
        self.a(f's_memrealtime s[{r}:{r+1}]')
    def srd(self, quad, ptr, size):
        q = int(quad[2:quad.index(':')])
        self.a(f's_mov_b32 s{q}, s{ptr}\ns_mov_b32 s{q+1}, s{ptr+1}\ns_mov_b32 s{q+2}, {size}\ns_mov_b32 s{q+3}, 0x00020000')
    def nt(self, key='nt'): return ' nt' if self.cfg[key] else ''
    def poll_begin(self):
        l = self.a.label('poll')
        self.a(f's_mov_b32 {sCNT}, {self.cfg["limit"]}\n{l}:')
        return l
    def poll_end(self, l, code, sleep, vacc):
        a = self.a; ok = a.label('ok')
        if code not in self.failsites: self.failsites.append(code)
        a(f'v_cmp_ne_u32 vcc, 0, {vacc}')
        a(f's_cbranch_vccz {ok}')
        a(f's_sub_u32 {sCNT}, {sCNT}, 1')
        a(f's_cbranch_scc1 L_fail_{code}')
        if sleep: a(f's_sleep {sleep}')
        a(f's_branch {l}')
        a(f'{ok}:')
    def poll_trig(self, voff, soff, ra, code, vacc):
        a = self.a
        if code not in self.failsites: self.failsites.append(code)
        l = a.label('pt'); ok = a.label('ptok')
        ld = lambda r: a(f'buffer_load_dwordx2 {vr(r,2)}, {voff}, {WS}, {soff} offen sc1')
        a(f's_mov_b32 {sCNT}, {self.cfg["limit"]}')
        ld(ra)
        a(f'{l}:')
        ld(ra+2)
        a(f's_waitcnt vmcnt(1)\nv_cmp_ne_u32 vcc, {sTAG}, v{ra+1}\ns_cbranch_vccz {ok}')
        ld(ra)
        a(f's_waitcnt vmcnt(1)\nv_cmp_ne_u32 vcc, {sTAG}, v{ra+3}\ns_cbranch_vccz {ok}')
        a(f's_sub_u32 {sCNT}, {sCNT}, 1\ns_cbranch_scc1 L_fail_{code}\ns_branch {l}\n{ok}:')
    def tagchk(self, vacc, regs):
        a = self.a
        for k, r in enumerate(regs):
            if k == 0: a(f'v_xor_b32 {vacc}, {sTAG}, {r}')
            else: a(f'v_bitop3_b32 {vacc}, {vacc}, {r}, {sTAG} bitop3:0xf6')
    def crossrow(self, regs, tmp, op):
        a = self.a
        for sw in ('v_permlane16_swap_b32', 'v_permlane32_swap_b32'):
            for r, t in zip(regs, tmp): a(f'v_mov_b32 {t}, {r}')
            for r, t in zip(regs, tmp): a(f'{sw} {r}, {t}')
            for r, t in zip(regs, tmp): a(f'{op} {r}, {r}, {t}')
    def allsum(self, regs, tmp, op='v_add_f32'):
        a = self.a
        for n in (8, 4, 2, 1):
            for r in regs: a(f'{op}_dpp {r}, {r}, {r} row_ror:{n} row_mask:0xf bank_mask:0xf')
        self.crossrow(regs, tmp, op)
    def ckv_prep(self, v):
        a = self.a
        self.srd(SA, P_CKV, 16 << 20)
        a(f'v_lshlrev_b32 v{v}, 4, {vL}')
        for k in range(1, 8): a(f'v_xor_b32 v{v+k}, {k << 5}, v{v}')
    def ckv_group(self, gi, v, ntkey):
        a = self.a
        a(f's_add_u32 {sU1}, {sWB}, {gi*4096}\ns_mov_b32 m0, {sU1}\ns_add_u32 {sU0}, {sCH}, {sU1}')
        for k in range(4):
            n = 4*gi + k
            off = f' offset:{k*1024}' if k else ''
            a(f'buffer_load_dwordx4 v{v + (n & 7)}, {SA}, {sU0} offen{off}{self.nt(ntkey)} lds')
    def dma_ckv_p(self):
        a = self.a
        thr = self.cfg.get('pthr', 2)
        self.srd(SA, P_CKV, 16 << 20)
        a(f'v_lshlrev_b32 v6, 4, {vL}')
        for k in range(1, 8): a(f'v_xor_b32 v{6+k}, {k << 5}, v6')
        for n in range(16):
            if n % 4 == 0:
                a(f's_add_u32 {sT1}, {sWB}, {(n>>2)*4096}')
                a(f's_mov_b32 m0, {sT1}')
                a(f's_add_u32 {sT0}, {sCH}, {sT1}')
            off = f' offset:{(n & 3)*1024}' if n & 3 else ''
            a(f'buffer_load_dwordx4 v{6 + (n & 7)}, {SA}, {sT0} offen{off}{self.nt("nt_ckv_p")} lds')
            if thr and n == thr - 1: a('s_waitcnt vmcnt(0)')
    def dma_groups(self, srd, voff4, sregs, mregs, nt):
        a = self.a
        for sr, mr in zip(sregs, mregs):
            a(f's_mov_b32 m0, {mr}\ns_nop 0')
            for k in range(4):
                off = f' offset:{k*1024}' if k else ''
                a(f'buffer_load_dwordx4 {voff4[k]}, {srd}, {sr} offen{off}{nt} lds')
    def rot_groups(self, ng, rot, sbase, step_log2, mbase, sregs, mregs, tmp=sCNT):
        a = self.a
        for j in range(ng):
            if rot is None:
                a(f's_add_u32 {sregs[j]}, {sbase}, {j << step_log2}')
                a(f's_add_u32 {mregs[j]}, {mbase}, {j*4096}')
            else:
                a(f's_add_u32 {tmp}, {rot}, {j}\ns_and_b32 {tmp}, {tmp}, {ng-1}')
                a(f's_lshl_b32 {sregs[j]}, {tmp}, {step_log2}\ns_add_u32 {sregs[j]}, {sregs[j]}, {sbase}')
                a(f's_lshl_b32 {mregs[j]}, {tmp}, 12\ns_add_u32 {mregs[j]}, {mregs[j]}, {mbase}')
    def voff128(self, v, rowstride):
        a = self.a
        a(f'''
        v_lshrrev_b32 v{v}, 3, {vL}
        v_mul_u32_u24 v{v}, {rowstride}, v{v}
        v_and_b32 v{v+1}, 7, {vL}
        v_lshlrev_b32 v{v+2}, 1, {vG}
        v_xor_b32 v{v+1}, v{v+1}, v{v+2}
        v_lshl_add_u32 v{v}, v{v+1}, 4, v{v}
        ''')
        for k in range(1, 4): a(f'v_add_u32 v{v+k}, {k*(8*rowstride-1024)}, v{v}')
        return [f'v{v+k}' for k in range(4)]
    def tr128_addr(self, v, base_s):
        a = self.a
        a(f'''
        v_lshrrev_b32 v{v}, 2, {vT}
        v_lshl_add_u32 v{v}, {vG}, 2, v{v}
        v_lshrrev_b32 v{v+1}, 1, v{v}
        v_and_b32 v{v+1}, 3, v{v+1}
        v_lshlrev_b32 v{v+1}, 5, v{v+1}
        v_lshl_add_u32 v{v}, v{v}, 7, v{v+1}
        v_lshrrev_b32 v{v+1}, 1, {vB4}
        v_lshl_add_u32 v{v}, v{v+1}, 4, v{v}
        v_and_b32 v{v+1}, 1, {vB4}
        v_lshl_add_u32 v{v}, v{v+1}, 3, v{v}
        v_add_u32 v{v}, {base_s}, v{v}
        ''')
        for ct in range(1, 4): a(f'v_xor_b32 v{v+ct}, {ct << 5}, v{v}')
        return [f'v{v+ct}' for ct in range(4)]
    def tr_reads(self, addrs, kss, rb, dst, base_off=0):
        a = self.a
        for ks in kss:
            for ct, ad in enumerate(addrs):
                d = dst + 4 * (ks * len(addrs) + ct)
                for hi in range(2):
                    a(f'ds_read_b64_tr_b16 {vr(d + 2*hi, 2)}, {ad} offset:{base_off + (32*ks + 16*hi)*rb}')
    def sel4(self, dst, srcs, masks):
        a = self.a
        a(f'v_cndmask_b32 {dst}, {srcs[0]}, {srcs[1]}, {masks[0]}')
        a(f'v_cndmask_b32 {dst}, {dst}, {srcs[2]}, {masks[1]}')
        a(f'v_cndmask_b32 {dst}, {dst}, {srcs[3]}, {masks[2]}')
    def masks_t(self):
        for k, val in enumerate((0x22222222, 0x44444444, 0x88888888)):
            self.a(f's_mov_b32 s{MK+2*k}, {val:#x}\ns_mov_b32 s{MK+2*k+1}, {val:#x}')
        return [f's[{MK+2*k}:{MK+2*k+1}]' for k in range(3)]
    def masks_q(self):
        for k, val in enumerate((0x00f000f0, 0x0f000f00, 0xf000f000)):
            self.a(f's_mov_b32 s{MK+2*k}, {val:#x}\ns_mov_b32 s{MK+2*k+1}, {val:#x}')
        return [f's[{MK+2*k}:{MK+2*k+1}]' for k in range(3)]
    def masks_g(self):
        for k, (lo, hi) in enumerate(((0xffff0000, 0), (0, 0x0000ffff), (0, 0xffff0000))):
            self.a(f's_mov_b32 s{MK+2*k}, {lo:#x}\ns_mov_b32 s{MK+2*k+1}, {hi:#x}')
        return [f's[{MK+2*k}:{MK+2*k+1}]' for k in range(3)]
    def mfma(self, acc, A, B, first):
        self.a(f'v_mfma_f32_16x16x32_bf16 {vr(acc,4)}, {vr(A,4)}, {vr(B,4)}, {"0" if first else vr(acc,4)}')
    def tree_add(self, regs):
        a = self.a; n = len(regs); step = 1
        while step < n:
            for k in range(0, n - step, 2*step): a(f'v_add_f32 {regs[k]}, {regs[k]}, {regs[k+step]}')
            step *= 2
    def prologue(self):
        a = self.a
        a('''
        s_cmp_ge_u32 s2, 256
        s_cbranch_scc1 L_end
        s_load_dwordx16 s[16:31], s[0:1], 0
        s_load_dwordx8 s[32:39], s[0:1], 64
        s_load_dwordx4 s[40:43], s[0:1], 96
        ''')
        self.ts('start')
        a(f'''
        v_lshrrev_b32 v5, 6, v0
        v_and_b32 {vL}, 63, v0
        v_readfirstlane_b32 {sW}, v5
        v_lshrrev_b32 {vG}, 4, {vL}
        v_and_b32 {vT}, 15, {vL}
        v_and_b32 {vB4}, 3, {vL}
        s_and_b32 {sX}, s2, 7
        s_lshr_b32 {sI}, s2, 3
        ''')
        if self.cfg.get('ixor'): a(f's_xor_b32 {sI}, {sI}, {self.cfg["ixor"]}')
        a(f'''
        s_lshl_b32 {sWB}, {sW}, 14
        s_mov_b32 s60, 0x000f000f
        s_mov_b32 s61, 0x000f000f
        s_lshl_b32 {sCH}, {sX}, 4
        s_and_b32 {sT0}, {sI}, 15
        s_add_u32 {sCH}, {sCH}, {sT0}
        s_lshr_b32 {sBA}, {sCH}, 5
        s_and_b32 {sS}, {sCH}, 31
        s_lshr_b32 {sHH}, {sI}, 4
        s_lshl_b32 {sCH}, {sCH}, 17
        s_cmp_lt_u32 {sI}, 16
        s_cbranch_scc1 L_qpre
        ''')
    def after_kernarg(self):
        a = self.a
        a(f's_waitcnt lgkmcnt(0)\ns_load_dword {sEP}, s[{P_WS}:{P_WS+1}], 0')
    def tag(self):
        self.srd(WS, P_WS, WS_SIZE)
        self.a(f'''
        s_waitcnt lgkmcnt(0)
        s_add_u32 {sTAG}, {sEP}, 1
        s_mul_i32 {sTAG}, {sTAG}, {TAGMUL:#x}
        s_add_u32 {sTAG}, {sTAG}, 0x7f4a7c15
        ''')
    def dma_ckv(self, ntkey, groups=(0, 1, 2, 3), v=6):
        a = self.a
        self.srd(SA, P_CKV, 16 << 20)
        a(f'v_lshlrev_b32 v{v}, 4, {vL}')
        for k in range(1, 8): a(f'v_xor_b32 v{v+k}, {k << 5}, v{v}')
        for gi in groups:
            a(f's_add_u32 {sT1}, {sWB}, {gi*4096}')
            a(f's_mov_b32 m0, {sT1}')
            a(f's_add_u32 {sT0}, {sCH}, {sT1}')
            for k in range(4):
                n = 4*gi + k
                off = f' offset:{k*1024}' if k else ''
                a(f'buffer_load_dwordx4 v{v + (n & 7)}, {SA}, {sT0} offen{off}{self.nt(ntkey)} lds')
    def silu_addr(self):
        self.a(f'''
        v_lshlrev_b32 v16, 3, v0
        v_lshrrev_b32 v20, 7, v0
        v_mul_u32_u24 v20, {SVS}, v20
        v_and_b32 v21, 127, v0
        v_lshrrev_b32 v21, 3, v21
        v_lshl_add_u32 v20, v21, 6, v20
        v_and_b32 v21, 3, v0
        v_lshl_add_u32 v20, v21, 4, v20
        v_lshrrev_b32 v21, 2, v0
        v_and_b32 v21, 1, v21
        v_lshl_add_u32 v20, v21, 3, v20
        v_add_u32 v20, {SV}, v20
        ''')
    def silu_calc(self):
        a = self.a
        a('''
        v_lshlrev_b32 v22, 16, v18
        v_and_b32 v23, 0xffff0000, v18
        v_lshlrev_b32 v24, 16, v19
        v_and_b32 v25, 0xffff0000, v19
        ''')
        for r in range(22, 26): a(f'v_mul_f32 v{r+4}, {fhex(-LOG2E)}, v{r}')
        for r in range(22, 26): a(f'v_exp_f32 v{r+4}, v{r+4}')
        for r in range(22, 26): a(f'v_add_f32 v{r+4}, 1.0, v{r+4}')
        for r in range(22, 26): a(f'v_rcp_f32 v{r+4}, v{r+4}')
        for r in range(22, 26): a(f'v_mul_f32 v{r}, v{r}, v{r+4}')
        a('v_cvt_pk_bf16_f32 v22, v22, v23\nv_cvt_pk_bf16_f32 v23, v24, v25\nds_write_b64 v20, v[22:23]')
    def sv_frag_addr(self, v):
        self.a(f'''
        v_mul_u32_u24 {v}, {SVS}, {vB4}
        v_lshl_add_u32 {v}, {vG}, 4, {v}
        s_lshl_b32 {sT2}, {sW}, 7
        s_add_u32 {sT2}, {sT2}, {SV}
        v_add_u32 {v}, {sT2}, {v}
        ''')
    def p_pre(self):
        a = self.a
        a('; ================= P pre')
        if self.cfg.get('stopq'):
            self.after_kernarg(); self.tag(); a('s_branch L_exit')
        skip = a.label('nohp'); done = a.label('hpdone')
        a(f's_sub_u32 {sR0}, {sI}, 16\ns_cmp_ge_u32 {sR0}, 4\ns_cbranch_scc1 {skip}')
        vo = self.voff128(6, 6144)
        a(f"""
        s_lshl_b32 {sT0}, {sR0}, 2
        s_and_b32 {sT4}, {sW}, 3
        s_add_u32 {sT0}, {sT0}, {sT4}
        s_mul_i32 {sT0}, {sT0}, {32*6144}
        s_lshr_b32 {sT1}, {sW}, 2
        s_lshl_b32 {sT1}, {sT1}, 10
        s_add_u32 {sT0}, {sT0}, {sT1}
        s_lshl_b32 {sT3}, {sX}, 7
        s_add_u32 {sT0}, {sT0}, {sT3}
        v_lshrrev_b32 v16, 7, v0
        v_and_b32 v17, 127, v0
        v_lshlrev_b32 v18, 10, v16
        v_lshl_add_u32 v18, v17, 1, v18
        s_lshl_b32 {sT2}, {sR0}, 8
        s_lshl_b32 {sT5}, {sT4}, 10
        v_lshlrev_b32 v30, 4, {vL}
        v_lshrrev_b32 v39, 1, v0
        v_and_b32 v39, 3, v39
        v_lshrrev_b32 v37, 3, v0
        v_and_b32 v36, 1, v0
        v_lshlrev_b32 v35, 10, v39
        v_lshl_add_u32 v35, v37, 3, v35
        v_lshl_add_u32 v35, v36, 2, v35
        """)
        self.after_kernarg()
        self.srd(SB, P_C, 4096); self.srd(SC, P_X, 4096); self.srd(SA, P_WMOD, 512 * 6144)
        self.ts('hp_karg')
        a(f"""
        buffer_load_ushort v20, v18, {SB}, {sT2} offen
        buffer_load_dwordx4 v[40:43], v30, {SC}, {sT5} offen
        buffer_load_dword v38, v35, {SC}, {sT3} offen
        """)
        self.dma_groups(SA, vo, [sT0], [sWB], self.nt())
        self.tag()
        ad = self.tr128_addr(6, sWB)
        mq = self.masks_q()
        a(f"""
        v_mul_u32_u24 v10, {QBS}, v16
        v_lshrrev_b32 v11, 5, v17
        v_lshl_add_u32 v10, v11, 6, v10
        v_lshrrev_b32 v11, 2, v17
        v_and_b32 v11, 3, v11
        v_lshl_add_u32 v10, v11, 4, v10
        v_lshrrev_b32 v11, 4, v17
        v_and_b32 v11, 1, v11
        v_lshl_add_u32 v10, v11, 3, v10
        v_and_b32 v11, 3, v17
        v_lshl_add_u32 v10, v11, 1, v10
        v_add_u32 v10, {SV}, v10
        v_mul_u32_u24 v11, {QBS}, {vB4}
        v_lshl_add_u32 v11, {vG}, 4, v11
        s_lshl_b32 {sT0}, {sT4}, 6
        s_add_u32 {sT0}, {sT0}, {SV}
        v_add_u32 v11, {sT0}, v11
        s_lshl_b32 {sT0}, {sW}, 10
        s_add_u32 {sT0}, {sT0}, {RED}
        v_lshrrev_b32 v12, 2, {vT}
        v_lshlrev_b32 v12, 8, v12
        v_lshl_add_u32 v12, {vG}, 6, v12
        v_lshl_add_u32 v12, {vB4}, 4, v12
        v_add_u32 v12, {sT0}, v12
        v_lshlrev_b32 v13, 3, v0
        v_add_u32 v13, {RED}, v13
        v_lshlrev_b32 v14, 3, v39
        v_add_u32 v14, {LS}, v14
        v_lshlrev_b32 v15, 11, v39
        v_lshl_add_u32 v15, v37, 4, v15
        v_lshl_add_u32 v15, v36, 3, v15
        s_lshl_b32 {sT6}, {sR0}, 13
        s_lshl_b32 {sT0}, {sX}, 8
        s_add_u32 {sT6}, {sT6}, {sT0}
        s_add_u32 {sT6}, {sT6}, {WS_H}
        s_lshl_b32 {sT3}, {sT4}, 3
        s_add_u32 {sT3}, {sT3}, {LS}
        v_mov_b32 v50, {sT3}
        s_cmp_eq_u32 {sR0}, 0
        s_cselect_b32 {sT7}, 1.0, 0
        v_mov_b32 v45, {sTAG}
        s_waitcnt vmcnt(6)
        v_lshlrev_b32 v20, 16, v20
        v_mul_f32 v21, {fhex(-LOG2E)}, v20
        v_exp_f32 v21, v21
        s_nop 0
        v_add_f32 v21, 1.0, v21
        v_rcp_f32 v21, v21
        s_nop 0
        v_mul_f32 v20, v20, v21
        v_cvt_pk_bf16_f32 v20, v20, v20
        ds_write_b16 v10, v20
        s_waitcnt vmcnt(5)
        """)
        self.ts('hp_c')
        for k in range(4):
            a(f'v_lshlrev_b32 v{52+2*k}, 16, v{40+k}\nv_and_b32 v{53+2*k}, 0xffff0000, v{40+k}')
        a('v_add_f32 v48, v52, v53\nv_mul_f32 v49, v52, v52\nv_fmac_f32 v49, v53, v53')
        for k in range(54, 60): a(f'v_add_f32 v48, v48, v{k}\nv_fmac_f32 v49, v{k}, v{k}')
        self.allsum(['v48', 'v49'], ['v51', 'v52'])
        a(f"""
        v_mul_f32 v48, {fhex(1/512)}, v48
        v_mul_f32 v49, {fhex(1/512)}, v49
        v_fma_f32 v49, -v48, v48, v49
        v_max_f32 v49, 0, v49
        v_add_f32 v49, {fhex(1e-5)}, v49
        v_rsq_f32 v49, v49
        s_nop 0
        ds_write_b64 v50, v[48:49]
        s_waitcnt lgkmcnt(0)
        """)
        self.ts('hp_ln')
        a('s_barrier\nds_read_b128 v[52:55], v11\ns_waitcnt vmcnt(0)')
        self.ts('hp_loaded')
        self.tr_reads(ad, range(1), 128, 16)
        a('s_waitcnt lgkmcnt(0)')
        for ct in range(4): self.mfma(60+4*ct, 16+4*ct, 52, True)
        for r in range(4): self.sel4(f'v{76+r}', [f'v{60+4*ct+r}' for ct in range(4)], mq)
        a('ds_write_b128 v12, v[76:79]\ns_waitcnt lgkmcnt(0)\ns_barrier')
        fin = a.label('hpfin')
        a(f's_cmp_ge_u32 {sW}, 2\ns_cbranch_scc1 {fin}')
        for ww in range(8): a(f'ds_read_b64 {vr(16+2*ww,2)}, v13 offset:{ww*1024}')
        a("""
        ds_read_b64 v[32:33], v14
        v_lshlrev_b32 v40, 16, v38
        v_and_b32 v41, 0xffff0000, v38
        s_waitcnt lgkmcnt(0)
        v_sub_f32 v40, v40, v32
        v_sub_f32 v41, v41, v32
        v_mul_f32 v40, v40, v33
        v_mul_f32 v41, v41, v33
        """)
        self.tree_add(['v16', 'v18', 'v20', 'v22'])
        self.tree_add(['v17', 'v19', 'v21', 'v23'])
        self.tree_add(['v24', 'v26', 'v28', 'v30'])
        self.tree_add(['v25', 'v27', 'v29', 'v31'])
        a(f"""
        v_add_f32 v24, {sT7}, v24
        v_add_f32 v25, {sT7}, v25
        v_fmac_f32 v16, v40, v24
        v_fmac_f32 v17, v41, v25
        v_cvt_pk_bf16_f32 v44, v16, v17
        buffer_store_dwordx2 v[44:45], v15, {WS}, {sT6} offen sc1
        {fin}:
        s_barrier
        """)
        self.ts('hp_pub')
        a(f's_branch {done}\n{skip}:')
        if self.cfg.get('pfuk', True):
            a(f'''
            s_sub_u32 {sT0}, {sI}, 20
            s_mul_i32 {sT0}, {sT0}, 6
            s_add_u32 {sT0}, {sT0}, {sW}
            s_lshl_b32 {sT0}, {sT0}, 3
            s_lshl_b32 {sT0}, {sT0}, 13
            s_lshl_b32 {sT1}, {sX}, 10
            s_add_u32 {sT0}, {sT0}, {sT1}
            v_lshrrev_b32 v6, 3, {vL}
            v_lshlrev_b32 v6, 13, v6
            v_and_b32 v7, 7, {vL}
            v_lshl_add_u32 v6, v7, 7, v6
            ''')
        self.after_kernarg()
        if self.cfg.get('pfuk', True):
            sk2 = a.label('nouk')
            self.srd(SB, P_WUK, 4 << 20)
            a(f's_cmp_ge_u32 {sW}, 6\ns_cbranch_scc1 {sk2}\nbuffer_load_dword v98, v6, {SB}, {sT0} offen\n{sk2}:')
        self.tag()
        if self.cfg.get('pdelay'):
            a(f's_lshl_b32 {sT0}, {sX}, 8\ns_add_u32 {sT0}, {sT0}, {WS_H + 3*8192}\nv_mov_b32 v5, 0')
            l = self.poll_begin()
            a(f'buffer_load_dwordx2 v[6:7], v5, {WS}, {sT0} offen sc1\ns_waitcnt vmcnt(0)')
            self.tagchk('v8', ['v7'])
            self.poll_end(l, 12, 4, 'v8')
        a(f'{done}:')
        a(f"""
        s_sub_u32 {sR0}, {sI}, 16
        s_lshr_b32 {sR1}, {sR0}, 2
        s_lshl_b32 {sT0}, {sX}, 2
        s_add_u32 {sR1}, {sR1}, {sT0}          ; hp
        s_and_b32 {sR0}, {sR0}, 3              ; bp
        s_mov_b32 {sPLO}, 0x05040100
        s_mov_b32 {sPHI}, 0x07060302
        """)
        self.touch_uv()
        self.dma_ckv_p()
        self.ts('ckv_iss')
        self.srd(SB, P_WUV, 4 << 20)
        a(f"""
        v_lshlrev_b32 v96, 16, {vG}
        v_lshl_add_u32 v96, {vT}, 4, v96
        s_lshl_b32 {sU0}, {sW}, 19
        s_lshl_b32 {sU1}, {sR1}, 8
        s_add_u32 {sU0}, {sU0}, {sU1}
        """)
        self.wuv_at('e', False)
    def wuv_group(self, gi):
        a = self.a
        a(f's_add_u32 {sU1}, {sU0}, {((gi >> 1) * 32 + (gi & 1) * 4) * 8192}')
        for e in range(4):
            n = 4*gi + e
            a(f'buffer_load_dwordx4 {vr(112+4*n,4)}, v96, {SB}, {sU1} offen{self.nt()}')
            if e < 3: a(f's_add_u32 {sU1}, {sU1}, 8192')
    def wuv_at(self, pos, guard=True):
        a = self.a
        g1 = [gi for gi, p in enumerate(self.cfg['gpl']) if p == pos]
        g2 = [gi for gi, p in enumerate(self.cfg['gplhp']) if p == pos]
        if g1 == g2:
            if not g1: return len(g1)
            sk = a.label('nouv')
            if guard: a(f's_cmp_lt_u32 {sI}, 16\ns_cbranch_scc1 {sk}')
            for gi in g1: self.wuv_group(gi)
            a(f'{sk}:')
            return len(g1)
        done = a.label('uvd'); hp = a.label('uvhp')
        if guard: a(f's_cmp_lt_u32 {sI}, 16\ns_cbranch_scc1 {done}')
        a(f's_cmp_lt_u32 {sI}, 20\ns_cbranch_scc1 {hp}')
        for gi in g1: self.wuv_group(gi)
        a(f's_branch {done}\n{hp}:')
        for gi in g2: self.wuv_group(gi)
        a(f'{done}:')
        assert pos not in ('x', 'y')
        return 0
    def wuv_unit(self, k):
        a = self.a
        a(f's_add_u32 {sU1}, {sU0}, {k * 32 * 8192}')
        for e in range(8):
            a(f'buffer_load_dwordx4 {vr(112+32*k+4*e,4)}, v96, {SB}, {sU1} offen{self.nt()}')
            if e < 7: a(f's_add_u32 {sU1}, {sU1}, 8192')
    def q_pre(self):
        a = self.a
        a('; ================= Q pre')
        a(f'''
        s_lshr_b32 {sR1}, {sI}, 2
        s_lshl_b32 {sT0}, {sX}, 2
        s_add_u32 {sR1}, {sR1}, {sT0}          ; hq
        s_and_b32 {sR0}, {sI}, 3               ; cq
        v_lshlrev_b32 v9, 1, {vG}
        v_xor_b32 v10, {vT}, v9
        v_lshlrev_b32 v6, 13, {vG}
        v_lshl_add_u32 v6, v10, 4, v6          ; k=0
        v_xor_b32 v7, 128, v6
        v_add_u32 v8, {2*31744}, v6            ; k=2
        v_add_u32 v9, {3*31744}, v7            ; k=3
        v_add_u32 v7, 31744, v7                ; k=1
        s_lshl_b32 {sU0}, {sW}, 19
        s_lshl_b32 {sU1}, {sR1}, 8
        s_add_u32 {sU0}, {sU0}, {sU1}
        ''')
        self.rot_groups(4, sR0, sU0, 17, sWB, [sT0, sT1, sT2, sT3], [sT4, sT5, sT6, sT7])
        a(f'''
        s_lshl_b32 {sU0}, {sR0}, 20
        s_add_u32 {sU0}, {sU0}, {sU1}
        s_lshl_b32 {sU1}, {sW}, 17
        s_add_u32 {sU0}, {sU0}, {sU1}
        ''')
        self.after_kernarg()
        self.ts('q_karg')
        self.srd(SA, P_WQ, 4 << 20)
        self.dma_groups(SA, ['v6', 'v7', 'v8', 'v9'], [sT0, sT1, sT2, sT3], [sT4, sT5, sT6, sT7], self.nt())
        self.ts('q_iss')
        self.srd(SB, P_WUK, 4 << 20)
        a(f's_lshl_b32 {sU1}, {sW}, 12\ns_add_u32 {sU1}, {sU1}, {SM}')
        self.dma_groups(SB, ['v6', 'v7', 'v8', 'v9'], [sU0], [sU1], self.nt())
        self.tag()
        a(f'''
        v_lshrrev_b32 v8, 2, {vT}
        v_lshl_add_u32 v8, {vG}, 2, v8
        v_and_b32 v9, 7, v8
        v_lshlrev_b32 v9, 5, v9
        v_lshl_add_u32 v8, v8, 8, v9
        v_lshrrev_b32 v9, 1, {vB4}
        v_lshl_add_u32 v8, v9, 4, v8
        v_and_b32 v9, 1, {vB4}
        v_lshl_add_u32 v8, v9, 3, v8
        v_add_u32 v8, {sWB}, v8
        ''')
        for ct in range(1, 8): a(f'v_xor_b32 v{8+ct}, {ct << 5}, v8')
        a(f'''
        v_lshlrev_b32 v152, 11, {vG}
        v_lshl_add_u32 v152, {vT}, 4, v152
        v_mul_u32_u24 v170, 192, {vG}
        v_lshrrev_b32 v171, 3, {vT}
        v_lshl_add_u32 v170, v171, 6, v170
        v_lshl_add_u32 v170, {vB4}, 4, v170
        v_lshrrev_b32 v171, 2, {vT}
        v_and_b32 v171, 1, v171
        v_lshl_add_u32 v170, v171, 3, v170
        v_add_u32 v170, {sWB}, v170
        v_mul_u32_u24 v174, 192, {vB4}
        v_lshl_add_u32 v174, {vG}, 4, v174
        v_add_u32 v174, {sWB}, v174
        s_lshl_b32 {sT3}, {sW}, 8
        s_add_u32 {sT3}, {sT3}, {WS_H}
        s_add_u32 {sT2}, {sWB}, 2048
        v_lshrrev_b32 v156, 2, {vT}
        v_lshlrev_b32 v156, 8, v156
        v_lshl_add_u32 v156, {vG}, 6, v156
        v_lshl_add_u32 v156, {vB4}, 4, v156
        v_add_u32 v156, {sT2}, v156
        v_lshlrev_b32 v157, 2, v0
        v_add_u32 v157, 2048, v157
        v_add_u32 v159, 0x10000, v157          ; regions 4..7
        v_lshrrev_b32 v154, 2, {vL}
        v_and_b32 v154, 3, v154
        v_mul_u32_u24 v154, {QBS}, v154
        v_lshl_add_u32 v154, {vG}, 3, v154
        v_lshl_add_u32 v154, {vB4}, 1, v154
        s_lshl_b32 {sT2}, {sW}, 5
        s_add_u32 {sT2}, {sT2}, {QB}
        v_add_u32 v154, {sT2}, v154
        v_mul_u32_u24 v155, {QBS}, {vB4}
        v_lshl_add_u32 v155, {vG}, 4, v155
        v_add_u32 v155, {QB}, v155
        v_lshlrev_b32 v158, 16, {vB4}
        v_lshl_add_u32 v158, {vG}, 4, v158
        s_lshl_b32 {sT4}, {sR1}, 11
        s_lshl_b32 {sT1}, {sR0}, 9
        s_add_u32 {sT4}, {sT4}, {sT1}
        s_lshl_b32 {sT1}, {sW}, 6
        s_add_u32 {sT4}, {sT4}, {sT1}
        s_add_u32 {sT4}, {sT4}, {WS_Q}
        s_mov_b32 {sT5}, {fhex(SCALE)}
        v_mov_b32 v149, {sTAG}
        v_mov_b32 v151, {sTAG}
        v_and_b32 v5, 7, {vT}
        v_lshlrev_b32 v5, 5, v5
        v_lshlrev_b32 v160, 4, {vG}
        v_xor_b32 v160, v160, v5
        v_lshl_add_u32 v160, {vT}, 8, v160
        v_add_u32 v160, {sU1}, v160
        v_xor_b32 v161, 64, v160
        v_xor_b32 v162, 128, v160
        v_xor_b32 v163, 192, v160
        s_waitcnt vmcnt(4)
        ''')
        self.ts('wq_landed')
        a(f's_add_u32 {sT0}, {sT3}, 8192\ns_add_u32 {sT1}, {sT3}, 16384\ns_add_u32 {sT2}, {sT3}, 24576')
        def hloads():
            for k, so in enumerate((sT3, sT0, sT1, sT2)):
                a(f'buffer_load_dwordx4 {vr(128+4*k,4)}, v152, {WS}, {so} offen sc1')
        atrig = self.cfg.get('atrig', False)
        if not atrig: hloads()
        self.tr_reads([f'v{8+ct}' for ct in range(8)], range(2), 256, 16)
        mq = self.masks_q()
        self.ckv_prep(176)
        a(f's_waitcnt vmcnt({0 if atrig else 4})')
        for st in range(4): a(f'ds_read_b128 {vr(112+4*st,4)}, v{160+st}')
        if atrig:
            sk = a.label('noatrig')
            a(f's_cmp_lg_u32 {sW}, 0\ns_cbranch_scc1 {sk}')
            a(f'''
            v_lshrrev_b32 v168, 3, {vL}
            v_and_b32 v168, 3, v168
            v_lshlrev_b32 v168, 13, v168
            v_and_b32 v169, 7, {vL}
            v_lshl_add_u32 v168, v169, 8, v168
            v_add_u32 v168, {3*2048+248}, v168
            s_mov_b32 {sU0}, {WS_H}
            ''')
            l = self.poll_begin()
            a(f'buffer_load_dwordx2 v[128:129], v168, {WS}, {sU0} offen sc1\ns_waitcnt vmcnt(0)')
            self.tagchk('v153', ['v129'])
            self.poll_end(l, 13, self.cfg['sleepA'], 'v153')
            a(f'{sk}:\ns_barrier')
            self.ts('q_atrig')
            l = self.poll_begin()
            hloads()
            a('s_waitcnt vmcnt(0)')
        else:
            first = a.label('hfirst')
            a(f's_mov_b32 {sCNT}, {self.cfg["limit"]}\ns_branch {first}')
            l = a.label('poll'); a(f'{l}:')
            hloads()
            a(f'{first}:\ns_waitcnt vmcnt(0)')
        self.tagchk('v153', [f'v{128+4*k+o}' for k in range(4) for o in (1, 3)])
        self.poll_end(l, 1, self.cfg['sleepA2'], 'v153')
        self.ts('h_got')
        a(f's_mov_b32 {sT0}, 0x00003f80\ns_mov_b32 {sT1}, 0x3f800000')
        for k in range(4):
            for j, (src, sel) in enumerate(((128+4*k, sT0), (128+4*k, sT1), (130+4*k, sT0), (130+4*k, sT1))):
                a(f'v_dot2_f32_bf16 v{144+j}, v{src}, {sel}, {"0" if k == 0 else f"v{144+j}"}')
        a('v_cvt_pk_bf16_f32 v144, v144, v145\nv_cvt_pk_bf16_f32 v145, v146, v147\nds_write_b64 v170, v[144:145]\ns_waitcnt lgkmcnt(0)')
        a('ds_read_b128 v[128:131], v174\nds_read_b128 v[136:139], v174 offset:64')
        if self.cfg.get('ckvA', True): self.ckv_group(1, 176, 'nt_ckv_q')
        a('s_waitcnt lgkmcnt(0)')
        for ks in range(2):
            for ct in range(8): self.mfma(80+4*ct, 16+4*(ks*8+ct), 128+8*ks, ks == 0)
        self.ts('q_mfma')
        for hf in range(2):
            for r in range(4): self.sel4(f'v{136+4*hf+r}', [f'v{80+16*hf+4*ct+r}' for ct in range(4)], mq)
            a(f'ds_write_b128 v156, {vr(136+4*hf,4)} offset:{hf*1024}')
        a('s_waitcnt lgkmcnt(0)')
        self.ts('q_wr')
        a('s_barrier')
        self.ts('q_bar1')
        if self.cfg.get('ckvB', True): self.ckv_group(2, 176, 'nt_ckv_q')
        for ww in range(8): a(f'ds_read_b32 v{128+ww}, v{157 if ww < 4 else 159} offset:{(ww&3)*16384}')
        a('s_waitcnt lgkmcnt(0)')
        self.tree_add([f'v{128+k}' for k in range(8)])
        a('''
        v_cvt_pk_bf16_f32 v128, v128, v128
        ds_write_b16 v154, v128
        s_waitcnt lgkmcnt(0)
        s_barrier
        ''')
        self.ts('q_bar2')
        for st in range(4): a(f'ds_read_b128 {vr(128+4*st,4)}, v155 offset:{st*64}')
        for st in range(4):
            a(f's_waitcnt lgkmcnt({3-st})')
            self.mfma(144, 112+4*st, 128+4*st, st == 0)
        a(f'''
        v_mul_f32 v144, {sT5}, v144
        v_mul_f32 v145, {sT5}, v145
        v_mul_f32 v146, {sT5}, v146
        v_mul_f32 v147, {sT5}, v147
        v_cvt_pk_bf16_f32 v148, v144, v145
        v_cvt_pk_bf16_f32 v150, v146, v147
        s_mov_b64 exec, {mT4}
        buffer_store_dwordx4 v[148:151], v158, {WS}, {sT4} offen sc1
        s_mov_b64 exec, -1
        ''')
        self.ts('q_pub')
        a('s_barrier')
        for gi in [0, 3]: self.ckv_group(gi, 176, 'nt_ckv_q')
        self.touch_o_prep()
    def att_addr(self):
        a = self.a
        a(f'''
        v_and_b32 v5, 7, {vT}
        v_lshlrev_b32 v5, 5, v5
        v_lshlrev_b32 v244, 4, {vG}
        v_xor_b32 v244, v244, v5
        v_lshl_add_u32 v244, {vT}, 10, v244
        v_xor_b32 v245, 64, v244
        v_xor_b32 v246, 128, v244
        v_xor_b32 v247, 192, v244
        v_add_u32 v248, {QT}, v244
        v_add_u32 v249, {QT}, v245
        v_add_u32 v250, {QT}, v246
        v_add_u32 v251, {QT}, v247
        v_add_u32 v244, {sWB}, v244
        v_add_u32 v245, {sWB}, v245
        v_add_u32 v246, {sWB}, v246
        v_add_u32 v247, {sWB}, v247
        v_lshrrev_b32 v80, 2, {vT}
        v_lshl_add_u32 v80, {vG}, 2, v80
        v_and_b32 v81, 7, v80
        v_lshlrev_b32 v81, 5, v81
        s_lshl_b32 {sT0}, {sW}, 7
        v_lshl_add_u32 v82, {vB4}, 4, {sT0}
        v_xor_b32 v81, v81, v82
        v_lshl_add_u32 v80, v80, 10, v81
        v_lshrrev_b32 v81, 1, {vB4}
        v_lshl_add_u32 v80, v81, 3, v80
        v_xor_b32 v81, 8, v80
        v_xor_b32 v82, 64, v80
        v_xor_b32 v83, 72, v80
        v_add_u32 v100, 0x10000, v80
        v_add_u32 v101, 0x10000, v81
        v_add_u32 v102, 0x10000, v82
        v_add_u32 v103, 0x10000, v83
        v_mov_b32 v240, 0x3f803f80
        v_mov_b32 v241, 0x3f803f80
        v_mov_b32 v242, 0x3f803f80
        v_mov_b32 v243, 0x3f803f80
        v_lshlrev_b32 v84, 4, v0
        v_lshrrev_b32 v85, 2, {vL}
        v_lshlrev_b32 v85, 11, v85
        v_lshl_add_u32 v85, {vB4}, 9, v85
        v_add_u32 v85, 504, v85
        s_lshr_b32 {sT0}, {sW}, 1
        v_and_b32 v86, 127, v0
        v_lshrrev_b32 v87, 1, v86
        s_lshl_b32 {sT1}, {sT0}, 1
        v_xor_b32 v87, {sT1}, v87
        v_lshlrev_b32 v87, 4, v87
        v_and_b32 v86, 1, v86
        v_lshl_add_u32 v86, v86, 3, v87
        s_lshl_b32 {sT1}, {sT0}, 10
        s_add_u32 {sT1}, {sT1}, {QT}
        v_add_u32 v86, {sT1}, v86
        v_xor_b32 v87, 128, v86
        v_lshlrev_b32 v89, 5, {vT}
        s_lshl_b32 {sT1}, {sW}, 2
        s_add_u32 {sT2}, {sT1}, {MX}
        v_add_u32 v88, {sT2}, v89
        s_add_u32 {sT2}, {sT1}, {LS}
        v_add_u32 v91, {sT2}, v89
        v_add_u32 v92, {LS}, v89
        v_add_u32 v89, {MX}, v89
        s_lshl_b32 {sT0}, {sT0}, 10
        s_and_b32 {sT1}, {sW}, 1
        s_lshl_b32 {sT1}, {sT1}, 3
        s_add_u32 {sT0}, {sT0}, {sT1}
        s_add_u32 {sT0}, {sT0}, {PT}
        v_lshl_add_u32 v90, {vL}, 4, {sT0}
        v_lshlrev_b32 v93, 4, {vL}
        v_add_u32 v93, {PT}, v93
        v_lshlrev_b32 v94, 15, {vT}
        v_lshl_add_u32 v94, {vG}, 4, v94
        v_lshlrev_b32 v95, 8, {vT}
        s_lshl_b32 {sT0}, {sBA}, 5
        s_lshl_b32 {sT1}, {sHH}, 4
        s_add_u32 {sT0}, {sT0}, {sT1}          ; row0
        s_lshl_b32 {sR3}, {sT0}, 8
        s_lshl_b32 {sT1}, {sS}, 3
        s_add_u32 {sR3}, {sR3}, {sT1}
        s_add_u32 {sR3}, {sR3}, {WS_FL}
        s_lshl_b32 {sR2}, {sT0}, 5
        s_add_u32 {sR2}, {sR2}, {sS}
        s_lshl_b32 {sR2}, {sR2}, 10
        s_lshl_b32 {sT1}, {sW}, 7
        s_add_u32 {sR2}, {sR2}, {sT1}
        s_add_u32 {sR2}, {sR2}, {WS_D}
        s_lshl_b32 {sT4}, {sBA}, 16
        s_lshl_b32 {sT1}, {sHH}, 15
        s_add_u32 {sT4}, {sT4}, {sT1}
        s_add_u32 {sT4}, {sT4}, {WS_Q}
        s_add_u32 {sT5}, {sT4}, 8192
        s_add_u32 {sT6}, {sT4}, 16384
        s_add_u32 {sT7}, {sT4}, 24576
        ''')
    def wuv_prep(self):
        a = self.a
        self.srd(SB, P_WUV, 4 << 20)
        a(f'''
        v_lshlrev_b32 v96, 16, {vG}
        v_lshl_add_u32 v96, {vT}, 4, v96
        s_lshl_b32 {sU0}, {sW}, 19
        s_lshl_b32 {sU1}, {sR1}, 8
        s_add_u32 {sU0}, {sU0}, {sU1}
        ''')
    def touch_uv(self):
        a = self.a; done = a.label('tuv')
        a(f's_cmp_ge_u32 {sW}, 4\ns_cbranch_scc1 {done}')
        self.srd(SC, P_WUV, 4 << 20)
        a(f"""
        v_lshrrev_b32 v97, 1, {vL}
        v_lshlrev_b32 v97, 13, v97
        v_and_b32 v99, 1, {vL}
        v_lshl_add_u32 v97, v99, 7, v97
        s_lshl_b32 {sT0}, {sR1}, 8
        s_lshl_b32 {sT1}, {sR0}, 20
        s_add_u32 {sT0}, {sT0}, {sT1}
        s_lshl_b32 {sT1}, {sW}, 18
        s_add_u32 {sT0}, {sT0}, {sT1}
        buffer_load_dword v98, v97, {SC}, {sT0} offen
        {done}:
        """)
    def touch_o_prep(self):
        a = self.a
        self.srd(SC, P_WO, 4 << 20)
        a(f"""
        v_lshlrev_b32 v97, 7, {vL}
        s_lshl_b32 {sU0}, {sR1}, 17
        s_lshl_b32 {sU1}, {sR0}, 15
        s_add_u32 {sU0}, {sU0}, {sU1}
        s_lshl_b32 {sU1}, {sW}, 13
        s_add_u32 {sU0}, {sU0}, {sU1}
        """)
    def touch_o(self):
        a = self.a; done = a.label('to')
        a(f's_cmp_ge_u32 {sI}, 16\ns_cbranch_scc1 {done}\ns_cmp_ge_u32 {sW}, 4\ns_cbranch_scc1 {done}')
        a(f'buffer_load_dword v98, v97, {SC}, {sU0} offen\n{done}:')
    def attention(self):
        a = self.a
        a('; ================= attention')
        if self.cfg.get('ctrig', True):
            sk = a.label('notrig'); sq = a.label('qnotrig')
            a(f's_cmp_lt_u32 {sI}, 16\ns_cbranch_scc1 {sq}')
            a(f's_cmp_lg_u32 {sW}, 0\ns_cbranch_scc1 {sk}')
            if self.cfg.get('ptrig', True):
                self.poll_trig('v85', sT4, 176, 2, 'v192')
            else:
                l = self.poll_begin()
                a(f'buffer_load_dwordx2 v[176:177], v85, {WS}, {sT4} offen sc1\ns_waitcnt vmcnt(0)')
                self.tagchk('v192', ['v177'])
                self.poll_end(l, 2, self.cfg['sleepC'], 'v192')
            a(f'{sk}:\ns_barrier')
            self.ts('p_ctrig')
            a(f'{sq}:')
        l = self.poll_begin()
        for n, so in enumerate((sT4, sT5, sT6, sT7)):
            a(f'buffer_load_dwordx4 {vr(176+4*n,4)}, v84, {WS}, {so} offen sc1')
        a('s_waitcnt vmcnt(4)')
        for st in range(16): a(f'ds_read_b128 {vr(16+4*st,4)}, v{244+(st&3)} offset:{(st>>2)*256}')
        a('s_waitcnt vmcnt(0)')
        self.tagchk('v192', [f'v{176+4*n+o}' for n in range(4) for o in (1, 3)])
        self.poll_end(l, 3, self.cfg['sleepC2'], 'v192')
        self.ts('c_got')
        for n in range(4):
            a(f'v_mov_b32 v{177+4*n}, v{178+4*n}')
            a(f'ds_write_b64 v{86 + (n & 1)}, {vr(176+4*n,2)} offset:{n*4096}')
        self.wuv_at('c')
        a('s_waitcnt lgkmcnt(0)\ns_barrier')
        self.ts('b1')
        NB = 8
        for st in range(NB): a(f'ds_read_b128 {vr(196+4*st,4)}, v{248+(st&3)} offset:{(st>>2)*256}')
        if self.cfg.get('pfQo', True): self.touch_o()
        for st in range(16):
            a(f's_waitcnt lgkmcnt({min(16, st+NB) - st - 1})')
            self.mfma(192, 16+4*st, 196+4*(st % NB), st == 0)
            if st + NB < 16:
                s2 = st + NB
                a(f'ds_read_b128 {vr(196+4*(s2%NB),4)}, v{248+(s2&3)} offset:{(s2>>2)*256}')
        self.ts('a_sdone')
        def pva(ks):
            for pp in range(2):
                for T in range(2):
                    d = 16 + 4 * ((ks * 2 + pp) * 2 + T)
                    base = (80 if ks < 2 else 100) + 2*pp + T
                    for hi in range(2):
                        a(f'ds_read_b64_tr_b16 {vr(d+2*hi,2)}, v{base} offset:{(ks & 1)*32768 + hi*16384}')
        pva(0); pva(1)
        self.wuv_at('s')
        a('v_max_f32 v228, v192, v193\nv_max3_f32 v228, v228, v194, v195')
        self.crossrow(['v228'], ['v229'], 'v_max_f32')
        a('ds_write_b32 v88, v228')
        pva(2); pva(3)
        a('s_waitcnt lgkmcnt(15)')
        self.ts('a_preb2')
        a('s_barrier')
        self.ts('a_b2')
        a('ds_read_b128 v[236:239], v89\nds_read_b128 v[232:235], v89 offset:16')
        self.wuv_at('b')
        a("""
        s_waitcnt lgkmcnt(0)
        v_max3_f32 v236, v236, v237, v238
        v_max3_f32 v232, v232, v233, v234
        v_max3_f32 v228, v236, v239, v232
        v_max_f32 v228, v228, v235
        v_sub_f32 v192, v192, v228
        v_sub_f32 v193, v193, v228
        v_sub_f32 v194, v194, v228
        v_sub_f32 v195, v195, v228
        v_exp_f32 v192, v192
        v_exp_f32 v193, v193
        v_exp_f32 v194, v194
        v_exp_f32 v195, v195
        s_nop 0
        v_cvt_pk_bf16_f32 v234, v192, v193
        v_cvt_pk_bf16_f32 v235, v194, v195
        ds_write_b64 v90, v[234:235]
        """)
        self.wuv_at('p')
        self.ts('a_pvaiss')
        a('s_waitcnt lgkmcnt(0)')
        self.ts('a_preb3')
        a('s_barrier')
        self.ts('b3')
        for ks in range(4): a(f'ds_read_b128 {vr(196+4*ks,4)}, v93 offset:{ks*1024}')
        for ks in range(4):
            a(f's_waitcnt lgkmcnt({3-ks})')
            self.mfma(236, 240, 196+4*ks, ks == 0)
            for pp in range(2):
                for T in range(2): self.mfma(212+4*(pp*2+T), 16+4*((ks*2+pp)*2+T), 196+4*ks, ks == 0)
        self.ts('a_pvdone')
        a(f"""
        v_rcp_f32 v232, v236
        v_log_f32 v238, v236
        v_mov_b32 v239, {sTAG}
        v_add_f32 v238, v228, v238
        """)
        for pp in range(2):
            b = 212 + 8*pp
            for k in range(4): a(f'v_pk_mul_f32 {vr(b+2*k,2)}, {vr(b+2*k,2)}, v[232:233] op_sel_hi:[1,0]')
            for k in range(4): a(f'v_cvt_pk_bf16_f32 v{196+4*pp+k}, v{b+2*k}, v{b+2*k+1}')
            off = ' offset:64' if pp else ''
            a(f'buffer_store_dwordx4 {vr(196+4*pp,4)}, v94, {WS}, {sR2} offen{off} sc1')
        self.ts('d_st')
    def d_flag(self):
        a = self.a; sk = a.label('nofl')
        a(f'''
        s_barrier
        s_cmp_lg_u32 {sW}, 0
        s_cbranch_scc1 {sk}
        s_mov_b64 exec, 0xffff
        buffer_store_dwordx2 v[238:239], v95, {WS}, {sR3} offen sc1
        s_mov_b64 exec, -1
        {sk}:
        ''')
        self.ts('d_flag')
    def loader(self, srd, vo, kind, steps=(0, 1, 2, 3)):
        a = self.a
        a(f's_sub_u32 {sU0}, {sW}, 4')
        for st in steps:
            a(f"""
            s_add_u32 {sT0}, {sR0}, {st}
            s_and_b32 {sT0}, {sT0}, 3
            s_lshl_b32 {sT0}, {sT0}, 1
            s_lshr_b32 {sT1}, {sU0}, 1
            s_add_u32 {sT0}, {sT0}, {sT1}          ; region
            s_and_b32 {sT1}, {sU0}, 1
            s_lshl_b32 {sT1}, {sT1}, 3             ; n0
            s_lshl_b32 {sT4}, {sT0}, 14
            s_lshl_b32 {sT2}, {sT1}, 10
            s_add_u32 {sT4}, {sT4}, {sT2}          ; m0
            s_add_u32 {sT5}, {sT4}, 4096
            """)
            if kind == 'uv':
                a(f"""
                s_lshl_b32 {sT2}, {sT0}, 19
                s_lshl_b32 {sT3}, {sT1}, 15
                s_add_u32 {sT2}, {sT2}, {sT3}
                s_lshl_b32 {sT3}, {sR1}, 8
                s_add_u32 {sT2}, {sT2}, {sT3}
                s_add_u32 {sT3}, {sT2}, {4 << 15}
                """)
            else:
                a(f"""
                s_lshl_b32 {sT2}, {sT0}, 7
                s_lshl_b32 {sT3}, {sT1}, 13
                s_add_u32 {sT2}, {sT2}, {sT3}
                s_lshl_b32 {sT3}, {sR1}, 17
                s_add_u32 {sT2}, {sT2}, {sT3}
                s_add_u32 {sT3}, {sT2}, {4 << 13}
                """)
            self.dma_groups(srd, vo, [sT2, sT3], [sT4, sT5], self.nt())
    def perm_unit(self, src, dst):
        a = self.a
        for q in range(4):
            for p in range(4):
                X = src + 8*q + p; Y = src + 8*q + 4 + p
                a(f'v_perm_b32 v{dst+8*p+q}, v{Y}, v{X}, {sPLO}')
                a(f'v_perm_b32 v{dst+8*p+4+q}, v{Y}, v{X}, {sPHI}')
    def p_post(self):
        a = self.a
        a('; ================= P post')
        a('s_barrier')
        ng = self.wuv_at('x', False)
        self.srd(SA, P_WO, 4 << 20)
        vo = self.voff128(6, 1024)
        a(f"""
        s_lshl_b32 s98, {sR1}, 17
        s_lshl_b32 s99, {sW}, 7
        s_add_u32 s98, s98, s99
        """)
        self.rot_groups(4, sR0, 's98', 15, sWB, [sT0, sT1, sT2, sT3], [sT4, sT5, sT6, sT7])
        wf = self.cfg.get('wofirst', 0)
        SR = [sT0, sT1, sT2, sT3]; MR = [sT4, sT5, sT6, sT7]
        if wf: self.dma_groups(SA, vo, SR[:wf], MR[:wf], self.nt())
        a(f's_waitcnt vmcnt({4*ng + 4*wf})')
        self.d_flag()
        ny = self.wuv_at('y', False)
        if wf < 4: self.dma_groups(SA, vo, SR[wf:], MR[wf:], self.nt())
        self.ts('p_ldiss')
        ad = self.tr128_addr(220, sWB)
        a(f"""
        s_lshl_b32 {sT0}, {sR0}, 5
        s_add_u32 {sT0}, {sT0}, {sR1}
        s_lshl_b32 {sT1}, {sT0}, 8
        s_add_u32 {sT1}, {sT1}, {WS_FL}
        s_lshl_b32 {sT2}, {sT0}, 15
        s_lshl_b32 {sT3}, {sW}, 12
        s_add_u32 {sT2}, {sT2}, {sT3}
        s_add_u32 {sT2}, {sT2}, {WS_D}
        s_lshl_b32 {sR2}, {sT0}, 11
        s_lshl_b32 {sT5}, {sW}, 8
        s_add_u32 {sR2}, {sR2}, {sT5}
        s_add_u32 {sR2}, {sR2}, {WS_E}         ; E soff
        v_and_b32 v5, 31, {vL}
        v_lshlrev_b32 v5, 3, v5
        v_lshlrev_b32 v6, 4, {vL}
        s_lshl_b32 {sT0}, {sW}, 11
        s_add_u32 {sT0}, {sT0}, {RED}
        v_lshrrev_b32 v7, 1, {vL}
        v_and_b32 v7, 1, v7
        v_lshlrev_b32 v7, 4, v7
        v_lshl_add_u32 v7, {vL}, 5, v7
        v_add_u32 v7, {sT0}, v7
        v_xor_b32 v8, 16, v7
        s_lshl_b32 {sT0}, {sW}, 3
        s_add_u32 {sT0}, {sT0}, {MX}
        v_mov_b32 v9, {sT0}
        v_lshlrev_b32 v10, 2, v0
        v_add_u32 v10, {RED}, v10
        v_and_b32 v11, 7, {vL}
        v_lshlrev_b32 v11, 3, v11
        v_add_u32 v11, {MX}, v11
        v_lshlrev_b32 v12, 1, v0
        v_add_u32 v12, {OB}, v12
        s_lshl_b32 {sT0}, {sW}, 7
        s_add_u32 {sT0}, {sT0}, {OB}
        v_lshl_add_u32 v13, {vG}, 4, {sT0}
        s_lshl_b32 {sT0}, {sW}, 9
        s_add_u32 {sT0}, {sT0}, {RED2}
        v_lshlrev_b32 v14, 5, {vT}
        v_lshl_add_u32 v14, {vG}, 3, v14
        v_add_u32 v14, {sT0}, v14
        v_lshlrev_b32 v15, 3, {vL}
        v_add_u32 v15, {RED2}, v15
        v_lshlrev_b32 v232, 6, {vG}
        v_lshrrev_b32 v233, 1, {vL}
        v_and_b32 v233, 3, v233
        v_lshl_add_u32 v232, v233, 4, v232
        v_lshrrev_b32 v233, 3, {vL}
        v_and_b32 v233, 1, v233
        v_lshl_add_u32 v232, v233, 3, v232
        v_and_b32 v233, 1, {vL}
        v_lshl_add_u32 v232, v233, 2, v232
        s_lshl_b32 {sT0}, {sW}, 8
        s_add_u32 {sT0}, {sT0}, {WL}
        v_add_u32 v232, {sT0}, v232
        v_lshl_add_u32 v233, {vG}, 4, {sT0}
        v_lshlrev_b32 v234, 6, {vT}
        v_lshl_add_u32 v234, {vG}, 4, v234     ; E voff
        v_mov_b32 v229, {sTAG}
        v_mov_b32 v231, {sTAG}
        """)
        mg = self.masks_g()
        a(f's_waitcnt vmcnt({4*(4-wf)})')
        self.perm_unit(112, 80)
        self.perm_unit(144, 112)
        l = self.poll_begin()
        a(f'buffer_load_dwordx2 v[176:177], v5, {WS}, {sT1} offen sc1\ns_waitcnt vmcnt(0)')
        self.tagchk('v178', ['v177'])
        self.poll_end(l, 4, self.cfg['sleepD'], 'v178')
        self.ts('dfl_got')
        for k in range(4):
            off = f' offset:{k*1024}' if k else ''
            a(f'buffer_load_dwordx4 {vr(180+4*k,4)}, v6, {WS}, {sT2} offen{off} sc1')
        self.tr_reads(ad, range(4), 128, 16)
        a('v_mov_b32 v178, v176')
        for n in (8, 4, 2, 1): a(f'v_max_f32_dpp v178, v178, v178 row_ror:{n} row_mask:0xf bank_mask:0xf')
        a('v_mov_b32 v179, v178\nv_permlane16_swap_b32 v178, v179\nv_max_f32 v178, v178, v179')
        a("""
        v_sub_f32 v176, v176, v178
        v_exp_f32 v176, v176
        s_nop 0
        v_cvt_pk_bf16_f32 v177, v176, v176
        v_and_b32 v176, 0xffff0000, v177
        v_and_b32 v177, 0xffff, v177
        v_mov_b32 v178, v176
        """)
        for n in (8, 4, 2, 1): a(f'v_add_f32_dpp v178, v178, v178 row_ror:{n} row_mask:0xf bank_mask:0xf')
        a('v_mov_b32 v179, v178\nv_permlane16_swap_b32 v178, v179\nv_add_f32 v178, v178, v179\nv_rcp_f32 v203, v178')
        a(f's_lshl_b32 {sT3}, {sW}, 2')
        for k in range(4):
            a(f's_add_u32 {sT0}, {sT3}, {k}')
            a(f'v_readlane_b32 s{16+k}, v177, {sT0}')
            a(f'v_readlane_b32 s{32+k}, v176, {sT0}')
        for k in range(4):
            a(f's_waitcnt vmcnt({3-k})')
            for p in range(4):
                sreg = 180 + 4*k + p
                c0 = '0' if k == 0 else f'v{212+2*p}'; c1 = '0' if k == 0 else f'v{213+2*p}'
                a(f'v_dot2_f32_bf16 v{212+2*p}, v{sreg}, s{16+k}, {c0}')
                a(f'v_dot2_f32_bf16 v{213+2*p}, v{sreg}, s{32+k}, {c1}')
        self.ts('d_got')
        a('ds_write_b128 v7, v[212:215]\nds_write_b128 v8, v[216:219]')
        a('s_waitcnt lgkmcnt(0)\ns_barrier')
        self.ts('p_b1')
        for ww in range(8): a(f'ds_read_b32 v{192+ww}, v10 offset:{ww*2048}')
        a('s_waitcnt lgkmcnt(0)')
        self.tree_add([f'v{192+k}' for k in range(8)])
        a('v_mov_b32 v202, v192') if False else None
        a("""
        v_mul_f32 v192, v192, v203
        v_cvt_pk_bf16_f32 v202, v192, v192
        ds_write_b16 v12, v202
        s_waitcnt lgkmcnt(0)
        ds_read_b128 v[176:179], v13
        ds_read_b128 v[180:183], v13 offset:64
        """)
        self.ts('p_o')
        for k in range(2):
            a(f's_waitcnt lgkmcnt({1-k})')
            for u in range(8): self.mfma(184+4*u, 176+4*k, 80+32*k+4*u, k == 0)
        self.sel4('v216', [f'v{184+4*u}' for u in (0, 2, 4, 6)], mg)
        self.sel4('v217', [f'v{184+4*u}' for u in (1, 3, 5, 7)], mg)
        self.ts('p_uv')
        a('ds_write_b64 v14, v[216:217]\ns_waitcnt lgkmcnt(0)\ns_barrier')
        self.ts('p_b2')
        for ww in range(8): a(f'ds_read_b64 {vr(176+2*ww,2)}, v15 offset:{ww*512}')
        mt = self.masks_t()
        a('s_waitcnt lgkmcnt(0)')
        self.tree_add([f'v{176+2*k}' for k in range(8)])
        self.tree_add([f'v{177+2*k}' for k in range(8)])
        a('v_cvt_pk_bf16_f32 v176, v176, v177\nds_write_b32 v232, v176\ns_waitcnt lgkmcnt(0)')
        for ks in range(4): a(f'ds_read_b128 {vr(180+4*ks,4)}, v233 offset:{ks*64}')
        for ks in range(4):
            a(f's_waitcnt lgkmcnt({3-ks})')
            for ct in range(4): self.mfma(196+4*ct, 16+4*(ks*4+ct), 180+4*ks, ks == 0)
        self.ts('p_omf')
        for r in range(4): self.sel4(f'v{212+r}', [f'v{196+4*ct+r}' for ct in range(4)], mt)
        a(f"""
        v_cvt_pk_bf16_f32 v228, v212, v213
        v_cvt_pk_bf16_f32 v230, v214, v215
        s_mov_b64 exec, {mT4}
        buffer_store_dwordx4 v[228:231], v234, {WS}, {sR2} offen sc1
        s_mov_b64 exec, -1
        """)
        self.ts('e_pub')
    def ffn(self):
        a = self.a
        a('s_waitcnt vmcnt(0)')
        self.d_flag()
        self.srd(SA, P_W1, 512 * 2752)
        vo = self.voff128(6, 2752)
        a(f'''
        s_mul_i32 {sU0}, {sW}, {64*2752}
        s_lshl_b32 {sT2}, {sR1}, 7
        s_add_u32 {sU0}, {sU0}, {sT2}
        s_add_u32 {sT0}, {sU0}, {32*2752}
        s_add_u32 {sT1}, {sWB}, 4096
        ''')
        self.dma_groups(SA, vo, [sU0, sT0], [sWB, sT1], self.nt())
        self.srd(SB, P_W2, 1376 * 1024)
        vo = self.voff128(10, 1024)
        a(f'''
        s_lshl_b32 {sU0}, {sR1}, 16
        s_lshl_b32 {sT2}, {sW}, 7
        s_add_u32 {sU0}, {sU0}, {sT2}
        s_add_u32 {sT0}, {sU0}, 32768
        s_add_u32 {sT1}, {sWB}, 8192
        s_add_u32 {sT2}, {sWB}, 12288
        ''')
        self.dma_groups(SB, vo, [sU0, sT0], [sT1, sT2], self.nt())
        self.srd(SC, P_X, 4096)
        a(f'''
        v_lshlrev_b32 v5, 1, v0
        s_lshl_b32 {sT0}, {sR0}, 10
        buffer_load_ushort v100, v5, {SC}, {sT0} offen
        v_lshrrev_b32 v5, 1, v0
        v_lshlrev_b32 v5, 3, v5
        s_lshl_b32 {sT0}, {sR0}, 13
        s_add_u32 {sT0}, {sT0}, {WS_MR}
        s_add_u32 {sT1}, {sT0}, 4096
        ''')
        ad = self.tr128_addr(8, sWB)
        mt = self.masks_t()
        a(f'''
        s_lshl_b32 {sT2}, {sR0}, 5
        s_lshl_b32 {sT4}, {sT2}, 11
        s_add_u32 {sT4}, {sT4}, {WS_E}
        s_lshl_b32 {sT3}, {sW}, 13
        s_add_u32 {sT5}, {sT4}, {sT3}
        s_add_u32 {sT6}, {sT5}, 4096
        v_and_b32 v12, 31, {vL}
        v_lshlrev_b32 v12, 11, v12
        v_add_u32 v12, 2040, v12
        v_lshlrev_b32 v13, 4, {vL}
        s_lshl_b32 {sT2}, {sW}, 11
        s_add_u32 {sT2}, {sT2}, {RED}
        v_lshl_add_u32 v14, {vL}, 4, {sT2}
        v_lshlrev_b32 v15, 2, v0
        v_add_u32 v15, {RED}, v15
        s_lshl_b32 {sT2}, {sW}, 3
        s_add_u32 {sT2}, {sT2}, {MX}
        v_mov_b32 v220, {sT2}
        v_and_b32 v221, 7, {vL}
        v_lshlrev_b32 v221, 3, v221
        v_add_u32 v221, {MX}, v221
        v_lshrrev_b32 v222, 5, {vL}
        v_lshlrev_b32 v222, 6, v222
        v_lshrrev_b32 v223, 2, {vL}
        v_and_b32 v223, 3, v223
        v_lshl_add_u32 v222, v223, 4, v222
        v_and_b32 v223, 1, {vG}
        v_lshl_add_u32 v222, v223, 3, v222
        v_lshl_add_u32 v222, {vB4}, 1, v222
        s_lshl_b32 {sT2}, {sW}, 8
        s_add_u32 {sT2}, {sT2}, {WL}
        v_add_u32 v222, {sT2}, v222
        v_lshl_add_u32 v223, {vG}, 4, {sT2}
        s_lshl_b32 {sT2}, {sW}, 8
        s_add_u32 {sT2}, {sT2}, {RED2}
        v_lshlrev_b32 v224, 6, {vT}
        v_lshl_add_u32 v224, {vG}, 4, v224
        v_add_u32 v224, {sT2}, v224
        v_lshlrev_b32 v225, 2, {vL}
        v_add_u32 v225, {RED2}, v225
        s_lshl_b32 {sT2}, {sR0}, 3
        s_add_u32 {sT2}, {sT2}, {sW}
        s_mul_i32 {sT2}, {sT2}, {24*512}
        s_lshl_b32 {sT3}, {sR1}, 9
        s_add_u32 {sT2}, {sT2}, {sT3}
        s_add_u32 {sT7}, {sT2}, {WS_F}         ; F soff
        v_lshlrev_b32 v226, 7, {vT}
        v_lshl_add_u32 v226, {vG}, 5, v226     ; F voff
        s_lshl_b32 {sT2}, {sR1}, 6
        v_add_u32 v227, {sT2}, {vL}
        s_movk_i32 {sT3}, 1376
        v_cmp_gt_u32 s[62:63], {sT3}, v227
        v_mov_b32 v141, {sTAG}
        v_mov_b32 v143, {sTAG}
        v_mov_b32 v145, {sTAG}
        v_mov_b32 v147, {sTAG}
        ''')
        a(f'v_and_b32 v6, 1, v0\nv_lshlrev_b32 v6, 4, v6')
        a('s_waitcnt vmcnt(0)\nv_lshlrev_b32 v100, 16, v100')
        self.tr_reads(ad, range(2), 128, 16)
        self.tr_reads(ad, range(2), 128, 48, 8192)
        l = self.poll_begin()
        a(f'''
        buffer_load_dwordx2 v[102:103], v5, {WS}, {sT0} offen sc1
        buffer_load_dwordx2 v[104:105], v5, {WS}, {sT0} offen offset:2048 sc1
        buffer_load_dwordx2 v[106:107], v5, {WS}, {sT1} offen sc1
        s_waitcnt vmcnt(0)
        ''')
        self.tagchk('v208', ['v103', 'v105', 'v107'])
        self.poll_end(l, 5, self.cfg['sleepM'], 'v208')
        for r in (102, 104, 106):
            a(f'v_lshrrev_b32 v{r}, v6, v{r}\nv_lshlrev_b32 v{r}, 16, v{r}')
        a(f's_mov_b32 {sT0}, 0x00003f80\ns_mov_b32 {sT1}, 0x3f800000')
        sk = a.label('noet')
        a(f's_cmp_lg_u32 {sW}, 0\ns_cbranch_scc1 {sk}')
        l = self.poll_begin()
        a(f'buffer_load_dwordx2 v[176:177], v12, {WS}, {sT4} offen sc1\ns_waitcnt vmcnt(0)')
        self.tagchk('v178', ['v177'])
        self.poll_end(l, 6, self.cfg['sleepE'], 'v178')
        a(f'{sk}:\ns_barrier')
        self.ts('e_trig')
        l = self.poll_begin()
        for k in range(8):
            so = sT5 if k < 4 else sT6
            off = f' offset:{(k&3)*1024}' if k & 3 else ''
            a(f'buffer_load_dwordx4 {vr(176+4*k,4)}, v13, {WS}, {so} offen{off} sc1')
        for k in range(8):
            a(f's_waitcnt vmcnt({7-k})')
            hf = k & 1; b = 176 + 4*k; acc = 112 + 4*hf
            for j, (src, sel) in enumerate(((b, sT0), (b, sT1), (b+2, sT0), (b+2, sT1))):
                c = '0' if k < 2 else f'v{acc+j}'
                a(f'v_dot2_f32_bf16 v{acc+j}, v{src}, {sel}, {c}')
            if k == 0: a(f'v_xor_b32 v208, {sTAG}, v{b+1}\nv_bitop3_b32 v208, v208, v{b+3}, {sTAG} bitop3:0xf6')
            else:
                for o in (1, 3): a(f'v_bitop3_b32 v208, v208, v{b+o}, {sTAG} bitop3:0xf6')
        self.poll_end(l, 7, 1, 'v208')
        self.ts('e_got')
        a('''
        ds_write_b128 v14, v[112:115]
        ds_write_b128 v14, v[116:119] offset:1024
        s_waitcnt lgkmcnt(0)
        s_barrier
        ''')
        self.ts('f_b1')
        for ww in range(8): a(f'ds_read_b32 v{112+ww}, v15 offset:{ww*2048}')
        a('s_waitcnt lgkmcnt(0)')
        self.tree_add([f'v{112+k}' for k in range(8)])
        a('v_fma_f32 v100, v102, v112, v100\nv_mov_b32 v120, v100\nv_mul_f32 v121, v100, v100')
        self.allsum(['v120', 'v121'], ['v122', 'v123'])
        a('ds_write_b64 v220, v[120:121]\ns_waitcnt lgkmcnt(0)\ns_barrier')
        self.ts('f_b2')
        a('ds_read_b64 v[112:113], v221\ns_waitcnt lgkmcnt(0)')
        for d in ('quad_perm:[1,0,3,2]', 'quad_perm:[2,3,0,1]', 'row_half_mirror'):
            for r in (112, 113): a(f'v_add_f32_dpp v{r}, v{r}, v{r} {d} row_mask:0xf bank_mask:0xf')
        a(f'''
        v_mul_f32 v112, {fhex(1/512)}, v112
        v_mul_f32 v113, {fhex(1/512)}, v113
        v_fma_f32 v113, -v112, v112, v113
        v_max_f32 v113, 0, v113
        v_add_f32 v113, {fhex(1e-5)}, v113
        v_rsq_f32 v113, v113
        v_sub_f32 v114, v100, v112
        v_mul_f32 v114, v114, v113
        v_add_f32 v115, v114, v104
        v_fmac_f32 v115, v114, v106
        v_cvt_pk_bf16_f32 v115, v115, v115
        ds_write_b16 v222, v115
        s_waitcnt lgkmcnt(0)
        ds_read_b128 v[112:115], v223
        ds_read_b128 v[116:119], v223 offset:64
        ''')
        for ks in range(2):
            a(f's_waitcnt lgkmcnt({1-ks})')
            for ct in range(4): self.mfma(120+4*ct, 16+4*(ks*4+ct), 112+4*ks, ks == 0)
        for r in range(4): self.sel4(f'v{136+r}', [f'v{120+4*ct+r}' for ct in range(4)], mt)
        a(f'''
        s_mov_b64 exec, {mT4}
        ds_write_b128 v224, v[136:139]
        s_mov_b64 exec, -1
        s_waitcnt lgkmcnt(0)
        s_barrier
        ''')
        self.ts('f_b3')
        for ww in range(8): a(f'ds_read_b32 v{112+ww}, v225 offset:{ww*256}')
        a('s_waitcnt lgkmcnt(0)')
        self.tree_add([f'v{112+k}' for k in range(8)])
        a('''
        v_max_f32 v112, 0, v112
        v_cndmask_b32 v112, 0, v112, s[62:63]
        v_cvt_pk_bf16_f32 v112, v112, v112
        ds_write_b16 v222, v112 offset:128
        s_waitcnt lgkmcnt(0)
        ds_read_b128 v[112:115], v223 offset:128
        ds_read_b128 v[116:119], v223 offset:192
        ''')
        for ks in range(2):
            a(f's_waitcnt lgkmcnt({1-ks})')
            for ct in range(4): self.mfma(120+4*ct, 48+4*(ks*4+ct), 112+4*ks, ks == 0)
        for r, d in enumerate((140, 142, 144, 146)): self.sel4(f'v{d}', [f'v{120+4*ct+r}' for ct in range(4)], mt)
        a(f'''
        s_mov_b64 exec, {mT4}
        buffer_store_dwordx4 v[140:143], v226, {WS}, {sT7} offen sc1
        buffer_store_dwordx4 v[144:147], v226, {WS}, {sT7} offen offset:16 sc1
        s_mov_b64 exec, -1
        ''')
        self.ts('f_pub')
    def final(self):
        a = self.a
        a('s_waitcnt vmcnt(0)')
        self.d_flag()
        a(f's_lshl_b32 {sR1}, {sX}, 2\ns_add_u32 {sR1}, {sR1}, {sR0}')
        self.silu_addr()
        self.srd(SB, P_C, 4096)
        a(f'buffer_load_dwordx2 v[18:19], v16, {SB}, 0 offen')
        self.srd(SA, P_WMOD, 512 * 6144)
        vo = self.voff128(6, 6144)
        a(f'''
        s_mul_i32 {sU0}, {sW}, {64*6144}
        s_lshl_b32 {sT2}, {sR1}, 7
        s_add_u32 {sU0}, {sU0}, {sT2}
        s_add_u32 {sU0}, {sU0}, 2048
        s_add_u32 {sT0}, {sU0}, {32*6144}
        s_add_u32 {sT1}, {sWB}, 4096
        ''')
        self.dma_groups(SA, vo, [sU0, sT0], [sWB, sT1], self.nt())
        self.sv_frag_addr('v12')
        ad = self.tr128_addr(8, sWB)
        a('s_waitcnt vmcnt(8)')
        self.silu_calc()
        a('s_waitcnt lgkmcnt(0)\ns_barrier')
        a('ds_read_b128 v[112:115], v12\nds_read_b128 v[116:119], v12 offset:64\ns_waitcnt vmcnt(0)')
        self.tr_reads(ad, range(2), 128, 24)
        a('s_waitcnt lgkmcnt(0)')
        for ks in range(2):
            for ct in range(4): self.mfma(120+4*ct, 24+4*(ks*4+ct), 112+4*ks, ks == 0)
        a(f'''
        s_lshl_b32 {sT0}, {sW}, 10
        s_add_u32 {sT0}, {sT0}, {RED}
        v_lshlrev_b32 v5, 6, {vG}
        v_lshl_add_u32 v5, {vT}, 4, v5
        v_add_u32 v5, {sT0}, v5
        s_mov_b64 exec, {mT4}
        ''')
        for ct in range(4): a(f'ds_write_b128 v5, {vr(120+4*ct,4)} offset:{ct*256}')
        a('s_mov_b64 exec, -1\ns_waitcnt lgkmcnt(0)\ns_barrier')
        sk = a.label('mrskip')
        a(f's_cmp_ge_u32 {sW}, 2\ns_cbranch_scc1 {sk}')
        a(f'v_lshlrev_b32 v5, 3, v0\nv_add_u32 v5, {RED}, v5')
        for ww in range(8): a(f'ds_read_b64 {vr(112+2*ww,2)}, v5 offset:{ww*1024}')
        a(f'''
        v_lshrrev_b32 v6, 1, v0
        v_and_b32 v6, 3, v6
        v_lshlrev_b32 v6, 13, v6
        v_lshrrev_b32 v7, 3, v0
        v_lshl_add_u32 v6, v7, 4, v6
        v_and_b32 v7, 1, v0
        v_lshl_add_u32 v6, v7, 3, v6
        s_lshl_b32 {sT0}, {sR1}, 8
        s_add_u32 {sT0}, {sT0}, {WS_MR}
        s_waitcnt lgkmcnt(0)
        ''')
        self.tree_add([f'v{112+2*k}' for k in range(8)])
        self.tree_add([f'v{113+2*k}' for k in range(8)])
        a(f'''
        v_cvt_pk_bf16_f32 v112, v112, v113
        v_mov_b32 v113, {sTAG}
        buffer_store_dwordx2 v[112:113], v6, {WS}, {sT0} offen sc1
        {sk}:
        ''')
        self.ts('mr_pub')
        a(f's_cmp_lg_u32 {sW}, 0\ns_cbranch_scc1 L_exit')
        self.srd(SC, P_X, 4096)
        self.srd(SA, P_OUT, 4096)
        a(f'''
        v_and_b32 v5, 31, {vL}
        v_lshlrev_b32 v6, 2, v5
        s_lshl_b32 {sT0}, {sR0}, 10
        s_lshl_b32 {sT1}, {sX}, 7
        s_add_u32 {sR2}, {sT0}, {sT1}
        buffer_load_dword v100, v6, {SC}, {sR2} offen
        v_lshlrev_b32 v7, 3, v5
        s_lshl_b32 {sT0}, {sR0}, 13
        s_lshl_b32 {sT1}, {sX}, 8
        s_add_u32 {sT0}, {sT0}, {sT1}
        s_add_u32 {sT0}, {sT0}, {WS_MR}
        s_add_u32 {sT1}, {sT0}, {3*2048}
        ''')
        a(f'''
        s_mov_b32 {sU0}, {sT0}
        s_mov_b32 {sU1}, {sT1}
        v_lshrrev_b32 v8, 5, {vL}
        v_lshl_add_u32 v9, v8, 11, v7
        s_lshl_b32 {sT7}, {sR0}, 16
        s_add_u32 {sT7}, {sT7}, {WS_E}
        s_lshl_b32 {sT1}, {sX}, 8
        s_add_u32 {sT0}, {sT7}, {sT1}
        v_lshlrev_b32 v11, 9, v8
        v_lshl_add_u32 v11, v5, 4, v11
        v_lshlrev_b32 v12, 11, v5
        v_add_u32 v12, 2040, v12
        v_min_u32 v13, 21, v5
        v_lshlrev_b32 v13, 9, v13
        v_add_u32 v13, 504, v13
        s_lshl_b32 {sT4}, {sR0}, 3
        s_add_u32 {sT4}, {sT4}, {sX}
        s_mul_i32 {sT4}, {sT4}, {24*512}
        s_add_u32 {sT4}, {sT4}, {WS_F}
        s_add_u32 {sT5}, {sT4}, 4096
        s_add_u32 {sT6}, {sT4}, 8192
        ''')
        l = self.poll_begin()
        a(f'buffer_load_dwordx2 v[112:113], v12, {WS}, {sT7} offen sc1\ns_waitcnt vmcnt(0)')
        self.tagchk('v10', ['v113'])
        self.poll_end(l, 12, self.cfg['sleepE'] + 2, 'v10')
        l = self.poll_begin()
        a(f'''
        buffer_load_dwordx2 v[102:103], v7, {WS}, {sU0} offen sc1
        buffer_load_dwordx2 v[104:105], v7, {WS}, {sU1} offen sc1
        s_mov_b32 {sT1}, {sT0}
        ''')
        for k in range(16):
            a(f'buffer_load_dwordx2 {vr(112+2*k,2)}, v9, {WS}, {sT1} offen sc1')
            if k < 15: a(f's_add_u32 {sT1}, {sT1}, 4096')
        a('s_waitcnt vmcnt(0)')
        self.tagchk('v10', ['v103', 'v105'] + [f'v{113+2*k}' for k in range(16)])
        self.poll_end(l, 9, 2, 'v10')
        a('''
        v_lshlrev_b32 v146, 16, v100
        v_and_b32 v147, 0xffff0000, v100
        v_lshlrev_b32 v152, 16, v102
        v_and_b32 v153, 0xffff0000, v102
        v_lshlrev_b32 v148, 16, v104
        v_and_b32 v149, 0xffff0000, v104
        ''')
        self.ts('fe_got')
        a(f's_mov_b32 {sT0}, 0x00003f80\ns_mov_b32 {sT1}, 0x3f800000')
        for k in range(16):
            c0 = '0' if k == 0 else 'v144'; c1 = '0' if k == 0 else 'v145'
            a(f'v_dot2_f32_bf16 v144, v{112+2*k}, {sT0}, {c0}\nv_dot2_f32_bf16 v145, v{112+2*k}, {sT1}, {c1}')
        a('''
        v_mov_b32 v150, v144
        v_mov_b32 v151, v145
        s_nop 0
        v_permlane32_swap_b32 v144, v150
        v_permlane32_swap_b32 v145, v151
        v_add_f32 v144, v144, v150
        v_add_f32 v145, v145, v151
        v_fmac_f32 v146, v152, v144
        v_fmac_f32 v147, v153, v145
        ''')
        if self.cfg.get('ftrig', False):
            l = self.poll_begin()
            a(f'buffer_load_dwordx2 v[112:113], v13, {WS}, {sT4} offen sc1\ns_waitcnt vmcnt(0)')
            self.tagchk('v10', ['v113'])
            self.poll_end(l, 14, self.cfg['sleepF'], 'v10')
        l = self.poll_begin()
        for k in range(11):
            so = (sT4, sT5, sT6)[k >> 2]
            off = f' offset:{(k&3)*1024}' if k & 3 else ''
            a(f'buffer_load_dwordx4 {vr(176+4*k,4)}, v11, {WS}, {so} offen{off} sc1')
        a('s_waitcnt vmcnt(0)')
        self.tagchk('v10', [f'v{176+4*k+o}' for k in range(11) for o in (1, 3)])
        self.poll_end(l, 10, self.cfg['sleepF'], 'v10')
        self.tree_add([f'v{176+4*k}' for k in range(11)])
        self.tree_add([f'v{178+4*k}' for k in range(11)])
        a(f'''
        v_mov_b32 v150, v176
        v_mov_b32 v151, v178
        s_nop 0
        v_permlane32_swap_b32 v176, v150
        v_permlane32_swap_b32 v178, v151
        v_add_f32 v176, v176, v150
        v_add_f32 v178, v178, v151
        v_fmac_f32 v146, v148, v176
        v_fmac_f32 v147, v149, v178
        v_cvt_pk_bf16_f32 v146, v146, v147
        s_mov_b32 exec_hi, 0
        buffer_store_dword v146, v6, {SA}, {sR2} offen
        s_mov_b64 exec, -1
        ''')
        self.ts('out_st')
    def epoch_update(self):
        a = self.a
        a(f's_cmp_lg_u32 {sW}, 0\ns_cbranch_scc1 L_exit')
        a(f'v_and_b32 v5, 7, {vL}\nv_lshlrev_b32 v5, 15, v5\nv_add_u32 v5, 2040, v5\ns_mov_b32 {sT0}, {WS_E}')
        l = self.poll_begin()
        a(f'buffer_load_dwordx2 v[6:7], v5, {WS}, {sT0} offen sc1\ns_waitcnt vmcnt(0)')
        self.tagchk('v8', ['v7'])
        self.poll_end(l, 11, 8, 'v8')
        a(f'''
        s_add_u32 {sT0}, {sEP}, 1
        v_mov_b32 v6, {sT0}
        v_mov_b32 v5, 0
        s_mov_b64 exec, 1
        buffer_store_dword v6, v5, {WS}, 0 offen sc1
        s_mov_b64 exec, -1
        ''')
    def build(self):
        a = self.a
        self.prologue()
        self.p_pre()
        a('s_branch L_att\nL_qpre:')
        self.q_pre()
        a('L_att:')
        self.att_addr()
        self.attention()
        a(f's_cmp_lt_u32 {sI}, 16\ns_cbranch_scc1 L_qpost')
        self.p_post()
        a('s_branch L_exit\nL_qpost:')
        a(f'''
        s_lshr_b32 {sT0}, {sI}, 2
        s_and_b32 {sR0}, {sI}, 3
        s_cmp_eq_u32 {sT0}, 3
        s_cbranch_scc1 L_final
        s_lshl_b32 {sR1}, {sT0}, 3
        s_add_u32 {sR1}, {sR1}, {sX}
        s_cmp_ge_u32 {sR1}, 22
        s_cbranch_scc1 L_idle
        ''')
        self.ffn()
        a('s_branch L_exit\nL_final:')
        self.final()
        a('s_branch L_exit\nL_idle:')
        a('s_waitcnt vmcnt(0)')
        self.d_flag()
        a(f's_cmp_eq_u32 s2, {7 + 8*11}\ns_cbranch_scc0 L_exit')
        self.epoch_update()
        a('s_branch L_exit')
        for code in self.failsites:
            a(f'L_fail_{code}:\ns_mov_b32 {sT0}, {code}\ns_branch L_fail')
        a(f'''
        L_fail:
        s_mov_b32 s12, s{P_DBG}
        s_mov_b32 s13, s{P_DBG+1}
        s_mov_b32 s14, 256
        s_mov_b32 s15, 0x00020000
        s_mov_b64 exec, 1
        s_lshl_b32 {sT1}, {sT0}, 2
        v_mov_b32 v5, {sT1}
        v_mov_b32 v6, s2
        v_add_u32 v6, 1000, v6
        buffer_store_dword v6, v5, s[12:15], 0 offen
        s_mov_b64 exec, -1
        L_exit:
        ''')
        self.ts('end')
        if self.cfg['ts']:
            sk = a.label('nots')
            a(f's_cmp_lg_u32 {sW}, {self.cfg["tswave"]}\ns_cbranch_scc1 {sk}')
            a(f's_waitcnt lgkmcnt(0)\ns_mov_b64 exec, 1\ns_lshl_b32 {sT0}, s2, 6\ns_add_u32 {sT0}, {sT0}, {WS_TS}\nv_mov_b32 v5, 0')
            for k in range(len(TSREG)):
                a(f'v_mov_b32 v6, s{TSREG[k]}\nbuffer_store_dword v6, v5, {WS}, {sT0} offen offset:{4*k}')
            a(f'{sk}:')
        a('s_waitcnt vmcnt(0) lgkmcnt(0)\nL_end:\ns_endpgm')
        return a.finish()
HEADER = open('adaLN_cond__compressed_kv_cla__dense_activation_relu__decode.s.ref').read().split('; Override launch')[0]
def generate(cfg):
    g = Gen(cfg)
    body = g.build()
    init = ''
    if g.cfg['ts']:
        init = ''.join(f'    s_mov_b32 s{r}, 0\n' for r in TSREG[:10])
    txt = HEADER + f'''; @launch grid=(256,1,1) block=(512,1,1) lds={LDS_BYTES}
.amdgcn_target "amdgcn-amd-amdhsa--gfx950"
.text
.globl {KNAME}
.p2align 8
.type {KNAME},@function
{KNAME}:
{init}{body}.section .rodata,"a"
.p2align 6
.amdhsa_kernel {KNAME}
  .amdhsa_next_free_vgpr 256
  .amdhsa_next_free_sgpr 102
  .amdhsa_accum_offset 256
  .amdhsa_group_segment_fixed_size 0
  .amdhsa_kernarg_size 112
  .amdhsa_user_sgpr_count 2
  .amdhsa_user_sgpr_kernarg_segment_ptr 1
  .amdhsa_system_sgpr_workgroup_id_x 1
.end_amdhsa_kernel
'''
    return txt, g
if __name__ == '__main__':
    cfg = json.loads(sys.argv[2]) if len(sys.argv) > 2 else {}
    txt, g = generate(cfg)
    open(sys.argv[1], 'w').write(txt)
    json.dump(dict(ts=g.tsnames, slot=(g.cfg.get('tsmap') or TSSLOT), gen='g'), open(sys.argv[1] + '.json', 'w'))
    print('written', sys.argv[1], 'lines', txt.count('\n'), 'nops padded', g.a.npad)
```

```python
import sys, json, struct
from asmlib import Asm
KNAME = 'adaLN_cond__compressed_kv_cla__dense_activation_relu__decode_kernel'
CFG = dict(codepf=True, ptrig=False, gpl=['e','e','c','b'], gplhp=['c','s','b','p'], wofirst=2, wo_pre=0, pthr=0, ckvsplit=False, ts=False, nt=False, nt_ckv_p=False, nt_ckv_q=True, limit=20000,
           sleepA=1, sleepA2=1, ckvB=False, sleepM=16, sleepC2=1, ftrig=False, sleepC=1, sleepD=1, sleepE=1, sleepF=1, tswave=0)
WS_H  = 0x500000
WS_MR = 0x510000
WS_Q  = 0x10000
WS_FL = 0x50000
WS_E  = 0x60000
WS_F  = 0xA0000
WS_D  = 0x100000
WS_TS = 0x600000
WS_SIZE = 0x700000
SM   = 131072
QT   = SM
RED  = SM
PT   = SM + 16384
WL   = PT
MX   = SM + 20480
LS   = SM + 20992
SV   = SM + 21504
QB   = SM + 25856
OB   = SM + 27136
RED2 = SM + 28160
LDS_BYTES = 163840
SVS = 1088
QBS = 320
TAGMUL = 0x9E3779B1
LOG2E = 1.4426950408889634
SCALE = (128 ** -0.5) * LOG2E
def fhex(x): return '0x%08x' % struct.unpack('<I', struct.pack('<f', x))[0]
sX, sI, sW, sTAG, sEP = 's3', 's4', 's5', 's6', 's7'
WS = 's[8:11]'; SA = 's[12:15]'; SB = 's[44:47]'; SC = 's[48:51]'
P_X, P_CKV, P_WQ, P_WUK, P_WUV, P_WO, P_W1, P_W2, P_C, P_WMOD, P_OUT, P_DBG, P_WS = 16, 18, 20, 22, 24, 26, 30, 32, 34, 36, 38, 40, 42
sWB = 's52'
sT0, sT1, sT2, sT3 = 's53', 's54', 's55', 's56'
sT4, sT5, sT6, sT7 = 's72', 's73', 's74', 's75'
sPLO, sPHI = 's57', 's58'
sCNT = 's59'
mT4 = 's[60:61]'
sU0, sU1 = 's62', 's63'
sCH, sBA, sS, sHH = 's64', 's65', 's66', 's67'
sR0, sR1, sR2, sR3 = 's68', 's69', 's70', 's71'
MK = 96
TSREG = [76,78,80,82,84,86,88,90,92,94,28,0]
TSSLOT = dict(start=0, hp_loaded=1, hp_pub=2, wq_landed=1, h_got=2, q_pub=3, ckv_iss=3, c_got=4, b1=5, b3=6, d_st=7, d_flag=8,
              dfl_got=9, d_got=10, e_pub=11, e_trig=9, e_got=10, f_pub=11, mr_pub=9, fe_got=10, out_st=11)
vL, vG, vT, vB4 = 'v1', 'v2', 'v3', 'v4'
def vr(a, n=1): return f'v{a}' if n == 1 else f'v[{a}:{a+n-1}]'
class Gen:
    def __init__(self, cfg):
        self.cfg = dict(CFG); self.cfg.update(cfg)
        self.a = Asm(); self.tsnames = []; self.failsites = []
    def ts(self, name):
        if not self.cfg['ts']: return
        slots = self.cfg.get('tsmap') or TSSLOT
        if name not in slots: return
        r = TSREG[slots[name]]
        if name not in self.tsnames: self.tsnames.append(name)
        self.a(f's_memrealtime s[{r}:{r+1}]')
    def srd(self, quad, ptr, size):
        q = int(quad[2:quad.index(':')])
        self.a(f's_mov_b32 s{q}, s{ptr}\ns_mov_b32 s{q+1}, s{ptr+1}\ns_mov_b32 s{q+2}, {size}\ns_mov_b32 s{q+3}, 0x00020000')
    def nt(self, key='nt'): return ' nt' if self.cfg[key] else ''
    def poll_begin(self):
        l = self.a.label('poll')
        self.a(f's_mov_b32 {sCNT}, {self.cfg["limit"]}\n{l}:')
        return l
    def poll_end(self, l, code, sleep, vacc):
        a = self.a; ok = a.label('ok')
        if code not in self.failsites: self.failsites.append(code)
        a(f'v_cmp_ne_u32 vcc, 0, {vacc}')
        a(f's_cbranch_vccz {ok}')
        a(f's_sub_u32 {sCNT}, {sCNT}, 1')
        a(f's_cbranch_scc1 L_fail_{code}')
        if sleep: a(f's_sleep {sleep}')
        a(f's_branch {l}')
        a(f'{ok}:')
    def poll_trig(self, voff, soff, ra, code, vacc):
        a = self.a
        if code not in self.failsites: self.failsites.append(code)
        l = a.label('pt'); ok = a.label('ptok')
        ld = lambda r: a(f'buffer_load_dwordx2 {vr(r,2)}, {voff}, {WS}, {soff} offen sc1')
        a(f's_mov_b32 {sCNT}, {self.cfg["limit"]}')
        ld(ra)
        a(f'{l}:')
        ld(ra+2)
        a(f's_waitcnt vmcnt(1)\nv_cmp_ne_u32 vcc, {sTAG}, v{ra+1}\ns_cbranch_vccz {ok}')
        ld(ra)
        a(f's_waitcnt vmcnt(1)\nv_cmp_ne_u32 vcc, {sTAG}, v{ra+3}\ns_cbranch_vccz {ok}')
        a(f's_sub_u32 {sCNT}, {sCNT}, 1\ns_cbranch_scc1 L_fail_{code}\ns_branch {l}\n{ok}:')
    def tagchk(self, vacc, regs):
        a = self.a
        for k, r in enumerate(regs):
            if k == 0: a(f'v_xor_b32 {vacc}, {sTAG}, {r}')
            else: a(f'v_bitop3_b32 {vacc}, {vacc}, {r}, {sTAG} bitop3:0xf6')
    def crossrow(self, regs, tmp, op):
        a = self.a
        for sw in ('v_permlane16_swap_b32', 'v_permlane32_swap_b32'):
            for r, t in zip(regs, tmp): a(f'v_mov_b32 {t}, {r}')
            for r, t in zip(regs, tmp): a(f'{sw} {r}, {t}')
            for r, t in zip(regs, tmp): a(f'{op} {r}, {r}, {t}')
    def allsum(self, regs, tmp, op='v_add_f32'):
        a = self.a
        for n in (8, 4, 2, 1):
            for r in regs: a(f'{op}_dpp {r}, {r}, {r} row_ror:{n} row_mask:0xf bank_mask:0xf')
        self.crossrow(regs, tmp, op)
    def ckv_prep(self, v):
        a = self.a
        self.srd(SA, P_CKV, 16 << 20)
        a(f'v_lshlrev_b32 v{v}, 4, {vL}')
        for k in range(1, 8): a(f'v_xor_b32 v{v+k}, {k << 5}, v{v}')
    def ckv_group(self, gi, v, ntkey):
        a = self.a
        a(f's_add_u32 {sU1}, {sWB}, {gi*4096}\ns_mov_b32 m0, {sU1}\ns_add_u32 {sU0}, {sCH}, {sU1}')
        for k in range(4):
            n = 4*gi + k
            off = f' offset:{k*1024}' if k else ''
            a(f'buffer_load_dwordx4 v{v + (n & 7)}, {SA}, {sU0} offen{off}{self.nt(ntkey)} lds')
    def dma_ckv_p(self):
        a = self.a
        thr = self.cfg.get('pthr', 2)
        self.srd(SA, P_CKV, 16 << 20)
        a(f'v_lshlrev_b32 v6, 4, {vL}')
        for k in range(1, 8): a(f'v_xor_b32 v{6+k}, {k << 5}, v6')
        for n in range(16):
            if n % 4 == 0:
                a(f's_add_u32 {sT1}, {sWB}, {(n>>2)*4096}')
                a(f's_mov_b32 m0, {sT1}')
                a(f's_add_u32 {sT0}, {sCH}, {sT1}')
            off = f' offset:{(n & 3)*1024}' if n & 3 else ''
            a(f'buffer_load_dwordx4 v{6 + (n & 7)}, {SA}, {sT0} offen{off}{self.nt("nt_ckv_p")} lds')
            if thr and n == thr - 1: a('s_waitcnt vmcnt(0)')
    def dma_groups(self, srd, voff4, sregs, mregs, nt):
        a = self.a
        for sr, mr in zip(sregs, mregs):
            a(f's_mov_b32 m0, {mr}\ns_nop 0')
            for k in range(4):
                off = f' offset:{k*1024}' if k else ''
                a(f'buffer_load_dwordx4 {voff4[k]}, {srd}, {sr} offen{off}{nt} lds')
    def rot_groups(self, ng, rot, sbase, step_log2, mbase, sregs, mregs, tmp=sCNT):
        a = self.a
        for j in range(ng):
            if rot is None:
                a(f's_add_u32 {sregs[j]}, {sbase}, {j << step_log2}')
                a(f's_add_u32 {mregs[j]}, {mbase}, {j*4096}')
            else:
                a(f's_add_u32 {tmp}, {rot}, {j}\ns_and_b32 {tmp}, {tmp}, {ng-1}')
                a(f's_lshl_b32 {sregs[j]}, {tmp}, {step_log2}\ns_add_u32 {sregs[j]}, {sregs[j]}, {sbase}')
                a(f's_lshl_b32 {mregs[j]}, {tmp}, 12\ns_add_u32 {mregs[j]}, {mregs[j]}, {mbase}')
    def voff128(self, v, rowstride):
        a = self.a
        a(f'''
        v_lshrrev_b32 v{v}, 3, {vL}
        v_mul_u32_u24 v{v}, {rowstride}, v{v}
        v_and_b32 v{v+1}, 7, {vL}
        v_lshlrev_b32 v{v+2}, 1, {vG}
        v_xor_b32 v{v+1}, v{v+1}, v{v+2}
        v_lshl_add_u32 v{v}, v{v+1}, 4, v{v}
        ''')
        for k in range(1, 4): a(f'v_add_u32 v{v+k}, {k*(8*rowstride-1024)}, v{v}')
        return [f'v{v+k}' for k in range(4)]
    def tr128_addr(self, v, base_s):
        a = self.a
        a(f'''
        v_lshrrev_b32 v{v}, 2, {vT}
        v_lshl_add_u32 v{v}, {vG}, 2, v{v}
        v_lshrrev_b32 v{v+1}, 1, v{v}
        v_and_b32 v{v+1}, 3, v{v+1}
        v_lshlrev_b32 v{v+1}, 5, v{v+1}
        v_lshl_add_u32 v{v}, v{v}, 7, v{v+1}
        v_lshrrev_b32 v{v+1}, 1, {vB4}
        v_lshl_add_u32 v{v}, v{v+1}, 4, v{v}
        v_and_b32 v{v+1}, 1, {vB4}
        v_lshl_add_u32 v{v}, v{v+1}, 3, v{v}
        v_add_u32 v{v}, {base_s}, v{v}
        ''')
        for ct in range(1, 4): a(f'v_xor_b32 v{v+ct}, {ct << 5}, v{v}')
        return [f'v{v+ct}' for ct in range(4)]
    def tr_reads(self, addrs, kss, rb, dst, base_off=0):
        a = self.a
        for ks in kss:
            for ct, ad in enumerate(addrs):
                d = dst + 4 * (ks * len(addrs) + ct)
                for hi in range(2):
                    a(f'ds_read_b64_tr_b16 {vr(d + 2*hi, 2)}, {ad} offset:{base_off + (32*ks + 16*hi)*rb}')
    def sel4(self, dst, srcs, masks):
        a = self.a
        a(f'v_cndmask_b32 {dst}, {srcs[0]}, {srcs[1]}, {masks[0]}')
        a(f'v_cndmask_b32 {dst}, {dst}, {srcs[2]}, {masks[1]}')
        a(f'v_cndmask_b32 {dst}, {dst}, {srcs[3]}, {masks[2]}')
    def masks_t(self):
        for k, val in enumerate((0x22222222, 0x44444444, 0x88888888)):
            self.a(f's_mov_b32 s{MK+2*k}, {val:#x}\ns_mov_b32 s{MK+2*k+1}, {val:#x}')
        return [f's[{MK+2*k}:{MK+2*k+1}]' for k in range(3)]
    def masks_q(self):
        for k, val in enumerate((0x00f000f0, 0x0f000f00, 0xf000f000)):
            self.a(f's_mov_b32 s{MK+2*k}, {val:#x}\ns_mov_b32 s{MK+2*k+1}, {val:#x}')
        return [f's[{MK+2*k}:{MK+2*k+1}]' for k in range(3)]
    def masks_g(self):
        for k, (lo, hi) in enumerate(((0xffff0000, 0), (0, 0x0000ffff), (0, 0xffff0000))):
            self.a(f's_mov_b32 s{MK+2*k}, {lo:#x}\ns_mov_b32 s{MK+2*k+1}, {hi:#x}')
        return [f's[{MK+2*k}:{MK+2*k+1}]' for k in range(3)]
    def mfma(self, acc, A, B, first):
        self.a(f'v_mfma_f32_16x16x32_bf16 {vr(acc,4)}, {vr(A,4)}, {vr(B,4)}, {"0" if first else vr(acc,4)}')
    def tree_add(self, regs):
        a = self.a; n = len(regs); step = 1
        while step < n:
            for k in range(0, n - step, 2*step): a(f'v_add_f32 {regs[k]}, {regs[k]}, {regs[k+step]}')
            step *= 2
    def prologue(self):
        a = self.a
        a('''
        s_cmp_ge_u32 s2, 256
        s_cbranch_scc1 L_end
        s_load_dwordx16 s[16:31], s[0:1], 0
        s_load_dwordx8 s[32:39], s[0:1], 64
        s_load_dwordx4 s[40:43], s[0:1], 96
        ''')
        self.ts('start')
        a(f'''
        v_lshrrev_b32 v5, 6, v0
        v_and_b32 {vL}, 63, v0
        v_readfirstlane_b32 {sW}, v5
        v_lshrrev_b32 {vG}, 4, {vL}
        v_and_b32 {vT}, 15, {vL}
        v_and_b32 {vB4}, 3, {vL}
        s_and_b32 {sX}, s2, 7
        s_lshr_b32 {sI}, s2, 3
        ''')
        if self.cfg.get('ixor'): a(f's_xor_b32 {sI}, {sI}, {self.cfg["ixor"]}')
        a(f'''
        s_lshl_b32 {sWB}, {sW}, 14
        s_mov_b32 s60, 0x000f000f
        s_mov_b32 s61, 0x000f000f
        s_lshl_b32 {sCH}, {sX}, 4
        s_and_b32 {sT0}, {sI}, 15
        s_add_u32 {sCH}, {sCH}, {sT0}
        s_lshr_b32 {sBA}, {sCH}, 5
        s_and_b32 {sS}, {sCH}, 31
        s_lshr_b32 {sHH}, {sI}, 4
        ''')
        if self.cfg.get('hhswap', True): a(f's_xor_b32 {sHH}, {sHH}, 1')
        a(f'''
        s_lshl_b32 {sCH}, {sCH}, 17
        ''')
        if self.cfg.get('codepf'):
            sk = a.label('nocpf')
            a(f's_cmp_lg_u32 {sI}, {self.cfg.get("codepf_i", 31)}\ns_cbranch_scc1 {sk}')
            a(f's_cmp_ge_u32 {sW}, 3\ns_cbranch_scc1 {sk}')
            a(f'''
            s_getpc_b64 s[62:63]
            L_pc:
            s_sub_u32 s62, s62, L_pc-{KNAME}
            s_subb_u32 s63, s63, 0
            v_lshlrev_b32 v5, 7, {vL}
            s_lshl_b32 {sT0}, {sW}, 13
            v_add_u32 v5, {sT0}, v5
            s_mov_b32 {sT0}, L_end-{KNAME}
            v_cmp_gt_u32 vcc, {sT0}, v5
            s_and_saveexec_b64 s[100:101], vcc
            s_cbranch_execz L_cpf_skip
            global_load_dword v255, v5, s[62:63]
            L_cpf_skip:
            s_mov_b64 exec, s[100:101]
            {sk}:
            ''')
        a(f'''
        s_cmp_lt_u32 {sI}, 16
        s_cbranch_scc1 L_qpre
        ''')
    def after_kernarg(self):
        a = self.a
        a(f's_waitcnt lgkmcnt(0)\ns_load_dword {sEP}, s[{P_WS}:{P_WS+1}], 0')
    def tag(self):
        self.srd(WS, P_WS, WS_SIZE)
        self.a(f'''
        s_waitcnt lgkmcnt(0)
        s_add_u32 {sTAG}, {sEP}, 1
        s_mul_i32 {sTAG}, {sTAG}, {TAGMUL:#x}
        s_add_u32 {sTAG}, {sTAG}, 0x7f4a7c15
        ''')
    def dma_ckv(self, ntkey, groups=(0, 1, 2, 3), v=6):
        a = self.a
        self.srd(SA, P_CKV, 16 << 20)
        a(f'v_lshlrev_b32 v{v}, 4, {vL}')
        for k in range(1, 8): a(f'v_xor_b32 v{v+k}, {k << 5}, v{v}')
        for gi in groups:
            a(f's_add_u32 {sT1}, {sWB}, {gi*4096}')
            a(f's_mov_b32 m0, {sT1}')
            a(f's_add_u32 {sT0}, {sCH}, {sT1}')
            for k in range(4):
                n = 4*gi + k
                off = f' offset:{k*1024}' if k else ''
                a(f'buffer_load_dwordx4 v{v + (n & 7)}, {SA}, {sT0} offen{off}{self.nt(ntkey)} lds')
    def silu_addr(self):
        self.a(f'''
        v_lshlrev_b32 v16, 3, v0
        v_lshrrev_b32 v20, 7, v0
        v_mul_u32_u24 v20, {SVS}, v20
        v_and_b32 v21, 127, v0
        v_lshrrev_b32 v21, 3, v21
        v_lshl_add_u32 v20, v21, 6, v20
        v_and_b32 v21, 3, v0
        v_lshl_add_u32 v20, v21, 4, v20
        v_lshrrev_b32 v21, 2, v0
        v_and_b32 v21, 1, v21
        v_lshl_add_u32 v20, v21, 3, v20
        v_add_u32 v20, {SV}, v20
        ''')
    def silu_calc(self):
        a = self.a
        a('''
        v_lshlrev_b32 v22, 16, v18
        v_and_b32 v23, 0xffff0000, v18
        v_lshlrev_b32 v24, 16, v19
        v_and_b32 v25, 0xffff0000, v19
        ''')
        for r in range(22, 26): a(f'v_mul_f32 v{r+4}, {fhex(-LOG2E)}, v{r}')
        for r in range(22, 26): a(f'v_exp_f32 v{r+4}, v{r+4}')
        for r in range(22, 26): a(f'v_add_f32 v{r+4}, 1.0, v{r+4}')
        for r in range(22, 26): a(f'v_rcp_f32 v{r+4}, v{r+4}')
        for r in range(22, 26): a(f'v_mul_f32 v{r}, v{r}, v{r+4}')
        a('v_cvt_pk_bf16_f32 v22, v22, v23\nv_cvt_pk_bf16_f32 v23, v24, v25\nds_write_b64 v20, v[22:23]')
    def sv_frag_addr(self, v):
        self.a(f'''
        v_mul_u32_u24 {v}, {SVS}, {vB4}
        v_lshl_add_u32 {v}, {vG}, 4, {v}
        s_lshl_b32 {sT2}, {sW}, 7
        s_add_u32 {sT2}, {sT2}, {SV}
        v_add_u32 {v}, {sT2}, {v}
        ''')
    def p_pre(self):
        a = self.a
        a('; ================= P pre')
        if self.cfg.get('stopq'):
            self.after_kernarg(); self.tag(); a('s_branch L_exit')
        skip = a.label('nohp'); done = a.label('hpdone')
        a(f's_sub_u32 {sR0}, {sI}, 16\ns_cmp_ge_u32 {sR0}, 4\ns_cbranch_scc1 {skip}')
        vo = self.voff128(6, 6144)
        a(f"""
        s_lshl_b32 {sT0}, {sR0}, 2
        s_and_b32 {sT4}, {sW}, 3
        s_add_u32 {sT0}, {sT0}, {sT4}
        s_mul_i32 {sT0}, {sT0}, {32*6144}
        s_lshr_b32 {sT1}, {sW}, 2
        s_lshl_b32 {sT1}, {sT1}, 10
        s_add_u32 {sT0}, {sT0}, {sT1}
        s_lshl_b32 {sT3}, {sX}, 7
        s_add_u32 {sT0}, {sT0}, {sT3}
        v_lshrrev_b32 v16, 7, v0
        v_and_b32 v17, 127, v0
        v_lshlrev_b32 v18, 10, v16
        v_lshl_add_u32 v18, v17, 1, v18
        s_lshl_b32 {sT2}, {sR0}, 8
        s_lshl_b32 {sT5}, {sT4}, 10
        v_lshlrev_b32 v30, 4, {vL}
        v_lshrrev_b32 v39, 1, v0
        v_and_b32 v39, 3, v39
        v_lshrrev_b32 v37, 3, v0
        v_and_b32 v36, 1, v0
        v_lshlrev_b32 v35, 10, v39
        v_lshl_add_u32 v35, v37, 3, v35
        v_lshl_add_u32 v35, v36, 2, v35
        """)
        self.after_kernarg()
        self.srd(SB, P_C, 4096); self.srd(SC, P_X, 4096); self.srd(SA, P_WMOD, 512 * 6144)
        self.ts('hp_karg')
        a(f"""
        buffer_load_ushort v20, v18, {SB}, {sT2} offen
        buffer_load_dwordx4 v[40:43], v30, {SC}, {sT5} offen
        buffer_load_dword v38, v35, {SC}, {sT3} offen
        """)
        self.dma_groups(SA, vo, [sT0], [sWB], self.nt())
        self.tag()
        ad = self.tr128_addr(6, sWB)
        mq = self.masks_q()
        a(f"""
        v_mul_u32_u24 v10, {QBS}, v16
        v_lshrrev_b32 v11, 5, v17
        v_lshl_add_u32 v10, v11, 6, v10
        v_lshrrev_b32 v11, 2, v17
        v_and_b32 v11, 3, v11
        v_lshl_add_u32 v10, v11, 4, v10
        v_lshrrev_b32 v11, 4, v17
        v_and_b32 v11, 1, v11
        v_lshl_add_u32 v10, v11, 3, v10
        v_and_b32 v11, 3, v17
        v_lshl_add_u32 v10, v11, 1, v10
        v_add_u32 v10, {SV}, v10
        v_mul_u32_u24 v11, {QBS}, {vB4}
        v_lshl_add_u32 v11, {vG}, 4, v11
        s_lshl_b32 {sT0}, {sT4}, 6
        s_add_u32 {sT0}, {sT0}, {SV}
        v_add_u32 v11, {sT0}, v11
        s_lshl_b32 {sT0}, {sW}, 10
        s_add_u32 {sT0}, {sT0}, {RED}
        v_lshrrev_b32 v12, 2, {vT}
        v_lshlrev_b32 v12, 8, v12
        v_lshl_add_u32 v12, {vG}, 6, v12
        v_lshl_add_u32 v12, {vB4}, 4, v12
        v_add_u32 v12, {sT0}, v12
        v_lshlrev_b32 v13, 3, v0
        v_add_u32 v13, {RED}, v13
        v_lshlrev_b32 v14, 3, v39
        v_add_u32 v14, {LS}, v14
        v_lshlrev_b32 v15, 11, v39
        v_lshl_add_u32 v15, v37, 4, v15
        v_lshl_add_u32 v15, v36, 3, v15
        s_lshl_b32 {sT6}, {sR0}, 13
        s_lshl_b32 {sT0}, {sX}, 8
        s_add_u32 {sT6}, {sT6}, {sT0}
        s_add_u32 {sT6}, {sT6}, {WS_H}
        s_lshl_b32 {sT3}, {sT4}, 3
        s_add_u32 {sT3}, {sT3}, {LS}
        v_mov_b32 v50, {sT3}
        s_cmp_eq_u32 {sR0}, 0
        s_cselect_b32 {sT7}, 1.0, 0
        v_mov_b32 v45, {sTAG}
        s_waitcnt vmcnt(6)
        v_lshlrev_b32 v20, 16, v20
        v_mul_f32 v21, {fhex(-LOG2E)}, v20
        v_exp_f32 v21, v21
        s_nop 0
        v_add_f32 v21, 1.0, v21
        v_rcp_f32 v21, v21
        s_nop 0
        v_mul_f32 v20, v20, v21
        v_cvt_pk_bf16_f32 v20, v20, v20
        ds_write_b16 v10, v20
        s_waitcnt vmcnt(5)
        """)
        self.ts('hp_c')
        for k in range(4):
            a(f'v_lshlrev_b32 v{52+2*k}, 16, v{40+k}\nv_and_b32 v{53+2*k}, 0xffff0000, v{40+k}')
        a('v_add_f32 v48, v52, v53\nv_mul_f32 v49, v52, v52\nv_fmac_f32 v49, v53, v53')
        for k in range(54, 60): a(f'v_add_f32 v48, v48, v{k}\nv_fmac_f32 v49, v{k}, v{k}')
        self.allsum(['v48', 'v49'], ['v51', 'v52'])
        a(f"""
        v_mul_f32 v48, {fhex(1/512)}, v48
        v_mul_f32 v49, {fhex(1/512)}, v49
        v_fma_f32 v49, -v48, v48, v49
        v_max_f32 v49, 0, v49
        v_add_f32 v49, {fhex(1e-5)}, v49
        v_rsq_f32 v49, v49
        s_nop 0
        ds_write_b64 v50, v[48:49]
        s_waitcnt lgkmcnt(0)
        """)
        self.ts('hp_ln')
        a('s_barrier\nds_read_b128 v[52:55], v11\ns_waitcnt vmcnt(0)')
        self.ts('hp_loaded')
        self.tr_reads(ad, range(1), 128, 16)
        a('s_waitcnt lgkmcnt(0)')
        for ct in range(4): self.mfma(60+4*ct, 16+4*ct, 52, True)
        for r in range(4): self.sel4(f'v{76+r}', [f'v{60+4*ct+r}' for ct in range(4)], mq)
        a('ds_write_b128 v12, v[76:79]\ns_waitcnt lgkmcnt(0)\ns_barrier')
        fin = a.label('hpfin')
        a(f's_cmp_ge_u32 {sW}, 2\ns_cbranch_scc1 {fin}')
        for ww in range(8): a(f'ds_read_b64 {vr(16+2*ww,2)}, v13 offset:{ww*1024}')
        a("""
        ds_read_b64 v[32:33], v14
        v_lshlrev_b32 v40, 16, v38
        v_and_b32 v41, 0xffff0000, v38
        s_waitcnt lgkmcnt(0)
        v_sub_f32 v40, v40, v32
        v_sub_f32 v41, v41, v32
        v_mul_f32 v40, v40, v33
        v_mul_f32 v41, v41, v33
        """)
        self.tree_add(['v16', 'v18', 'v20', 'v22'])
        self.tree_add(['v17', 'v19', 'v21', 'v23'])
        self.tree_add(['v24', 'v26', 'v28', 'v30'])
        self.tree_add(['v25', 'v27', 'v29', 'v31'])
        a(f"""
        v_add_f32 v24, {sT7}, v24
        v_add_f32 v25, {sT7}, v25
        v_fmac_f32 v16, v40, v24
        v_fmac_f32 v17, v41, v25
        v_cvt_pk_bf16_f32 v44, v16, v17
        buffer_store_dwordx2 v[44:45], v15, {WS}, {sT6} offen sc1
        {fin}:
        s_barrier
        """)
        self.ts('hp_pub')
        a(f's_branch {done}\n{skip}:')
        if self.cfg.get('pfuk', True):
            a(f'''
            s_sub_u32 {sT0}, {sI}, 20
            s_mul_i32 {sT0}, {sT0}, 6
            s_add_u32 {sT0}, {sT0}, {sW}
            s_lshl_b32 {sT0}, {sT0}, 3
            s_lshl_b32 {sT0}, {sT0}, 13
            s_lshl_b32 {sT1}, {sX}, 10
            s_add_u32 {sT0}, {sT0}, {sT1}
            v_lshrrev_b32 v6, 3, {vL}
            v_lshlrev_b32 v6, 13, v6
            v_and_b32 v7, 7, {vL}
            v_lshl_add_u32 v6, v7, 7, v6
            ''')
        self.after_kernarg()
        if self.cfg.get('pfuk', True):
            sk2 = a.label('nouk')
            self.srd(SB, P_WUK, 4 << 20)
            a(f's_cmp_ge_u32 {sW}, 6\ns_cbranch_scc1 {sk2}\nbuffer_load_dword v98, v6, {SB}, {sT0} offen\n{sk2}:')
        self.tag()
        if self.cfg.get('pdelay'):
            a(f's_lshl_b32 {sT0}, {sX}, 8\ns_add_u32 {sT0}, {sT0}, {WS_H + 3*8192}\nv_mov_b32 v5, 0')
            l = self.poll_begin()
            a(f'buffer_load_dwordx2 v[6:7], v5, {WS}, {sT0} offen sc1\ns_waitcnt vmcnt(0)')
            self.tagchk('v8', ['v7'])
            self.poll_end(l, 12, 4, 'v8')
        a(f'{done}:')
        a(f"""
        s_sub_u32 {sR0}, {sI}, 16
        s_lshr_b32 {sR1}, {sR0}, 2
        s_lshl_b32 {sT0}, {sX}, 2
        s_add_u32 {sR1}, {sR1}, {sT0}          ; hp
        s_and_b32 {sR0}, {sR0}, 3              ; bp
        s_mov_b32 {sPLO}, 0x05040100
        s_mov_b32 {sPHI}, 0x07060302
        """)
        self.touch_uv()
        if self.cfg.get('pwait'): a('s_waitcnt vmcnt(0)')
        self.dma_ckv_p()
        self.ts('ckv_iss')
        self.srd(SB, P_WUV, 4 << 20)
        a(f"""
        v_lshlrev_b32 v96, 16, {vG}
        v_lshl_add_u32 v96, {vT}, 4, v96
        s_lshl_b32 {sU0}, {sW}, 19
        s_lshl_b32 {sU1}, {sR1}, 8
        s_add_u32 {sU0}, {sU0}, {sU1}
        """)
        self.wuv_at('e', False)
    def wuv_group(self, gi):
        a = self.a
        a(f's_add_u32 {sU1}, {sU0}, {((gi >> 1) * 32 + (gi & 1) * 4) * 8192}')
        for e in range(4):
            n = 4*gi + e
            a(f'buffer_load_dwordx4 {vr(112+4*n,4)}, v96, {SB}, {sU1} offen{self.nt()}')
            if e < 3: a(f's_add_u32 {sU1}, {sU1}, 8192')
    def wuv_at(self, pos, guard=True):
        a = self.a
        g1 = [gi for gi, p in enumerate(self.cfg['gpl']) if p == pos]
        g2 = [gi for gi, p in enumerate(self.cfg['gplhp']) if p == pos]
        if g1 == g2:
            if not g1: return len(g1)
            sk = a.label('nouv')
            if guard: a(f's_cmp_lt_u32 {sI}, 16\ns_cbranch_scc1 {sk}')
            for gi in g1: self.wuv_group(gi)
            a(f'{sk}:')
            return len(g1)
        done = a.label('uvd'); hp = a.label('uvhp')
        if guard: a(f's_cmp_lt_u32 {sI}, 16\ns_cbranch_scc1 {done}')
        a(f's_cmp_lt_u32 {sI}, 20\ns_cbranch_scc1 {hp}')
        for gi in g1: self.wuv_group(gi)
        a(f's_branch {done}\n{hp}:')
        for gi in g2: self.wuv_group(gi)
        a(f'{done}:')
        assert pos not in ('x', 'y')
        return 0
    def wuv_unit(self, k):
        a = self.a
        a(f's_add_u32 {sU1}, {sU0}, {k * 32 * 8192}')
        for e in range(8):
            a(f'buffer_load_dwordx4 {vr(112+32*k+4*e,4)}, v96, {SB}, {sU1} offen{self.nt()}')
            if e < 7: a(f's_add_u32 {sU1}, {sU1}, 8192')
    def q_pre(self):
        a = self.a
        a('; ================= Q pre')
        a(f'''
        s_lshr_b32 {sR1}, {sI}, 2
        s_lshl_b32 {sT0}, {sX}, 2
        s_add_u32 {sR1}, {sR1}, {sT0}          ; hq
        s_and_b32 {sR0}, {sI}, 3               ; cq
        v_lshlrev_b32 v9, 1, {vG}
        v_xor_b32 v10, {vT}, v9
        v_lshlrev_b32 v6, 13, {vG}
        v_lshl_add_u32 v6, v10, 4, v6          ; k=0
        v_xor_b32 v7, 128, v6
        v_add_u32 v8, {2*31744}, v6            ; k=2
        v_add_u32 v9, {3*31744}, v7            ; k=3
        v_add_u32 v7, 31744, v7                ; k=1
        s_lshl_b32 {sU0}, {sW}, 19
        s_lshl_b32 {sU1}, {sR1}, 8
        s_add_u32 {sU0}, {sU0}, {sU1}
        ''')
        self.rot_groups(4, sR0, sU0, 17, sWB, [sT0, sT1, sT2, sT3], [sT4, sT5, sT6, sT7])
        a(f'''
        s_lshl_b32 {sU0}, {sR0}, 20
        s_add_u32 {sU0}, {sU0}, {sU1}
        s_lshl_b32 {sU1}, {sW}, 17
        s_add_u32 {sU0}, {sU0}, {sU1}
        ''')
        self.after_kernarg()
        self.ts('q_karg')
        self.srd(SA, P_WQ, 4 << 20)
        self.dma_groups(SA, ['v6', 'v7', 'v8', 'v9'], [sT0, sT1, sT2, sT3], [sT4, sT5, sT6, sT7], self.nt())
        self.ts('q_iss')
        self.srd(SB, P_WUK, 4 << 20)
        a(f's_lshl_b32 {sU1}, {sW}, 12\ns_add_u32 {sU1}, {sU1}, {SM}')
        self.dma_groups(SB, ['v6', 'v7', 'v8', 'v9'], [sU0], [sU1], self.nt())
        self.tag()
        a(f'''
        v_lshrrev_b32 v8, 2, {vT}
        v_lshl_add_u32 v8, {vG}, 2, v8
        v_and_b32 v9, 7, v8
        v_lshlrev_b32 v9, 5, v9
        v_lshl_add_u32 v8, v8, 8, v9
        v_lshrrev_b32 v9, 1, {vB4}
        v_lshl_add_u32 v8, v9, 4, v8
        v_and_b32 v9, 1, {vB4}
        v_lshl_add_u32 v8, v9, 3, v8
        v_add_u32 v8, {sWB}, v8
        ''')
        for ct in range(1, 8): a(f'v_xor_b32 v{8+ct}, {ct << 5}, v8')
        a(f'''
        v_lshlrev_b32 v152, 11, {vG}
        v_lshl_add_u32 v152, {vT}, 4, v152
        v_mul_u32_u24 v170, 192, {vG}
        v_lshrrev_b32 v171, 3, {vT}
        v_lshl_add_u32 v170, v171, 6, v170
        v_lshl_add_u32 v170, {vB4}, 4, v170
        v_lshrrev_b32 v171, 2, {vT}
        v_and_b32 v171, 1, v171
        v_lshl_add_u32 v170, v171, 3, v170
        v_add_u32 v170, {sWB}, v170
        v_mul_u32_u24 v174, 192, {vB4}
        v_lshl_add_u32 v174, {vG}, 4, v174
        v_add_u32 v174, {sWB}, v174
        s_lshl_b32 {sT3}, {sW}, 8
        s_add_u32 {sT3}, {sT3}, {WS_H}
        s_add_u32 {sT2}, {sWB}, 2048
        v_lshrrev_b32 v156, 2, {vT}
        v_lshlrev_b32 v156, 8, v156
        v_lshl_add_u32 v156, {vG}, 6, v156
        v_lshl_add_u32 v156, {vB4}, 4, v156
        v_add_u32 v156, {sT2}, v156
        v_lshlrev_b32 v157, 2, v0
        v_add_u32 v157, 2048, v157
        v_add_u32 v159, 0x10000, v157          ; regions 4..7
        v_lshrrev_b32 v154, 2, {vL}
        v_and_b32 v154, 3, v154
        v_mul_u32_u24 v154, {QBS}, v154
        v_lshl_add_u32 v154, {vG}, 3, v154
        v_lshl_add_u32 v154, {vB4}, 1, v154
        s_lshl_b32 {sT2}, {sW}, 5
        s_add_u32 {sT2}, {sT2}, {QB}
        v_add_u32 v154, {sT2}, v154
        v_mul_u32_u24 v155, {QBS}, {vB4}
        v_lshl_add_u32 v155, {vG}, 4, v155
        v_add_u32 v155, {QB}, v155
        v_lshlrev_b32 v158, 16, {vB4}
        v_lshl_add_u32 v158, {vG}, 4, v158
        s_lshl_b32 {sT4}, {sR1}, 11
        s_lshl_b32 {sT1}, {sR0}, 9
        s_add_u32 {sT4}, {sT4}, {sT1}
        s_lshl_b32 {sT1}, {sW}, 6
        s_add_u32 {sT4}, {sT4}, {sT1}
        s_add_u32 {sT4}, {sT4}, {WS_Q}
        s_mov_b32 {sT5}, {fhex(SCALE)}
        v_mov_b32 v149, {sTAG}
        v_mov_b32 v151, {sTAG}
        v_and_b32 v5, 7, {vT}
        v_lshlrev_b32 v5, 5, v5
        v_lshlrev_b32 v160, 4, {vG}
        v_xor_b32 v160, v160, v5
        v_lshl_add_u32 v160, {vT}, 8, v160
        v_add_u32 v160, {sU1}, v160
        v_xor_b32 v161, 64, v160
        v_xor_b32 v162, 128, v160
        v_xor_b32 v163, 192, v160
        s_waitcnt vmcnt(4)
        ''')
        self.ts('wq_landed')
        a(f's_add_u32 {sT0}, {sT3}, 8192\ns_add_u32 {sT1}, {sT3}, 16384\ns_add_u32 {sT2}, {sT3}, 24576')
        def hloads():
            for k, so in enumerate((sT3, sT0, sT1, sT2)):
                a(f'buffer_load_dwordx4 {vr(128+4*k,4)}, v152, {WS}, {so} offen sc1')
        atrig = self.cfg.get('atrig', False)
        if not atrig: hloads()
        self.tr_reads([f'v{8+ct}' for ct in range(8)], range(2), 256, 16)
        mq = self.masks_q()
        self.ckv_prep(176)
        a(f's_waitcnt vmcnt({0 if atrig else 4})')
        for st in range(4): a(f'ds_read_b128 {vr(112+4*st,4)}, v{160+st}')
        if atrig:
            sk = a.label('noatrig')
            a(f's_cmp_lg_u32 {sW}, 0\ns_cbranch_scc1 {sk}')
            a(f'''
            v_lshrrev_b32 v168, 3, {vL}
            v_and_b32 v168, 3, v168
            v_lshlrev_b32 v168, 13, v168
            v_and_b32 v169, 7, {vL}
            v_lshl_add_u32 v168, v169, 8, v168
            v_add_u32 v168, {3*2048+248}, v168
            s_mov_b32 {sU0}, {WS_H}
            ''')
            l = self.poll_begin()
            a(f'buffer_load_dwordx2 v[128:129], v168, {WS}, {sU0} offen sc1\ns_waitcnt vmcnt(0)')
            self.tagchk('v153', ['v129'])
            self.poll_end(l, 13, self.cfg['sleepA'], 'v153')
            a(f'{sk}:\ns_barrier')
            self.ts('q_atrig')
            l = self.poll_begin()
            hloads()
            a('s_waitcnt vmcnt(0)')
        else:
            first = a.label('hfirst')
            a(f's_mov_b32 {sCNT}, {self.cfg["limit"]}\ns_branch {first}')
            l = a.label('poll'); a(f'{l}:')
            hloads()
            a(f'{first}:\ns_waitcnt vmcnt(0)')
        self.tagchk('v153', [f'v{128+4*k+o}' for k in range(4) for o in (1, 3)])
        self.poll_end(l, 1, self.cfg['sleepA2'], 'v153')
        self.ts('h_got')
        a(f's_mov_b32 {sT0}, 0x00003f80\ns_mov_b32 {sT1}, 0x3f800000')
        for k in range(4):
            for j, (src, sel) in enumerate(((128+4*k, sT0), (128+4*k, sT1), (130+4*k, sT0), (130+4*k, sT1))):
                a(f'v_dot2_f32_bf16 v{144+j}, v{src}, {sel}, {"0" if k == 0 else f"v{144+j}"}')
        a('v_cvt_pk_bf16_f32 v144, v144, v145\nv_cvt_pk_bf16_f32 v145, v146, v147\nds_write_b64 v170, v[144:145]\ns_waitcnt lgkmcnt(0)')
        a('ds_read_b128 v[128:131], v174\nds_read_b128 v[136:139], v174 offset:64')
        if self.cfg.get('ckvA', True): self.ckv_group(1, 176, 'nt_ckv_q')
        a('s_waitcnt lgkmcnt(0)')
        for ks in range(2):
            for ct in range(8): self.mfma(80+4*ct, 16+4*(ks*8+ct), 128+8*ks, ks == 0)
        self.ts('q_mfma')
        for hf in range(2):
            for r in range(4): self.sel4(f'v{136+4*hf+r}', [f'v{80+16*hf+4*ct+r}' for ct in range(4)], mq)
            a(f'ds_write_b128 v156, {vr(136+4*hf,4)} offset:{hf*1024}')
        a('s_waitcnt lgkmcnt(0)')
        self.ts('q_wr')
        if self.cfg.get('ckvB2'): self.ckv_group(2, 176, 'nt_ckv_q')
        a('s_barrier')
        self.ts('q_bar1')
        if self.cfg['ckvB']: self.ckv_group(2, 176, 'nt_ckv_q')
        for ww in range(8): a(f'ds_read_b32 v{128+ww}, v{157 if ww < 4 else 159} offset:{(ww&3)*16384}')
        a('s_waitcnt lgkmcnt(0)')
        self.tree_add([f'v{128+k}' for k in range(8)])
        a('''
        v_cvt_pk_bf16_f32 v128, v128, v128
        ds_write_b16 v154, v128
        s_waitcnt lgkmcnt(0)
        ''')
        if self.cfg.get('ckvB3'): self.ckv_group(2, 176, 'nt_ckv_q')
        a('s_barrier')
        self.ts('q_bar2')
        for st in range(4): a(f'ds_read_b128 {vr(128+4*st,4)}, v155 offset:{st*64}')
        for st in range(4):
            a(f's_waitcnt lgkmcnt({3-st})')
            self.mfma(144, 112+4*st, 128+4*st, st == 0)
        a(f'''
        v_mul_f32 v144, {sT5}, v144
        v_mul_f32 v145, {sT5}, v145
        v_mul_f32 v146, {sT5}, v146
        v_mul_f32 v147, {sT5}, v147
        v_cvt_pk_bf16_f32 v148, v144, v145
        v_cvt_pk_bf16_f32 v150, v146, v147
        s_mov_b64 exec, {mT4}
        buffer_store_dwordx4 v[148:151], v158, {WS}, {sT4} offen sc1
        s_mov_b64 exec, -1
        ''')
        self.ts('q_pub')
        a('s_barrier')
        for gi in [0, 3] + ([] if self.cfg.get('ckvA', True) else [1]) + ([] if (self.cfg['ckvB'] or self.cfg.get('ckvB2') or self.cfg.get('ckvB3')) else [2]): self.ckv_group(gi, 176, 'nt_ckv_q')
        self.touch_o_prep()
    def att_addr(self):
        a = self.a
        a(f'''
        v_and_b32 v5, 7, {vT}
        v_lshlrev_b32 v5, 5, v5
        v_lshlrev_b32 v244, 4, {vG}
        v_xor_b32 v244, v244, v5
        v_lshl_add_u32 v244, {vT}, 10, v244
        v_xor_b32 v245, 64, v244
        v_xor_b32 v246, 128, v244
        v_xor_b32 v247, 192, v244
        v_add_u32 v248, {QT}, v244
        v_add_u32 v249, {QT}, v245
        v_add_u32 v250, {QT}, v246
        v_add_u32 v251, {QT}, v247
        v_add_u32 v244, {sWB}, v244
        v_add_u32 v245, {sWB}, v245
        v_add_u32 v246, {sWB}, v246
        v_add_u32 v247, {sWB}, v247
        v_lshrrev_b32 v80, 2, {vT}
        v_lshl_add_u32 v80, {vG}, 2, v80
        v_and_b32 v81, 7, v80
        v_lshlrev_b32 v81, 5, v81
        s_lshl_b32 {sT0}, {sW}, 7
        v_lshl_add_u32 v82, {vB4}, 4, {sT0}
        v_xor_b32 v81, v81, v82
        v_lshl_add_u32 v80, v80, 10, v81
        v_lshrrev_b32 v81, 1, {vB4}
        v_lshl_add_u32 v80, v81, 3, v80
        v_xor_b32 v81, 8, v80
        v_xor_b32 v82, 64, v80
        v_xor_b32 v83, 72, v80
        v_add_u32 v100, 0x10000, v80
        v_add_u32 v101, 0x10000, v81
        v_add_u32 v102, 0x10000, v82
        v_add_u32 v103, 0x10000, v83
        v_mov_b32 v240, 0x3f803f80
        v_mov_b32 v241, 0x3f803f80
        v_mov_b32 v242, 0x3f803f80
        v_mov_b32 v243, 0x3f803f80
        v_lshlrev_b32 v84, 4, v0
        v_lshrrev_b32 v85, 2, {vL}
        v_lshlrev_b32 v85, 11, v85
        v_lshl_add_u32 v85, {vB4}, 9, v85
        v_add_u32 v85, 504, v85
        s_lshr_b32 {sT0}, {sW}, 1
        v_and_b32 v86, 127, v0
        v_lshrrev_b32 v87, 1, v86
        s_lshl_b32 {sT1}, {sT0}, 1
        v_xor_b32 v87, {sT1}, v87
        v_lshlrev_b32 v87, 4, v87
        v_and_b32 v86, 1, v86
        v_lshl_add_u32 v86, v86, 3, v87
        s_lshl_b32 {sT1}, {sT0}, 10
        s_add_u32 {sT1}, {sT1}, {QT}
        v_add_u32 v86, {sT1}, v86
        v_xor_b32 v87, 128, v86
        v_lshlrev_b32 v89, 5, {vT}
        s_lshl_b32 {sT1}, {sW}, 2
        s_add_u32 {sT2}, {sT1}, {MX}
        v_add_u32 v88, {sT2}, v89
        s_add_u32 {sT2}, {sT1}, {LS}
        v_add_u32 v91, {sT2}, v89
        v_add_u32 v92, {LS}, v89
        v_add_u32 v89, {MX}, v89
        s_lshl_b32 {sT0}, {sT0}, 10
        s_and_b32 {sT1}, {sW}, 1
        s_lshl_b32 {sT1}, {sT1}, 3
        s_add_u32 {sT0}, {sT0}, {sT1}
        s_add_u32 {sT0}, {sT0}, {PT}
        v_lshl_add_u32 v90, {vL}, 4, {sT0}
        v_lshlrev_b32 v93, 4, {vL}
        v_add_u32 v93, {PT}, v93
        v_lshlrev_b32 v94, 15, {vT}
        v_lshl_add_u32 v94, {vG}, 4, v94
        v_lshlrev_b32 v95, 8, {vT}
        s_lshl_b32 {sT0}, {sBA}, 5
        s_lshl_b32 {sT1}, {sHH}, 4
        s_add_u32 {sT0}, {sT0}, {sT1}          ; row0
        s_lshl_b32 {sR3}, {sT0}, 8
        s_lshl_b32 {sT1}, {sS}, 3
        s_add_u32 {sR3}, {sR3}, {sT1}
        s_add_u32 {sR3}, {sR3}, {WS_FL}
        s_lshl_b32 {sR2}, {sT0}, 5
        s_add_u32 {sR2}, {sR2}, {sS}
        s_lshl_b32 {sR2}, {sR2}, 10
        s_lshl_b32 {sT1}, {sW}, 7
        s_add_u32 {sR2}, {sR2}, {sT1}
        s_add_u32 {sR2}, {sR2}, {WS_D}
        s_lshl_b32 {sT4}, {sBA}, 16
        s_lshl_b32 {sT1}, {sHH}, 15
        s_add_u32 {sT4}, {sT4}, {sT1}
        s_add_u32 {sT4}, {sT4}, {WS_Q}
        s_add_u32 {sT5}, {sT4}, 8192
        s_add_u32 {sT6}, {sT4}, 16384
        s_add_u32 {sT7}, {sT4}, 24576
        ''')
    def wuv_prep(self):
        a = self.a
        self.srd(SB, P_WUV, 4 << 20)
        a(f'''
        v_lshlrev_b32 v96, 16, {vG}
        v_lshl_add_u32 v96, {vT}, 4, v96
        s_lshl_b32 {sU0}, {sW}, 19
        s_lshl_b32 {sU1}, {sR1}, 8
        s_add_u32 {sU0}, {sU0}, {sU1}
        ''')
    def touch_uv(self):
        a = self.a; done = a.label('tuv')
        self.srd(SC, P_WUV, 4 << 20)
        a(f"""
        v_lshrrev_b32 v97, 1, {vL}
        v_lshlrev_b32 v97, 13, v97
        v_and_b32 v99, 1, {vL}
        v_lshl_add_u32 v97, v99, 7, v97
        s_cmp_ge_u32 {sW}, 4
        s_cbranch_scc1 {done}
        s_lshl_b32 {sT0}, {sR1}, 8
        s_lshl_b32 {sT1}, {sR0}, 20
        s_add_u32 {sT0}, {sT0}, {sT1}
        s_lshl_b32 {sT1}, {sW}, 18
        s_add_u32 {sT0}, {sT0}, {sT1}
        buffer_load_dword v98, v97, {SC}, {sT0} offen
        {done}:
        """)
    def touch_o_prep(self):
        a = self.a
        self.srd(SC, P_WO, 4 << 20)
        a(f"""
        v_lshlrev_b32 v97, 7, {vL}
        s_lshl_b32 {sU0}, {sR1}, 17
        s_lshl_b32 {sU1}, {sR0}, 15
        s_add_u32 {sU0}, {sU0}, {sU1}
        s_lshl_b32 {sU1}, {sW}, 13
        s_add_u32 {sU0}, {sU0}, {sU1}
        """)
    def touch_o(self):
        a = self.a; done = a.label('to')
        a(f's_cmp_ge_u32 {sI}, 16\ns_cbranch_scc1 {done}\ns_cmp_ge_u32 {sW}, 4\ns_cbranch_scc1 {done}')
        a(f'buffer_load_dword v98, v97, {SC}, {sU0} offen\n{done}:')
    def attention(self):
        a = self.a
        a('; ================= attention')
        if self.cfg.get('ctrig', True):
            sk = a.label('notrig'); sq = a.label('qnotrig')
            a(f's_cmp_lt_u32 {sI}, 16\ns_cbranch_scc1 {sq}')
            a(f's_cmp_lg_u32 {sW}, 0\ns_cbranch_scc1 {sk}')
            if self.cfg.get('ptrig', True):
                self.poll_trig('v85', sT4, 176, 2, 'v192')
            else:
                l = self.poll_begin()
                a(f'buffer_load_dwordx2 v[176:177], v85, {WS}, {sT4} offen sc1\ns_waitcnt vmcnt(0)')
                self.tagchk('v192', ['v177'])
                self.poll_end(l, 2, self.cfg['sleepC'], 'v192')
            a(f'{sk}:\ns_barrier')
            self.ts('p_ctrig')
            a(f'{sq}:')
        l = self.poll_begin()
        for n, so in enumerate((sT4, sT5, sT6, sT7)):
            a(f'buffer_load_dwordx4 {vr(176+4*n,4)}, v84, {WS}, {so} offen sc1')
        a('s_waitcnt vmcnt(4)')
        for st in range(16): a(f'ds_read_b128 {vr(16+4*st,4)}, v{244+(st&3)} offset:{(st>>2)*256}')
        a('s_waitcnt vmcnt(0)')
        self.tagchk('v192', [f'v{176+4*n+o}' for n in range(4) for o in (1, 3)])
        self.poll_end(l, 3, self.cfg['sleepC2'], 'v192')
        self.ts('c_got')
        for n in range(4):
            a(f'v_mov_b32 v{177+4*n}, v{178+4*n}')
            a(f'ds_write_b64 v{86 + (n & 1)}, {vr(176+4*n,2)} offset:{n*4096}')
        self.wuv_at('c')
        a('s_waitcnt lgkmcnt(0)\ns_barrier')
        self.ts('b1')
        NB = 8
        for st in range(NB): a(f'ds_read_b128 {vr(196+4*st,4)}, v{248+(st&3)} offset:{(st>>2)*256}')
        if self.cfg.get('pfQo', True): self.touch_o()
        for st in range(16):
            a(f's_waitcnt lgkmcnt({min(16, st+NB) - st - 1})')
            self.mfma(192, 16+4*st, 196+4*(st % NB), st == 0)
            if st + NB < 16:
                s2 = st + NB
                a(f'ds_read_b128 {vr(196+4*(s2%NB),4)}, v{248+(s2&3)} offset:{(s2>>2)*256}')
        self.ts('a_sdone')
        def pva(ks):
            for pp in range(2):
                for T in range(2):
                    d = 16 + 4 * ((ks * 2 + pp) * 2 + T)
                    base = (80 if ks < 2 else 100) + 2*pp + T
                    for hi in range(2):
                        a(f'ds_read_b64_tr_b16 {vr(d+2*hi,2)}, v{base} offset:{(ks & 1)*32768 + hi*16384}')
        pva(0); pva(1)
        self.wuv_at('s')
        a('v_max_f32 v228, v192, v193\nv_max3_f32 v228, v228, v194, v195')
        self.crossrow(['v228'], ['v229'], 'v_max_f32')
        a('ds_write_b32 v88, v228')
        pva(2); pva(3)
        a('s_waitcnt lgkmcnt(15)')
        self.ts('a_preb2')
        a('s_barrier')
        self.ts('a_b2')
        a('ds_read_b128 v[236:239], v89\nds_read_b128 v[232:235], v89 offset:16')
        self.wuv_at('b')
        a("""
        s_waitcnt lgkmcnt(0)
        v_max3_f32 v236, v236, v237, v238
        v_max3_f32 v232, v232, v233, v234
        v_max3_f32 v228, v236, v239, v232
        v_max_f32 v228, v228, v235
        v_sub_f32 v192, v192, v228
        v_sub_f32 v193, v193, v228
        v_sub_f32 v194, v194, v228
        v_sub_f32 v195, v195, v228
        v_exp_f32 v192, v192
        v_exp_f32 v193, v193
        v_exp_f32 v194, v194
        v_exp_f32 v195, v195
        s_nop 0
        v_cvt_pk_bf16_f32 v234, v192, v193
        v_cvt_pk_bf16_f32 v235, v194, v195
        ds_write_b64 v90, v[234:235]
        """)
        self.wuv_at('p')
        self.ts('a_pvaiss')
        a('s_waitcnt lgkmcnt(0)')
        self.ts('a_preb3')
        a('s_barrier')
        self.ts('b3')
        for ks in range(4): a(f'ds_read_b128 {vr(196+4*ks,4)}, v93 offset:{ks*1024}')
        for ks in range(4):
            a(f's_waitcnt lgkmcnt({3-ks})')
            self.mfma(236, 240, 196+4*ks, ks == 0)
            for pp in range(2):
                for T in range(2): self.mfma(212+4*(pp*2+T), 16+4*((ks*2+pp)*2+T), 196+4*ks, ks == 0)
        self.ts('a_pvdone')
        a(f"""
        v_rcp_f32 v232, v236
        v_log_f32 v238, v236
        v_mov_b32 v239, {sTAG}
        v_add_f32 v238, v228, v238
        """)
        for pp in range(2):
            b = 212 + 8*pp
            for k in range(4): a(f'v_pk_mul_f32 {vr(b+2*k,2)}, {vr(b+2*k,2)}, v[232:233] op_sel_hi:[1,0]')
            for k in range(4): a(f'v_cvt_pk_bf16_f32 v{196+4*pp+k}, v{b+2*k}, v{b+2*k+1}')
            off = ' offset:64' if pp else ''
            a(f'buffer_store_dwordx4 {vr(196+4*pp,4)}, v94, {WS}, {sR2} offen{off} sc1')
        self.ts('d_st')
    def d_flag(self):
        a = self.a; sk = a.label('nofl')
        a(f'''
        s_barrier
        s_cmp_lg_u32 {sW}, 0
        s_cbranch_scc1 {sk}
        s_mov_b64 exec, 0xffff
        buffer_store_dwordx2 v[238:239], v95, {WS}, {sR3} offen sc1
        s_mov_b64 exec, -1
        {sk}:
        ''')
        self.ts('d_flag')
    def loader(self, srd, vo, kind, steps=(0, 1, 2, 3)):
        a = self.a
        a(f's_sub_u32 {sU0}, {sW}, 4')
        for st in steps:
            a(f"""
            s_add_u32 {sT0}, {sR0}, {st}
            s_and_b32 {sT0}, {sT0}, 3
            s_lshl_b32 {sT0}, {sT0}, 1
            s_lshr_b32 {sT1}, {sU0}, 1
            s_add_u32 {sT0}, {sT0}, {sT1}          ; region
            s_and_b32 {sT1}, {sU0}, 1
            s_lshl_b32 {sT1}, {sT1}, 3             ; n0
            s_lshl_b32 {sT4}, {sT0}, 14
            s_lshl_b32 {sT2}, {sT1}, 10
            s_add_u32 {sT4}, {sT4}, {sT2}          ; m0
            s_add_u32 {sT5}, {sT4}, 4096
            """)
            if kind == 'uv':
                a(f"""
                s_lshl_b32 {sT2}, {sT0}, 19
                s_lshl_b32 {sT3}, {sT1}, 15
                s_add_u32 {sT2}, {sT2}, {sT3}
                s_lshl_b32 {sT3}, {sR1}, 8
                s_add_u32 {sT2}, {sT2}, {sT3}
                s_add_u32 {sT3}, {sT2}, {4 << 15}
                """)
            else:
                a(f"""
                s_lshl_b32 {sT2}, {sT0}, 7
                s_lshl_b32 {sT3}, {sT1}, 13
                s_add_u32 {sT2}, {sT2}, {sT3}
                s_lshl_b32 {sT3}, {sR1}, 17
                s_add_u32 {sT2}, {sT2}, {sT3}
                s_add_u32 {sT3}, {sT2}, {4 << 13}
                """)
            self.dma_groups(srd, vo, [sT2, sT3], [sT4, sT5], self.nt())
    def perm_unit(self, src, dst):
        a = self.a
        for q in range(4):
            for p in range(4):
                X = src + 8*q + p; Y = src + 8*q + 4 + p
                a(f'v_perm_b32 v{dst+8*p+q}, v{Y}, v{X}, {sPLO}')
                a(f'v_perm_b32 v{dst+8*p+4+q}, v{Y}, v{X}, {sPHI}')
    def p_post(self):
        a = self.a
        a('; ================= P post')
        a('s_barrier')
        ng = self.wuv_at('x', False)
        self.srd(SA, P_WO, 4 << 20)
        vo = self.voff128(6, 1024)
        a(f"""
        s_lshl_b32 s98, {sR1}, 17
        s_lshl_b32 s99, {sW}, 7
        s_add_u32 s98, s98, s99
        """)
        self.rot_groups(4, sR0, 's98', 15, sWB, [sT0, sT1, sT2, sT3], [sT4, sT5, sT6, sT7])
        wf = self.cfg.get('wofirst', 0)
        SR = [sT0, sT1, sT2, sT3]; MR = [sT4, sT5, sT6, sT7]
        if wf: self.dma_groups(SA, vo, SR[:wf], MR[:wf], self.nt())
        a(f's_waitcnt vmcnt({4*ng + 4*wf})')
        self.d_flag()
        ny = self.wuv_at('y', False)
        if wf < 4: self.dma_groups(SA, vo, SR[wf:], MR[wf:], self.nt())
        self.ts('p_ldiss')
        ad = self.tr128_addr(220, sWB)
        a(f"""
        s_lshl_b32 {sT0}, {sR0}, 5
        s_add_u32 {sT0}, {sT0}, {sR1}
        s_lshl_b32 {sT1}, {sT0}, 8
        s_add_u32 {sT1}, {sT1}, {WS_FL}
        s_lshl_b32 {sT2}, {sT0}, 15
        s_lshl_b32 {sT3}, {sW}, 12
        s_add_u32 {sT2}, {sT2}, {sT3}
        s_add_u32 {sT2}, {sT2}, {WS_D}
        s_lshl_b32 {sR2}, {sT0}, 11
        s_lshl_b32 {sT5}, {sW}, 8
        s_add_u32 {sR2}, {sR2}, {sT5}
        s_add_u32 {sR2}, {sR2}, {WS_E}         ; E soff
        v_and_b32 v5, 31, {vL}
        v_lshlrev_b32 v5, 3, v5
        v_lshlrev_b32 v6, 4, {vL}
        s_lshl_b32 {sT0}, {sW}, 11
        s_add_u32 {sT0}, {sT0}, {RED}
        v_lshrrev_b32 v7, 1, {vL}
        v_and_b32 v7, 1, v7
        v_lshlrev_b32 v7, 4, v7
        v_lshl_add_u32 v7, {vL}, 5, v7
        v_add_u32 v7, {sT0}, v7
        v_xor_b32 v8, 16, v7
        s_lshl_b32 {sT0}, {sW}, 3
        s_add_u32 {sT0}, {sT0}, {MX}
        v_mov_b32 v9, {sT0}
        v_lshlrev_b32 v10, 2, v0
        v_add_u32 v10, {RED}, v10
        v_and_b32 v11, 7, {vL}
        v_lshlrev_b32 v11, 3, v11
        v_add_u32 v11, {MX}, v11
        v_lshlrev_b32 v12, 1, v0
        v_add_u32 v12, {OB}, v12
        s_lshl_b32 {sT0}, {sW}, 7
        s_add_u32 {sT0}, {sT0}, {OB}
        v_lshl_add_u32 v13, {vG}, 4, {sT0}
        s_lshl_b32 {sT0}, {sW}, 9
        s_add_u32 {sT0}, {sT0}, {RED2}
        v_lshlrev_b32 v14, 5, {vT}
        v_lshl_add_u32 v14, {vG}, 3, v14
        v_add_u32 v14, {sT0}, v14
        v_lshlrev_b32 v15, 3, {vL}
        v_add_u32 v15, {RED2}, v15
        v_lshlrev_b32 v232, 6, {vG}
        v_lshrrev_b32 v233, 1, {vL}
        v_and_b32 v233, 3, v233
        v_lshl_add_u32 v232, v233, 4, v232
        v_lshrrev_b32 v233, 3, {vL}
        v_and_b32 v233, 1, v233
        v_lshl_add_u32 v232, v233, 3, v232
        v_and_b32 v233, 1, {vL}
        v_lshl_add_u32 v232, v233, 2, v232
        s_lshl_b32 {sT0}, {sW}, 8
        s_add_u32 {sT0}, {sT0}, {WL}
        v_add_u32 v232, {sT0}, v232
        v_lshl_add_u32 v233, {vG}, 4, {sT0}
        v_lshlrev_b32 v234, 6, {vT}
        v_lshl_add_u32 v234, {vG}, 4, v234     ; E voff
        v_mov_b32 v229, {sTAG}
        v_mov_b32 v231, {sTAG}
        """)
        mg = self.masks_g()
        a(f's_waitcnt vmcnt({4*(4-wf)})')
        self.perm_unit(112, 80)
        self.perm_unit(144, 112)
        l = self.poll_begin()
        a(f'buffer_load_dwordx2 v[176:177], v5, {WS}, {sT1} offen sc1\ns_waitcnt vmcnt(0)')
        self.tagchk('v178', ['v177'])
        self.poll_end(l, 4, self.cfg['sleepD'], 'v178')
        self.ts('dfl_got')
        for k in range(4):
            off = f' offset:{k*1024}' if k else ''
            a(f'buffer_load_dwordx4 {vr(180+4*k,4)}, v6, {WS}, {sT2} offen{off} sc1')
        self.tr_reads(ad, range(4), 128, 16)
        a('v_mov_b32 v178, v176')
        for n in (8, 4, 2, 1): a(f'v_max_f32_dpp v178, v178, v178 row_ror:{n} row_mask:0xf bank_mask:0xf')
        a('v_mov_b32 v179, v178\nv_permlane16_swap_b32 v178, v179\nv_max_f32 v178, v178, v179')
        a("""
        v_sub_f32 v176, v176, v178
        v_exp_f32 v176, v176
        s_nop 0
        v_cvt_pk_bf16_f32 v177, v176, v176
        v_and_b32 v176, 0xffff0000, v177
        v_and_b32 v177, 0xffff, v177
        v_mov_b32 v178, v176
        """)
        for n in (8, 4, 2, 1): a(f'v_add_f32_dpp v178, v178, v178 row_ror:{n} row_mask:0xf bank_mask:0xf')
        a('v_mov_b32 v179, v178\nv_permlane16_swap_b32 v178, v179\nv_add_f32 v178, v178, v179\nv_rcp_f32 v203, v178')
        a(f's_lshl_b32 {sT3}, {sW}, 2')
        for k in range(4):
            a(f's_add_u32 {sT0}, {sT3}, {k}')
            a(f'v_readlane_b32 s{16+k}, v177, {sT0}')
            a(f'v_readlane_b32 s{32+k}, v176, {sT0}')
        for k in range(4):
            a(f's_waitcnt vmcnt({3-k})')
            for p in range(4):
                sreg = 180 + 4*k + p
                c0 = '0' if k == 0 else f'v{212+2*p}'; c1 = '0' if k == 0 else f'v{213+2*p}'
                a(f'v_dot2_f32_bf16 v{212+2*p}, v{sreg}, s{16+k}, {c0}')
                a(f'v_dot2_f32_bf16 v{213+2*p}, v{sreg}, s{32+k}, {c1}')
        self.ts('d_got')
        a('ds_write_b128 v7, v[212:215]\nds_write_b128 v8, v[216:219]')
        a('s_waitcnt lgkmcnt(0)\ns_barrier')
        self.ts('p_b1')
        for ww in range(8): a(f'ds_read_b32 v{192+ww}, v10 offset:{ww*2048}')
        a('s_waitcnt lgkmcnt(0)')
        self.tree_add([f'v{192+k}' for k in range(8)])
        a('v_mov_b32 v202, v192') if False else None
        a("""
        v_mul_f32 v192, v192, v203
        v_cvt_pk_bf16_f32 v202, v192, v192
        ds_write_b16 v12, v202
        s_waitcnt lgkmcnt(0)
        ds_read_b128 v[176:179], v13
        ds_read_b128 v[180:183], v13 offset:64
        """)
        self.ts('p_o')
        for k in range(2):
            a(f's_waitcnt lgkmcnt({1-k})')
            for u in range(8): self.mfma(184+4*u, 176+4*k, 80+32*k+4*u, k == 0)
        self.sel4('v216', [f'v{184+4*u}' for u in (0, 2, 4, 6)], mg)
        self.sel4('v217', [f'v{184+4*u}' for u in (1, 3, 5, 7)], mg)
        self.ts('p_uv')
        a('ds_write_b64 v14, v[216:217]\ns_waitcnt lgkmcnt(0)\ns_barrier')
        self.ts('p_b2')
        for ww in range(8): a(f'ds_read_b64 {vr(176+2*ww,2)}, v15 offset:{ww*512}')
        mt = self.masks_t()
        a('s_waitcnt lgkmcnt(0)')
        self.tree_add([f'v{176+2*k}' for k in range(8)])
        self.tree_add([f'v{177+2*k}' for k in range(8)])
        a('v_cvt_pk_bf16_f32 v176, v176, v177\nds_write_b32 v232, v176\ns_waitcnt lgkmcnt(0)')
        for ks in range(4): a(f'ds_read_b128 {vr(180+4*ks,4)}, v233 offset:{ks*64}')
        for ks in range(4):
            a(f's_waitcnt lgkmcnt({3-ks})')
            for ct in range(4): self.mfma(196+4*ct, 16+4*(ks*4+ct), 180+4*ks, ks == 0)
        self.ts('p_omf')
        for r in range(4): self.sel4(f'v{212+r}', [f'v{196+4*ct+r}' for ct in range(4)], mt)
        a(f"""
        v_cvt_pk_bf16_f32 v228, v212, v213
        v_cvt_pk_bf16_f32 v230, v214, v215
        s_mov_b64 exec, {mT4}
        buffer_store_dwordx4 v[228:231], v234, {WS}, {sR2} offen sc1
        s_mov_b64 exec, -1
        """)
        self.ts('e_pub')
    def ffn(self):
        a = self.a
        a('s_waitcnt vmcnt(0)')
        self.d_flag()
        self.srd(SA, P_W1, 512 * 2752)
        vo = self.voff128(6, 2752)
        a(f'''
        s_mul_i32 {sU0}, {sW}, {64*2752}
        s_lshl_b32 {sT2}, {sR1}, 7
        s_add_u32 {sU0}, {sU0}, {sT2}
        s_add_u32 {sT0}, {sU0}, {32*2752}
        s_add_u32 {sT1}, {sWB}, 4096
        ''')
        self.dma_groups(SA, vo, [sU0, sT0], [sWB, sT1], self.nt())
        self.srd(SB, P_W2, 1376 * 1024)
        vo = self.voff128(10, 1024)
        a(f'''
        s_lshl_b32 {sU0}, {sR1}, 16
        s_lshl_b32 {sT2}, {sW}, 7
        s_add_u32 {sU0}, {sU0}, {sT2}
        s_add_u32 {sT0}, {sU0}, 32768
        s_add_u32 {sT1}, {sWB}, 8192
        s_add_u32 {sT2}, {sWB}, 12288
        ''')
        self.dma_groups(SB, vo, [sU0, sT0], [sT1, sT2], self.nt())
        self.srd(SC, P_X, 4096)
        a(f'''
        v_lshlrev_b32 v5, 1, v0
        s_lshl_b32 {sT0}, {sR0}, 10
        buffer_load_ushort v100, v5, {SC}, {sT0} offen
        v_lshrrev_b32 v5, 1, v0
        v_lshlrev_b32 v5, 3, v5
        s_lshl_b32 {sT0}, {sR0}, 13
        s_add_u32 {sT0}, {sT0}, {WS_MR}
        s_add_u32 {sT1}, {sT0}, 4096
        ''')
        ad = self.tr128_addr(8, sWB)
        mt = self.masks_t()
        a(f'''
        s_lshl_b32 {sT2}, {sR0}, 5
        s_lshl_b32 {sT4}, {sT2}, 11
        s_add_u32 {sT4}, {sT4}, {WS_E}
        s_lshl_b32 {sT3}, {sW}, 13
        s_add_u32 {sT5}, {sT4}, {sT3}
        s_add_u32 {sT6}, {sT5}, 4096
        v_and_b32 v12, 31, {vL}
        v_lshlrev_b32 v12, 11, v12
        v_add_u32 v12, 2040, v12
        v_lshlrev_b32 v13, 4, {vL}
        s_lshl_b32 {sT2}, {sW}, 11
        s_add_u32 {sT2}, {sT2}, {RED}
        v_lshl_add_u32 v14, {vL}, 4, {sT2}
        v_lshlrev_b32 v15, 2, v0
        v_add_u32 v15, {RED}, v15
        s_lshl_b32 {sT2}, {sW}, 3
        s_add_u32 {sT2}, {sT2}, {MX}
        v_mov_b32 v220, {sT2}
        v_and_b32 v221, 7, {vL}
        v_lshlrev_b32 v221, 3, v221
        v_add_u32 v221, {MX}, v221
        v_lshrrev_b32 v222, 5, {vL}
        v_lshlrev_b32 v222, 6, v222
        v_lshrrev_b32 v223, 2, {vL}
        v_and_b32 v223, 3, v223
        v_lshl_add_u32 v222, v223, 4, v222
        v_and_b32 v223, 1, {vG}
        v_lshl_add_u32 v222, v223, 3, v222
        v_lshl_add_u32 v222, {vB4}, 1, v222
        s_lshl_b32 {sT2}, {sW}, 8
        s_add_u32 {sT2}, {sT2}, {WL}
        v_add_u32 v222, {sT2}, v222
        v_lshl_add_u32 v223, {vG}, 4, {sT2}
        s_lshl_b32 {sT2}, {sW}, 8
        s_add_u32 {sT2}, {sT2}, {RED2}
        v_lshlrev_b32 v224, 6, {vT}
        v_lshl_add_u32 v224, {vG}, 4, v224
        v_add_u32 v224, {sT2}, v224
        v_lshlrev_b32 v225, 2, {vL}
        v_add_u32 v225, {RED2}, v225
        s_lshl_b32 {sT2}, {sR0}, 3
        s_add_u32 {sT2}, {sT2}, {sW}
        s_mul_i32 {sT2}, {sT2}, {24*512}
        s_lshl_b32 {sT3}, {sR1}, 9
        s_add_u32 {sT2}, {sT2}, {sT3}
        s_add_u32 {sT7}, {sT2}, {WS_F}         ; F soff
        v_lshlrev_b32 v226, 7, {vT}
        v_lshl_add_u32 v226, {vG}, 5, v226     ; F voff
        s_lshl_b32 {sT2}, {sR1}, 6
        v_add_u32 v227, {sT2}, {vL}
        s_movk_i32 {sT3}, 1376
        v_cmp_gt_u32 s[62:63], {sT3}, v227
        v_mov_b32 v141, {sTAG}
        v_mov_b32 v143, {sTAG}
        v_mov_b32 v145, {sTAG}
        v_mov_b32 v147, {sTAG}
        ''')
        a(f'v_and_b32 v6, 1, v0\nv_lshlrev_b32 v6, 4, v6')
        a('s_waitcnt vmcnt(0)\nv_lshlrev_b32 v100, 16, v100')
        self.tr_reads(ad, range(2), 128, 16)
        self.tr_reads(ad, range(2), 128, 48, 8192)
        l = self.poll_begin()
        a(f'''
        buffer_load_dwordx2 v[102:103], v5, {WS}, {sT0} offen sc1
        buffer_load_dwordx2 v[104:105], v5, {WS}, {sT0} offen offset:2048 sc1
        buffer_load_dwordx2 v[106:107], v5, {WS}, {sT1} offen sc1
        s_waitcnt vmcnt(0)
        ''')
        self.tagchk('v208', ['v103', 'v105', 'v107'])
        self.poll_end(l, 5, self.cfg['sleepM'], 'v208')
        for r in (102, 104, 106):
            a(f'v_lshrrev_b32 v{r}, v6, v{r}\nv_lshlrev_b32 v{r}, 16, v{r}')
        a(f's_mov_b32 {sT0}, 0x00003f80\ns_mov_b32 {sT1}, 0x3f800000')
        sk = a.label('noet')
        a(f's_cmp_lg_u32 {sW}, 0\ns_cbranch_scc1 {sk}')
        l = self.poll_begin()
        a(f'buffer_load_dwordx2 v[176:177], v12, {WS}, {sT4} offen sc1\ns_waitcnt vmcnt(0)')
        self.tagchk('v178', ['v177'])
        self.poll_end(l, 6, self.cfg['sleepE'], 'v178')
        a(f'{sk}:\ns_barrier')
        self.ts('e_trig')
        l = self.poll_begin()
        for k in range(8):
            so = sT5 if k < 4 else sT6
            off = f' offset:{(k&3)*1024}' if k & 3 else ''
            a(f'buffer_load_dwordx4 {vr(176+4*k,4)}, v13, {WS}, {so} offen{off} sc1')
        for k in range(8):
            a(f's_waitcnt vmcnt({7-k})')
            hf = k & 1; b = 176 + 4*k; acc = 112 + 4*hf
            for j, (src, sel) in enumerate(((b, sT0), (b, sT1), (b+2, sT0), (b+2, sT1))):
                c = '0' if k < 2 else f'v{acc+j}'
                a(f'v_dot2_f32_bf16 v{acc+j}, v{src}, {sel}, {c}')
            if k == 0: a(f'v_xor_b32 v208, {sTAG}, v{b+1}\nv_bitop3_b32 v208, v208, v{b+3}, {sTAG} bitop3:0xf6')
            else:
                for o in (1, 3): a(f'v_bitop3_b32 v208, v208, v{b+o}, {sTAG} bitop3:0xf6')
        self.poll_end(l, 7, 1, 'v208')
        self.ts('e_got')
        a('''
        ds_write_b128 v14, v[112:115]
        ds_write_b128 v14, v[116:119] offset:1024
        s_waitcnt lgkmcnt(0)
        s_barrier
        ''')
        self.ts('f_b1')
        for ww in range(8): a(f'ds_read_b32 v{112+ww}, v15 offset:{ww*2048}')
        a('s_waitcnt lgkmcnt(0)')
        self.tree_add([f'v{112+k}' for k in range(8)])
        a('v_fma_f32 v100, v102, v112, v100\nv_mov_b32 v120, v100\nv_mul_f32 v121, v100, v100')
        self.allsum(['v120', 'v121'], ['v122', 'v123'])
        a('ds_write_b64 v220, v[120:121]\ns_waitcnt lgkmcnt(0)\ns_barrier')
        self.ts('f_b2')
        a('ds_read_b64 v[112:113], v221\ns_waitcnt lgkmcnt(0)')
        for d in ('quad_perm:[1,0,3,2]', 'quad_perm:[2,3,0,1]', 'row_half_mirror'):
            for r in (112, 113): a(f'v_add_f32_dpp v{r}, v{r}, v{r} {d} row_mask:0xf bank_mask:0xf')
        a(f'''
        v_mul_f32 v112, {fhex(1/512)}, v112
        v_mul_f32 v113, {fhex(1/512)}, v113
        v_fma_f32 v113, -v112, v112, v113
        v_max_f32 v113, 0, v113
        v_add_f32 v113, {fhex(1e-5)}, v113
        v_rsq_f32 v113, v113
        v_sub_f32 v114, v100, v112
        v_mul_f32 v114, v114, v113
        v_add_f32 v115, v114, v104
        v_fmac_f32 v115, v114, v106
        v_cvt_pk_bf16_f32 v115, v115, v115
        ds_write_b16 v222, v115
        s_waitcnt lgkmcnt(0)
        ds_read_b128 v[112:115], v223
        ds_read_b128 v[116:119], v223 offset:64
        ''')
        for ks in range(2):
            a(f's_waitcnt lgkmcnt({1-ks})')
            for ct in range(4): self.mfma(120+4*ct, 16+4*(ks*4+ct), 112+4*ks, ks == 0)
        for r in range(4): self.sel4(f'v{136+r}', [f'v{120+4*ct+r}' for ct in range(4)], mt)
        a(f'''
        s_mov_b64 exec, {mT4}
        ds_write_b128 v224, v[136:139]
        s_mov_b64 exec, -1
        s_waitcnt lgkmcnt(0)
        s_barrier
        ''')
        self.ts('f_b3')
        for ww in range(8): a(f'ds_read_b32 v{112+ww}, v225 offset:{ww*256}')
        a('s_waitcnt lgkmcnt(0)')
        self.tree_add([f'v{112+k}' for k in range(8)])
        a('''
        v_max_f32 v112, 0, v112
        v_cndmask_b32 v112, 0, v112, s[62:63]
        v_cvt_pk_bf16_f32 v112, v112, v112
        ds_write_b16 v222, v112 offset:128
        s_waitcnt lgkmcnt(0)
        ds_read_b128 v[112:115], v223 offset:128
        ds_read_b128 v[116:119], v223 offset:192
        ''')
        for ks in range(2):
            a(f's_waitcnt lgkmcnt({1-ks})')
            for ct in range(4): self.mfma(120+4*ct, 48+4*(ks*4+ct), 112+4*ks, ks == 0)
        for r, d in enumerate((140, 142, 144, 146)): self.sel4(f'v{d}', [f'v{120+4*ct+r}' for ct in range(4)], mt)
        a(f'''
        s_mov_b64 exec, {mT4}
        buffer_store_dwordx4 v[140:143], v226, {WS}, {sT7} offen sc1
        buffer_store_dwordx4 v[144:147], v226, {WS}, {sT7} offen offset:16 sc1
        s_mov_b64 exec, -1
        ''')
        self.ts('f_pub')
    def final(self):
        a = self.a
        a('s_waitcnt vmcnt(0)')
        self.d_flag()
        a(f's_lshl_b32 {sR1}, {sX}, 2\ns_add_u32 {sR1}, {sR1}, {sR0}')
        self.silu_addr()
        self.srd(SB, P_C, 4096)
        a(f'buffer_load_dwordx2 v[18:19], v16, {SB}, 0 offen')
        self.srd(SA, P_WMOD, 512 * 6144)
        vo = self.voff128(6, 6144)
        a(f'''
        s_mul_i32 {sU0}, {sW}, {64*6144}
        s_lshl_b32 {sT2}, {sR1}, 7
        s_add_u32 {sU0}, {sU0}, {sT2}
        s_add_u32 {sU0}, {sU0}, 2048
        s_add_u32 {sT0}, {sU0}, {32*6144}
        s_add_u32 {sT1}, {sWB}, 4096
        ''')
        self.dma_groups(SA, vo, [sU0, sT0], [sWB, sT1], self.nt())
        self.sv_frag_addr('v12')
        ad = self.tr128_addr(8, sWB)
        a('s_waitcnt vmcnt(8)')
        self.silu_calc()
        a('s_waitcnt lgkmcnt(0)\ns_barrier')
        a('ds_read_b128 v[112:115], v12\nds_read_b128 v[116:119], v12 offset:64\ns_waitcnt vmcnt(0)')
        self.tr_reads(ad, range(2), 128, 24)
        a('s_waitcnt lgkmcnt(0)')
        for ks in range(2):
            for ct in range(4): self.mfma(120+4*ct, 24+4*(ks*4+ct), 112+4*ks, ks == 0)
        a(f'''
        s_lshl_b32 {sT0}, {sW}, 10
        s_add_u32 {sT0}, {sT0}, {RED}
        v_lshlrev_b32 v5, 6, {vG}
        v_lshl_add_u32 v5, {vT}, 4, v5
        v_add_u32 v5, {sT0}, v5
        s_mov_b64 exec, {mT4}
        ''')
        for ct in range(4): a(f'ds_write_b128 v5, {vr(120+4*ct,4)} offset:{ct*256}')
        a('s_mov_b64 exec, -1\ns_waitcnt lgkmcnt(0)\ns_barrier')
        sk = a.label('mrskip')
        a(f's_cmp_ge_u32 {sW}, 2\ns_cbranch_scc1 {sk}')
        a(f'v_lshlrev_b32 v5, 3, v0\nv_add_u32 v5, {RED}, v5')
        for ww in range(8): a(f'ds_read_b64 {vr(112+2*ww,2)}, v5 offset:{ww*1024}')
        a(f'''
        v_lshrrev_b32 v6, 1, v0
        v_and_b32 v6, 3, v6
        v_lshlrev_b32 v6, 13, v6
        v_lshrrev_b32 v7, 3, v0
        v_lshl_add_u32 v6, v7, 4, v6
        v_and_b32 v7, 1, v0
        v_lshl_add_u32 v6, v7, 3, v6
        s_lshl_b32 {sT0}, {sR1}, 8
        s_add_u32 {sT0}, {sT0}, {WS_MR}
        s_waitcnt lgkmcnt(0)
        ''')
        self.tree_add([f'v{112+2*k}' for k in range(8)])
        self.tree_add([f'v{113+2*k}' for k in range(8)])
        a(f'''
        v_cvt_pk_bf16_f32 v112, v112, v113
        v_mov_b32 v113, {sTAG}
        buffer_store_dwordx2 v[112:113], v6, {WS}, {sT0} offen sc1
        {sk}:
        ''')
        self.ts('mr_pub')
        a(f's_cmp_lg_u32 {sW}, 0\ns_cbranch_scc1 L_exit')
        self.srd(SC, P_X, 4096)
        self.srd(SA, P_OUT, 4096)
        a(f'''
        v_and_b32 v5, 31, {vL}
        v_lshlrev_b32 v6, 2, v5
        s_lshl_b32 {sT0}, {sR0}, 10
        s_lshl_b32 {sT1}, {sX}, 7
        s_add_u32 {sR2}, {sT0}, {sT1}
        buffer_load_dword v100, v6, {SC}, {sR2} offen
        v_lshlrev_b32 v7, 3, v5
        s_lshl_b32 {sT0}, {sR0}, 13
        s_lshl_b32 {sT1}, {sX}, 8
        s_add_u32 {sT0}, {sT0}, {sT1}
        s_add_u32 {sT0}, {sT0}, {WS_MR}
        s_add_u32 {sT1}, {sT0}, {3*2048}
        ''')
        a(f'''
        s_mov_b32 {sU0}, {sT0}
        s_mov_b32 {sU1}, {sT1}
        v_lshrrev_b32 v8, 5, {vL}
        v_lshl_add_u32 v9, v8, 11, v7
        s_lshl_b32 {sT7}, {sR0}, 16
        s_add_u32 {sT7}, {sT7}, {WS_E}
        s_lshl_b32 {sT1}, {sX}, 8
        s_add_u32 {sT0}, {sT7}, {sT1}
        v_lshlrev_b32 v11, 9, v8
        v_lshl_add_u32 v11, v5, 4, v11
        v_lshlrev_b32 v12, 11, v5
        v_add_u32 v12, 2040, v12
        v_min_u32 v13, 21, v5
        v_lshlrev_b32 v13, 9, v13
        v_add_u32 v13, 504, v13
        s_lshl_b32 {sT4}, {sR0}, 3
        s_add_u32 {sT4}, {sT4}, {sX}
        s_mul_i32 {sT4}, {sT4}, {24*512}
        s_add_u32 {sT4}, {sT4}, {WS_F}
        s_add_u32 {sT5}, {sT4}, 4096
        s_add_u32 {sT6}, {sT4}, 8192
        ''')
        l = self.poll_begin()
        a(f'buffer_load_dwordx2 v[112:113], v12, {WS}, {sT7} offen sc1\ns_waitcnt vmcnt(0)')
        self.tagchk('v10', ['v113'])
        self.poll_end(l, 12, self.cfg['sleepE'] + 2, 'v10')
        l = self.poll_begin()
        a(f'''
        buffer_load_dwordx2 v[102:103], v7, {WS}, {sU0} offen sc1
        buffer_load_dwordx2 v[104:105], v7, {WS}, {sU1} offen sc1
        s_mov_b32 {sT1}, {sT0}
        ''')
        for k in range(16):
            a(f'buffer_load_dwordx2 {vr(112+2*k,2)}, v9, {WS}, {sT1} offen sc1')
            if k < 15: a(f's_add_u32 {sT1}, {sT1}, 4096')
        a('s_waitcnt vmcnt(0)')
        self.tagchk('v10', ['v103', 'v105'] + [f'v{113+2*k}' for k in range(16)])
        self.poll_end(l, 9, 2, 'v10')
        a('''
        v_lshlrev_b32 v146, 16, v100
        v_and_b32 v147, 0xffff0000, v100
        v_lshlrev_b32 v152, 16, v102
        v_and_b32 v153, 0xffff0000, v102
        v_lshlrev_b32 v148, 16, v104
        v_and_b32 v149, 0xffff0000, v104
        ''')
        self.ts('fe_got')
        a(f's_mov_b32 {sT0}, 0x00003f80\ns_mov_b32 {sT1}, 0x3f800000')
        for k in range(16):
            c0 = '0' if k == 0 else 'v144'; c1 = '0' if k == 0 else 'v145'
            a(f'v_dot2_f32_bf16 v144, v{112+2*k}, {sT0}, {c0}\nv_dot2_f32_bf16 v145, v{112+2*k}, {sT1}, {c1}')
        a('''
        v_mov_b32 v150, v144
        v_mov_b32 v151, v145
        s_nop 0
        v_permlane32_swap_b32 v144, v150
        v_permlane32_swap_b32 v145, v151
        v_add_f32 v144, v144, v150
        v_add_f32 v145, v145, v151
        v_fmac_f32 v146, v152, v144
        v_fmac_f32 v147, v153, v145
        ''')
        if self.cfg.get('ftrig', False):
            l = self.poll_begin()
            a(f'buffer_load_dwordx2 v[112:113], v13, {WS}, {sT4} offen sc1\ns_waitcnt vmcnt(0)')
            self.tagchk('v10', ['v113'])
            self.poll_end(l, 14, self.cfg['sleepF'], 'v10')
        l = self.poll_begin()
        for k in range(11):
            so = (sT4, sT5, sT6)[k >> 2]
            off = f' offset:{(k&3)*1024}' if k & 3 else ''
            a(f'buffer_load_dwordx4 {vr(176+4*k,4)}, v11, {WS}, {so} offen{off} sc1')
        a('s_waitcnt vmcnt(0)')
        self.tagchk('v10', [f'v{176+4*k+o}' for k in range(11) for o in (1, 3)])
        self.poll_end(l, 10, self.cfg['sleepF'], 'v10')
        self.tree_add([f'v{176+4*k}' for k in range(11)])
        self.tree_add([f'v{178+4*k}' for k in range(11)])
        a(f'''
        v_mov_b32 v150, v176
        v_mov_b32 v151, v178
        s_nop 0
        v_permlane32_swap_b32 v176, v150
        v_permlane32_swap_b32 v178, v151
        v_add_f32 v176, v176, v150
        v_add_f32 v178, v178, v151
        v_fmac_f32 v146, v148, v176
        v_fmac_f32 v147, v149, v178
        v_cvt_pk_bf16_f32 v146, v146, v147
        s_mov_b32 exec_hi, 0
        buffer_store_dword v146, v6, {SA}, {sR2} offen
        s_mov_b64 exec, -1
        ''')
        self.ts('out_st')
    def epoch_update(self):
        a = self.a
        a(f's_cmp_lg_u32 {sW}, 0\ns_cbranch_scc1 L_exit')
        a(f'v_and_b32 v5, 7, {vL}\nv_lshlrev_b32 v5, 15, v5\nv_add_u32 v5, 2040, v5\ns_mov_b32 {sT0}, {WS_E}')
        l = self.poll_begin()
        a(f'buffer_load_dwordx2 v[6:7], v5, {WS}, {sT0} offen sc1\ns_waitcnt vmcnt(0)')
        self.tagchk('v8', ['v7'])
        self.poll_end(l, 11, 8, 'v8')
        a(f'''
        s_add_u32 {sT0}, {sEP}, 1
        v_mov_b32 v6, {sT0}
        v_mov_b32 v5, 0
        s_mov_b64 exec, 1
        buffer_store_dword v6, v5, {WS}, 0 offen sc1
        s_mov_b64 exec, -1
        ''')
    def build(self):
        a = self.a
        self.prologue()
        self.p_pre()
        a('s_branch L_att\nL_qpre:')
        self.q_pre()
        a('L_att:')
        self.att_addr()
        self.attention()
        a(f's_cmp_lt_u32 {sI}, 16\ns_cbranch_scc1 L_qpost')
        self.p_post()
        a('s_branch L_exit\nL_qpost:')
        a(f'''
        s_lshr_b32 {sT0}, {sI}, 2
        s_and_b32 {sR0}, {sI}, 3
        s_cmp_eq_u32 {sT0}, 3
        s_cbranch_scc1 L_final
        s_lshl_b32 {sR1}, {sT0}, 3
        s_add_u32 {sR1}, {sR1}, {sX}
        s_cmp_ge_u32 {sR1}, 22
        s_cbranch_scc1 L_idle
        ''')
        self.ffn()
        a('s_branch L_exit\nL_final:')
        self.final()
        a('s_branch L_exit\nL_idle:')
        a('s_waitcnt vmcnt(0)')
        self.d_flag()
        a(f's_cmp_eq_u32 s2, {7 + 8*11}\ns_cbranch_scc0 L_exit')
        self.epoch_update()
        a('s_branch L_exit')
        for code in self.failsites:
            a(f'L_fail_{code}:\ns_mov_b32 {sT0}, {code}\ns_branch L_fail')
        a(f'''
        L_fail:
        s_mov_b32 s12, s{P_DBG}
        s_mov_b32 s13, s{P_DBG+1}
        s_mov_b32 s14, 256
        s_mov_b32 s15, 0x00020000
        s_mov_b64 exec, 1
        s_lshl_b32 {sT1}, {sT0}, 2
        v_mov_b32 v5, {sT1}
        v_mov_b32 v6, s2
        v_add_u32 v6, 1000, v6
        buffer_store_dword v6, v5, s[12:15], 0 offen
        s_mov_b64 exec, -1
        L_exit:
        ''')
        self.ts('end')
        if self.cfg['ts']:
            sk = a.label('nots')
            a(f's_cmp_lg_u32 {sW}, {self.cfg["tswave"]}\ns_cbranch_scc1 {sk}')
            a(f's_waitcnt lgkmcnt(0)\ns_mov_b64 exec, 1\ns_lshl_b32 {sT0}, s2, 6\ns_add_u32 {sT0}, {sT0}, {WS_TS}\nv_mov_b32 v5, 0')
            for k in range(len(TSREG)):
                a(f'v_mov_b32 v6, s{TSREG[k]}\nbuffer_store_dword v6, v5, {WS}, {sT0} offen offset:{4*k}')
            a(f'{sk}:')
        a('s_waitcnt vmcnt(0) lgkmcnt(0)\nL_end:\ns_endpgm')
        return a.finish()
HEADER = open('adaLN_cond__compressed_kv_cla__dense_activation_relu__decode.s.ref').read().split('; Override launch')[0]
def generate(cfg):
    g = Gen(cfg)
    body = g.build()
    init = ''
    if g.cfg['ts']:
        init = ''.join(f'    s_mov_b32 s{r}, 0\n' for r in TSREG[:10])
    txt = HEADER + f'''; @launch grid=(256,1,1) block=(512,1,1) lds={LDS_BYTES}
.amdgcn_target "amdgcn-amd-amdhsa--gfx950"
.text
.globl {KNAME}
.p2align 8
.type {KNAME},@function
{KNAME}:
{init}{body}.section .rodata,"a"
.p2align 6
.amdhsa_kernel {KNAME}
  .amdhsa_next_free_vgpr 256
  .amdhsa_next_free_sgpr 102
  .amdhsa_accum_offset 256
  .amdhsa_group_segment_fixed_size 0
  .amdhsa_kernarg_size 112
  .amdhsa_user_sgpr_count 2
  .amdhsa_user_sgpr_kernarg_segment_ptr 1
  .amdhsa_system_sgpr_workgroup_id_x 1
.end_amdhsa_kernel
'''
    return txt, g
if __name__ == '__main__':
    cfg = json.loads(sys.argv[2]) if len(sys.argv) > 2 else {}
    txt, g = generate(cfg)
    open(sys.argv[1], 'w').write(txt)
    json.dump(dict(ts=g.tsnames, slot=(g.cfg.get('tsmap') or TSSLOT), gen='g'), open(sys.argv[1] + '.json', 'w'))
    print('written', sys.argv[1], 'lines', txt.count('\n'), 'nops padded', g.a.npad)
```

```python
import sys, json, struct
from asmlib import Asm
KNAME = 'adaLN_cond__compressed_kv_cla__dense_activation_relu__decode_kernel'
CFG = dict(pkmul=False, pvaearly=False, ones=True, codepf=True, ptrig=False, gpl=['e','e','c','b'], gplhp=['c','s','b','p'], wofirst=2, wo_pre=0, pthr=0, ckvsplit=False, ts=False, nt=False, nt_ckv_p=False, nt_ckv_q=True, limit=20000,
           sleepA=1, sleepA2=1, ckvB=False, sleepM=16, sleepC2=1, ftrig=False, sleepC=1, sleepD=1, sleepE=1, sleepF=1, tswave=0)
WS_H  = 0x500000
WS_MR = 0x510000
WS_Q  = 0x10000
WS_FL = 0x50000
WS_E  = 0x60000
WS_F  = 0xA0000
WS_D  = 0x100000
WS_TS = 0x600000
WS_SIZE = 0x700000
SM   = 131072
QT   = SM
RED  = SM
PT   = SM + 16384
WL   = PT
MX   = SM + 20480
LS   = SM + 20992
SV   = SM + 21504
QB   = SM + 25856
OB   = SM + 27136
RED2 = SM + 28160
LDS_BYTES = 163840
SVS = 1088
QBS = 320
TAGMUL = 0x9E3779B1
LOG2E = 1.4426950408889634
SCALE = (128 ** -0.5) * LOG2E
def fhex(x): return '0x%08x' % struct.unpack('<I', struct.pack('<f', x))[0]
sX, sI, sW, sTAG, sEP = 's3', 's4', 's5', 's6', 's7'
WS = 's[8:11]'; SA = 's[12:15]'; SB = 's[44:47]'; SC = 's[48:51]'
P_X, P_CKV, P_WQ, P_WUK, P_WUV, P_WO, P_W1, P_W2, P_C, P_WMOD, P_OUT, P_DBG, P_WS = 16, 18, 20, 22, 24, 26, 30, 32, 34, 36, 38, 40, 42
sWB = 's52'
sT0, sT1, sT2, sT3 = 's53', 's54', 's55', 's56'
sT4, sT5, sT6, sT7 = 's72', 's73', 's74', 's75'
sPLO, sPHI = 's57', 's58'
sCNT = 's59'
mT4 = 's[60:61]'
sU0, sU1 = 's62', 's63'
sCH, sBA, sS, sHH = 's64', 's65', 's66', 's67'
sR0, sR1, sR2, sR3 = 's68', 's69', 's70', 's71'
MK = 96
TSREG = [76,78,80,82,84,86,88,90,92,94,28,0]
TSSLOT = dict(start=0, hp_loaded=1, hp_pub=2, wq_landed=1, h_got=2, q_pub=3, ckv_iss=3, c_got=4, b1=5, b3=6, d_st=7, d_flag=8,
              dfl_got=9, d_got=10, e_pub=11, e_trig=9, e_got=10, f_pub=11, mr_pub=9, fe_got=10, out_st=11)
vL, vG, vT, vB4 = 'v1', 'v2', 'v3', 'v4'
def vr(a, n=1): return f'v{a}' if n == 1 else f'v[{a}:{a+n-1}]'
class Gen:
    def __init__(self, cfg):
        self.cfg = dict(CFG); self.cfg.update(cfg)
        self.a = Asm(); self.tsnames = []; self.failsites = []
    def ts(self, name):
        if not self.cfg['ts']: return
        slots = self.cfg.get('tsmap') or TSSLOT
        if name not in slots: return
        r = TSREG[slots[name]]
        if name not in self.tsnames: self.tsnames.append(name)
        self.a(f's_memrealtime s[{r}:{r+1}]')
    def srd(self, quad, ptr, size):
        q = int(quad[2:quad.index(':')])
        self.a(f's_mov_b32 s{q}, s{ptr}\ns_mov_b32 s{q+1}, s{ptr+1}\ns_mov_b32 s{q+2}, {size}\ns_mov_b32 s{q+3}, 0x00020000')
    def nt(self, key='nt'): return ' nt' if self.cfg[key] else ''
    def poll_begin(self):
        l = self.a.label('poll')
        self.a(f's_mov_b32 {sCNT}, {self.cfg["limit"]}\n{l}:')
        return l
    def poll_end(self, l, code, sleep, vacc):
        a = self.a; ok = a.label('ok')
        if code not in self.failsites: self.failsites.append(code)
        a(f'v_cmp_ne_u32 vcc, 0, {vacc}')
        a(f's_cbranch_vccz {ok}')
        a(f's_sub_u32 {sCNT}, {sCNT}, 1')
        a(f's_cbranch_scc1 L_fail_{code}')
        if sleep: a(f's_sleep {sleep}')
        a(f's_branch {l}')
        a(f'{ok}:')
    def poll_trig(self, voff, soff, ra, code, vacc):
        a = self.a
        if code not in self.failsites: self.failsites.append(code)
        l = a.label('pt'); ok = a.label('ptok')
        ld = lambda r: a(f'buffer_load_dwordx2 {vr(r,2)}, {voff}, {WS}, {soff} offen sc1')
        a(f's_mov_b32 {sCNT}, {self.cfg["limit"]}')
        ld(ra)
        a(f'{l}:')
        ld(ra+2)
        a(f's_waitcnt vmcnt(1)\nv_cmp_ne_u32 vcc, {sTAG}, v{ra+1}\ns_cbranch_vccz {ok}')
        ld(ra)
        a(f's_waitcnt vmcnt(1)\nv_cmp_ne_u32 vcc, {sTAG}, v{ra+3}\ns_cbranch_vccz {ok}')
        a(f's_sub_u32 {sCNT}, {sCNT}, 1\ns_cbranch_scc1 L_fail_{code}\ns_branch {l}\n{ok}:')
    def tagchk(self, vacc, regs):
        a = self.a
        for k, r in enumerate(regs):
            if k == 0: a(f'v_xor_b32 {vacc}, {sTAG}, {r}')
            else: a(f'v_bitop3_b32 {vacc}, {vacc}, {r}, {sTAG} bitop3:0xf6')
    def crossrow(self, regs, tmp, op):
        a = self.a
        for sw in ('v_permlane16_swap_b32', 'v_permlane32_swap_b32'):
            for r, t in zip(regs, tmp): a(f'v_mov_b32 {t}, {r}')
            for r, t in zip(regs, tmp): a(f'{sw} {r}, {t}')
            for r, t in zip(regs, tmp): a(f'{op} {r}, {r}, {t}')
    def allsum(self, regs, tmp, op='v_add_f32'):
        a = self.a
        for n in (8, 4, 2, 1):
            for r in regs: a(f'{op}_dpp {r}, {r}, {r} row_ror:{n} row_mask:0xf bank_mask:0xf')
        self.crossrow(regs, tmp, op)
    def ckv_prep(self, v):
        a = self.a
        self.srd(SA, P_CKV, 16 << 20)
        a(f'v_lshlrev_b32 v{v}, 4, {vL}')
        for k in range(1, 8): a(f'v_xor_b32 v{v+k}, {k << 5}, v{v}')
    def ckv_group(self, gi, v, ntkey):
        a = self.a
        a(f's_add_u32 {sU1}, {sWB}, {gi*4096}\ns_mov_b32 m0, {sU1}\ns_add_u32 {sU0}, {sCH}, {sU1}')
        for k in range(4):
            n = 4*gi + k
            off = f' offset:{k*1024}' if k else ''
            a(f'buffer_load_dwordx4 v{v + (n & 7)}, {SA}, {sU0} offen{off}{self.nt(ntkey)} lds')
    def dma_ckv_p(self):
        a = self.a
        thr = self.cfg.get('pthr', 2)
        self.srd(SA, P_CKV, 16 << 20)
        a(f'v_lshlrev_b32 v6, 4, {vL}')
        for k in range(1, 8): a(f'v_xor_b32 v{6+k}, {k << 5}, v6')
        for n in range(16):
            if n % 4 == 0:
                a(f's_add_u32 {sT1}, {sWB}, {(n>>2)*4096}')
                a(f's_mov_b32 m0, {sT1}')
                a(f's_add_u32 {sT0}, {sCH}, {sT1}')
            off = f' offset:{(n & 3)*1024}' if n & 3 else ''
            a(f'buffer_load_dwordx4 v{6 + (n & 7)}, {SA}, {sT0} offen{off}{self.nt("nt_ckv_p")} lds')
            if thr and n == thr - 1: a('s_waitcnt vmcnt(0)')
    def dma_groups(self, srd, voff4, sregs, mregs, nt):
        a = self.a
        for sr, mr in zip(sregs, mregs):
            a(f's_mov_b32 m0, {mr}\ns_nop 0')
            for k in range(4):
                off = f' offset:{k*1024}' if k else ''
                a(f'buffer_load_dwordx4 {voff4[k]}, {srd}, {sr} offen{off}{nt} lds')
    def rot_groups(self, ng, rot, sbase, step_log2, mbase, sregs, mregs, tmp=sCNT):
        a = self.a
        for j in range(ng):
            if rot is None:
                a(f's_add_u32 {sregs[j]}, {sbase}, {j << step_log2}')
                a(f's_add_u32 {mregs[j]}, {mbase}, {j*4096}')
            else:
                a(f's_add_u32 {tmp}, {rot}, {j}\ns_and_b32 {tmp}, {tmp}, {ng-1}')
                a(f's_lshl_b32 {sregs[j]}, {tmp}, {step_log2}\ns_add_u32 {sregs[j]}, {sregs[j]}, {sbase}')
                a(f's_lshl_b32 {mregs[j]}, {tmp}, 12\ns_add_u32 {mregs[j]}, {mregs[j]}, {mbase}')
    def voff128(self, v, rowstride):
        a = self.a
        a(f'''
        v_lshrrev_b32 v{v}, 3, {vL}
        v_mul_u32_u24 v{v}, {rowstride}, v{v}
        v_and_b32 v{v+1}, 7, {vL}
        v_lshlrev_b32 v{v+2}, 1, {vG}
        v_xor_b32 v{v+1}, v{v+1}, v{v+2}
        v_lshl_add_u32 v{v}, v{v+1}, 4, v{v}
        ''')
        for k in range(1, 4): a(f'v_add_u32 v{v+k}, {k*(8*rowstride-1024)}, v{v}')
        return [f'v{v+k}' for k in range(4)]
    def tr128_addr(self, v, base_s):
        a = self.a
        a(f'''
        v_lshrrev_b32 v{v}, 2, {vT}
        v_lshl_add_u32 v{v}, {vG}, 2, v{v}
        v_lshrrev_b32 v{v+1}, 1, v{v}
        v_and_b32 v{v+1}, 3, v{v+1}
        v_lshlrev_b32 v{v+1}, 5, v{v+1}
        v_lshl_add_u32 v{v}, v{v}, 7, v{v+1}
        v_lshrrev_b32 v{v+1}, 1, {vB4}
        v_lshl_add_u32 v{v}, v{v+1}, 4, v{v}
        v_and_b32 v{v+1}, 1, {vB4}
        v_lshl_add_u32 v{v}, v{v+1}, 3, v{v}
        v_add_u32 v{v}, {base_s}, v{v}
        ''')
        for ct in range(1, 4): a(f'v_xor_b32 v{v+ct}, {ct << 5}, v{v}')
        return [f'v{v+ct}' for ct in range(4)]
    def tr_reads(self, addrs, kss, rb, dst, base_off=0):
        a = self.a
        for ks in kss:
            for ct, ad in enumerate(addrs):
                d = dst + 4 * (ks * len(addrs) + ct)
                for hi in range(2):
                    a(f'ds_read_b64_tr_b16 {vr(d + 2*hi, 2)}, {ad} offset:{base_off + (32*ks + 16*hi)*rb}')
    def sel4(self, dst, srcs, masks):
        a = self.a
        a(f'v_cndmask_b32 {dst}, {srcs[0]}, {srcs[1]}, {masks[0]}')
        a(f'v_cndmask_b32 {dst}, {dst}, {srcs[2]}, {masks[1]}')
        a(f'v_cndmask_b32 {dst}, {dst}, {srcs[3]}, {masks[2]}')
    def masks_t(self):
        for k, val in enumerate((0x22222222, 0x44444444, 0x88888888)):
            self.a(f's_mov_b32 s{MK+2*k}, {val:#x}\ns_mov_b32 s{MK+2*k+1}, {val:#x}')
        return [f's[{MK+2*k}:{MK+2*k+1}]' for k in range(3)]
    def masks_q(self):
        for k, val in enumerate((0x00f000f0, 0x0f000f00, 0xf000f000)):
            self.a(f's_mov_b32 s{MK+2*k}, {val:#x}\ns_mov_b32 s{MK+2*k+1}, {val:#x}')
        return [f's[{MK+2*k}:{MK+2*k+1}]' for k in range(3)]
    def masks_g(self):
        for k, (lo, hi) in enumerate(((0xffff0000, 0), (0, 0x0000ffff), (0, 0xffff0000))):
            self.a(f's_mov_b32 s{MK+2*k}, {lo:#x}\ns_mov_b32 s{MK+2*k+1}, {hi:#x}')
        return [f's[{MK+2*k}:{MK+2*k+1}]' for k in range(3)]
    def mfma(self, acc, A, B, first):
        self.a(f'v_mfma_f32_16x16x32_bf16 {vr(acc,4)}, {vr(A,4)}, {vr(B,4)}, {"0" if first else vr(acc,4)}')
    def tree_add(self, regs):
        a = self.a; n = len(regs); step = 1
        while step < n:
            for k in range(0, n - step, 2*step): a(f'v_add_f32 {regs[k]}, {regs[k]}, {regs[k+step]}')
            step *= 2
    def prologue(self):
        a = self.a
        a('''
        s_cmp_ge_u32 s2, 256
        s_cbranch_scc1 L_end
        s_load_dwordx16 s[16:31], s[0:1], 0
        s_load_dwordx8 s[32:39], s[0:1], 64
        s_load_dwordx4 s[40:43], s[0:1], 96
        ''')
        self.ts('start')
        a(f'''
        v_lshrrev_b32 v5, 6, v0
        v_and_b32 {vL}, 63, v0
        v_readfirstlane_b32 {sW}, v5
        v_lshrrev_b32 {vG}, 4, {vL}
        v_and_b32 {vT}, 15, {vL}
        v_and_b32 {vB4}, 3, {vL}
        s_and_b32 {sX}, s2, 7
        s_lshr_b32 {sI}, s2, 3
        ''')
        if self.cfg.get('ixor'): a(f's_xor_b32 {sI}, {sI}, {self.cfg["ixor"]}')
        a(f'''
        s_lshl_b32 {sWB}, {sW}, 14
        s_mov_b32 s60, 0x000f000f
        s_mov_b32 s61, 0x000f000f
        s_lshl_b32 {sCH}, {sX}, 4
        s_and_b32 {sT0}, {sI}, 15
        s_add_u32 {sCH}, {sCH}, {sT0}
        s_lshr_b32 {sBA}, {sCH}, 5
        s_and_b32 {sS}, {sCH}, 31
        s_lshr_b32 {sHH}, {sI}, 4
        ''')
        if self.cfg.get('hhswap', True): a(f's_xor_b32 {sHH}, {sHH}, 1')
        a(f'''
        s_lshl_b32 {sCH}, {sCH}, 17
        ''')
        if self.cfg.get('codepf'):
            sk = a.label('nocpf')
            a(f's_cmp_lg_u32 {sI}, {self.cfg.get("codepf_i", 31)}\ns_cbranch_scc1 {sk}')
            a(f's_cmp_ge_u32 {sW}, 3\ns_cbranch_scc1 {sk}')
            a(f'''
            s_getpc_b64 s[62:63]
            L_pc:
            s_sub_u32 s62, s62, L_pc-{KNAME}
            s_subb_u32 s63, s63, 0
            v_lshlrev_b32 v5, 7, {vL}
            s_lshl_b32 {sT0}, {sW}, 13
            v_add_u32 v5, {sT0}, v5
            s_mov_b32 {sT0}, L_end-{KNAME}
            v_cmp_gt_u32 vcc, {sT0}, v5
            s_and_saveexec_b64 s[100:101], vcc
            s_cbranch_execz L_cpf_skip
            global_load_dword v255, v5, s[62:63]
            L_cpf_skip:
            s_mov_b64 exec, s[100:101]
            {sk}:
            ''')
        a(f'''
        s_cmp_lt_u32 {sI}, 16
        s_cbranch_scc1 L_qpre
        ''')
    def after_kernarg(self):
        a = self.a
        a(f's_waitcnt lgkmcnt(0)\ns_load_dword {sEP}, s[{P_WS}:{P_WS+1}], 0')
    def tag(self):
        self.srd(WS, P_WS, WS_SIZE)
        self.a(f'''
        s_waitcnt lgkmcnt(0)
        s_add_u32 {sTAG}, {sEP}, 1
        s_mul_i32 {sTAG}, {sTAG}, {TAGMUL:#x}
        s_add_u32 {sTAG}, {sTAG}, 0x7f4a7c15
        ''')
    def dma_ckv(self, ntkey, groups=(0, 1, 2, 3), v=6):
        a = self.a
        self.srd(SA, P_CKV, 16 << 20)
        a(f'v_lshlrev_b32 v{v}, 4, {vL}')
        for k in range(1, 8): a(f'v_xor_b32 v{v+k}, {k << 5}, v{v}')
        for gi in groups:
            a(f's_add_u32 {sT1}, {sWB}, {gi*4096}')
            a(f's_mov_b32 m0, {sT1}')
            a(f's_add_u32 {sT0}, {sCH}, {sT1}')
            for k in range(4):
                n = 4*gi + k
                off = f' offset:{k*1024}' if k else ''
                a(f'buffer_load_dwordx4 v{v + (n & 7)}, {SA}, {sT0} offen{off}{self.nt(ntkey)} lds')
    def silu_addr(self):
        self.a(f'''
        v_lshlrev_b32 v16, 3, v0
        v_lshrrev_b32 v20, 7, v0
        v_mul_u32_u24 v20, {SVS}, v20
        v_and_b32 v21, 127, v0
        v_lshrrev_b32 v21, 3, v21
        v_lshl_add_u32 v20, v21, 6, v20
        v_and_b32 v21, 3, v0
        v_lshl_add_u32 v20, v21, 4, v20
        v_lshrrev_b32 v21, 2, v0
        v_and_b32 v21, 1, v21
        v_lshl_add_u32 v20, v21, 3, v20
        v_add_u32 v20, {SV}, v20
        ''')
    def silu_calc(self):
        a = self.a
        a('''
        v_lshlrev_b32 v22, 16, v18
        v_and_b32 v23, 0xffff0000, v18
        v_lshlrev_b32 v24, 16, v19
        v_and_b32 v25, 0xffff0000, v19
        ''')
        for r in range(22, 26): a(f'v_mul_f32 v{r+4}, {fhex(-LOG2E)}, v{r}')
        for r in range(22, 26): a(f'v_exp_f32 v{r+4}, v{r+4}')
        for r in range(22, 26): a(f'v_add_f32 v{r+4}, 1.0, v{r+4}')
        for r in range(22, 26): a(f'v_rcp_f32 v{r+4}, v{r+4}')
        for r in range(22, 26): a(f'v_mul_f32 v{r}, v{r}, v{r+4}')
        a('v_cvt_pk_bf16_f32 v22, v22, v23\nv_cvt_pk_bf16_f32 v23, v24, v25\nds_write_b64 v20, v[22:23]')
    def sv_frag_addr(self, v):
        self.a(f'''
        v_mul_u32_u24 {v}, {SVS}, {vB4}
        v_lshl_add_u32 {v}, {vG}, 4, {v}
        s_lshl_b32 {sT2}, {sW}, 7
        s_add_u32 {sT2}, {sT2}, {SV}
        v_add_u32 {v}, {sT2}, {v}
        ''')
    def p_pre(self):
        a = self.a
        a('; ================= P pre')
        if self.cfg.get('stopq'):
            self.after_kernarg(); self.tag(); a('s_branch L_exit')
        skip = a.label('nohp'); done = a.label('hpdone')
        a(f's_sub_u32 {sR0}, {sI}, 16\ns_cmp_ge_u32 {sR0}, 4\ns_cbranch_scc1 {skip}')
        vo = self.voff128(6, 6144)
        a(f"""
        s_lshl_b32 {sT0}, {sR0}, 2
        s_and_b32 {sT4}, {sW}, 3
        s_add_u32 {sT0}, {sT0}, {sT4}
        s_mul_i32 {sT0}, {sT0}, {32*6144}
        s_lshr_b32 {sT1}, {sW}, 2
        s_lshl_b32 {sT1}, {sT1}, 10
        s_add_u32 {sT0}, {sT0}, {sT1}
        s_lshl_b32 {sT3}, {sX}, 7
        s_add_u32 {sT0}, {sT0}, {sT3}
        v_lshrrev_b32 v16, 7, v0
        v_and_b32 v17, 127, v0
        v_lshlrev_b32 v18, 10, v16
        v_lshl_add_u32 v18, v17, 1, v18
        s_lshl_b32 {sT2}, {sR0}, 8
        s_lshl_b32 {sT5}, {sT4}, 10
        v_lshlrev_b32 v30, 4, {vL}
        v_lshrrev_b32 v39, 1, v0
        v_and_b32 v39, 3, v39
        v_lshrrev_b32 v37, 3, v0
        v_and_b32 v36, 1, v0
        v_lshlrev_b32 v35, 10, v39
        v_lshl_add_u32 v35, v37, 3, v35
        v_lshl_add_u32 v35, v36, 2, v35
        """)
        self.after_kernarg()
        self.srd(SB, P_C, 4096); self.srd(SC, P_X, 4096); self.srd(SA, P_WMOD, 512 * 6144)
        self.ts('hp_karg')
        a(f"""
        buffer_load_ushort v20, v18, {SB}, {sT2} offen
        buffer_load_dwordx4 v[40:43], v30, {SC}, {sT5} offen
        buffer_load_dword v38, v35, {SC}, {sT3} offen
        """)
        self.dma_groups(SA, vo, [sT0], [sWB], self.nt())
        self.tag()
        ad = self.tr128_addr(6, sWB)
        mq = self.masks_q()
        a(f"""
        v_mul_u32_u24 v10, {QBS}, v16
        v_lshrrev_b32 v11, 5, v17
        v_lshl_add_u32 v10, v11, 6, v10
        v_lshrrev_b32 v11, 2, v17
        v_and_b32 v11, 3, v11
        v_lshl_add_u32 v10, v11, 4, v10
        v_lshrrev_b32 v11, 4, v17
        v_and_b32 v11, 1, v11
        v_lshl_add_u32 v10, v11, 3, v10
        v_and_b32 v11, 3, v17
        v_lshl_add_u32 v10, v11, 1, v10
        v_add_u32 v10, {SV}, v10
        v_mul_u32_u24 v11, {QBS}, {vB4}
        v_lshl_add_u32 v11, {vG}, 4, v11
        s_lshl_b32 {sT0}, {sT4}, 6
        s_add_u32 {sT0}, {sT0}, {SV}
        v_add_u32 v11, {sT0}, v11
        s_lshl_b32 {sT0}, {sW}, 10
        s_add_u32 {sT0}, {sT0}, {RED}
        v_lshrrev_b32 v12, 2, {vT}
        v_lshlrev_b32 v12, 8, v12
        v_lshl_add_u32 v12, {vG}, 6, v12
        v_lshl_add_u32 v12, {vB4}, 4, v12
        v_add_u32 v12, {sT0}, v12
        v_lshlrev_b32 v13, 3, v0
        v_add_u32 v13, {RED}, v13
        v_lshlrev_b32 v14, 3, v39
        v_add_u32 v14, {LS}, v14
        v_lshlrev_b32 v15, 11, v39
        v_lshl_add_u32 v15, v37, 4, v15
        v_lshl_add_u32 v15, v36, 3, v15
        s_lshl_b32 {sT6}, {sR0}, 13
        s_lshl_b32 {sT0}, {sX}, 8
        s_add_u32 {sT6}, {sT6}, {sT0}
        s_add_u32 {sT6}, {sT6}, {WS_H}
        s_lshl_b32 {sT3}, {sT4}, 3
        s_add_u32 {sT3}, {sT3}, {LS}
        v_mov_b32 v50, {sT3}
        s_cmp_eq_u32 {sR0}, 0
        s_cselect_b32 {sT7}, 1.0, 0
        v_mov_b32 v45, {sTAG}
        s_waitcnt vmcnt(6)
        v_lshlrev_b32 v20, 16, v20
        v_mul_f32 v21, {fhex(-LOG2E)}, v20
        v_exp_f32 v21, v21
        s_nop 0
        v_add_f32 v21, 1.0, v21
        v_rcp_f32 v21, v21
        s_nop 0
        v_mul_f32 v20, v20, v21
        v_cvt_pk_bf16_f32 v20, v20, v20
        ds_write_b16 v10, v20
        s_waitcnt vmcnt(5)
        """)
        self.ts('hp_c')
        for k in range(4):
            a(f'v_lshlrev_b32 v{52+2*k}, 16, v{40+k}\nv_and_b32 v{53+2*k}, 0xffff0000, v{40+k}')
        a('v_add_f32 v48, v52, v53\nv_mul_f32 v49, v52, v52\nv_fmac_f32 v49, v53, v53')
        for k in range(54, 60): a(f'v_add_f32 v48, v48, v{k}\nv_fmac_f32 v49, v{k}, v{k}')
        self.allsum(['v48', 'v49'], ['v51', 'v52'])
        a(f"""
        v_mul_f32 v48, {fhex(1/512)}, v48
        v_mul_f32 v49, {fhex(1/512)}, v49
        v_fma_f32 v49, -v48, v48, v49
        v_max_f32 v49, 0, v49
        v_add_f32 v49, {fhex(1e-5)}, v49
        v_rsq_f32 v49, v49
        s_nop 0
        ds_write_b64 v50, v[48:49]
        s_waitcnt lgkmcnt(0)
        """)
        self.ts('hp_ln')
        a('s_barrier\nds_read_b128 v[52:55], v11\ns_waitcnt vmcnt(0)')
        self.ts('hp_loaded')
        self.tr_reads(ad, range(1), 128, 16)
        a('s_waitcnt lgkmcnt(0)')
        for ct in range(4): self.mfma(60+4*ct, 16+4*ct, 52, True)
        for r in range(4): self.sel4(f'v{76+r}', [f'v{60+4*ct+r}' for ct in range(4)], mq)
        a('ds_write_b128 v12, v[76:79]\ns_waitcnt lgkmcnt(0)\ns_barrier')
        fin = a.label('hpfin')
        a(f's_cmp_ge_u32 {sW}, 2\ns_cbranch_scc1 {fin}')
        for ww in range(8): a(f'ds_read_b64 {vr(16+2*ww,2)}, v13 offset:{ww*1024}')
        a("""
        ds_read_b64 v[32:33], v14
        v_lshlrev_b32 v40, 16, v38
        v_and_b32 v41, 0xffff0000, v38
        s_waitcnt lgkmcnt(0)
        v_sub_f32 v40, v40, v32
        v_sub_f32 v41, v41, v32
        v_mul_f32 v40, v40, v33
        v_mul_f32 v41, v41, v33
        """)
        self.tree_add(['v16', 'v18', 'v20', 'v22'])
        self.tree_add(['v17', 'v19', 'v21', 'v23'])
        self.tree_add(['v24', 'v26', 'v28', 'v30'])
        self.tree_add(['v25', 'v27', 'v29', 'v31'])
        a(f"""
        v_add_f32 v24, {sT7}, v24
        v_add_f32 v25, {sT7}, v25
        v_fmac_f32 v16, v40, v24
        v_fmac_f32 v17, v41, v25
        v_cvt_pk_bf16_f32 v44, v16, v17
        buffer_store_dwordx2 v[44:45], v15, {WS}, {sT6} offen sc1
        {fin}:
        s_barrier
        """)
        self.ts('hp_pub')
        a(f's_branch {done}\n{skip}:')
        if self.cfg.get('pfuk', True):
            a(f'''
            s_sub_u32 {sT0}, {sI}, 20
            s_mul_i32 {sT0}, {sT0}, 6
            s_add_u32 {sT0}, {sT0}, {sW}
            s_lshl_b32 {sT0}, {sT0}, 3
            s_lshl_b32 {sT0}, {sT0}, 13
            s_lshl_b32 {sT1}, {sX}, 10
            s_add_u32 {sT0}, {sT0}, {sT1}
            v_lshrrev_b32 v6, 3, {vL}
            v_lshlrev_b32 v6, 13, v6
            v_and_b32 v7, 7, {vL}
            v_lshl_add_u32 v6, v7, 7, v6
            ''')
        self.after_kernarg()
        if self.cfg.get('pfuk', True):
            sk2 = a.label('nouk')
            self.srd(SB, P_WUK, 4 << 20)
            a(f's_cmp_ge_u32 {sW}, 6\ns_cbranch_scc1 {sk2}\nbuffer_load_dword v98, v6, {SB}, {sT0} offen\n{sk2}:')
        self.tag()
        if self.cfg.get('pdelay'):
            a(f's_lshl_b32 {sT0}, {sX}, 8\ns_add_u32 {sT0}, {sT0}, {WS_H + 3*8192}\nv_mov_b32 v5, 0')
            l = self.poll_begin()
            a(f'buffer_load_dwordx2 v[6:7], v5, {WS}, {sT0} offen sc1\ns_waitcnt vmcnt(0)')
            self.tagchk('v8', ['v7'])
            self.poll_end(l, 12, 4, 'v8')
        a(f'{done}:')
        a(f"""
        s_sub_u32 {sR0}, {sI}, 16
        s_lshr_b32 {sR1}, {sR0}, 2
        s_lshl_b32 {sT0}, {sX}, 2
        s_add_u32 {sR1}, {sR1}, {sT0}          ; hp
        s_and_b32 {sR0}, {sR0}, 3              ; bp
        s_mov_b32 {sPLO}, 0x05040100
        s_mov_b32 {sPHI}, 0x07060302
        """)
        self.touch_uv()
        if self.cfg.get('pwait'): a('s_waitcnt vmcnt(0)')
        self.dma_ckv_p()
        self.ts('ckv_iss')
        self.srd(SB, P_WUV, 4 << 20)
        a(f"""
        v_lshlrev_b32 v96, 16, {vG}
        v_lshl_add_u32 v96, {vT}, 4, v96
        s_lshl_b32 {sU0}, {sW}, 19
        s_lshl_b32 {sU1}, {sR1}, 8
        s_add_u32 {sU0}, {sU0}, {sU1}
        """)
        self.wuv_at('e', False)
    def wuv_group(self, gi):
        a = self.a
        a(f's_add_u32 {sU1}, {sU0}, {((gi >> 1) * 32 + (gi & 1) * 4) * 8192}')
        for e in range(4):
            n = 4*gi + e
            a(f'buffer_load_dwordx4 {vr(112+4*n,4)}, v96, {SB}, {sU1} offen{self.nt()}')
            if e < 3: a(f's_add_u32 {sU1}, {sU1}, 8192')
    def wuv_at(self, pos, guard=True):
        a = self.a
        g1 = [gi for gi, p in enumerate(self.cfg['gpl']) if p == pos]
        g2 = [gi for gi, p in enumerate(self.cfg['gplhp']) if p == pos]
        if g1 == g2:
            if not g1: return len(g1)
            sk = a.label('nouv')
            if guard: a(f's_cmp_lt_u32 {sI}, 16\ns_cbranch_scc1 {sk}')
            for gi in g1: self.wuv_group(gi)
            a(f'{sk}:')
            return len(g1)
        done = a.label('uvd'); hp = a.label('uvhp')
        if guard: a(f's_cmp_lt_u32 {sI}, 16\ns_cbranch_scc1 {done}')
        a(f's_cmp_lt_u32 {sI}, 20\ns_cbranch_scc1 {hp}')
        for gi in g1: self.wuv_group(gi)
        a(f's_branch {done}\n{hp}:')
        for gi in g2: self.wuv_group(gi)
        a(f'{done}:')
        assert pos not in ('x', 'y')
        return 0
    def wuv_unit(self, k):
        a = self.a
        a(f's_add_u32 {sU1}, {sU0}, {k * 32 * 8192}')
        for e in range(8):
            a(f'buffer_load_dwordx4 {vr(112+32*k+4*e,4)}, v96, {SB}, {sU1} offen{self.nt()}')
            if e < 7: a(f's_add_u32 {sU1}, {sU1}, 8192')
    def q_pre(self):
        a = self.a
        a('; ================= Q pre')
        a(f'''
        s_lshr_b32 {sR1}, {sI}, 2
        s_lshl_b32 {sT0}, {sX}, 2
        s_add_u32 {sR1}, {sR1}, {sT0}          ; hq
        s_and_b32 {sR0}, {sI}, 3               ; cq
        v_lshlrev_b32 v9, 1, {vG}
        v_xor_b32 v10, {vT}, v9
        v_lshlrev_b32 v6, 13, {vG}
        v_lshl_add_u32 v6, v10, 4, v6          ; k=0
        v_xor_b32 v7, 128, v6
        v_add_u32 v8, {2*31744}, v6            ; k=2
        v_add_u32 v9, {3*31744}, v7            ; k=3
        v_add_u32 v7, 31744, v7                ; k=1
        s_lshl_b32 {sU0}, {sW}, 19
        s_lshl_b32 {sU1}, {sR1}, 8
        s_add_u32 {sU0}, {sU0}, {sU1}
        ''')
        self.rot_groups(4, sR0, sU0, 17, sWB, [sT0, sT1, sT2, sT3], [sT4, sT5, sT6, sT7])
        a(f'''
        s_lshl_b32 {sU0}, {sR0}, 20
        s_add_u32 {sU0}, {sU0}, {sU1}
        s_lshl_b32 {sU1}, {sW}, 17
        s_add_u32 {sU0}, {sU0}, {sU1}
        ''')
        self.after_kernarg()
        self.ts('q_karg')
        self.srd(SA, P_WQ, 4 << 20)
        self.dma_groups(SA, ['v6', 'v7', 'v8', 'v9'], [sT0, sT1, sT2, sT3], [sT4, sT5, sT6, sT7], self.nt())
        self.ts('q_iss')
        self.srd(SB, P_WUK, 4 << 20)
        a(f's_lshl_b32 {sU1}, {sW}, 12\ns_add_u32 {sU1}, {sU1}, {SM}')
        self.dma_groups(SB, ['v6', 'v7', 'v8', 'v9'], [sU0], [sU1], self.nt())
        self.tag()
        a(f'''
        v_lshrrev_b32 v8, 2, {vT}
        v_lshl_add_u32 v8, {vG}, 2, v8
        v_and_b32 v9, 7, v8
        v_lshlrev_b32 v9, 5, v9
        v_lshl_add_u32 v8, v8, 8, v9
        v_lshrrev_b32 v9, 1, {vB4}
        v_lshl_add_u32 v8, v9, 4, v8
        v_and_b32 v9, 1, {vB4}
        v_lshl_add_u32 v8, v9, 3, v8
        v_add_u32 v8, {sWB}, v8
        ''')
        for ct in range(1, 8): a(f'v_xor_b32 v{8+ct}, {ct << 5}, v8')
        a(f'''
        v_lshlrev_b32 v152, 11, {vG}
        v_lshl_add_u32 v152, {vT}, 4, v152
        v_mul_u32_u24 v170, 192, {vG}
        v_lshrrev_b32 v171, 3, {vT}
        v_lshl_add_u32 v170, v171, 6, v170
        v_lshl_add_u32 v170, {vB4}, 4, v170
        v_lshrrev_b32 v171, 2, {vT}
        v_and_b32 v171, 1, v171
        v_lshl_add_u32 v170, v171, 3, v170
        v_add_u32 v170, {sWB}, v170
        v_mul_u32_u24 v174, 192, {vB4}
        v_lshl_add_u32 v174, {vG}, 4, v174
        v_add_u32 v174, {sWB}, v174
        s_lshl_b32 {sT3}, {sW}, 8
        s_add_u32 {sT3}, {sT3}, {WS_H}
        s_add_u32 {sT2}, {sWB}, 2048
        v_lshrrev_b32 v156, 2, {vT}
        v_lshlrev_b32 v156, 8, v156
        v_lshl_add_u32 v156, {vG}, 6, v156
        v_lshl_add_u32 v156, {vB4}, 4, v156
        v_add_u32 v156, {sT2}, v156
        v_lshlrev_b32 v157, 2, v0
        v_add_u32 v157, 2048, v157
        v_add_u32 v159, 0x10000, v157          ; regions 4..7
        v_lshrrev_b32 v154, 2, {vL}
        v_and_b32 v154, 3, v154
        v_mul_u32_u24 v154, {QBS}, v154
        v_lshl_add_u32 v154, {vG}, 3, v154
        v_lshl_add_u32 v154, {vB4}, 1, v154
        s_lshl_b32 {sT2}, {sW}, 5
        s_add_u32 {sT2}, {sT2}, {QB}
        v_add_u32 v154, {sT2}, v154
        v_mul_u32_u24 v155, {QBS}, {vB4}
        v_lshl_add_u32 v155, {vG}, 4, v155
        v_add_u32 v155, {QB}, v155
        v_lshlrev_b32 v158, 16, {vB4}
        v_lshl_add_u32 v158, {vG}, 4, v158
        s_lshl_b32 {sT4}, {sR1}, 11
        s_lshl_b32 {sT1}, {sR0}, 9
        s_add_u32 {sT4}, {sT4}, {sT1}
        s_lshl_b32 {sT1}, {sW}, 6
        s_add_u32 {sT4}, {sT4}, {sT1}
        s_add_u32 {sT4}, {sT4}, {WS_Q}
        s_mov_b32 {sT5}, {fhex(SCALE)}
        v_mov_b32 v149, {sTAG}
        v_mov_b32 v151, {sTAG}
        v_and_b32 v5, 7, {vT}
        v_lshlrev_b32 v5, 5, v5
        v_lshlrev_b32 v160, 4, {vG}
        v_xor_b32 v160, v160, v5
        v_lshl_add_u32 v160, {vT}, 8, v160
        v_add_u32 v160, {sU1}, v160
        v_xor_b32 v161, 64, v160
        v_xor_b32 v162, 128, v160
        v_xor_b32 v163, 192, v160
        s_waitcnt vmcnt(4)
        ''')
        self.ts('wq_landed')
        a(f's_add_u32 {sT0}, {sT3}, 8192\ns_add_u32 {sT1}, {sT3}, 16384\ns_add_u32 {sT2}, {sT3}, 24576')
        def hloads():
            for k, so in enumerate((sT3, sT0, sT1, sT2)):
                a(f'buffer_load_dwordx4 {vr(128+4*k,4)}, v152, {WS}, {so} offen sc1')
        atrig = self.cfg.get('atrig', False)
        if not atrig: hloads()
        self.tr_reads([f'v{8+ct}' for ct in range(8)], range(2), 256, 16)
        mq = self.masks_q()
        self.ckv_prep(176)
        a(f's_waitcnt vmcnt({0 if atrig else 4})')
        for st in range(4): a(f'ds_read_b128 {vr(112+4*st,4)}, v{160+st}')
        if atrig:
            sk = a.label('noatrig')
            a(f's_cmp_lg_u32 {sW}, 0\ns_cbranch_scc1 {sk}')
            a(f'''
            v_lshrrev_b32 v168, 3, {vL}
            v_and_b32 v168, 3, v168
            v_lshlrev_b32 v168, 13, v168
            v_and_b32 v169, 7, {vL}
            v_lshl_add_u32 v168, v169, 8, v168
            v_add_u32 v168, {3*2048+248}, v168
            s_mov_b32 {sU0}, {WS_H}
            ''')
            l = self.poll_begin()
            a(f'buffer_load_dwordx2 v[128:129], v168, {WS}, {sU0} offen sc1\ns_waitcnt vmcnt(0)')
            self.tagchk('v153', ['v129'])
            self.poll_end(l, 13, self.cfg['sleepA'], 'v153')
            a(f'{sk}:\ns_barrier')
            self.ts('q_atrig')
            l = self.poll_begin()
            hloads()
            a('s_waitcnt vmcnt(0)')
        else:
            first = a.label('hfirst')
            a(f's_mov_b32 {sCNT}, {self.cfg["limit"]}\ns_branch {first}')
            l = a.label('poll'); a(f'{l}:')
            hloads()
            a(f'{first}:\ns_waitcnt vmcnt(0)')
        self.tagchk('v153', [f'v{128+4*k+o}' for k in range(4) for o in (1, 3)])
        self.poll_end(l, 1, self.cfg['sleepA2'], 'v153')
        self.ts('h_got')
        a(f's_mov_b32 {sT0}, 0x00003f80\ns_mov_b32 {sT1}, 0x3f800000')
        for k in range(4):
            for j, (src, sel) in enumerate(((128+4*k, sT0), (128+4*k, sT1), (130+4*k, sT0), (130+4*k, sT1))):
                a(f'v_dot2_f32_bf16 v{144+j}, v{src}, {sel}, {"0" if k == 0 else f"v{144+j}"}')
        a('v_cvt_pk_bf16_f32 v144, v144, v145\nv_cvt_pk_bf16_f32 v145, v146, v147\nds_write_b64 v170, v[144:145]\ns_waitcnt lgkmcnt(0)')
        a('ds_read_b128 v[128:131], v174\nds_read_b128 v[136:139], v174 offset:64')
        if self.cfg.get('ckvA', True): self.ckv_group(1, 176, 'nt_ckv_q')
        a('s_waitcnt lgkmcnt(0)')
        for ks in range(2):
            for ct in range(8): self.mfma(80+4*ct, 16+4*(ks*8+ct), 128+8*ks, ks == 0)
        self.ts('q_mfma')
        for hf in range(2):
            for r in range(4): self.sel4(f'v{136+4*hf+r}', [f'v{80+16*hf+4*ct+r}' for ct in range(4)], mq)
            a(f'ds_write_b128 v156, {vr(136+4*hf,4)} offset:{hf*1024}')
        a('s_waitcnt lgkmcnt(0)')
        self.ts('q_wr')
        if self.cfg.get('ckvB2'): self.ckv_group(2, 176, 'nt_ckv_q')
        a('s_barrier')
        self.ts('q_bar1')
        if self.cfg['ckvB']: self.ckv_group(2, 176, 'nt_ckv_q')
        for ww in range(8): a(f'ds_read_b32 v{128+ww}, v{157 if ww < 4 else 159} offset:{(ww&3)*16384}')
        a('s_waitcnt lgkmcnt(0)')
        self.tree_add([f'v{128+k}' for k in range(8)])
        a('''
        v_cvt_pk_bf16_f32 v128, v128, v128
        ds_write_b16 v154, v128
        s_waitcnt lgkmcnt(0)
        ''')
        if self.cfg.get('ckvB3'): self.ckv_group(2, 176, 'nt_ckv_q')
        a('s_barrier')
        self.ts('q_bar2')
        for st in range(4): a(f'ds_read_b128 {vr(128+4*st,4)}, v155 offset:{st*64}')
        for st in range(4):
            a(f's_waitcnt lgkmcnt({3-st})')
            self.mfma(144, 112+4*st, 128+4*st, st == 0)
        a(f'''
        v_mul_f32 v144, {sT5}, v144
        v_mul_f32 v145, {sT5}, v145
        v_mul_f32 v146, {sT5}, v146
        v_mul_f32 v147, {sT5}, v147
        v_cvt_pk_bf16_f32 v148, v144, v145
        v_cvt_pk_bf16_f32 v150, v146, v147
        s_mov_b64 exec, {mT4}
        buffer_store_dwordx4 v[148:151], v158, {WS}, {sT4} offen sc1
        s_mov_b64 exec, -1
        ''')
        self.ts('q_pub')
        a('s_barrier')
        for gi in [0, 3] + ([] if self.cfg.get('ckvA', True) else [1]) + ([] if (self.cfg['ckvB'] or self.cfg.get('ckvB2') or self.cfg.get('ckvB3')) else [2]): self.ckv_group(gi, 176, 'nt_ckv_q')
        self.touch_o_prep()
    def att_addr(self):
        a = self.a
        a(f'''
        v_and_b32 v5, 7, {vT}
        v_lshlrev_b32 v5, 5, v5
        v_lshlrev_b32 v244, 4, {vG}
        v_xor_b32 v244, v244, v5
        v_lshl_add_u32 v244, {vT}, 10, v244
        v_xor_b32 v245, 64, v244
        v_xor_b32 v246, 128, v244
        v_xor_b32 v247, 192, v244
        v_add_u32 v248, {QT}, v244
        v_add_u32 v249, {QT}, v245
        v_add_u32 v250, {QT}, v246
        v_add_u32 v251, {QT}, v247
        v_add_u32 v244, {sWB}, v244
        v_add_u32 v245, {sWB}, v245
        v_add_u32 v246, {sWB}, v246
        v_add_u32 v247, {sWB}, v247
        v_lshrrev_b32 v80, 2, {vT}
        v_lshl_add_u32 v80, {vG}, 2, v80
        v_and_b32 v81, 7, v80
        v_lshlrev_b32 v81, 5, v81
        s_lshl_b32 {sT0}, {sW}, 7
        v_lshl_add_u32 v82, {vB4}, 4, {sT0}
        v_xor_b32 v81, v81, v82
        v_lshl_add_u32 v80, v80, 10, v81
        v_lshrrev_b32 v81, 1, {vB4}
        v_lshl_add_u32 v80, v81, 3, v80
        v_xor_b32 v81, 8, v80
        v_xor_b32 v82, 64, v80
        v_xor_b32 v83, 72, v80
        v_add_u32 v100, 0x10000, v80
        v_add_u32 v101, 0x10000, v81
        v_add_u32 v102, 0x10000, v82
        v_add_u32 v103, 0x10000, v83
        v_mov_b32 v240, 0x3f803f80
        v_mov_b32 v241, 0x3f803f80
        v_mov_b32 v242, 0x3f803f80
        v_mov_b32 v243, 0x3f803f80
        v_lshlrev_b32 v84, 4, v0
        v_lshrrev_b32 v85, 2, {vL}
        v_lshlrev_b32 v85, 11, v85
        v_lshl_add_u32 v85, {vB4}, 9, v85
        v_add_u32 v85, 504, v85
        s_lshr_b32 {sT0}, {sW}, 1
        v_and_b32 v86, 127, v0
        v_lshrrev_b32 v87, 1, v86
        s_lshl_b32 {sT1}, {sT0}, 1
        v_xor_b32 v87, {sT1}, v87
        v_lshlrev_b32 v87, 4, v87
        v_and_b32 v86, 1, v86
        v_lshl_add_u32 v86, v86, 3, v87
        s_lshl_b32 {sT1}, {sT0}, 10
        s_add_u32 {sT1}, {sT1}, {QT}
        v_add_u32 v86, {sT1}, v86
        v_xor_b32 v87, 128, v86
        v_lshlrev_b32 v89, 5, {vT}
        s_lshl_b32 {sT1}, {sW}, 2
        s_add_u32 {sT2}, {sT1}, {MX}
        v_add_u32 v88, {sT2}, v89
        s_add_u32 {sT2}, {sT1}, {LS}
        v_add_u32 v91, {sT2}, v89
        v_add_u32 v92, {LS}, v89
        v_add_u32 v89, {MX}, v89
        s_lshl_b32 {sT0}, {sT0}, 10
        s_and_b32 {sT1}, {sW}, 1
        s_lshl_b32 {sT1}, {sT1}, 3
        s_add_u32 {sT0}, {sT0}, {sT1}
        s_add_u32 {sT0}, {sT0}, {PT}
        v_lshl_add_u32 v90, {vL}, 4, {sT0}
        v_lshlrev_b32 v93, 4, {vL}
        v_add_u32 v93, {PT}, v93
        v_lshlrev_b32 v94, 15, {vT}
        v_lshl_add_u32 v94, {vG}, 4, v94
        v_lshlrev_b32 v95, 8, {vT}
        s_lshl_b32 {sT0}, {sBA}, 5
        s_lshl_b32 {sT1}, {sHH}, 4
        s_add_u32 {sT0}, {sT0}, {sT1}          ; row0
        s_lshl_b32 {sR3}, {sT0}, 8
        s_lshl_b32 {sT1}, {sS}, 3
        s_add_u32 {sR3}, {sR3}, {sT1}
        s_add_u32 {sR3}, {sR3}, {WS_FL}
        s_lshl_b32 {sR2}, {sT0}, 5
        s_add_u32 {sR2}, {sR2}, {sS}
        s_lshl_b32 {sR2}, {sR2}, 10
        s_lshl_b32 {sT1}, {sW}, 7
        s_add_u32 {sR2}, {sR2}, {sT1}
        s_add_u32 {sR2}, {sR2}, {WS_D}
        s_lshl_b32 {sT4}, {sBA}, 16
        s_lshl_b32 {sT1}, {sHH}, 15
        s_add_u32 {sT4}, {sT4}, {sT1}
        s_add_u32 {sT4}, {sT4}, {WS_Q}
        s_add_u32 {sT5}, {sT4}, 8192
        s_add_u32 {sT6}, {sT4}, 16384
        s_add_u32 {sT7}, {sT4}, 24576
        ''')
    def wuv_prep(self):
        a = self.a
        self.srd(SB, P_WUV, 4 << 20)
        a(f'''
        v_lshlrev_b32 v96, 16, {vG}
        v_lshl_add_u32 v96, {vT}, 4, v96
        s_lshl_b32 {sU0}, {sW}, 19
        s_lshl_b32 {sU1}, {sR1}, 8
        s_add_u32 {sU0}, {sU0}, {sU1}
        ''')
    def touch_uv(self):
        a = self.a; done = a.label('tuv')
        self.srd(SC, P_WUV, 4 << 20)
        a(f"""
        v_lshrrev_b32 v97, 1, {vL}
        v_lshlrev_b32 v97, 13, v97
        v_and_b32 v99, 1, {vL}
        v_lshl_add_u32 v97, v99, 7, v97
        s_cmp_ge_u32 {sW}, 4
        s_cbranch_scc1 {done}
        s_lshl_b32 {sT0}, {sR1}, 8
        s_lshl_b32 {sT1}, {sR0}, 20
        s_add_u32 {sT0}, {sT0}, {sT1}
        s_lshl_b32 {sT1}, {sW}, 18
        s_add_u32 {sT0}, {sT0}, {sT1}
        buffer_load_dword v98, v97, {SC}, {sT0} offen
        {done}:
        """)
    def touch_o_prep(self):
        a = self.a
        self.srd(SC, P_WO, 4 << 20)
        a(f"""
        v_lshlrev_b32 v97, 7, {vL}
        s_lshl_b32 {sU0}, {sR1}, 17
        s_lshl_b32 {sU1}, {sR0}, 15
        s_add_u32 {sU0}, {sU0}, {sU1}
        s_lshl_b32 {sU1}, {sW}, 13
        s_add_u32 {sU0}, {sU0}, {sU1}
        """)
    def touch_o(self):
        a = self.a; done = a.label('to')
        a(f's_cmp_ge_u32 {sI}, 16\ns_cbranch_scc1 {done}\ns_cmp_ge_u32 {sW}, 4\ns_cbranch_scc1 {done}')
        a(f'buffer_load_dword v98, v97, {SC}, {sU0} offen\n{done}:')
    def attention(self):
        a = self.a
        a('; ================= attention')
        if self.cfg.get('ctrig', True):
            sk = a.label('notrig'); sq = a.label('qnotrig')
            a(f's_cmp_lt_u32 {sI}, 16\ns_cbranch_scc1 {sq}')
            a(f's_cmp_lg_u32 {sW}, 0\ns_cbranch_scc1 {sk}')
            if self.cfg.get('ptrig', True):
                self.poll_trig('v85', sT4, 176, 2, 'v192')
            else:
                l = self.poll_begin()
                a(f'buffer_load_dwordx2 v[176:177], v85, {WS}, {sT4} offen sc1\ns_waitcnt vmcnt(0)')
                self.tagchk('v192', ['v177'])
                self.poll_end(l, 2, self.cfg['sleepC'], 'v192')
            a(f'{sk}:\ns_barrier')
            self.ts('p_ctrig')
            a(f'{sq}:')
        l = self.poll_begin()
        for n, so in enumerate((sT4, sT5, sT6, sT7)):
            a(f'buffer_load_dwordx4 {vr(176+4*n,4)}, v84, {WS}, {so} offen sc1')
        a('s_waitcnt vmcnt(4)')
        for st in range(16): a(f'ds_read_b128 {vr(16+4*st,4)}, v{244+(st&3)} offset:{(st>>2)*256}')
        a('s_waitcnt vmcnt(0)')
        self.tagchk('v192', [f'v{176+4*n+o}' for n in range(4) for o in (1, 3)])
        self.poll_end(l, 3, self.cfg['sleepC2'], 'v192')
        self.ts('c_got')
        for n in range(4):
            a(f'v_mov_b32 v{177+4*n}, v{178+4*n}')
            a(f'ds_write_b64 v{86 + (n & 1)}, {vr(176+4*n,2)} offset:{n*4096}')
        self.wuv_at('c')
        a('s_waitcnt lgkmcnt(0)\ns_barrier')
        self.ts('b1')
        NB = 8
        for st in range(NB): a(f'ds_read_b128 {vr(196+4*st,4)}, v{248+(st&3)} offset:{(st>>2)*256}')
        if self.cfg.get('pfQo', True): self.touch_o()
        for st in range(16):
            a(f's_waitcnt lgkmcnt({min(16, st+NB) - st - 1})')
            self.mfma(192, 16+4*st, 196+4*(st % NB), st == 0)
            if st + NB < 16:
                s2 = st + NB
                a(f'ds_read_b128 {vr(196+4*(s2%NB),4)}, v{248+(s2&3)} offset:{(s2>>2)*256}')
        self.ts('a_sdone')
        def pva(ks):
            for pp in range(2):
                for T in range(2):
                    d = 16 + 4 * ((ks * 2 + pp) * 2 + T)
                    base = (80 if ks < 2 else 100) + 2*pp + T
                    for hi in range(2):
                        a(f'ds_read_b64_tr_b16 {vr(d+2*hi,2)}, v{base} offset:{(ks & 1)*32768 + hi*16384}')
        early = self.cfg['pvaearly']
        if early: pva(0); pva(1)
        self.wuv_at('s')
        a('v_max_f32 v228, v192, v193\nv_max3_f32 v228, v228, v194, v195')
        self.crossrow(['v228'], ['v229'], 'v_max_f32')
        a('ds_write_b32 v88, v228')
        if early:
            pva(2); pva(3)
            a('s_waitcnt lgkmcnt(15)')
        else:
            a('s_waitcnt lgkmcnt(0)')
        self.ts('a_preb2')
        a('s_barrier')
        self.ts('a_b2')
        a('ds_read_b128 v[236:239], v89\nds_read_b128 v[232:235], v89 offset:16')
        self.wuv_at('b')
        if not early: pva(0)
        a(f's_waitcnt lgkmcnt({0 if early else 8})')
        a("""
        v_max3_f32 v236, v236, v237, v238
        v_max3_f32 v232, v232, v233, v234
        v_max3_f32 v228, v236, v239, v232
        v_max_f32 v228, v228, v235
        v_sub_f32 v192, v192, v228
        v_sub_f32 v193, v193, v228
        v_sub_f32 v194, v194, v228
        v_sub_f32 v195, v195, v228
        v_exp_f32 v192, v192
        v_exp_f32 v193, v193
        v_exp_f32 v194, v194
        v_exp_f32 v195, v195
        s_nop 0
        v_cvt_pk_bf16_f32 v234, v192, v193
        v_cvt_pk_bf16_f32 v235, v194, v195
        ds_write_b64 v90, v[234:235]
        """)
        if not self.cfg['ones']:
            a('v_add_f32 v229, v192, v193\nv_add_f32 v230, v194, v195\nv_add_f32 v229, v229, v230')
            if not early: pva(1)
            self.crossrow(['v229'], ['v230'], 'v_add_f32')
            a('ds_write_b32 v91, v229')
            if not early: pva(2); pva(3)
        elif not early: pva(1); pva(2); pva(3)
        self.wuv_at('p')
        self.ts('a_pvaiss')
        a('s_waitcnt lgkmcnt(0)')
        self.ts('a_preb3')
        a('s_barrier')
        self.ts('b3')
        for ks in range(4): a(f'ds_read_b128 {vr(196+4*ks,4)}, v93 offset:{ks*1024}')
        if not self.cfg['ones']: a('ds_read_b128 v[236:239], v92\nds_read_b128 v[240:243], v92 offset:16')
        for ks in range(4):
            a(f's_waitcnt lgkmcnt({3-ks + (0 if self.cfg["ones"] else 2)})')
            if self.cfg['ones']: self.mfma(236, 240, 196+4*ks, ks == 0)
            for pp in range(2):
                for T in range(2): self.mfma(212+4*(pp*2+T), 16+4*((ks*2+pp)*2+T), 196+4*ks, ks == 0)
        self.ts('a_pvdone')
        if not self.cfg['ones']:
            a('s_waitcnt lgkmcnt(0)')
            self.tree_add([f'v{236+k}' for k in range(8)])
        a(f"""
        v_rcp_f32 v232, v236
        v_log_f32 v238, v236
        v_mov_b32 v239, {sTAG}
        v_add_f32 v238, v228, v238
        """)
        for pp in range(2):
            b = 212 + 8*pp
            if self.cfg['pkmul']:
                for k in range(4): a(f'v_pk_mul_f32 {vr(b+2*k,2)}, {vr(b+2*k,2)}, v[232:233] op_sel_hi:[1,0]')
            else:
                for k in range(8): a(f'v_mul_f32 v{b+k}, v232, v{b+k}')
            for k in range(4): a(f'v_cvt_pk_bf16_f32 v{196+4*pp+k}, v{b+2*k}, v{b+2*k+1}')
            off = ' offset:64' if pp else ''
            a(f'buffer_store_dwordx4 {vr(196+4*pp,4)}, v94, {WS}, {sR2} offen{off} sc1')
        self.ts('d_st')
    def d_flag(self):
        a = self.a; sk = a.label('nofl')
        a(f'''
        s_barrier
        s_cmp_lg_u32 {sW}, 0
        s_cbranch_scc1 {sk}
        s_mov_b64 exec, 0xffff
        buffer_store_dwordx2 v[238:239], v95, {WS}, {sR3} offen sc1
        s_mov_b64 exec, -1
        {sk}:
        ''')
        self.ts('d_flag')
    def loader(self, srd, vo, kind, steps=(0, 1, 2, 3)):
        a = self.a
        a(f's_sub_u32 {sU0}, {sW}, 4')
        for st in steps:
            a(f"""
            s_add_u32 {sT0}, {sR0}, {st}
            s_and_b32 {sT0}, {sT0}, 3
            s_lshl_b32 {sT0}, {sT0}, 1
            s_lshr_b32 {sT1}, {sU0}, 1
            s_add_u32 {sT0}, {sT0}, {sT1}          ; region
            s_and_b32 {sT1}, {sU0}, 1
            s_lshl_b32 {sT1}, {sT1}, 3             ; n0
            s_lshl_b32 {sT4}, {sT0}, 14
            s_lshl_b32 {sT2}, {sT1}, 10
            s_add_u32 {sT4}, {sT4}, {sT2}          ; m0
            s_add_u32 {sT5}, {sT4}, 4096
            """)
            if kind == 'uv':
                a(f"""
                s_lshl_b32 {sT2}, {sT0}, 19
                s_lshl_b32 {sT3}, {sT1}, 15
                s_add_u32 {sT2}, {sT2}, {sT3}
                s_lshl_b32 {sT3}, {sR1}, 8
                s_add_u32 {sT2}, {sT2}, {sT3}
                s_add_u32 {sT3}, {sT2}, {4 << 15}
                """)
            else:
                a(f"""
                s_lshl_b32 {sT2}, {sT0}, 7
                s_lshl_b32 {sT3}, {sT1}, 13
                s_add_u32 {sT2}, {sT2}, {sT3}
                s_lshl_b32 {sT3}, {sR1}, 17
                s_add_u32 {sT2}, {sT2}, {sT3}
                s_add_u32 {sT3}, {sT2}, {4 << 13}
                """)
            self.dma_groups(srd, vo, [sT2, sT3], [sT4, sT5], self.nt())
    def perm_unit(self, src, dst):
        a = self.a
        for q in range(4):
            for p in range(4):
                X = src + 8*q + p; Y = src + 8*q + 4 + p
                a(f'v_perm_b32 v{dst+8*p+q}, v{Y}, v{X}, {sPLO}')
                a(f'v_perm_b32 v{dst+8*p+4+q}, v{Y}, v{X}, {sPHI}')
    def p_post(self):
        a = self.a
        a('; ================= P post')
        a('s_barrier')
        ng = self.wuv_at('x', False)
        self.srd(SA, P_WO, 4 << 20)
        vo = self.voff128(6, 1024)
        a(f"""
        s_lshl_b32 s98, {sR1}, 17
        s_lshl_b32 s99, {sW}, 7
        s_add_u32 s98, s98, s99
        """)
        self.rot_groups(4, sR0, 's98', 15, sWB, [sT0, sT1, sT2, sT3], [sT4, sT5, sT6, sT7])
        wf = self.cfg.get('wofirst', 0)
        SR = [sT0, sT1, sT2, sT3]; MR = [sT4, sT5, sT6, sT7]
        if wf: self.dma_groups(SA, vo, SR[:wf], MR[:wf], self.nt())
        a(f's_waitcnt vmcnt({4*ng + 4*wf})')
        self.d_flag()
        ny = self.wuv_at('y', False)
        if wf < 4: self.dma_groups(SA, vo, SR[wf:], MR[wf:], self.nt())
        self.ts('p_ldiss')
        ad = self.tr128_addr(220, sWB)
        a(f"""
        s_lshl_b32 {sT0}, {sR0}, 5
        s_add_u32 {sT0}, {sT0}, {sR1}
        s_lshl_b32 {sT1}, {sT0}, 8
        s_add_u32 {sT1}, {sT1}, {WS_FL}
        s_lshl_b32 {sT2}, {sT0}, 15
        s_lshl_b32 {sT3}, {sW}, 12
        s_add_u32 {sT2}, {sT2}, {sT3}
        s_add_u32 {sT2}, {sT2}, {WS_D}
        s_lshl_b32 {sR2}, {sT0}, 11
        s_lshl_b32 {sT5}, {sW}, 8
        s_add_u32 {sR2}, {sR2}, {sT5}
        s_add_u32 {sR2}, {sR2}, {WS_E}         ; E soff
        v_and_b32 v5, 31, {vL}
        v_lshlrev_b32 v5, 3, v5
        v_lshlrev_b32 v6, 4, {vL}
        s_lshl_b32 {sT0}, {sW}, 11
        s_add_u32 {sT0}, {sT0}, {RED}
        v_lshrrev_b32 v7, 1, {vL}
        v_and_b32 v7, 1, v7
        v_lshlrev_b32 v7, 4, v7
        v_lshl_add_u32 v7, {vL}, 5, v7
        v_add_u32 v7, {sT0}, v7
        v_xor_b32 v8, 16, v7
        s_lshl_b32 {sT0}, {sW}, 3
        s_add_u32 {sT0}, {sT0}, {MX}
        v_mov_b32 v9, {sT0}
        v_lshlrev_b32 v10, 2, v0
        v_add_u32 v10, {RED}, v10
        v_and_b32 v11, 7, {vL}
        v_lshlrev_b32 v11, 3, v11
        v_add_u32 v11, {MX}, v11
        v_lshlrev_b32 v12, 1, v0
        v_add_u32 v12, {OB}, v12
        s_lshl_b32 {sT0}, {sW}, 7
        s_add_u32 {sT0}, {sT0}, {OB}
        v_lshl_add_u32 v13, {vG}, 4, {sT0}
        s_lshl_b32 {sT0}, {sW}, 9
        s_add_u32 {sT0}, {sT0}, {RED2}
        v_lshlrev_b32 v14, 5, {vT}
        v_lshl_add_u32 v14, {vG}, 3, v14
        v_add_u32 v14, {sT0}, v14
        v_lshlrev_b32 v15, 3, {vL}
        v_add_u32 v15, {RED2}, v15
        v_lshlrev_b32 v232, 6, {vG}
        v_lshrrev_b32 v233, 1, {vL}
        v_and_b32 v233, 3, v233
        v_lshl_add_u32 v232, v233, 4, v232
        v_lshrrev_b32 v233, 3, {vL}
        v_and_b32 v233, 1, v233
        v_lshl_add_u32 v232, v233, 3, v232
        v_and_b32 v233, 1, {vL}
        v_lshl_add_u32 v232, v233, 2, v232
        s_lshl_b32 {sT0}, {sW}, 8
        s_add_u32 {sT0}, {sT0}, {WL}
        v_add_u32 v232, {sT0}, v232
        v_lshl_add_u32 v233, {vG}, 4, {sT0}
        v_lshlrev_b32 v234, 6, {vT}
        v_lshl_add_u32 v234, {vG}, 4, v234     ; E voff
        v_mov_b32 v229, {sTAG}
        v_mov_b32 v231, {sTAG}
        """)
        mg = self.masks_g()
        a(f's_waitcnt vmcnt({4*(4-wf)})')
        self.perm_unit(112, 80)
        self.perm_unit(144, 112)
        l = self.poll_begin()
        a(f'buffer_load_dwordx2 v[176:177], v5, {WS}, {sT1} offen sc1\ns_waitcnt vmcnt(0)')
        self.tagchk('v178', ['v177'])
        self.poll_end(l, 4, self.cfg['sleepD'], 'v178')
        self.ts('dfl_got')
        for k in range(4):
            off = f' offset:{k*1024}' if k else ''
            a(f'buffer_load_dwordx4 {vr(180+4*k,4)}, v6, {WS}, {sT2} offen{off} sc1')
        self.tr_reads(ad, range(4), 128, 16)
        a('v_mov_b32 v178, v176')
        for n in (8, 4, 2, 1): a(f'v_max_f32_dpp v178, v178, v178 row_ror:{n} row_mask:0xf bank_mask:0xf')
        a('v_mov_b32 v179, v178\nv_permlane16_swap_b32 v178, v179\nv_max_f32 v178, v178, v179')
        a("""
        v_sub_f32 v176, v176, v178
        v_exp_f32 v176, v176
        s_nop 0
        v_cvt_pk_bf16_f32 v177, v176, v176
        v_and_b32 v176, 0xffff0000, v177
        v_and_b32 v177, 0xffff, v177
        v_mov_b32 v178, v176
        """)
        for n in (8, 4, 2, 1): a(f'v_add_f32_dpp v178, v178, v178 row_ror:{n} row_mask:0xf bank_mask:0xf')
        a('v_mov_b32 v179, v178\nv_permlane16_swap_b32 v178, v179\nv_add_f32 v178, v178, v179\nv_rcp_f32 v203, v178')
        a(f's_lshl_b32 {sT3}, {sW}, 2')
        for k in range(4):
            a(f's_add_u32 {sT0}, {sT3}, {k}')
            a(f'v_readlane_b32 s{16+k}, v177, {sT0}')
            a(f'v_readlane_b32 s{32+k}, v176, {sT0}')
        for k in range(4):
            a(f's_waitcnt vmcnt({3-k})')
            for p in range(4):
                sreg = 180 + 4*k + p
                c0 = '0' if k == 0 else f'v{212+2*p}'; c1 = '0' if k == 0 else f'v{213+2*p}'
                a(f'v_dot2_f32_bf16 v{212+2*p}, v{sreg}, s{16+k}, {c0}')
                a(f'v_dot2_f32_bf16 v{213+2*p}, v{sreg}, s{32+k}, {c1}')
        self.ts('d_got')
        a('ds_write_b128 v7, v[212:215]\nds_write_b128 v8, v[216:219]')
        a('s_waitcnt lgkmcnt(0)\ns_barrier')
        self.ts('p_b1')
        for ww in range(8): a(f'ds_read_b32 v{192+ww}, v10 offset:{ww*2048}')
        a('s_waitcnt lgkmcnt(0)')
        self.tree_add([f'v{192+k}' for k in range(8)])
        a('v_mov_b32 v202, v192') if False else None
        a("""
        v_mul_f32 v192, v192, v203
        v_cvt_pk_bf16_f32 v202, v192, v192
        ds_write_b16 v12, v202
        s_waitcnt lgkmcnt(0)
        ds_read_b128 v[176:179], v13
        ds_read_b128 v[180:183], v13 offset:64
        """)
        self.ts('p_o')
        for k in range(2):
            a(f's_waitcnt lgkmcnt({1-k})')
            for u in range(8): self.mfma(184+4*u, 176+4*k, 80+32*k+4*u, k == 0)
        self.sel4('v216', [f'v{184+4*u}' for u in (0, 2, 4, 6)], mg)
        self.sel4('v217', [f'v{184+4*u}' for u in (1, 3, 5, 7)], mg)
        self.ts('p_uv')
        a('ds_write_b64 v14, v[216:217]\ns_waitcnt lgkmcnt(0)\ns_barrier')
        self.ts('p_b2')
        for ww in range(8): a(f'ds_read_b64 {vr(176+2*ww,2)}, v15 offset:{ww*512}')
        mt = self.masks_t()
        a('s_waitcnt lgkmcnt(0)')
        self.tree_add([f'v{176+2*k}' for k in range(8)])
        self.tree_add([f'v{177+2*k}' for k in range(8)])
        a('v_cvt_pk_bf16_f32 v176, v176, v177\nds_write_b32 v232, v176\ns_waitcnt lgkmcnt(0)')
        for ks in range(4): a(f'ds_read_b128 {vr(180+4*ks,4)}, v233 offset:{ks*64}')
        for ks in range(4):
            a(f's_waitcnt lgkmcnt({3-ks})')
            for ct in range(4): self.mfma(196+4*ct, 16+4*(ks*4+ct), 180+4*ks, ks == 0)
        self.ts('p_omf')
        for r in range(4): self.sel4(f'v{212+r}', [f'v{196+4*ct+r}' for ct in range(4)], mt)
        a(f"""
        v_cvt_pk_bf16_f32 v228, v212, v213
        v_cvt_pk_bf16_f32 v230, v214, v215
        s_mov_b64 exec, {mT4}
        buffer_store_dwordx4 v[228:231], v234, {WS}, {sR2} offen sc1
        s_mov_b64 exec, -1
        """)
        self.ts('e_pub')
    def ffn(self):
        a = self.a
        a('s_waitcnt vmcnt(0)')
        self.d_flag()
        self.srd(SA, P_W1, 512 * 2752)
        vo = self.voff128(6, 2752)
        a(f'''
        s_mul_i32 {sU0}, {sW}, {64*2752}
        s_lshl_b32 {sT2}, {sR1}, 7
        s_add_u32 {sU0}, {sU0}, {sT2}
        s_add_u32 {sT0}, {sU0}, {32*2752}
        s_add_u32 {sT1}, {sWB}, 4096
        ''')
        self.dma_groups(SA, vo, [sU0, sT0], [sWB, sT1], self.nt())
        self.srd(SB, P_W2, 1376 * 1024)
        vo = self.voff128(10, 1024)
        a(f'''
        s_lshl_b32 {sU0}, {sR1}, 16
        s_lshl_b32 {sT2}, {sW}, 7
        s_add_u32 {sU0}, {sU0}, {sT2}
        s_add_u32 {sT0}, {sU0}, 32768
        s_add_u32 {sT1}, {sWB}, 8192
        s_add_u32 {sT2}, {sWB}, 12288
        ''')
        self.dma_groups(SB, vo, [sU0, sT0], [sT1, sT2], self.nt())
        self.srd(SC, P_X, 4096)
        a(f'''
        v_lshlrev_b32 v5, 1, v0
        s_lshl_b32 {sT0}, {sR0}, 10
        buffer_load_ushort v100, v5, {SC}, {sT0} offen
        v_lshrrev_b32 v5, 1, v0
        v_lshlrev_b32 v5, 3, v5
        s_lshl_b32 {sT0}, {sR0}, 13
        s_add_u32 {sT0}, {sT0}, {WS_MR}
        s_add_u32 {sT1}, {sT0}, 4096
        ''')
        ad = self.tr128_addr(8, sWB)
        mt = self.masks_t()
        a(f'''
        s_lshl_b32 {sT2}, {sR0}, 5
        s_lshl_b32 {sT4}, {sT2}, 11
        s_add_u32 {sT4}, {sT4}, {WS_E}
        s_lshl_b32 {sT3}, {sW}, 13
        s_add_u32 {sT5}, {sT4}, {sT3}
        s_add_u32 {sT6}, {sT5}, 4096
        v_and_b32 v12, 31, {vL}
        v_lshlrev_b32 v12, 11, v12
        v_add_u32 v12, 2040, v12
        v_lshlrev_b32 v13, 4, {vL}
        s_lshl_b32 {sT2}, {sW}, 11
        s_add_u32 {sT2}, {sT2}, {RED}
        v_lshl_add_u32 v14, {vL}, 4, {sT2}
        v_lshlrev_b32 v15, 2, v0
        v_add_u32 v15, {RED}, v15
        s_lshl_b32 {sT2}, {sW}, 3
        s_add_u32 {sT2}, {sT2}, {MX}
        v_mov_b32 v220, {sT2}
        v_and_b32 v221, 7, {vL}
        v_lshlrev_b32 v221, 3, v221
        v_add_u32 v221, {MX}, v221
        v_lshrrev_b32 v222, 5, {vL}
        v_lshlrev_b32 v222, 6, v222
        v_lshrrev_b32 v223, 2, {vL}
        v_and_b32 v223, 3, v223
        v_lshl_add_u32 v222, v223, 4, v222
        v_and_b32 v223, 1, {vG}
        v_lshl_add_u32 v222, v223, 3, v222
        v_lshl_add_u32 v222, {vB4}, 1, v222
        s_lshl_b32 {sT2}, {sW}, 8
        s_add_u32 {sT2}, {sT2}, {WL}
        v_add_u32 v222, {sT2}, v222
        v_lshl_add_u32 v223, {vG}, 4, {sT2}
        s_lshl_b32 {sT2}, {sW}, 8
        s_add_u32 {sT2}, {sT2}, {RED2}
        v_lshlrev_b32 v224, 6, {vT}
        v_lshl_add_u32 v224, {vG}, 4, v224
        v_add_u32 v224, {sT2}, v224
        v_lshlrev_b32 v225, 2, {vL}
        v_add_u32 v225, {RED2}, v225
        s_lshl_b32 {sT2}, {sR0}, 3
        s_add_u32 {sT2}, {sT2}, {sW}
        s_mul_i32 {sT2}, {sT2}, {24*512}
        s_lshl_b32 {sT3}, {sR1}, 9
        s_add_u32 {sT2}, {sT2}, {sT3}
        s_add_u32 {sT7}, {sT2}, {WS_F}         ; F soff
        v_lshlrev_b32 v226, 7, {vT}
        v_lshl_add_u32 v226, {vG}, 5, v226     ; F voff
        s_lshl_b32 {sT2}, {sR1}, 6
        v_add_u32 v227, {sT2}, {vL}
        s_movk_i32 {sT3}, 1376
        v_cmp_gt_u32 s[62:63], {sT3}, v227
        v_mov_b32 v141, {sTAG}
        v_mov_b32 v143, {sTAG}
        v_mov_b32 v145, {sTAG}
        v_mov_b32 v147, {sTAG}
        ''')
        a(f'v_and_b32 v6, 1, v0\nv_lshlrev_b32 v6, 4, v6')
        a('s_waitcnt vmcnt(0)\nv_lshlrev_b32 v100, 16, v100')
        self.tr_reads(ad, range(2), 128, 16)
        self.tr_reads(ad, range(2), 128, 48, 8192)
        l = self.poll_begin()
        a(f'''
        buffer_load_dwordx2 v[102:103], v5, {WS}, {sT0} offen sc1
        buffer_load_dwordx2 v[104:105], v5, {WS}, {sT0} offen offset:2048 sc1
        buffer_load_dwordx2 v[106:107], v5, {WS}, {sT1} offen sc1
        s_waitcnt vmcnt(0)
        ''')
        self.tagchk('v208', ['v103', 'v105', 'v107'])
        self.poll_end(l, 5, self.cfg['sleepM'], 'v208')
        for r in (102, 104, 106):
            a(f'v_lshrrev_b32 v{r}, v6, v{r}\nv_lshlrev_b32 v{r}, 16, v{r}')
        a(f's_mov_b32 {sT0}, 0x00003f80\ns_mov_b32 {sT1}, 0x3f800000')
        sk = a.label('noet')
        a(f's_cmp_lg_u32 {sW}, 0\ns_cbranch_scc1 {sk}')
        l = self.poll_begin()
        a(f'buffer_load_dwordx2 v[176:177], v12, {WS}, {sT4} offen sc1\ns_waitcnt vmcnt(0)')
        self.tagchk('v178', ['v177'])
        self.poll_end(l, 6, self.cfg['sleepE'], 'v178')
        a(f'{sk}:\ns_barrier')
        self.ts('e_trig')
        l = self.poll_begin()
        for k in range(8):
            so = sT5 if k < 4 else sT6
            off = f' offset:{(k&3)*1024}' if k & 3 else ''
            a(f'buffer_load_dwordx4 {vr(176+4*k,4)}, v13, {WS}, {so} offen{off} sc1')
        for k in range(8):
            a(f's_waitcnt vmcnt({7-k})')
            hf = k & 1; b = 176 + 4*k; acc = 112 + 4*hf
            for j, (src, sel) in enumerate(((b, sT0), (b, sT1), (b+2, sT0), (b+2, sT1))):
                c = '0' if k < 2 else f'v{acc+j}'
                a(f'v_dot2_f32_bf16 v{acc+j}, v{src}, {sel}, {c}')
            if k == 0: a(f'v_xor_b32 v208, {sTAG}, v{b+1}\nv_bitop3_b32 v208, v208, v{b+3}, {sTAG} bitop3:0xf6')
            else:
                for o in (1, 3): a(f'v_bitop3_b32 v208, v208, v{b+o}, {sTAG} bitop3:0xf6')
        self.poll_end(l, 7, 1, 'v208')
        self.ts('e_got')
        a('''
        ds_write_b128 v14, v[112:115]
        ds_write_b128 v14, v[116:119] offset:1024
        s_waitcnt lgkmcnt(0)
        s_barrier
        ''')
        self.ts('f_b1')
        for ww in range(8): a(f'ds_read_b32 v{112+ww}, v15 offset:{ww*2048}')
        a('s_waitcnt lgkmcnt(0)')
        self.tree_add([f'v{112+k}' for k in range(8)])
        a('v_fma_f32 v100, v102, v112, v100\nv_mov_b32 v120, v100\nv_mul_f32 v121, v100, v100')
        self.allsum(['v120', 'v121'], ['v122', 'v123'])
        a('ds_write_b64 v220, v[120:121]\ns_waitcnt lgkmcnt(0)\ns_barrier')
        self.ts('f_b2')
        a('ds_read_b64 v[112:113], v221\ns_waitcnt lgkmcnt(0)')
        for d in ('quad_perm:[1,0,3,2]', 'quad_perm:[2,3,0,1]', 'row_half_mirror'):
            for r in (112, 113): a(f'v_add_f32_dpp v{r}, v{r}, v{r} {d} row_mask:0xf bank_mask:0xf')
        a(f'''
        v_mul_f32 v112, {fhex(1/512)}, v112
        v_mul_f32 v113, {fhex(1/512)}, v113
        v_fma_f32 v113, -v112, v112, v113
        v_max_f32 v113, 0, v113
        v_add_f32 v113, {fhex(1e-5)}, v113
        v_rsq_f32 v113, v113
        v_sub_f32 v114, v100, v112
        v_mul_f32 v114, v114, v113
        v_add_f32 v115, v114, v104
        v_fmac_f32 v115, v114, v106
        v_cvt_pk_bf16_f32 v115, v115, v115
        ds_write_b16 v222, v115
        s_waitcnt lgkmcnt(0)
        ds_read_b128 v[112:115], v223
        ds_read_b128 v[116:119], v223 offset:64
        ''')
        for ks in range(2):
            a(f's_waitcnt lgkmcnt({1-ks})')
            for ct in range(4): self.mfma(120+4*ct, 16+4*(ks*4+ct), 112+4*ks, ks == 0)
        for r in range(4): self.sel4(f'v{136+r}', [f'v{120+4*ct+r}' for ct in range(4)], mt)
        a(f'''
        s_mov_b64 exec, {mT4}
        ds_write_b128 v224, v[136:139]
        s_mov_b64 exec, -1
        s_waitcnt lgkmcnt(0)
        s_barrier
        ''')
        self.ts('f_b3')
        for ww in range(8): a(f'ds_read_b32 v{112+ww}, v225 offset:{ww*256}')
        a('s_waitcnt lgkmcnt(0)')
        self.tree_add([f'v{112+k}' for k in range(8)])
        a('''
        v_max_f32 v112, 0, v112
        v_cndmask_b32 v112, 0, v112, s[62:63]
        v_cvt_pk_bf16_f32 v112, v112, v112
        ds_write_b16 v222, v112 offset:128
        s_waitcnt lgkmcnt(0)
        ds_read_b128 v[112:115], v223 offset:128
        ds_read_b128 v[116:119], v223 offset:192
        ''')
        for ks in range(2):
            a(f's_waitcnt lgkmcnt({1-ks})')
            for ct in range(4): self.mfma(120+4*ct, 48+4*(ks*4+ct), 112+4*ks, ks == 0)
        for r, d in enumerate((140, 142, 144, 146)): self.sel4(f'v{d}', [f'v{120+4*ct+r}' for ct in range(4)], mt)
        a(f'''
        s_mov_b64 exec, {mT4}
        buffer_store_dwordx4 v[140:143], v226, {WS}, {sT7} offen sc1
        buffer_store_dwordx4 v[144:147], v226, {WS}, {sT7} offen offset:16 sc1
        s_mov_b64 exec, -1
        ''')
        self.ts('f_pub')
    def final(self):
        a = self.a
        a('s_waitcnt vmcnt(0)')
        self.d_flag()
        a(f's_lshl_b32 {sR1}, {sX}, 2\ns_add_u32 {sR1}, {sR1}, {sR0}')
        self.silu_addr()
        self.srd(SB, P_C, 4096)
        a(f'buffer_load_dwordx2 v[18:19], v16, {SB}, 0 offen')
        self.srd(SA, P_WMOD, 512 * 6144)
        vo = self.voff128(6, 6144)
        a(f'''
        s_mul_i32 {sU0}, {sW}, {64*6144}
        s_lshl_b32 {sT2}, {sR1}, 7
        s_add_u32 {sU0}, {sU0}, {sT2}
        s_add_u32 {sU0}, {sU0}, 2048
        s_add_u32 {sT0}, {sU0}, {32*6144}
        s_add_u32 {sT1}, {sWB}, 4096
        ''')
        self.dma_groups(SA, vo, [sU0, sT0], [sWB, sT1], self.nt())
        self.sv_frag_addr('v12')
        ad = self.tr128_addr(8, sWB)
        a('s_waitcnt vmcnt(8)')
        self.silu_calc()
        a('s_waitcnt lgkmcnt(0)\ns_barrier')
        a('ds_read_b128 v[112:115], v12\nds_read_b128 v[116:119], v12 offset:64\ns_waitcnt vmcnt(0)')
        self.tr_reads(ad, range(2), 128, 24)
        a('s_waitcnt lgkmcnt(0)')
        for ks in range(2):
            for ct in range(4): self.mfma(120+4*ct, 24+4*(ks*4+ct), 112+4*ks, ks == 0)
        a(f'''
        s_lshl_b32 {sT0}, {sW}, 10
        s_add_u32 {sT0}, {sT0}, {RED}
        v_lshlrev_b32 v5, 6, {vG}
        v_lshl_add_u32 v5, {vT}, 4, v5
        v_add_u32 v5, {sT0}, v5
        s_mov_b64 exec, {mT4}
        ''')
        for ct in range(4): a(f'ds_write_b128 v5, {vr(120+4*ct,4)} offset:{ct*256}')
        a('s_mov_b64 exec, -1\ns_waitcnt lgkmcnt(0)\ns_barrier')
        sk = a.label('mrskip')
        a(f's_cmp_ge_u32 {sW}, 2\ns_cbranch_scc1 {sk}')
        a(f'v_lshlrev_b32 v5, 3, v0\nv_add_u32 v5, {RED}, v5')
        for ww in range(8): a(f'ds_read_b64 {vr(112+2*ww,2)}, v5 offset:{ww*1024}')
        a(f'''
        v_lshrrev_b32 v6, 1, v0
        v_and_b32 v6, 3, v6
        v_lshlrev_b32 v6, 13, v6
        v_lshrrev_b32 v7, 3, v0
        v_lshl_add_u32 v6, v7, 4, v6
        v_and_b32 v7, 1, v0
        v_lshl_add_u32 v6, v7, 3, v6
        s_lshl_b32 {sT0}, {sR1}, 8
        s_add_u32 {sT0}, {sT0}, {WS_MR}
        s_waitcnt lgkmcnt(0)
        ''')
        self.tree_add([f'v{112+2*k}' for k in range(8)])
        self.tree_add([f'v{113+2*k}' for k in range(8)])
        a(f'''
        v_cvt_pk_bf16_f32 v112, v112, v113
        v_mov_b32 v113, {sTAG}
        buffer_store_dwordx2 v[112:113], v6, {WS}, {sT0} offen sc1
        {sk}:
        ''')
        self.ts('mr_pub')
        a(f's_cmp_lg_u32 {sW}, 0\ns_cbranch_scc1 L_exit')
        self.srd(SC, P_X, 4096)
        self.srd(SA, P_OUT, 4096)
        a(f'''
        v_and_b32 v5, 31, {vL}
        v_lshlrev_b32 v6, 2, v5
        s_lshl_b32 {sT0}, {sR0}, 10
        s_lshl_b32 {sT1}, {sX}, 7
        s_add_u32 {sR2}, {sT0}, {sT1}
        buffer_load_dword v100, v6, {SC}, {sR2} offen
        v_lshlrev_b32 v7, 3, v5
        s_lshl_b32 {sT0}, {sR0}, 13
        s_lshl_b32 {sT1}, {sX}, 8
        s_add_u32 {sT0}, {sT0}, {sT1}
        s_add_u32 {sT0}, {sT0}, {WS_MR}
        s_add_u32 {sT1}, {sT0}, {3*2048}
        ''')
        a(f'''
        s_mov_b32 {sU0}, {sT0}
        s_mov_b32 {sU1}, {sT1}
        v_lshrrev_b32 v8, 5, {vL}
        v_lshl_add_u32 v9, v8, 11, v7
        s_lshl_b32 {sT7}, {sR0}, 16
        s_add_u32 {sT7}, {sT7}, {WS_E}
        s_lshl_b32 {sT1}, {sX}, 8
        s_add_u32 {sT0}, {sT7}, {sT1}
        v_lshlrev_b32 v11, 9, v8
        v_lshl_add_u32 v11, v5, 4, v11
        v_lshlrev_b32 v12, 11, v5
        v_add_u32 v12, 2040, v12
        v_min_u32 v13, 21, v5
        v_lshlrev_b32 v13, 9, v13
        v_add_u32 v13, 504, v13
        s_lshl_b32 {sT4}, {sR0}, 3
        s_add_u32 {sT4}, {sT4}, {sX}
        s_mul_i32 {sT4}, {sT4}, {24*512}
        s_add_u32 {sT4}, {sT4}, {WS_F}
        s_add_u32 {sT5}, {sT4}, 4096
        s_add_u32 {sT6}, {sT4}, 8192
        ''')
        l = self.poll_begin()
        a(f'buffer_load_dwordx2 v[112:113], v12, {WS}, {sT7} offen sc1\ns_waitcnt vmcnt(0)')
        self.tagchk('v10', ['v113'])
        self.poll_end(l, 12, self.cfg['sleepE'] + 2, 'v10')
        l = self.poll_begin()
        a(f'''
        buffer_load_dwordx2 v[102:103], v7, {WS}, {sU0} offen sc1
        buffer_load_dwordx2 v[104:105], v7, {WS}, {sU1} offen sc1
        s_mov_b32 {sT1}, {sT0}
        ''')
        for k in range(16):
            a(f'buffer_load_dwordx2 {vr(112+2*k,2)}, v9, {WS}, {sT1} offen sc1')
            if k < 15: a(f's_add_u32 {sT1}, {sT1}, 4096')
        a('s_waitcnt vmcnt(0)')
        self.tagchk('v10', ['v103', 'v105'] + [f'v{113+2*k}' for k in range(16)])
        self.poll_end(l, 9, 2, 'v10')
        a('''
        v_lshlrev_b32 v146, 16, v100
        v_and_b32 v147, 0xffff0000, v100
        v_lshlrev_b32 v152, 16, v102
        v_and_b32 v153, 0xffff0000, v102
        v_lshlrev_b32 v148, 16, v104
        v_and_b32 v149, 0xffff0000, v104
        ''')
        self.ts('fe_got')
        a(f's_mov_b32 {sT0}, 0x00003f80\ns_mov_b32 {sT1}, 0x3f800000')
        for k in range(16):
            c0 = '0' if k == 0 else 'v144'; c1 = '0' if k == 0 else 'v145'
            a(f'v_dot2_f32_bf16 v144, v{112+2*k}, {sT0}, {c0}\nv_dot2_f32_bf16 v145, v{112+2*k}, {sT1}, {c1}')
        a('''
        v_mov_b32 v150, v144
        v_mov_b32 v151, v145
        s_nop 0
        v_permlane32_swap_b32 v144, v150
        v_permlane32_swap_b32 v145, v151
        v_add_f32 v144, v144, v150
        v_add_f32 v145, v145, v151
        v_fmac_f32 v146, v152, v144
        v_fmac_f32 v147, v153, v145
        ''')
        if self.cfg.get('ftrig', False):
            l = self.poll_begin()
            a(f'buffer_load_dwordx2 v[112:113], v13, {WS}, {sT4} offen sc1\ns_waitcnt vmcnt(0)')
            self.tagchk('v10', ['v113'])
            self.poll_end(l, 14, self.cfg['sleepF'], 'v10')
        l = self.poll_begin()
        for k in range(11):
            so = (sT4, sT5, sT6)[k >> 2]
            off = f' offset:{(k&3)*1024}' if k & 3 else ''
            a(f'buffer_load_dwordx4 {vr(176+4*k,4)}, v11, {WS}, {so} offen{off} sc1')
        a('s_waitcnt vmcnt(0)')
        self.tagchk('v10', [f'v{176+4*k+o}' for k in range(11) for o in (1, 3)])
        self.poll_end(l, 10, self.cfg['sleepF'], 'v10')
        self.tree_add([f'v{176+4*k}' for k in range(11)])
        self.tree_add([f'v{178+4*k}' for k in range(11)])
        a(f'''
        v_mov_b32 v150, v176
        v_mov_b32 v151, v178
        s_nop 0
        v_permlane32_swap_b32 v176, v150
        v_permlane32_swap_b32 v178, v151
        v_add_f32 v176, v176, v150
        v_add_f32 v178, v178, v151
        v_fmac_f32 v146, v148, v176
        v_fmac_f32 v147, v149, v178
        v_cvt_pk_bf16_f32 v146, v146, v147
        s_mov_b32 exec_hi, 0
        buffer_store_dword v146, v6, {SA}, {sR2} offen
        s_mov_b64 exec, -1
        ''')
        self.ts('out_st')
    def epoch_update(self):
        a = self.a
        a(f's_cmp_lg_u32 {sW}, 0\ns_cbranch_scc1 L_exit')
        a(f'v_and_b32 v5, 7, {vL}\nv_lshlrev_b32 v5, 15, v5\nv_add_u32 v5, 2040, v5\ns_mov_b32 {sT0}, {WS_E}')
        l = self.poll_begin()
        a(f'buffer_load_dwordx2 v[6:7], v5, {WS}, {sT0} offen sc1\ns_waitcnt vmcnt(0)')
        self.tagchk('v8', ['v7'])
        self.poll_end(l, 11, 8, 'v8')
        a(f'''
        s_add_u32 {sT0}, {sEP}, 1
        v_mov_b32 v6, {sT0}
        v_mov_b32 v5, 0
        s_mov_b64 exec, 1
        buffer_store_dword v6, v5, {WS}, 0 offen sc1
        s_mov_b64 exec, -1
        ''')
    def build(self):
        a = self.a
        self.prologue()
        self.p_pre()
        a('s_branch L_att\nL_qpre:')
        self.q_pre()
        a('L_att:')
        self.att_addr()
        self.attention()
        a(f's_cmp_lt_u32 {sI}, 16\ns_cbranch_scc1 L_qpost')
        self.p_post()
        a('s_branch L_exit\nL_qpost:')
        a(f'''
        s_lshr_b32 {sT0}, {sI}, 2
        s_and_b32 {sR0}, {sI}, 3
        s_cmp_eq_u32 {sT0}, 3
        s_cbranch_scc1 L_final
        s_lshl_b32 {sR1}, {sT0}, 3
        s_add_u32 {sR1}, {sR1}, {sX}
        s_cmp_ge_u32 {sR1}, 22
        s_cbranch_scc1 L_idle
        ''')
        self.ffn()
        a('s_branch L_exit\nL_final:')
        self.final()
        a('s_branch L_exit\nL_idle:')
        a('s_waitcnt vmcnt(0)')
        self.d_flag()
        a(f's_cmp_eq_u32 s2, {7 + 8*11}\ns_cbranch_scc0 L_exit')
        self.epoch_update()
        a('s_branch L_exit')
        for code in self.failsites:
            a(f'L_fail_{code}:\ns_mov_b32 {sT0}, {code}\ns_branch L_fail')
        a(f'''
        L_fail:
        s_mov_b32 s12, s{P_DBG}
        s_mov_b32 s13, s{P_DBG+1}
        s_mov_b32 s14, 256
        s_mov_b32 s15, 0x00020000
        s_mov_b64 exec, 1
        s_lshl_b32 {sT1}, {sT0}, 2
        v_mov_b32 v5, {sT1}
        v_mov_b32 v6, s2
        v_add_u32 v6, 1000, v6
        buffer_store_dword v6, v5, s[12:15], 0 offen
        s_mov_b64 exec, -1
        L_exit:
        ''')
        self.ts('end')
        if self.cfg['ts']:
            sk = a.label('nots')
            a(f's_cmp_lg_u32 {sW}, {self.cfg["tswave"]}\ns_cbranch_scc1 {sk}')
            a(f's_waitcnt lgkmcnt(0)\ns_mov_b64 exec, 1\ns_lshl_b32 {sT0}, s2, 6\ns_add_u32 {sT0}, {sT0}, {WS_TS}\nv_mov_b32 v5, 0')
            for k in range(len(TSREG)):
                a(f'v_mov_b32 v6, s{TSREG[k]}\nbuffer_store_dword v6, v5, {WS}, {sT0} offen offset:{4*k}')
            a(f'{sk}:')
        if self.cfg.get('endwait', True) or self.cfg['ts']: a('s_waitcnt vmcnt(0) lgkmcnt(0)')
        a('L_end:\ns_endpgm')
        return a.finish()
HEADER = open('adaLN_cond__compressed_kv_cla__dense_activation_relu__decode.s.ref').read().split('; Override launch')[0]
def generate(cfg):
    g = Gen(cfg)
    body = g.build()
    init = ''
    if g.cfg['ts']:
        init = ''.join(f'    s_mov_b32 s{r}, 0\n' for r in TSREG[:10])
    txt = HEADER + f'''; @launch grid=(256,1,1) block=(512,1,1) lds={LDS_BYTES}
.amdgcn_target "amdgcn-amd-amdhsa--gfx950"
.text
.globl {KNAME}
.p2align 8
.type {KNAME},@function
{KNAME}:
{init}{body}.section .rodata,"a"
.p2align 6
.amdhsa_kernel {KNAME}
  .amdhsa_next_free_vgpr 256
  .amdhsa_next_free_sgpr 102
  .amdhsa_accum_offset 256
  .amdhsa_group_segment_fixed_size 0
  .amdhsa_kernarg_size 112
  .amdhsa_user_sgpr_count 2
  .amdhsa_user_sgpr_kernarg_segment_ptr 1
  .amdhsa_system_sgpr_workgroup_id_x 1
.end_amdhsa_kernel
'''
    return txt, g
if __name__ == '__main__':
    cfg = json.loads(sys.argv[2]) if len(sys.argv) > 2 else {}
    txt, g = generate(cfg)
    open(sys.argv[1], 'w').write(txt)
    json.dump(dict(ts=g.tsnames, slot=(g.cfg.get('tsmap') or TSSLOT), gen='g'), open(sys.argv[1] + '.json', 'w'))
    print('written', sys.argv[1], 'lines', txt.count('\n'), 'nops padded', g.a.npad)
```

```python
import sys, json, struct
from asmlib import Asm
KNAME = 'adaLN_cond__compressed_kv_cla__dense_activation_relu__decode_kernel'
CFG = dict(endwait=False, pkmul=False, pvaearly=False, ones=True, codepf=True, ptrig=False, gpl=['e','e','c','b'], gplhp=['c','s','b','p'], wofirst=2, wo_pre=0, pthr=0, ckvsplit=False, ts=False, nt=False, nt_ckv_p=False, nt_ckv_q=True, limit=20000,
           sleepA=1, sleepA2=1, ckvB=False, sleepM=16, sleepC2=1, ftrig=False, sleepC=1, sleepD=1, sleepE=1, sleepF=1, tswave=0)
WS_H  = 0x500000
WS_MR = 0x510000
WS_Q  = 0x10000
WS_FL = 0x50000
WS_E  = 0x60000
WS_F  = 0xA0000
WS_D  = 0x100000
WS_TS = 0x600000
WS_SIZE = 0x700000
SM   = 131072
QT   = SM
RED  = SM
PT   = SM + 16384
WL   = PT
MX   = SM + 20480
LS   = SM + 20992
SV   = SM + 21504
QB   = SM + 25856
OB   = SM + 27136
RED2 = SM + 28160
LDS_BYTES = 163840
SVS = 1088
QBS = 320
TAGMUL = 0x9E3779B1
LOG2E = 1.4426950408889634
SCALE = (128 ** -0.5) * LOG2E
def fhex(x): return '0x%08x' % struct.unpack('<I', struct.pack('<f', x))[0]
sX, sI, sW, sTAG, sEP = 's3', 's4', 's5', 's6', 's7'
WS = 's[8:11]'; SA = 's[12:15]'; SB = 's[44:47]'; SC = 's[48:51]'
P_X, P_CKV, P_WQ, P_WUK, P_WUV, P_WO, P_W1, P_W2, P_C, P_WMOD, P_OUT, P_DBG, P_WS = 16, 18, 20, 22, 24, 26, 30, 32, 34, 36, 38, 40, 42
sWB = 's52'
sT0, sT1, sT2, sT3 = 's53', 's54', 's55', 's56'
sT4, sT5, sT6, sT7 = 's72', 's73', 's74', 's75'
sPLO, sPHI = 's57', 's58'
sCNT = 's59'
mT4 = 's[60:61]'
sU0, sU1 = 's62', 's63'
sCH, sBA, sS, sHH = 's64', 's65', 's66', 's67'
sR0, sR1, sR2, sR3 = 's68', 's69', 's70', 's71'
MK = 96
TSREG = [76,78,80,82,84,86,88,90,92,94,28,0]
TSSLOT = dict(start=0, hp_loaded=1, hp_pub=2, wq_landed=1, h_got=2, q_pub=3, ckv_iss=3, c_got=4, b1=5, b3=6, d_st=7, d_flag=8,
              dfl_got=9, d_got=10, e_pub=11, e_trig=9, e_got=10, f_pub=11, mr_pub=9, fe_got=10, out_st=11)
vL, vG, vT, vB4 = 'v1', 'v2', 'v3', 'v4'
def vr(a, n=1): return f'v{a}' if n == 1 else f'v[{a}:{a+n-1}]'
class Gen:
    def __init__(self, cfg):
        self.cfg = dict(CFG); self.cfg.update(cfg)
        self.a = Asm(); self.tsnames = []; self.failsites = []
    def ts(self, name):
        if not self.cfg['ts']: return
        slots = self.cfg.get('tsmap') or TSSLOT
        if name not in slots: return
        r = TSREG[slots[name]]
        if name not in self.tsnames: self.tsnames.append(name)
        self.a(f's_memrealtime s[{r}:{r+1}]')
    def srd(self, quad, ptr, size):
        q = int(quad[2:quad.index(':')])
        self.a(f's_mov_b32 s{q}, s{ptr}\ns_mov_b32 s{q+1}, s{ptr+1}\ns_mov_b32 s{q+2}, {size}\ns_mov_b32 s{q+3}, 0x00020000')
    def nt(self, key='nt'): return ' nt' if self.cfg[key] else ''
    def poll_begin(self):
        l = self.a.label('poll')
        self.a(f's_mov_b32 {sCNT}, {self.cfg["limit"]}\n{l}:')
        return l
    def poll_end(self, l, code, sleep, vacc):
        a = self.a; ok = a.label('ok')
        if code not in self.failsites: self.failsites.append(code)
        a(f'v_cmp_ne_u32 vcc, 0, {vacc}')
        a(f's_cbranch_vccz {ok}')
        a(f's_sub_u32 {sCNT}, {sCNT}, 1')
        a(f's_cbranch_scc1 L_fail_{code}')
        if sleep: a(f's_sleep {sleep}')
        a(f's_branch {l}')
        a(f'{ok}:')
    def poll_trig(self, voff, soff, ra, code, vacc):
        a = self.a
        if code not in self.failsites: self.failsites.append(code)
        l = a.label('pt'); ok = a.label('ptok')
        ld = lambda r: a(f'buffer_load_dwordx2 {vr(r,2)}, {voff}, {WS}, {soff} offen sc1')
        a(f's_mov_b32 {sCNT}, {self.cfg["limit"]}')
        ld(ra)
        a(f'{l}:')
        ld(ra+2)
        a(f's_waitcnt vmcnt(1)\nv_cmp_ne_u32 vcc, {sTAG}, v{ra+1}\ns_cbranch_vccz {ok}')
        ld(ra)
        a(f's_waitcnt vmcnt(1)\nv_cmp_ne_u32 vcc, {sTAG}, v{ra+3}\ns_cbranch_vccz {ok}')
        a(f's_sub_u32 {sCNT}, {sCNT}, 1\ns_cbranch_scc1 L_fail_{code}\ns_branch {l}\n{ok}:')
    def tagchk(self, vacc, regs):
        a = self.a
        for k, r in enumerate(regs):
            if k == 0: a(f'v_xor_b32 {vacc}, {sTAG}, {r}')
            else: a(f'v_bitop3_b32 {vacc}, {vacc}, {r}, {sTAG} bitop3:0xf6')
    def crossrow(self, regs, tmp, op):
        a = self.a
        for sw in ('v_permlane16_swap_b32', 'v_permlane32_swap_b32'):
            for r, t in zip(regs, tmp): a(f'v_mov_b32 {t}, {r}')
            for r, t in zip(regs, tmp): a(f'{sw} {r}, {t}')
            for r, t in zip(regs, tmp): a(f'{op} {r}, {r}, {t}')
    def allsum(self, regs, tmp, op='v_add_f32'):
        a = self.a
        for n in (8, 4, 2, 1):
            for r in regs: a(f'{op}_dpp {r}, {r}, {r} row_ror:{n} row_mask:0xf bank_mask:0xf')
        self.crossrow(regs, tmp, op)
    def ckv_prep(self, v):
        a = self.a
        self.srd(SA, P_CKV, 16 << 20)
        a(f'v_lshlrev_b32 v{v}, 4, {vL}')
        for k in range(1, 8): a(f'v_xor_b32 v{v+k}, {k << 5}, v{v}')
    def ckv_group(self, gi, v, ntkey):
        a = self.a
        a(f's_add_u32 {sU1}, {sWB}, {gi*4096}\ns_mov_b32 m0, {sU1}\ns_add_u32 {sU0}, {sCH}, {sU1}')
        for k in range(4):
            n = 4*gi + k
            off = f' offset:{k*1024}' if k else ''
            a(f'buffer_load_dwordx4 v{v + (n & 7)}, {SA}, {sU0} offen{off}{self.nt(ntkey)} lds')
    def dma_ckv_p(self):
        a = self.a
        thr = self.cfg.get('pthr', 2)
        self.srd(SA, P_CKV, 16 << 20)
        a(f'v_lshlrev_b32 v6, 4, {vL}')
        for k in range(1, 8): a(f'v_xor_b32 v{6+k}, {k << 5}, v6')
        for n in range(16):
            if n % 4 == 0:
                a(f's_add_u32 {sT1}, {sWB}, {(n>>2)*4096}')
                a(f's_mov_b32 m0, {sT1}')
                a(f's_add_u32 {sT0}, {sCH}, {sT1}')
            off = f' offset:{(n & 3)*1024}' if n & 3 else ''
            a(f'buffer_load_dwordx4 v{6 + (n & 7)}, {SA}, {sT0} offen{off}{self.nt("nt_ckv_p")} lds')
            if thr and n == thr - 1: a('s_waitcnt vmcnt(0)')
    def dma_groups(self, srd, voff4, sregs, mregs, nt):
        a = self.a
        for sr, mr in zip(sregs, mregs):
            a(f's_mov_b32 m0, {mr}\ns_nop 0')
            for k in range(4):
                off = f' offset:{k*1024}' if k else ''
                a(f'buffer_load_dwordx4 {voff4[k]}, {srd}, {sr} offen{off}{nt} lds')
    def rot_groups(self, ng, rot, sbase, step_log2, mbase, sregs, mregs, tmp=sCNT):
        a = self.a
        for j in range(ng):
            if rot is None:
                a(f's_add_u32 {sregs[j]}, {sbase}, {j << step_log2}')
                a(f's_add_u32 {mregs[j]}, {mbase}, {j*4096}')
            else:
                a(f's_add_u32 {tmp}, {rot}, {j}\ns_and_b32 {tmp}, {tmp}, {ng-1}')
                a(f's_lshl_b32 {sregs[j]}, {tmp}, {step_log2}\ns_add_u32 {sregs[j]}, {sregs[j]}, {sbase}')
                a(f's_lshl_b32 {mregs[j]}, {tmp}, 12\ns_add_u32 {mregs[j]}, {mregs[j]}, {mbase}')
    def voff128(self, v, rowstride):
        a = self.a
        a(f'''
        v_lshrrev_b32 v{v}, 3, {vL}
        v_mul_u32_u24 v{v}, {rowstride}, v{v}
        v_and_b32 v{v+1}, 7, {vL}
        v_lshlrev_b32 v{v+2}, 1, {vG}
        v_xor_b32 v{v+1}, v{v+1}, v{v+2}
        v_lshl_add_u32 v{v}, v{v+1}, 4, v{v}
        ''')
        for k in range(1, 4): a(f'v_add_u32 v{v+k}, {k*(8*rowstride-1024)}, v{v}')
        return [f'v{v+k}' for k in range(4)]
    def tr128_addr(self, v, base_s):
        a = self.a
        a(f'''
        v_lshrrev_b32 v{v}, 2, {vT}
        v_lshl_add_u32 v{v}, {vG}, 2, v{v}
        v_lshrrev_b32 v{v+1}, 1, v{v}
        v_and_b32 v{v+1}, 3, v{v+1}
        v_lshlrev_b32 v{v+1}, 5, v{v+1}
        v_lshl_add_u32 v{v}, v{v}, 7, v{v+1}
        v_lshrrev_b32 v{v+1}, 1, {vB4}
        v_lshl_add_u32 v{v}, v{v+1}, 4, v{v}
        v_and_b32 v{v+1}, 1, {vB4}
        v_lshl_add_u32 v{v}, v{v+1}, 3, v{v}
        v_add_u32 v{v}, {base_s}, v{v}
        ''')
        for ct in range(1, 4): a(f'v_xor_b32 v{v+ct}, {ct << 5}, v{v}')
        return [f'v{v+ct}' for ct in range(4)]
    def tr_reads(self, addrs, kss, rb, dst, base_off=0):
        a = self.a
        for ks in kss:
            for ct, ad in enumerate(addrs):
                d = dst + 4 * (ks * len(addrs) + ct)
                for hi in range(2):
                    a(f'ds_read_b64_tr_b16 {vr(d + 2*hi, 2)}, {ad} offset:{base_off + (32*ks + 16*hi)*rb}')
    def sel4(self, dst, srcs, masks):
        a = self.a
        a(f'v_cndmask_b32 {dst}, {srcs[0]}, {srcs[1]}, {masks[0]}')
        a(f'v_cndmask_b32 {dst}, {dst}, {srcs[2]}, {masks[1]}')
        a(f'v_cndmask_b32 {dst}, {dst}, {srcs[3]}, {masks[2]}')
    def masks_t(self):
        for k, val in enumerate((0x22222222, 0x44444444, 0x88888888)):
            self.a(f's_mov_b32 s{MK+2*k}, {val:#x}\ns_mov_b32 s{MK+2*k+1}, {val:#x}')
        return [f's[{MK+2*k}:{MK+2*k+1}]' for k in range(3)]
    def masks_q(self):
        for k, val in enumerate((0x00f000f0, 0x0f000f00, 0xf000f000)):
            self.a(f's_mov_b32 s{MK+2*k}, {val:#x}\ns_mov_b32 s{MK+2*k+1}, {val:#x}')
        return [f's[{MK+2*k}:{MK+2*k+1}]' for k in range(3)]
    def masks_g(self):
        for k, (lo, hi) in enumerate(((0xffff0000, 0), (0, 0x0000ffff), (0, 0xffff0000))):
            self.a(f's_mov_b32 s{MK+2*k}, {lo:#x}\ns_mov_b32 s{MK+2*k+1}, {hi:#x}')
        return [f's[{MK+2*k}:{MK+2*k+1}]' for k in range(3)]
    def mfma(self, acc, A, B, first):
        self.a(f'v_mfma_f32_16x16x32_bf16 {vr(acc,4)}, {vr(A,4)}, {vr(B,4)}, {"0" if first else vr(acc,4)}')
    def tree_add(self, regs):
        a = self.a; n = len(regs); step = 1
        while step < n:
            for k in range(0, n - step, 2*step): a(f'v_add_f32 {regs[k]}, {regs[k]}, {regs[k+step]}')
            step *= 2
    def prologue(self):
        a = self.a
        a('''
        s_cmp_ge_u32 s2, 256
        s_cbranch_scc1 L_end
        s_load_dwordx16 s[16:31], s[0:1], 0
        s_load_dwordx8 s[32:39], s[0:1], 64
        s_load_dwordx4 s[40:43], s[0:1], 96
        ''')
        self.ts('start')
        a(f'''
        v_lshrrev_b32 v5, 6, v0
        v_and_b32 {vL}, 63, v0
        v_readfirstlane_b32 {sW}, v5
        v_lshrrev_b32 {vG}, 4, {vL}
        v_and_b32 {vT}, 15, {vL}
        v_and_b32 {vB4}, 3, {vL}
        s_and_b32 {sX}, s2, 7
        s_lshr_b32 {sI}, s2, 3
        ''')
        if self.cfg.get('ixor'): a(f's_xor_b32 {sI}, {sI}, {self.cfg["ixor"]}')
        a(f'''
        s_lshl_b32 {sWB}, {sW}, 14
        s_mov_b32 s60, 0x000f000f
        s_mov_b32 s61, 0x000f000f
        s_lshl_b32 {sCH}, {sX}, 4
        s_and_b32 {sT0}, {sI}, 15
        s_add_u32 {sCH}, {sCH}, {sT0}
        s_lshr_b32 {sBA}, {sCH}, 5
        s_and_b32 {sS}, {sCH}, 31
        s_lshr_b32 {sHH}, {sI}, 4
        ''')
        if self.cfg.get('hhswap', True): a(f's_xor_b32 {sHH}, {sHH}, 1')
        a(f'''
        s_lshl_b32 {sCH}, {sCH}, 17
        ''')
        if self.cfg.get('codepf'):
            sk = a.label('nocpf')
            a(f's_cmp_lg_u32 {sI}, {self.cfg.get("codepf_i", 31)}\ns_cbranch_scc1 {sk}')
            a(f's_cmp_ge_u32 {sW}, 3\ns_cbranch_scc1 {sk}')
            a(f'''
            s_getpc_b64 s[62:63]
            L_pc:
            s_sub_u32 s62, s62, L_pc-{KNAME}
            s_subb_u32 s63, s63, 0
            v_lshlrev_b32 v5, 7, {vL}
            s_lshl_b32 {sT0}, {sW}, 13
            v_add_u32 v5, {sT0}, v5
            s_mov_b32 {sT0}, L_end-{KNAME}
            v_cmp_gt_u32 vcc, {sT0}, v5
            s_and_saveexec_b64 s[100:101], vcc
            s_cbranch_execz L_cpf_skip
            global_load_dword v255, v5, s[62:63]
            L_cpf_skip:
            s_mov_b64 exec, s[100:101]
            {sk}:
            ''')
        a(f'''
        s_cmp_lt_u32 {sI}, 16
        s_cbranch_scc1 L_qpre
        ''')
    def after_kernarg(self):
        a = self.a
        a(f's_waitcnt lgkmcnt(0)\ns_load_dword {sEP}, s[{P_WS}:{P_WS+1}], 0')
    def tag(self):
        self.srd(WS, P_WS, WS_SIZE)
        self.a(f'''
        s_waitcnt lgkmcnt(0)
        s_add_u32 {sTAG}, {sEP}, 1
        s_mul_i32 {sTAG}, {sTAG}, {TAGMUL:#x}
        s_add_u32 {sTAG}, {sTAG}, 0x7f4a7c15
        ''')
    def dma_ckv(self, ntkey, groups=(0, 1, 2, 3), v=6):
        a = self.a
        self.srd(SA, P_CKV, 16 << 20)
        a(f'v_lshlrev_b32 v{v}, 4, {vL}')
        for k in range(1, 8): a(f'v_xor_b32 v{v+k}, {k << 5}, v{v}')
        for gi in groups:
            a(f's_add_u32 {sT1}, {sWB}, {gi*4096}')
            a(f's_mov_b32 m0, {sT1}')
            a(f's_add_u32 {sT0}, {sCH}, {sT1}')
            for k in range(4):
                n = 4*gi + k
                off = f' offset:{k*1024}' if k else ''
                a(f'buffer_load_dwordx4 v{v + (n & 7)}, {SA}, {sT0} offen{off}{self.nt(ntkey)} lds')
    def silu_addr(self):
        self.a(f'''
        v_lshlrev_b32 v16, 3, v0
        v_lshrrev_b32 v20, 7, v0
        v_mul_u32_u24 v20, {SVS}, v20
        v_and_b32 v21, 127, v0
        v_lshrrev_b32 v21, 3, v21
        v_lshl_add_u32 v20, v21, 6, v20
        v_and_b32 v21, 3, v0
        v_lshl_add_u32 v20, v21, 4, v20
        v_lshrrev_b32 v21, 2, v0
        v_and_b32 v21, 1, v21
        v_lshl_add_u32 v20, v21, 3, v20
        v_add_u32 v20, {SV}, v20
        ''')
    def silu_calc(self):
        a = self.a
        a('''
        v_lshlrev_b32 v22, 16, v18
        v_and_b32 v23, 0xffff0000, v18
        v_lshlrev_b32 v24, 16, v19
        v_and_b32 v25, 0xffff0000, v19
        ''')
        for r in range(22, 26): a(f'v_mul_f32 v{r+4}, {fhex(-LOG2E)}, v{r}')
        for r in range(22, 26): a(f'v_exp_f32 v{r+4}, v{r+4}')
        for r in range(22, 26): a(f'v_add_f32 v{r+4}, 1.0, v{r+4}')
        for r in range(22, 26): a(f'v_rcp_f32 v{r+4}, v{r+4}')
        for r in range(22, 26): a(f'v_mul_f32 v{r}, v{r}, v{r+4}')
        a('v_cvt_pk_bf16_f32 v22, v22, v23\nv_cvt_pk_bf16_f32 v23, v24, v25\nds_write_b64 v20, v[22:23]')
    def sv_frag_addr(self, v):
        self.a(f'''
        v_mul_u32_u24 {v}, {SVS}, {vB4}
        v_lshl_add_u32 {v}, {vG}, 4, {v}
        s_lshl_b32 {sT2}, {sW}, 7
        s_add_u32 {sT2}, {sT2}, {SV}
        v_add_u32 {v}, {sT2}, {v}
        ''')
    def p_pre(self):
        a = self.a
        a('; ================= P pre')
        if self.cfg.get('stopq'):
            self.after_kernarg(); self.tag(); a('s_branch L_exit')
        skip = a.label('nohp'); done = a.label('hpdone')
        a(f's_sub_u32 {sR0}, {sI}, 16\ns_cmp_ge_u32 {sR0}, 4\ns_cbranch_scc1 {skip}')
        vo = self.voff128(6, 6144)
        a(f"""
        s_lshl_b32 {sT0}, {sR0}, 2
        s_and_b32 {sT4}, {sW}, 3
        s_add_u32 {sT0}, {sT0}, {sT4}
        s_mul_i32 {sT0}, {sT0}, {32*6144}
        s_lshr_b32 {sT1}, {sW}, 2
        s_lshl_b32 {sT1}, {sT1}, 10
        s_add_u32 {sT0}, {sT0}, {sT1}
        s_lshl_b32 {sT3}, {sX}, 7
        s_add_u32 {sT0}, {sT0}, {sT3}
        v_lshrrev_b32 v16, 7, v0
        v_and_b32 v17, 127, v0
        v_lshlrev_b32 v18, 10, v16
        v_lshl_add_u32 v18, v17, 1, v18
        s_lshl_b32 {sT2}, {sR0}, 8
        s_lshl_b32 {sT5}, {sT4}, 10
        v_lshlrev_b32 v30, 4, {vL}
        v_lshrrev_b32 v39, 1, v0
        v_and_b32 v39, 3, v39
        v_lshrrev_b32 v37, 3, v0
        v_and_b32 v36, 1, v0
        v_lshlrev_b32 v35, 10, v39
        v_lshl_add_u32 v35, v37, 3, v35
        v_lshl_add_u32 v35, v36, 2, v35
        """)
        self.after_kernarg()
        self.srd(SB, P_C, 4096); self.srd(SC, P_X, 4096); self.srd(SA, P_WMOD, 512 * 6144)
        self.ts('hp_karg')
        a(f"""
        buffer_load_ushort v20, v18, {SB}, {sT2} offen
        buffer_load_dwordx4 v[40:43], v30, {SC}, {sT5} offen
        buffer_load_dword v38, v35, {SC}, {sT3} offen
        """)
        self.dma_groups(SA, vo, [sT0], [sWB], self.nt())
        self.tag()
        ad = self.tr128_addr(6, sWB)
        mq = self.masks_q()
        a(f"""
        v_mul_u32_u24 v10, {QBS}, v16
        v_lshrrev_b32 v11, 5, v17
        v_lshl_add_u32 v10, v11, 6, v10
        v_lshrrev_b32 v11, 2, v17
        v_and_b32 v11, 3, v11
        v_lshl_add_u32 v10, v11, 4, v10
        v_lshrrev_b32 v11, 4, v17
        v_and_b32 v11, 1, v11
        v_lshl_add_u32 v10, v11, 3, v10
        v_and_b32 v11, 3, v17
        v_lshl_add_u32 v10, v11, 1, v10
        v_add_u32 v10, {SV}, v10
        v_mul_u32_u24 v11, {QBS}, {vB4}
        v_lshl_add_u32 v11, {vG}, 4, v11
        s_lshl_b32 {sT0}, {sT4}, 6
        s_add_u32 {sT0}, {sT0}, {SV}
        v_add_u32 v11, {sT0}, v11
        s_lshl_b32 {sT0}, {sW}, 10
        s_add_u32 {sT0}, {sT0}, {RED}
        v_lshrrev_b32 v12, 2, {vT}
        v_lshlrev_b32 v12, 8, v12
        v_lshl_add_u32 v12, {vG}, 6, v12
        v_lshl_add_u32 v12, {vB4}, 4, v12
        v_add_u32 v12, {sT0}, v12
        v_lshlrev_b32 v13, 3, v0
        v_add_u32 v13, {RED}, v13
        v_lshlrev_b32 v14, 3, v39
        v_add_u32 v14, {LS}, v14
        v_lshlrev_b32 v15, 11, v39
        v_lshl_add_u32 v15, v37, 4, v15
        v_lshl_add_u32 v15, v36, 3, v15
        s_lshl_b32 {sT6}, {sR0}, 13
        s_lshl_b32 {sT0}, {sX}, 8
        s_add_u32 {sT6}, {sT6}, {sT0}
        s_add_u32 {sT6}, {sT6}, {WS_H}
        s_lshl_b32 {sT3}, {sT4}, 3
        s_add_u32 {sT3}, {sT3}, {LS}
        v_mov_b32 v50, {sT3}
        s_cmp_eq_u32 {sR0}, 0
        s_cselect_b32 {sT7}, 1.0, 0
        v_mov_b32 v45, {sTAG}
        s_waitcnt vmcnt(6)
        v_lshlrev_b32 v20, 16, v20
        v_mul_f32 v21, {fhex(-LOG2E)}, v20
        v_exp_f32 v21, v21
        s_nop 0
        v_add_f32 v21, 1.0, v21
        v_rcp_f32 v21, v21
        s_nop 0
        v_mul_f32 v20, v20, v21
        v_cvt_pk_bf16_f32 v20, v20, v20
        ds_write_b16 v10, v20
        s_waitcnt vmcnt(5)
        """)
        self.ts('hp_c')
        for k in range(4):
            a(f'v_lshlrev_b32 v{52+2*k}, 16, v{40+k}\nv_and_b32 v{53+2*k}, 0xffff0000, v{40+k}')
        a('v_add_f32 v48, v52, v53\nv_mul_f32 v49, v52, v52\nv_fmac_f32 v49, v53, v53')
        for k in range(54, 60): a(f'v_add_f32 v48, v48, v{k}\nv_fmac_f32 v49, v{k}, v{k}')
        self.allsum(['v48', 'v49'], ['v51', 'v52'])
        a(f"""
        v_mul_f32 v48, {fhex(1/512)}, v48
        v_mul_f32 v49, {fhex(1/512)}, v49
        v_fma_f32 v49, -v48, v48, v49
        v_max_f32 v49, 0, v49
        v_add_f32 v49, {fhex(1e-5)}, v49
        v_rsq_f32 v49, v49
        s_nop 0
        ds_write_b64 v50, v[48:49]
        s_waitcnt lgkmcnt(0)
        """)
        self.ts('hp_ln')
        a('s_barrier\nds_read_b128 v[52:55], v11\ns_waitcnt vmcnt(0)')
        self.ts('hp_loaded')
        self.tr_reads(ad, range(1), 128, 16)
        a('s_waitcnt lgkmcnt(0)')
        for ct in range(4): self.mfma(60+4*ct, 16+4*ct, 52, True)
        for r in range(4): self.sel4(f'v{76+r}', [f'v{60+4*ct+r}' for ct in range(4)], mq)
        a('ds_write_b128 v12, v[76:79]\ns_waitcnt lgkmcnt(0)\ns_barrier')
        fin = a.label('hpfin')
        a(f's_cmp_ge_u32 {sW}, 2\ns_cbranch_scc1 {fin}')
        for ww in range(8): a(f'ds_read_b64 {vr(16+2*ww,2)}, v13 offset:{ww*1024}')
        a("""
        ds_read_b64 v[32:33], v14
        v_lshlrev_b32 v40, 16, v38
        v_and_b32 v41, 0xffff0000, v38
        s_waitcnt lgkmcnt(0)
        v_sub_f32 v40, v40, v32
        v_sub_f32 v41, v41, v32
        v_mul_f32 v40, v40, v33
        v_mul_f32 v41, v41, v33
        """)
        self.tree_add(['v16', 'v18', 'v20', 'v22'])
        self.tree_add(['v17', 'v19', 'v21', 'v23'])
        self.tree_add(['v24', 'v26', 'v28', 'v30'])
        self.tree_add(['v25', 'v27', 'v29', 'v31'])
        a(f"""
        v_add_f32 v24, {sT7}, v24
        v_add_f32 v25, {sT7}, v25
        v_fmac_f32 v16, v40, v24
        v_fmac_f32 v17, v41, v25
        v_cvt_pk_bf16_f32 v44, v16, v17
        buffer_store_dwordx2 v[44:45], v15, {WS}, {sT6} offen sc1
        {fin}:
        s_barrier
        """)
        self.ts('hp_pub')
        a(f's_branch {done}\n{skip}:')
        if self.cfg.get('pfuk', True):
            a(f'''
            s_sub_u32 {sT0}, {sI}, 20
            s_mul_i32 {sT0}, {sT0}, 6
            s_add_u32 {sT0}, {sT0}, {sW}
            s_lshl_b32 {sT0}, {sT0}, 3
            s_lshl_b32 {sT0}, {sT0}, 13
            s_lshl_b32 {sT1}, {sX}, 10
            s_add_u32 {sT0}, {sT0}, {sT1}
            v_lshrrev_b32 v6, 3, {vL}
            v_lshlrev_b32 v6, 13, v6
            v_and_b32 v7, 7, {vL}
            v_lshl_add_u32 v6, v7, 7, v6
            ''')
        self.after_kernarg()
        if self.cfg.get('pfuk', True):
            sk2 = a.label('nouk')
            self.srd(SB, P_WUK, 4 << 20)
            a(f's_cmp_ge_u32 {sW}, 6\ns_cbranch_scc1 {sk2}\nbuffer_load_dword v98, v6, {SB}, {sT0} offen\n{sk2}:')
        self.tag()
        if self.cfg.get('pdelay'):
            a(f's_lshl_b32 {sT0}, {sX}, 8\ns_add_u32 {sT0}, {sT0}, {WS_H + 3*8192}\nv_mov_b32 v5, 0')
            l = self.poll_begin()
            a(f'buffer_load_dwordx2 v[6:7], v5, {WS}, {sT0} offen sc1\ns_waitcnt vmcnt(0)')
            self.tagchk('v8', ['v7'])
            self.poll_end(l, 12, 4, 'v8')
        a(f'{done}:')
        a(f"""
        s_sub_u32 {sR0}, {sI}, 16
        s_lshr_b32 {sR1}, {sR0}, 2
        s_lshl_b32 {sT0}, {sX}, 2
        s_add_u32 {sR1}, {sR1}, {sT0}          ; hp
        s_and_b32 {sR0}, {sR0}, 3              ; bp
        s_mov_b32 {sPLO}, 0x05040100
        s_mov_b32 {sPHI}, 0x07060302
        """)
        self.touch_uv()
        if self.cfg.get('pwait'): a('s_waitcnt vmcnt(0)')
        self.dma_ckv_p()
        self.ts('ckv_iss')
        self.srd(SB, P_WUV, 4 << 20)
        a(f"""
        v_lshlrev_b32 v96, 16, {vG}
        v_lshl_add_u32 v96, {vT}, 4, v96
        s_lshl_b32 {sU0}, {sW}, 19
        s_lshl_b32 {sU1}, {sR1}, 8
        s_add_u32 {sU0}, {sU0}, {sU1}
        """)
        self.wuv_at('e', False)
    def wuv_group(self, gi):
        a = self.a
        a(f's_add_u32 {sU1}, {sU0}, {((gi >> 1) * 32 + (gi & 1) * 4) * 8192}')
        for e in range(4):
            n = 4*gi + e
            a(f'buffer_load_dwordx4 {vr(112+4*n,4)}, v96, {SB}, {sU1} offen{self.nt()}')
            if e < 3: a(f's_add_u32 {sU1}, {sU1}, 8192')
    def wuv_at(self, pos, guard=True):
        a = self.a
        g1 = [gi for gi, p in enumerate(self.cfg['gpl']) if p == pos]
        g2 = [gi for gi, p in enumerate(self.cfg['gplhp']) if p == pos]
        if g1 == g2:
            if not g1: return len(g1)
            sk = a.label('nouv')
            if guard: a(f's_cmp_lt_u32 {sI}, 16\ns_cbranch_scc1 {sk}')
            for gi in g1: self.wuv_group(gi)
            a(f'{sk}:')
            return len(g1)
        done = a.label('uvd'); hp = a.label('uvhp')
        if guard: a(f's_cmp_lt_u32 {sI}, 16\ns_cbranch_scc1 {done}')
        a(f's_cmp_lt_u32 {sI}, 20\ns_cbranch_scc1 {hp}')
        for gi in g1: self.wuv_group(gi)
        a(f's_branch {done}\n{hp}:')
        for gi in g2: self.wuv_group(gi)
        a(f'{done}:')
        assert pos not in ('x', 'y')
        return 0
    def wuv_unit(self, k):
        a = self.a
        a(f's_add_u32 {sU1}, {sU0}, {k * 32 * 8192}')
        for e in range(8):
            a(f'buffer_load_dwordx4 {vr(112+32*k+4*e,4)}, v96, {SB}, {sU1} offen{self.nt()}')
            if e < 7: a(f's_add_u32 {sU1}, {sU1}, 8192')
    def q_pre(self):
        a = self.a
        a('; ================= Q pre')
        a(f'''
        s_lshr_b32 {sR1}, {sI}, 2
        s_lshl_b32 {sT0}, {sX}, 2
        s_add_u32 {sR1}, {sR1}, {sT0}          ; hq
        s_and_b32 {sR0}, {sI}, 3               ; cq
        v_lshlrev_b32 v9, 1, {vG}
        v_xor_b32 v10, {vT}, v9
        v_lshlrev_b32 v6, 13, {vG}
        v_lshl_add_u32 v6, v10, 4, v6          ; k=0
        v_xor_b32 v7, 128, v6
        v_add_u32 v8, {2*31744}, v6            ; k=2
        v_add_u32 v9, {3*31744}, v7            ; k=3
        v_add_u32 v7, 31744, v7                ; k=1
        s_lshl_b32 {sU0}, {sW}, 19
        s_lshl_b32 {sU1}, {sR1}, 8
        s_add_u32 {sU0}, {sU0}, {sU1}
        ''')
        self.rot_groups(4, sR0, sU0, 17, sWB, [sT0, sT1, sT2, sT3], [sT4, sT5, sT6, sT7])
        a(f'''
        s_lshl_b32 {sU0}, {sR0}, 20
        s_add_u32 {sU0}, {sU0}, {sU1}
        s_lshl_b32 {sU1}, {sW}, 17
        s_add_u32 {sU0}, {sU0}, {sU1}
        ''')
        self.after_kernarg()
        self.ts('q_karg')
        self.srd(SA, P_WQ, 4 << 20)
        self.dma_groups(SA, ['v6', 'v7', 'v8', 'v9'], [sT0, sT1, sT2, sT3], [sT4, sT5, sT6, sT7], self.nt())
        self.ts('q_iss')
        self.srd(SB, P_WUK, 4 << 20)
        a(f's_lshl_b32 {sU1}, {sW}, 12\ns_add_u32 {sU1}, {sU1}, {SM}')
        self.dma_groups(SB, ['v6', 'v7', 'v8', 'v9'], [sU0], [sU1], self.nt())
        self.tag()
        a(f'''
        v_lshrrev_b32 v8, 2, {vT}
        v_lshl_add_u32 v8, {vG}, 2, v8
        v_and_b32 v9, 7, v8
        v_lshlrev_b32 v9, 5, v9
        v_lshl_add_u32 v8, v8, 8, v9
        v_lshrrev_b32 v9, 1, {vB4}
        v_lshl_add_u32 v8, v9, 4, v8
        v_and_b32 v9, 1, {vB4}
        v_lshl_add_u32 v8, v9, 3, v8
        v_add_u32 v8, {sWB}, v8
        ''')
        for ct in range(1, 8): a(f'v_xor_b32 v{8+ct}, {ct << 5}, v8')
        a(f'''
        v_lshlrev_b32 v152, 11, {vG}
        v_lshl_add_u32 v152, {vT}, 4, v152
        v_mul_u32_u24 v170, 192, {vG}
        v_lshrrev_b32 v171, 3, {vT}
        v_lshl_add_u32 v170, v171, 6, v170
        v_lshl_add_u32 v170, {vB4}, 4, v170
        v_lshrrev_b32 v171, 2, {vT}
        v_and_b32 v171, 1, v171
        v_lshl_add_u32 v170, v171, 3, v170
        v_add_u32 v170, {sWB}, v170
        v_mul_u32_u24 v174, 192, {vB4}
        v_lshl_add_u32 v174, {vG}, 4, v174
        v_add_u32 v174, {sWB}, v174
        s_lshl_b32 {sT3}, {sW}, 8
        s_add_u32 {sT3}, {sT3}, {WS_H}
        s_add_u32 {sT2}, {sWB}, 2048
        v_lshrrev_b32 v156, 2, {vT}
        v_lshlrev_b32 v156, 8, v156
        v_lshl_add_u32 v156, {vG}, 6, v156
        v_lshl_add_u32 v156, {vB4}, 4, v156
        v_add_u32 v156, {sT2}, v156
        v_lshlrev_b32 v157, 2, v0
        v_add_u32 v157, 2048, v157
        v_add_u32 v159, 0x10000, v157          ; regions 4..7
        v_lshrrev_b32 v154, 2, {vL}
        v_and_b32 v154, 3, v154
        v_mul_u32_u24 v154, {QBS}, v154
        v_lshl_add_u32 v154, {vG}, 3, v154
        v_lshl_add_u32 v154, {vB4}, 1, v154
        s_lshl_b32 {sT2}, {sW}, 5
        s_add_u32 {sT2}, {sT2}, {QB}
        v_add_u32 v154, {sT2}, v154
        v_mul_u32_u24 v155, {QBS}, {vB4}
        v_lshl_add_u32 v155, {vG}, 4, v155
        v_add_u32 v155, {QB}, v155
        v_lshlrev_b32 v158, 16, {vB4}
        v_lshl_add_u32 v158, {vG}, 4, v158
        s_lshl_b32 {sT4}, {sR1}, 11
        s_lshl_b32 {sT1}, {sR0}, 9
        s_add_u32 {sT4}, {sT4}, {sT1}
        s_lshl_b32 {sT1}, {sW}, 6
        s_add_u32 {sT4}, {sT4}, {sT1}
        s_add_u32 {sT4}, {sT4}, {WS_Q}
        s_mov_b32 {sT5}, {fhex(SCALE)}
        v_mov_b32 v149, {sTAG}
        v_mov_b32 v151, {sTAG}
        v_and_b32 v5, 7, {vT}
        v_lshlrev_b32 v5, 5, v5
        v_lshlrev_b32 v160, 4, {vG}
        v_xor_b32 v160, v160, v5
        v_lshl_add_u32 v160, {vT}, 8, v160
        v_add_u32 v160, {sU1}, v160
        v_xor_b32 v161, 64, v160
        v_xor_b32 v162, 128, v160
        v_xor_b32 v163, 192, v160
        s_waitcnt vmcnt(4)
        ''')
        self.ts('wq_landed')
        a(f's_add_u32 {sT0}, {sT3}, 8192\ns_add_u32 {sT1}, {sT3}, 16384\ns_add_u32 {sT2}, {sT3}, 24576')
        def hloads():
            for k, so in enumerate((sT3, sT0, sT1, sT2)):
                a(f'buffer_load_dwordx4 {vr(128+4*k,4)}, v152, {WS}, {so} offen sc1')
        atrig = self.cfg.get('atrig', False)
        if not atrig: hloads()
        self.tr_reads([f'v{8+ct}' for ct in range(8)], range(2), 256, 16)
        mq = self.masks_q()
        self.ckv_prep(176)
        a(f's_waitcnt vmcnt({0 if atrig else 4})')
        for st in range(4): a(f'ds_read_b128 {vr(112+4*st,4)}, v{160+st}')
        if atrig:
            sk = a.label('noatrig')
            a(f's_cmp_lg_u32 {sW}, 0\ns_cbranch_scc1 {sk}')
            a(f'''
            v_lshrrev_b32 v168, 3, {vL}
            v_and_b32 v168, 3, v168
            v_lshlrev_b32 v168, 13, v168
            v_and_b32 v169, 7, {vL}
            v_lshl_add_u32 v168, v169, 8, v168
            v_add_u32 v168, {3*2048+248}, v168
            s_mov_b32 {sU0}, {WS_H}
            ''')
            l = self.poll_begin()
            a(f'buffer_load_dwordx2 v[128:129], v168, {WS}, {sU0} offen sc1\ns_waitcnt vmcnt(0)')
            self.tagchk('v153', ['v129'])
            self.poll_end(l, 13, self.cfg['sleepA'], 'v153')
            a(f'{sk}:\ns_barrier')
            self.ts('q_atrig')
            l = self.poll_begin()
            hloads()
            a('s_waitcnt vmcnt(0)')
        else:
            first = a.label('hfirst')
            a(f's_mov_b32 {sCNT}, {self.cfg["limit"]}\ns_branch {first}')
            l = a.label('poll'); a(f'{l}:')
            hloads()
            a(f'{first}:\ns_waitcnt vmcnt(0)')
        self.tagchk('v153', [f'v{128+4*k+o}' for k in range(4) for o in (1, 3)])
        self.poll_end(l, 1, self.cfg['sleepA2'], 'v153')
        self.ts('h_got')
        a(f's_mov_b32 {sT0}, 0x00003f80\ns_mov_b32 {sT1}, 0x3f800000')
        for k in range(4):
            for j, (src, sel) in enumerate(((128+4*k, sT0), (128+4*k, sT1), (130+4*k, sT0), (130+4*k, sT1))):
                a(f'v_dot2_f32_bf16 v{144+j}, v{src}, {sel}, {"0" if k == 0 else f"v{144+j}"}')
        a('v_cvt_pk_bf16_f32 v144, v144, v145\nv_cvt_pk_bf16_f32 v145, v146, v147\nds_write_b64 v170, v[144:145]\ns_waitcnt lgkmcnt(0)')
        a('ds_read_b128 v[128:131], v174\nds_read_b128 v[136:139], v174 offset:64')
        if self.cfg.get('ckvA', True): self.ckv_group(1, 176, 'nt_ckv_q')
        a('s_waitcnt lgkmcnt(0)')
        for ks in range(2):
            for ct in range(8): self.mfma(80+4*ct, 16+4*(ks*8+ct), 128+8*ks, ks == 0)
        self.ts('q_mfma')
        for hf in range(2):
            for r in range(4): self.sel4(f'v{136+4*hf+r}', [f'v{80+16*hf+4*ct+r}' for ct in range(4)], mq)
            a(f'ds_write_b128 v156, {vr(136+4*hf,4)} offset:{hf*1024}')
        a('s_waitcnt lgkmcnt(0)')
        self.ts('q_wr')
        if self.cfg.get('ckvB2'): self.ckv_group(2, 176, 'nt_ckv_q')
        a('s_barrier')
        self.ts('q_bar1')
        if self.cfg['ckvB']: self.ckv_group(2, 176, 'nt_ckv_q')
        for ww in range(8): a(f'ds_read_b32 v{128+ww}, v{157 if ww < 4 else 159} offset:{(ww&3)*16384}')
        a('s_waitcnt lgkmcnt(0)')
        self.tree_add([f'v{128+k}' for k in range(8)])
        a('''
        v_cvt_pk_bf16_f32 v128, v128, v128
        ds_write_b16 v154, v128
        s_waitcnt lgkmcnt(0)
        ''')
        if self.cfg.get('ckvB3'): self.ckv_group(2, 176, 'nt_ckv_q')
        a('s_barrier')
        self.ts('q_bar2')
        for st in range(4): a(f'ds_read_b128 {vr(128+4*st,4)}, v155 offset:{st*64}')
        for st in range(4):
            a(f's_waitcnt lgkmcnt({3-st})')
            self.mfma(144, 112+4*st, 128+4*st, st == 0)
        a(f'''
        v_mul_f32 v144, {sT5}, v144
        v_mul_f32 v145, {sT5}, v145
        v_mul_f32 v146, {sT5}, v146
        v_mul_f32 v147, {sT5}, v147
        v_cvt_pk_bf16_f32 v148, v144, v145
        v_cvt_pk_bf16_f32 v150, v146, v147
        s_mov_b64 exec, {mT4}
        buffer_store_dwordx4 v[148:151], v158, {WS}, {sT4} offen sc1
        s_mov_b64 exec, -1
        ''')
        self.ts('q_pub')
        a('s_barrier')
        for gi in [0, 3] + ([] if self.cfg.get('ckvA', True) else [1]) + ([] if (self.cfg['ckvB'] or self.cfg.get('ckvB2') or self.cfg.get('ckvB3')) else [2]): self.ckv_group(gi, 176, 'nt_ckv_q')
        self.touch_o_prep()
    def att_addr(self):
        a = self.a
        a(f'''
        v_and_b32 v5, 7, {vT}
        v_lshlrev_b32 v5, 5, v5
        v_lshlrev_b32 v244, 4, {vG}
        v_xor_b32 v244, v244, v5
        v_lshl_add_u32 v244, {vT}, 10, v244
        v_xor_b32 v245, 64, v244
        v_xor_b32 v246, 128, v244
        v_xor_b32 v247, 192, v244
        v_add_u32 v248, {QT}, v244
        v_add_u32 v249, {QT}, v245
        v_add_u32 v250, {QT}, v246
        v_add_u32 v251, {QT}, v247
        v_add_u32 v244, {sWB}, v244
        v_add_u32 v245, {sWB}, v245
        v_add_u32 v246, {sWB}, v246
        v_add_u32 v247, {sWB}, v247
        v_lshrrev_b32 v80, 2, {vT}
        v_lshl_add_u32 v80, {vG}, 2, v80
        v_and_b32 v81, 7, v80
        v_lshlrev_b32 v81, 5, v81
        s_lshl_b32 {sT0}, {sW}, 7
        v_lshl_add_u32 v82, {vB4}, 4, {sT0}
        v_xor_b32 v81, v81, v82
        v_lshl_add_u32 v80, v80, 10, v81
        v_lshrrev_b32 v81, 1, {vB4}
        v_lshl_add_u32 v80, v81, 3, v80
        v_xor_b32 v81, 8, v80
        v_xor_b32 v82, 64, v80
        v_xor_b32 v83, 72, v80
        v_add_u32 v100, 0x10000, v80
        v_add_u32 v101, 0x10000, v81
        v_add_u32 v102, 0x10000, v82
        v_add_u32 v103, 0x10000, v83
        v_mov_b32 v240, 0x3f803f80
        v_mov_b32 v241, 0x3f803f80
        v_mov_b32 v242, 0x3f803f80
        v_mov_b32 v243, 0x3f803f80
        v_lshlrev_b32 v84, 4, v0
        v_lshrrev_b32 v85, 2, {vL}
        v_lshlrev_b32 v85, 11, v85
        v_lshl_add_u32 v85, {vB4}, 9, v85
        v_add_u32 v85, 504, v85
        s_lshr_b32 {sT0}, {sW}, 1
        v_and_b32 v86, 127, v0
        v_lshrrev_b32 v87, 1, v86
        s_lshl_b32 {sT1}, {sT0}, 1
        v_xor_b32 v87, {sT1}, v87
        v_lshlrev_b32 v87, 4, v87
        v_and_b32 v86, 1, v86
        v_lshl_add_u32 v86, v86, 3, v87
        s_lshl_b32 {sT1}, {sT0}, 10
        s_add_u32 {sT1}, {sT1}, {QT}
        v_add_u32 v86, {sT1}, v86
        v_xor_b32 v87, 128, v86
        v_lshlrev_b32 v89, 5, {vT}
        s_lshl_b32 {sT1}, {sW}, 2
        s_add_u32 {sT2}, {sT1}, {MX}
        v_add_u32 v88, {sT2}, v89
        s_add_u32 {sT2}, {sT1}, {LS}
        v_add_u32 v91, {sT2}, v89
        v_add_u32 v92, {LS}, v89
        v_add_u32 v89, {MX}, v89
        s_lshl_b32 {sT0}, {sT0}, 10
        s_and_b32 {sT1}, {sW}, 1
        s_lshl_b32 {sT1}, {sT1}, 3
        s_add_u32 {sT0}, {sT0}, {sT1}
        s_add_u32 {sT0}, {sT0}, {PT}
        v_lshl_add_u32 v90, {vL}, 4, {sT0}
        v_lshlrev_b32 v93, 4, {vL}
        v_add_u32 v93, {PT}, v93
        v_lshlrev_b32 v94, 15, {vT}
        v_lshl_add_u32 v94, {vG}, 4, v94
        v_lshlrev_b32 v95, 8, {vT}
        s_lshl_b32 {sT0}, {sBA}, 5
        s_lshl_b32 {sT1}, {sHH}, 4
        s_add_u32 {sT0}, {sT0}, {sT1}          ; row0
        s_lshl_b32 {sR3}, {sT0}, 8
        s_lshl_b32 {sT1}, {sS}, 3
        s_add_u32 {sR3}, {sR3}, {sT1}
        s_add_u32 {sR3}, {sR3}, {WS_FL}
        s_lshl_b32 {sR2}, {sT0}, 5
        s_add_u32 {sR2}, {sR2}, {sS}
        s_lshl_b32 {sR2}, {sR2}, 10
        s_lshl_b32 {sT1}, {sW}, 7
        s_add_u32 {sR2}, {sR2}, {sT1}
        s_add_u32 {sR2}, {sR2}, {WS_D}
        s_lshl_b32 {sT4}, {sBA}, 16
        s_lshl_b32 {sT1}, {sHH}, 15
        s_add_u32 {sT4}, {sT4}, {sT1}
        s_add_u32 {sT4}, {sT4}, {WS_Q}
        s_add_u32 {sT5}, {sT4}, 8192
        s_add_u32 {sT6}, {sT4}, 16384
        s_add_u32 {sT7}, {sT4}, 24576
        ''')
    def wuv_prep(self):
        a = self.a
        self.srd(SB, P_WUV, 4 << 20)
        a(f'''
        v_lshlrev_b32 v96, 16, {vG}
        v_lshl_add_u32 v96, {vT}, 4, v96
        s_lshl_b32 {sU0}, {sW}, 19
        s_lshl_b32 {sU1}, {sR1}, 8
        s_add_u32 {sU0}, {sU0}, {sU1}
        ''')
    def touch_uv(self):
        a = self.a; done = a.label('tuv')
        self.srd(SC, P_WUV, 4 << 20)
        a(f"""
        v_lshrrev_b32 v97, 1, {vL}
        v_lshlrev_b32 v97, 13, v97
        v_and_b32 v99, 1, {vL}
        v_lshl_add_u32 v97, v99, 7, v97
        s_cmp_ge_u32 {sW}, 4
        s_cbranch_scc1 {done}
        s_lshl_b32 {sT0}, {sR1}, 8
        s_lshl_b32 {sT1}, {sR0}, 20
        s_add_u32 {sT0}, {sT0}, {sT1}
        s_lshl_b32 {sT1}, {sW}, 18
        s_add_u32 {sT0}, {sT0}, {sT1}
        buffer_load_dword v98, v97, {SC}, {sT0} offen
        {done}:
        """)
    def touch_o_prep(self):
        a = self.a
        self.srd(SC, P_WO, 4 << 20)
        a(f"""
        v_lshlrev_b32 v97, 7, {vL}
        s_lshl_b32 {sU0}, {sR1}, 17
        s_lshl_b32 {sU1}, {sR0}, 15
        s_add_u32 {sU0}, {sU0}, {sU1}
        s_lshl_b32 {sU1}, {sW}, 13
        s_add_u32 {sU0}, {sU0}, {sU1}
        """)
    def touch_o(self):
        a = self.a; done = a.label('to')
        a(f's_cmp_ge_u32 {sI}, 16\ns_cbranch_scc1 {done}\ns_cmp_ge_u32 {sW}, 4\ns_cbranch_scc1 {done}')
        a(f'buffer_load_dword v98, v97, {SC}, {sU0} offen\n{done}:')
    def attention(self):
        a = self.a
        a('; ================= attention')
        if self.cfg.get('ctrig', True):
            sk = a.label('notrig'); sq = a.label('qnotrig')
            a(f's_cmp_lt_u32 {sI}, 16\ns_cbranch_scc1 {sq}')
            a(f's_cmp_lg_u32 {sW}, 0\ns_cbranch_scc1 {sk}')
            if self.cfg.get('ptrig', True):
                self.poll_trig('v85', sT4, 176, 2, 'v192')
            else:
                l = self.poll_begin()
                a(f'buffer_load_dwordx2 v[176:177], v85, {WS}, {sT4} offen sc1\ns_waitcnt vmcnt(0)')
                self.tagchk('v192', ['v177'])
                self.poll_end(l, 2, self.cfg['sleepC'], 'v192')
            a(f'{sk}:\ns_barrier')
            self.ts('p_ctrig')
            a(f'{sq}:')
        l = self.poll_begin()
        for n, so in enumerate((sT4, sT5, sT6, sT7)):
            a(f'buffer_load_dwordx4 {vr(176+4*n,4)}, v84, {WS}, {so} offen sc1')
        a('s_waitcnt vmcnt(4)')
        for st in range(16): a(f'ds_read_b128 {vr(16+4*st,4)}, v{244+(st&3)} offset:{(st>>2)*256}')
        a('s_waitcnt vmcnt(0)')
        self.tagchk('v192', [f'v{176+4*n+o}' for n in range(4) for o in (1, 3)])
        self.poll_end(l, 3, self.cfg['sleepC2'], 'v192')
        self.ts('c_got')
        for n in range(4):
            a(f'v_mov_b32 v{177+4*n}, v{178+4*n}')
            a(f'ds_write_b64 v{86 + (n & 1)}, {vr(176+4*n,2)} offset:{n*4096}')
        self.wuv_at('c')
        a('s_waitcnt lgkmcnt(0)\ns_barrier')
        self.ts('b1')
        NB = 8
        for st in range(NB): a(f'ds_read_b128 {vr(196+4*st,4)}, v{248+(st&3)} offset:{(st>>2)*256}')
        if self.cfg.get('pfQo', True): self.touch_o()
        for st in range(16):
            a(f's_waitcnt lgkmcnt({min(16, st+NB) - st - 1})')
            self.mfma(192, 16+4*st, 196+4*(st % NB), st == 0)
            if st + NB < 16:
                s2 = st + NB
                a(f'ds_read_b128 {vr(196+4*(s2%NB),4)}, v{248+(s2&3)} offset:{(s2>>2)*256}')
        self.ts('a_sdone')
        def pva(ks):
            for pp in range(2):
                for T in range(2):
                    d = 16 + 4 * ((ks * 2 + pp) * 2 + T)
                    base = (80 if ks < 2 else 100) + 2*pp + T
                    for hi in range(2):
                        a(f'ds_read_b64_tr_b16 {vr(d+2*hi,2)}, v{base} offset:{(ks & 1)*32768 + hi*16384}')
        early = self.cfg['pvaearly']
        if early: pva(0); pva(1)
        self.wuv_at('s')
        a('v_max_f32 v228, v192, v193\nv_max3_f32 v228, v228, v194, v195')
        self.crossrow(['v228'], ['v229'], 'v_max_f32')
        a('ds_write_b32 v88, v228')
        if early:
            pva(2); pva(3)
            a('s_waitcnt lgkmcnt(15)')
        else:
            a('s_waitcnt lgkmcnt(0)')
        self.ts('a_preb2')
        a('s_barrier')
        self.ts('a_b2')
        a('ds_read_b128 v[236:239], v89\nds_read_b128 v[232:235], v89 offset:16')
        self.wuv_at('b')
        if not early: pva(0)
        a(f's_waitcnt lgkmcnt({0 if early else 8})')
        a("""
        v_max3_f32 v236, v236, v237, v238
        v_max3_f32 v232, v232, v233, v234
        v_max3_f32 v228, v236, v239, v232
        v_max_f32 v228, v228, v235
        v_sub_f32 v192, v192, v228
        v_sub_f32 v193, v193, v228
        v_sub_f32 v194, v194, v228
        v_sub_f32 v195, v195, v228
        v_exp_f32 v192, v192
        v_exp_f32 v193, v193
        v_exp_f32 v194, v194
        v_exp_f32 v195, v195
        s_nop 0
        v_cvt_pk_bf16_f32 v234, v192, v193
        v_cvt_pk_bf16_f32 v235, v194, v195
        ds_write_b64 v90, v[234:235]
        """)
        if not self.cfg['ones']:
            a('v_add_f32 v229, v192, v193\nv_add_f32 v230, v194, v195\nv_add_f32 v229, v229, v230')
            if not early: pva(1)
            self.crossrow(['v229'], ['v230'], 'v_add_f32')
            a('ds_write_b32 v91, v229')
            if not early: pva(2); pva(3)
        elif not early: pva(1); pva(2); pva(3)
        self.wuv_at('p')
        self.ts('a_pvaiss')
        a('s_waitcnt lgkmcnt(0)')
        self.ts('a_preb3')
        a('s_barrier')
        self.ts('b3')
        for ks in range(4): a(f'ds_read_b128 {vr(196+4*ks,4)}, v93 offset:{ks*1024}')
        if not self.cfg['ones']: a('ds_read_b128 v[236:239], v92\nds_read_b128 v[240:243], v92 offset:16')
        for ks in range(4):
            a(f's_waitcnt lgkmcnt({3-ks + (0 if self.cfg["ones"] else 2)})')
            if self.cfg['ones']: self.mfma(236, 240, 196+4*ks, ks == 0)
            for pp in range(2):
                for T in range(2): self.mfma(212+4*(pp*2+T), 16+4*((ks*2+pp)*2+T), 196+4*ks, ks == 0)
        self.ts('a_pvdone')
        if not self.cfg['ones']:
            a('s_waitcnt lgkmcnt(0)')
            self.tree_add([f'v{236+k}' for k in range(8)])
        a(f"""
        v_rcp_f32 v232, v236
        v_log_f32 v238, v236
        v_mov_b32 v239, {sTAG}
        v_add_f32 v238, v228, v238
        """)
        for pp in range(2):
            b = 212 + 8*pp
            if self.cfg['pkmul']:
                for k in range(4): a(f'v_pk_mul_f32 {vr(b+2*k,2)}, {vr(b+2*k,2)}, v[232:233] op_sel_hi:[1,0]')
            else:
                for k in range(8): a(f'v_mul_f32 v{b+k}, v232, v{b+k}')
            for k in range(4): a(f'v_cvt_pk_bf16_f32 v{196+4*pp+k}, v{b+2*k}, v{b+2*k+1}')
            off = ' offset:64' if pp else ''
            a(f'buffer_store_dwordx4 {vr(196+4*pp,4)}, v94, {WS}, {sR2} offen{off} sc1')
        self.ts('d_st')
    def d_flag(self):
        a = self.a; sk = a.label('nofl')
        a(f'''
        s_barrier
        s_cmp_lg_u32 {sW}, 0
        s_cbranch_scc1 {sk}
        s_mov_b64 exec, 0xffff
        buffer_store_dwordx2 v[238:239], v95, {WS}, {sR3} offen sc1
        s_mov_b64 exec, -1
        {sk}:
        ''')
        self.ts('d_flag')
    def loader(self, srd, vo, kind, steps=(0, 1, 2, 3)):
        a = self.a
        a(f's_sub_u32 {sU0}, {sW}, 4')
        for st in steps:
            a(f"""
            s_add_u32 {sT0}, {sR0}, {st}
            s_and_b32 {sT0}, {sT0}, 3
            s_lshl_b32 {sT0}, {sT0}, 1
            s_lshr_b32 {sT1}, {sU0}, 1
            s_add_u32 {sT0}, {sT0}, {sT1}          ; region
            s_and_b32 {sT1}, {sU0}, 1
            s_lshl_b32 {sT1}, {sT1}, 3             ; n0
            s_lshl_b32 {sT4}, {sT0}, 14
            s_lshl_b32 {sT2}, {sT1}, 10
            s_add_u32 {sT4}, {sT4}, {sT2}          ; m0
            s_add_u32 {sT5}, {sT4}, 4096
            """)
            if kind == 'uv':
                a(f"""
                s_lshl_b32 {sT2}, {sT0}, 19
                s_lshl_b32 {sT3}, {sT1}, 15
                s_add_u32 {sT2}, {sT2}, {sT3}
                s_lshl_b32 {sT3}, {sR1}, 8
                s_add_u32 {sT2}, {sT2}, {sT3}
                s_add_u32 {sT3}, {sT2}, {4 << 15}
                """)
            else:
                a(f"""
                s_lshl_b32 {sT2}, {sT0}, 7
                s_lshl_b32 {sT3}, {sT1}, 13
                s_add_u32 {sT2}, {sT2}, {sT3}
                s_lshl_b32 {sT3}, {sR1}, 17
                s_add_u32 {sT2}, {sT2}, {sT3}
                s_add_u32 {sT3}, {sT2}, {4 << 13}
                """)
            self.dma_groups(srd, vo, [sT2, sT3], [sT4, sT5], self.nt())
    def perm_unit(self, src, dst):
        a = self.a
        for q in range(4):
            for p in range(4):
                X = src + 8*q + p; Y = src + 8*q + 4 + p
                a(f'v_perm_b32 v{dst+8*p+q}, v{Y}, v{X}, {sPLO}')
                a(f'v_perm_b32 v{dst+8*p+4+q}, v{Y}, v{X}, {sPHI}')
    def p_post(self):
        a = self.a
        a('; ================= P post')
        a('s_barrier')
        ng = self.wuv_at('x', False)
        self.srd(SA, P_WO, 4 << 20)
        vo = self.voff128(6, 1024)
        a(f"""
        s_lshl_b32 s98, {sR1}, 17
        s_lshl_b32 s99, {sW}, 7
        s_add_u32 s98, s98, s99
        """)
        self.rot_groups(4, sR0, 's98', 15, sWB, [sT0, sT1, sT2, sT3], [sT4, sT5, sT6, sT7])
        wf = self.cfg.get('wofirst', 0)
        SR = [sT0, sT1, sT2, sT3]; MR = [sT4, sT5, sT6, sT7]
        if wf: self.dma_groups(SA, vo, SR[:wf], MR[:wf], self.nt())
        a(f's_waitcnt vmcnt({4*ng + 4*wf})')
        self.d_flag()
        ny = self.wuv_at('y', False)
        if wf < 4: self.dma_groups(SA, vo, SR[wf:], MR[wf:], self.nt())
        self.ts('p_ldiss')
        ad = self.tr128_addr(220, sWB)
        a(f"""
        s_lshl_b32 {sT0}, {sR0}, 5
        s_add_u32 {sT0}, {sT0}, {sR1}
        s_lshl_b32 {sT1}, {sT0}, 8
        s_add_u32 {sT1}, {sT1}, {WS_FL}
        s_lshl_b32 {sT2}, {sT0}, 15
        s_lshl_b32 {sT3}, {sW}, 12
        s_add_u32 {sT2}, {sT2}, {sT3}
        s_add_u32 {sT2}, {sT2}, {WS_D}
        s_lshl_b32 {sR2}, {sT0}, 11
        s_lshl_b32 {sT5}, {sW}, 8
        s_add_u32 {sR2}, {sR2}, {sT5}
        s_add_u32 {sR2}, {sR2}, {WS_E}         ; E soff
        v_and_b32 v5, 31, {vL}
        v_lshlrev_b32 v5, 3, v5
        v_lshlrev_b32 v6, 4, {vL}
        s_lshl_b32 {sT0}, {sW}, 11
        s_add_u32 {sT0}, {sT0}, {RED}
        v_lshrrev_b32 v7, 1, {vL}
        v_and_b32 v7, 1, v7
        v_lshlrev_b32 v7, 4, v7
        v_lshl_add_u32 v7, {vL}, 5, v7
        v_add_u32 v7, {sT0}, v7
        v_xor_b32 v8, 16, v7
        s_lshl_b32 {sT0}, {sW}, 3
        s_add_u32 {sT0}, {sT0}, {MX}
        v_mov_b32 v9, {sT0}
        v_lshlrev_b32 v10, 2, v0
        v_add_u32 v10, {RED}, v10
        v_and_b32 v11, 7, {vL}
        v_lshlrev_b32 v11, 3, v11
        v_add_u32 v11, {MX}, v11
        v_lshlrev_b32 v12, 1, v0
        v_add_u32 v12, {OB}, v12
        s_lshl_b32 {sT0}, {sW}, 7
        s_add_u32 {sT0}, {sT0}, {OB}
        v_lshl_add_u32 v13, {vG}, 4, {sT0}
        s_lshl_b32 {sT0}, {sW}, 9
        s_add_u32 {sT0}, {sT0}, {RED2}
        v_lshlrev_b32 v14, 5, {vT}
        v_lshl_add_u32 v14, {vG}, 3, v14
        v_add_u32 v14, {sT0}, v14
        v_lshlrev_b32 v15, 3, {vL}
        v_add_u32 v15, {RED2}, v15
        v_lshlrev_b32 v232, 6, {vG}
        v_lshrrev_b32 v233, 1, {vL}
        v_and_b32 v233, 3, v233
        v_lshl_add_u32 v232, v233, 4, v232
        v_lshrrev_b32 v233, 3, {vL}
        v_and_b32 v233, 1, v233
        v_lshl_add_u32 v232, v233, 3, v232
        v_and_b32 v233, 1, {vL}
        v_lshl_add_u32 v232, v233, 2, v232
        s_lshl_b32 {sT0}, {sW}, 8
        s_add_u32 {sT0}, {sT0}, {WL}
        v_add_u32 v232, {sT0}, v232
        v_lshl_add_u32 v233, {vG}, 4, {sT0}
        v_lshlrev_b32 v234, 6, {vT}
        v_lshl_add_u32 v234, {vG}, 4, v234     ; E voff
        v_mov_b32 v229, {sTAG}
        v_mov_b32 v231, {sTAG}
        """)
        mg = self.masks_g()
        a(f's_waitcnt vmcnt({4*(4-wf)})')
        self.perm_unit(112, 80)
        self.perm_unit(144, 112)
        l = self.poll_begin()
        a(f'buffer_load_dwordx2 v[176:177], v5, {WS}, {sT1} offen sc1\ns_waitcnt vmcnt(0)')
        self.tagchk('v178', ['v177'])
        self.poll_end(l, 4, self.cfg['sleepD'], 'v178')
        self.ts('dfl_got')
        for k in range(4):
            off = f' offset:{k*1024}' if k else ''
            a(f'buffer_load_dwordx4 {vr(180+4*k,4)}, v6, {WS}, {sT2} offen{off} sc1')
        self.tr_reads(ad, range(4), 128, 16)
        a('v_mov_b32 v178, v176')
        for n in (8, 4, 2, 1): a(f'v_max_f32_dpp v178, v178, v178 row_ror:{n} row_mask:0xf bank_mask:0xf')
        a('v_mov_b32 v179, v178\nv_permlane16_swap_b32 v178, v179\nv_max_f32 v178, v178, v179')
        a("""
        v_sub_f32 v176, v176, v178
        v_exp_f32 v176, v176
        s_nop 0
        v_cvt_pk_bf16_f32 v177, v176, v176
        v_and_b32 v176, 0xffff0000, v177
        v_and_b32 v177, 0xffff, v177
        v_mov_b32 v178, v176
        """)
        for n in (8, 4, 2, 1): a(f'v_add_f32_dpp v178, v178, v178 row_ror:{n} row_mask:0xf bank_mask:0xf')
        a('v_mov_b32 v179, v178\nv_permlane16_swap_b32 v178, v179\nv_add_f32 v178, v178, v179\nv_rcp_f32 v203, v178')
        a(f's_lshl_b32 {sT3}, {sW}, 2')
        for k in range(4):
            a(f's_add_u32 {sT0}, {sT3}, {k}')
            a(f'v_readlane_b32 s{16+k}, v177, {sT0}')
            a(f'v_readlane_b32 s{32+k}, v176, {sT0}')
        for k in range(4):
            a(f's_waitcnt vmcnt({3-k})')
            for p in range(4):
                sreg = 180 + 4*k + p
                c0 = '0' if k == 0 else f'v{212+2*p}'; c1 = '0' if k == 0 else f'v{213+2*p}'
                a(f'v_dot2_f32_bf16 v{212+2*p}, v{sreg}, s{16+k}, {c0}')
                a(f'v_dot2_f32_bf16 v{213+2*p}, v{sreg}, s{32+k}, {c1}')
        self.ts('d_got')
        a('ds_write_b128 v7, v[212:215]\nds_write_b128 v8, v[216:219]')
        a('s_waitcnt lgkmcnt(0)\ns_barrier')
        self.ts('p_b1')
        for ww in range(8): a(f'ds_read_b32 v{192+ww}, v10 offset:{ww*2048}')
        a('s_waitcnt lgkmcnt(0)')
        self.tree_add([f'v{192+k}' for k in range(8)])
        a('v_mov_b32 v202, v192') if False else None
        a("""
        v_mul_f32 v192, v192, v203
        v_cvt_pk_bf16_f32 v202, v192, v192
        ds_write_b16 v12, v202
        s_waitcnt lgkmcnt(0)
        ds_read_b128 v[176:179], v13
        ds_read_b128 v[180:183], v13 offset:64
        """)
        self.ts('p_o')
        for k in range(2):
            a(f's_waitcnt lgkmcnt({1-k})')
            for u in range(8): self.mfma(184+4*u, 176+4*k, 80+32*k+4*u, k == 0)
        self.sel4('v216', [f'v{184+4*u}' for u in (0, 2, 4, 6)], mg)
        self.sel4('v217', [f'v{184+4*u}' for u in (1, 3, 5, 7)], mg)
        self.ts('p_uv')
        a('ds_write_b64 v14, v[216:217]\ns_waitcnt lgkmcnt(0)\ns_barrier')
        self.ts('p_b2')
        for ww in range(8): a(f'ds_read_b64 {vr(176+2*ww,2)}, v15 offset:{ww*512}')
        mt = self.masks_t()
        a('s_waitcnt lgkmcnt(0)')
        self.tree_add([f'v{176+2*k}' for k in range(8)])
        self.tree_add([f'v{177+2*k}' for k in range(8)])
        a('v_cvt_pk_bf16_f32 v176, v176, v177\nds_write_b32 v232, v176\ns_waitcnt lgkmcnt(0)')
        for ks in range(4): a(f'ds_read_b128 {vr(180+4*ks,4)}, v233 offset:{ks*64}')
        for ks in range(4):
            a(f's_waitcnt lgkmcnt({3-ks})')
            for ct in range(4): self.mfma(196+4*ct, 16+4*(ks*4+ct), 180+4*ks, ks == 0)
        self.ts('p_omf')
        for r in range(4): self.sel4(f'v{212+r}', [f'v{196+4*ct+r}' for ct in range(4)], mt)
        a(f"""
        v_cvt_pk_bf16_f32 v228, v212, v213
        v_cvt_pk_bf16_f32 v230, v214, v215
        s_mov_b64 exec, {mT4}
        buffer_store_dwordx4 v[228:231], v234, {WS}, {sR2} offen sc1
        s_mov_b64 exec, -1
        """)
        self.ts('e_pub')
    def ffn(self):
        a = self.a
        a('s_waitcnt vmcnt(0)')
        self.d_flag()
        self.srd(SA, P_W1, 512 * 2752)
        vo = self.voff128(6, 2752)
        a(f'''
        s_mul_i32 {sU0}, {sW}, {64*2752}
        s_lshl_b32 {sT2}, {sR1}, 7
        s_add_u32 {sU0}, {sU0}, {sT2}
        s_add_u32 {sT0}, {sU0}, {32*2752}
        s_add_u32 {sT1}, {sWB}, 4096
        ''')
        self.dma_groups(SA, vo, [sU0, sT0], [sWB, sT1], self.nt())
        self.srd(SB, P_W2, 1376 * 1024)
        vo = self.voff128(10, 1024)
        a(f'''
        s_lshl_b32 {sU0}, {sR1}, 16
        s_lshl_b32 {sT2}, {sW}, 7
        s_add_u32 {sU0}, {sU0}, {sT2}
        s_add_u32 {sT0}, {sU0}, 32768
        s_add_u32 {sT1}, {sWB}, 8192
        s_add_u32 {sT2}, {sWB}, 12288
        ''')
        self.dma_groups(SB, vo, [sU0, sT0], [sT1, sT2], self.nt())
        self.srd(SC, P_X, 4096)
        a(f'''
        v_lshlrev_b32 v5, 1, v0
        s_lshl_b32 {sT0}, {sR0}, 10
        buffer_load_ushort v100, v5, {SC}, {sT0} offen
        v_lshrrev_b32 v5, 1, v0
        v_lshlrev_b32 v5, 3, v5
        s_lshl_b32 {sT0}, {sR0}, 13
        s_add_u32 {sT0}, {sT0}, {WS_MR}
        s_add_u32 {sT1}, {sT0}, 4096
        ''')
        ad = self.tr128_addr(8, sWB)
        mt = self.masks_t()
        a(f'''
        s_lshl_b32 {sT2}, {sR0}, 5
        s_lshl_b32 {sT4}, {sT2}, 11
        s_add_u32 {sT4}, {sT4}, {WS_E}
        s_lshl_b32 {sT3}, {sW}, 13
        s_add_u32 {sT5}, {sT4}, {sT3}
        s_add_u32 {sT6}, {sT5}, 4096
        v_and_b32 v12, 31, {vL}
        v_lshlrev_b32 v12, 11, v12
        v_add_u32 v12, 2040, v12
        v_lshlrev_b32 v13, 4, {vL}
        s_lshl_b32 {sT2}, {sW}, 11
        s_add_u32 {sT2}, {sT2}, {RED}
        v_lshl_add_u32 v14, {vL}, 4, {sT2}
        v_lshlrev_b32 v15, 2, v0
        v_add_u32 v15, {RED}, v15
        s_lshl_b32 {sT2}, {sW}, 3
        s_add_u32 {sT2}, {sT2}, {MX}
        v_mov_b32 v220, {sT2}
        v_and_b32 v221, 7, {vL}
        v_lshlrev_b32 v221, 3, v221
        v_add_u32 v221, {MX}, v221
        v_lshrrev_b32 v222, 5, {vL}
        v_lshlrev_b32 v222, 6, v222
        v_lshrrev_b32 v223, 2, {vL}
        v_and_b32 v223, 3, v223
        v_lshl_add_u32 v222, v223, 4, v222
        v_and_b32 v223, 1, {vG}
        v_lshl_add_u32 v222, v223, 3, v222
        v_lshl_add_u32 v222, {vB4}, 1, v222
        s_lshl_b32 {sT2}, {sW}, 8
        s_add_u32 {sT2}, {sT2}, {WL}
        v_add_u32 v222, {sT2}, v222
        v_lshl_add_u32 v223, {vG}, 4, {sT2}
        s_lshl_b32 {sT2}, {sW}, 8
        s_add_u32 {sT2}, {sT2}, {RED2}
        v_lshlrev_b32 v224, 6, {vT}
        v_lshl_add_u32 v224, {vG}, 4, v224
        v_add_u32 v224, {sT2}, v224
        v_lshlrev_b32 v225, 2, {vL}
        v_add_u32 v225, {RED2}, v225
        s_lshl_b32 {sT2}, {sR0}, 3
        s_add_u32 {sT2}, {sT2}, {sW}
        s_mul_i32 {sT2}, {sT2}, {24*256}
        s_lshl_b32 {sT3}, {sR1}, 8
        s_add_u32 {sT2}, {sT2}, {sT3}
        s_add_u32 {sT7}, {sT2}, {WS_F}         ; F soff
        v_lshlrev_b32 v226, 6, {vT}
        v_lshl_add_u32 v226, {vG}, 4, v226     ; F voff
        s_lshl_b32 {sT2}, {sR1}, 6
        v_add_u32 v227, {sT2}, {vL}
        s_movk_i32 {sT3}, 1376
        v_cmp_gt_u32 s[62:63], {sT3}, v227
        v_mov_b32 v141, {sTAG}
        v_mov_b32 v143, {sTAG}
        ''')
        a(f'v_and_b32 v6, 1, v0\nv_lshlrev_b32 v6, 4, v6')
        a('s_waitcnt vmcnt(0)\nv_lshlrev_b32 v100, 16, v100')
        self.tr_reads(ad, range(2), 128, 16)
        self.tr_reads(ad, range(2), 128, 48, 8192)
        l = self.poll_begin()
        a(f'''
        buffer_load_dwordx2 v[102:103], v5, {WS}, {sT0} offen sc1
        buffer_load_dwordx2 v[104:105], v5, {WS}, {sT0} offen offset:2048 sc1
        buffer_load_dwordx2 v[106:107], v5, {WS}, {sT1} offen sc1
        s_waitcnt vmcnt(0)
        ''')
        self.tagchk('v208', ['v103', 'v105', 'v107'])
        self.poll_end(l, 5, self.cfg['sleepM'], 'v208')
        for r in (102, 104, 106):
            a(f'v_lshrrev_b32 v{r}, v6, v{r}\nv_lshlrev_b32 v{r}, 16, v{r}')
        a(f's_mov_b32 {sT0}, 0x00003f80\ns_mov_b32 {sT1}, 0x3f800000')
        sk = a.label('noet')
        a(f's_cmp_lg_u32 {sW}, 0\ns_cbranch_scc1 {sk}')
        l = self.poll_begin()
        a(f'buffer_load_dwordx2 v[176:177], v12, {WS}, {sT4} offen sc1\ns_waitcnt vmcnt(0)')
        self.tagchk('v178', ['v177'])
        self.poll_end(l, 6, self.cfg['sleepE'], 'v178')
        a(f'{sk}:\ns_barrier')
        self.ts('e_trig')
        l = self.poll_begin()
        for k in range(8):
            so = sT5 if k < 4 else sT6
            off = f' offset:{(k&3)*1024}' if k & 3 else ''
            a(f'buffer_load_dwordx4 {vr(176+4*k,4)}, v13, {WS}, {so} offen{off} sc1')
        for k in range(8):
            a(f's_waitcnt vmcnt({7-k})')
            hf = k & 1; b = 176 + 4*k; acc = 112 + 4*hf
            for j, (src, sel) in enumerate(((b, sT0), (b, sT1), (b+2, sT0), (b+2, sT1))):
                c = '0' if k < 2 else f'v{acc+j}'
                a(f'v_dot2_f32_bf16 v{acc+j}, v{src}, {sel}, {c}')
            if k == 0: a(f'v_xor_b32 v208, {sTAG}, v{b+1}\nv_bitop3_b32 v208, v208, v{b+3}, {sTAG} bitop3:0xf6')
            else:
                for o in (1, 3): a(f'v_bitop3_b32 v208, v208, v{b+o}, {sTAG} bitop3:0xf6')
        self.poll_end(l, 7, 1, 'v208')
        self.ts('e_got')
        a('''
        ds_write_b128 v14, v[112:115]
        ds_write_b128 v14, v[116:119] offset:1024
        s_waitcnt lgkmcnt(0)
        s_barrier
        ''')
        self.ts('f_b1')
        for ww in range(8): a(f'ds_read_b32 v{112+ww}, v15 offset:{ww*2048}')
        a('s_waitcnt lgkmcnt(0)')
        self.tree_add([f'v{112+k}' for k in range(8)])
        a('v_fma_f32 v100, v102, v112, v100\nv_mov_b32 v120, v100\nv_mul_f32 v121, v100, v100')
        self.allsum(['v120', 'v121'], ['v122', 'v123'])
        a('ds_write_b64 v220, v[120:121]\ns_waitcnt lgkmcnt(0)\ns_barrier')
        self.ts('f_b2')
        a('ds_read_b64 v[112:113], v221\ns_waitcnt lgkmcnt(0)')
        for d in ('quad_perm:[1,0,3,2]', 'quad_perm:[2,3,0,1]', 'row_half_mirror'):
            for r in (112, 113): a(f'v_add_f32_dpp v{r}, v{r}, v{r} {d} row_mask:0xf bank_mask:0xf')
        a(f'''
        v_mul_f32 v112, {fhex(1/512)}, v112
        v_mul_f32 v113, {fhex(1/512)}, v113
        v_fma_f32 v113, -v112, v112, v113
        v_max_f32 v113, 0, v113
        v_add_f32 v113, {fhex(1e-5)}, v113
        v_rsq_f32 v113, v113
        v_sub_f32 v114, v100, v112
        v_mul_f32 v114, v114, v113
        v_add_f32 v115, v114, v104
        v_fmac_f32 v115, v114, v106
        v_cvt_pk_bf16_f32 v115, v115, v115
        ds_write_b16 v222, v115
        s_waitcnt lgkmcnt(0)
        ds_read_b128 v[112:115], v223
        ds_read_b128 v[116:119], v223 offset:64
        ''')
        for ks in range(2):
            a(f's_waitcnt lgkmcnt({1-ks})')
            for ct in range(4): self.mfma(120+4*ct, 16+4*(ks*4+ct), 112+4*ks, ks == 0)
        for r in range(4): self.sel4(f'v{136+r}', [f'v{120+4*ct+r}' for ct in range(4)], mt)
        a(f'''
        s_mov_b64 exec, {mT4}
        ds_write_b128 v224, v[136:139]
        s_mov_b64 exec, -1
        s_waitcnt lgkmcnt(0)
        s_barrier
        ''')
        self.ts('f_b3')
        for ww in range(8): a(f'ds_read_b32 v{112+ww}, v225 offset:{ww*256}')
        a('s_waitcnt lgkmcnt(0)')
        self.tree_add([f'v{112+k}' for k in range(8)])
        a('''
        v_max_f32 v112, 0, v112
        v_cndmask_b32 v112, 0, v112, s[62:63]
        v_cvt_pk_bf16_f32 v112, v112, v112
        ds_write_b16 v222, v112 offset:128
        s_waitcnt lgkmcnt(0)
        ds_read_b128 v[112:115], v223 offset:128
        ds_read_b128 v[116:119], v223 offset:192
        ''')
        for ks in range(2):
            a(f's_waitcnt lgkmcnt({1-ks})')
            for ct in range(4): self.mfma(120+4*ct, 48+4*(ks*4+ct), 112+4*ks, ks == 0)
        for r in range(4): self.sel4(f'v{136+r}', [f'v{120+4*ct+r}' for ct in range(4)], mt)
        a(f'''
        v_cvt_pk_bf16_f32 v140, v136, v137
        v_cvt_pk_bf16_f32 v142, v138, v139
        s_mov_b64 exec, {mT4}
        buffer_store_dwordx4 v[140:143], v226, {WS}, {sT7} offen sc1
        s_mov_b64 exec, -1
        ''')
        self.ts('f_pub')
    def final(self):
        a = self.a
        a('s_waitcnt vmcnt(0)')
        self.d_flag()
        a(f's_lshl_b32 {sR1}, {sX}, 2\ns_add_u32 {sR1}, {sR1}, {sR0}')
        self.silu_addr()
        self.srd(SB, P_C, 4096)
        a(f'buffer_load_dwordx2 v[18:19], v16, {SB}, 0 offen')
        self.srd(SA, P_WMOD, 512 * 6144)
        vo = self.voff128(6, 6144)
        a(f'''
        s_mul_i32 {sU0}, {sW}, {64*6144}
        s_lshl_b32 {sT2}, {sR1}, 7
        s_add_u32 {sU0}, {sU0}, {sT2}
        s_add_u32 {sU0}, {sU0}, 2048
        s_add_u32 {sT0}, {sU0}, {32*6144}
        s_add_u32 {sT1}, {sWB}, 4096
        ''')
        self.dma_groups(SA, vo, [sU0, sT0], [sWB, sT1], self.nt())
        self.sv_frag_addr('v12')
        ad = self.tr128_addr(8, sWB)
        a('s_waitcnt vmcnt(8)')
        self.silu_calc()
        a('s_waitcnt lgkmcnt(0)\ns_barrier')
        a('ds_read_b128 v[112:115], v12\nds_read_b128 v[116:119], v12 offset:64\ns_waitcnt vmcnt(0)')
        self.tr_reads(ad, range(2), 128, 24)
        a('s_waitcnt lgkmcnt(0)')
        for ks in range(2):
            for ct in range(4): self.mfma(120+4*ct, 24+4*(ks*4+ct), 112+4*ks, ks == 0)
        a(f'''
        s_lshl_b32 {sT0}, {sW}, 10
        s_add_u32 {sT0}, {sT0}, {RED}
        v_lshlrev_b32 v5, 6, {vG}
        v_lshl_add_u32 v5, {vT}, 4, v5
        v_add_u32 v5, {sT0}, v5
        s_mov_b64 exec, {mT4}
        ''')
        for ct in range(4): a(f'ds_write_b128 v5, {vr(120+4*ct,4)} offset:{ct*256}')
        a('s_mov_b64 exec, -1\ns_waitcnt lgkmcnt(0)\ns_barrier')
        sk = a.label('mrskip')
        a(f's_cmp_ge_u32 {sW}, 2\ns_cbranch_scc1 {sk}')
        a(f'v_lshlrev_b32 v5, 3, v0\nv_add_u32 v5, {RED}, v5')
        for ww in range(8): a(f'ds_read_b64 {vr(112+2*ww,2)}, v5 offset:{ww*1024}')
        a(f'''
        v_lshrrev_b32 v6, 1, v0
        v_and_b32 v6, 3, v6
        v_lshlrev_b32 v6, 13, v6
        v_lshrrev_b32 v7, 3, v0
        v_lshl_add_u32 v6, v7, 4, v6
        v_and_b32 v7, 1, v0
        v_lshl_add_u32 v6, v7, 3, v6
        s_lshl_b32 {sT0}, {sR1}, 8
        s_add_u32 {sT0}, {sT0}, {WS_MR}
        s_waitcnt lgkmcnt(0)
        ''')
        self.tree_add([f'v{112+2*k}' for k in range(8)])
        self.tree_add([f'v{113+2*k}' for k in range(8)])
        a(f'''
        v_cvt_pk_bf16_f32 v112, v112, v113
        v_mov_b32 v113, {sTAG}
        buffer_store_dwordx2 v[112:113], v6, {WS}, {sT0} offen sc1
        {sk}:
        ''')
        self.ts('mr_pub')
        a(f's_cmp_lg_u32 {sW}, 0\ns_cbranch_scc1 L_exit')
        self.srd(SC, P_X, 4096)
        self.srd(SA, P_OUT, 4096)
        a(f"""
        v_lshlrev_b32 v6, 3, {vT}
        s_lshl_b32 {sT0}, {sR0}, 10
        s_lshl_b32 {sT1}, {sX}, 7
        s_add_u32 {sR2}, {sT0}, {sT1}
        buffer_load_dwordx2 v[100:101], v6, {SC}, {sR2} offen
        v_lshlrev_b32 v7, 4, {vT}              ; 2 granules
        s_lshl_b32 {sT0}, {sR0}, 13
        s_lshl_b32 {sT1}, {sX}, 8
        s_add_u32 {sU0}, {sT0}, {sT1}
        s_add_u32 {sU0}, {sU0}, {WS_MR}        ; ga
        s_add_u32 {sU1}, {sU0}, {3*2048}       ; gb
        v_lshl_add_u32 v9, {vG}, 11, v7
        s_lshl_b32 {sT7}, {sR0}, 16
        s_add_u32 {sT7}, {sT7}, {WS_E}
        s_add_u32 {sT0}, {sT7}, {sT1}
        v_lshl_add_u32 v11, {vG}, 8, v7
        v_and_b32 v12, 31, {vL}
        v_lshlrev_b32 v12, 11, v12
        v_add_u32 v12, 2040, v12
        s_lshl_b32 {sT4}, {sR0}, 3
        s_add_u32 {sT4}, {sT4}, {sX}
        s_mul_i32 {sT4}, {sT4}, {24*256}
        s_add_u32 {sT4}, {sT4}, {WS_F}
        s_add_u32 {sT5}, {sT4}, 4096
        s_mov_b32 s98, 0x00003f80
        s_mov_b32 s99, 0x3f800000
        v_cmp_gt_u32 s[100:101], 2, {vG}
        """)
        l = self.poll_begin()
        a(f'buffer_load_dwordx2 v[112:113], v12, {WS}, {sT7} offen sc1\ns_waitcnt vmcnt(0)')
        self.tagchk('v10', ['v113'])
        self.poll_end(l, 12, self.cfg['sleepE'] + 2, 'v10')
        l = self.poll_begin()
        a(f"""
        buffer_load_dwordx4 v[104:107], v7, {WS}, {sU0} offen sc1
        buffer_load_dwordx4 v[108:111], v7, {WS}, {sU1} offen sc1
        s_mov_b32 {sT1}, {sT0}
        """)
        for k in range(8):
            a(f'buffer_load_dwordx4 {vr(112+4*k,4)}, v9, {WS}, {sT1} offen sc1')
            if k < 7: a(f's_add_u32 {sT1}, {sT1}, 8192')
        a('s_waitcnt vmcnt(0)')
        self.tagchk('v10', ['v105', 'v107', 'v109', 'v111'] + [f'v{112+4*k+o}' for k in range(8) for o in (1, 3)])
        self.poll_end(l, 9, 2, 'v10')
        self.ts('fe_got')
        def acc4(dst, srcs):
            for k, b in enumerate(srcs):
                for j, (src, sel) in enumerate(((b, 's98'), (b, 's99'), (b+2, 's98'), (b+2, 's99'))):
                    a(f'v_dot2_f32_bf16 v{dst+j}, v{src}, {sel}, {"0" if k == 0 else f"v{dst+j}"}')
        acc4(144, [112+4*k for k in range(8)])
        self.crossrow([f'v{144+j}' for j in range(4)], [f'v{148+j}' for j in range(4)], 'v_add_f32')
        a("""
        v_lshlrev_b32 v152, 16, v100
        v_and_b32 v153, 0xffff0000, v100
        v_lshlrev_b32 v154, 16, v101
        v_and_b32 v155, 0xffff0000, v101
        v_lshlrev_b32 v156, 16, v104
        v_and_b32 v157, 0xffff0000, v104
        v_lshlrev_b32 v158, 16, v106
        v_and_b32 v159, 0xffff0000, v106
        v_fmac_f32 v152, v156, v144            ; x1
        v_fmac_f32 v153, v157, v145
        v_fmac_f32 v154, v158, v146
        v_fmac_f32 v155, v159, v147
        v_lshlrev_b32 v156, 16, v108           ; gb
        v_and_b32 v157, 0xffff0000, v108
        v_lshlrev_b32 v158, 16, v110
        v_and_b32 v159, 0xffff0000, v110
        """)
        l = self.poll_begin()
        for k in range(6):
            so = sT4 if k < 4 else sT5
            off = f' offset:{(k&3)*1024}' if k & 3 else ''
            a(f'buffer_load_dwordx4 {vr(176+4*k,4)}, v11, {WS}, {so} offen{off} sc1')
        a('s_waitcnt vmcnt(0)')
        a(f'v_mov_b32 v10, {sTAG}')
        for r in (197, 199): a(f'v_cndmask_b32 v{r}, v10, v{r}, s[100:101]')
        for r in (196, 198): a(f'v_cndmask_b32 v{r}, 0, v{r}, s[100:101]')
        self.tagchk('v10', [f'v{176+4*k+o}' for k in range(6) for o in (1, 3)])
        self.poll_end(l, 10, self.cfg['sleepF'], 'v10')
        acc4(144, [176+4*k for k in range(6)])
        self.crossrow([f'v{144+j}' for j in range(4)], [f'v{148+j}' for j in range(4)], 'v_add_f32')
        a(f"""
        v_fmac_f32 v152, v156, v144
        v_fmac_f32 v153, v157, v145
        v_fmac_f32 v154, v158, v146
        v_fmac_f32 v155, v159, v147
        v_cvt_pk_bf16_f32 v152, v152, v153
        v_cvt_pk_bf16_f32 v153, v154, v155
        s_mov_b64 exec, 0xffff
        buffer_store_dwordx2 v[152:153], v6, {SA}, {sR2} offen
        s_mov_b64 exec, -1
        """)
        self.ts('out_st')
    def epoch_update(self):
        a = self.a
        a(f's_cmp_lg_u32 {sW}, 0\ns_cbranch_scc1 L_exit')
        a(f'v_and_b32 v5, 7, {vL}\nv_lshlrev_b32 v5, 15, v5\nv_add_u32 v5, 2040, v5\ns_mov_b32 {sT0}, {WS_E}')
        l = self.poll_begin()
        a(f'buffer_load_dwordx2 v[6:7], v5, {WS}, {sT0} offen sc1\ns_waitcnt vmcnt(0)')
        self.tagchk('v8', ['v7'])
        self.poll_end(l, 11, 8, 'v8')
        a(f'''
        s_add_u32 {sT0}, {sEP}, 1
        v_mov_b32 v6, {sT0}
        v_mov_b32 v5, 0
        s_mov_b64 exec, 1
        buffer_store_dword v6, v5, {WS}, 0 offen sc1
        s_mov_b64 exec, -1
        ''')
    def build(self):
        a = self.a
        self.prologue()
        self.p_pre()
        a('s_branch L_att\nL_qpre:')
        self.q_pre()
        a('L_att:')
        self.att_addr()
        self.attention()
        a(f's_cmp_lt_u32 {sI}, 16\ns_cbranch_scc1 L_qpost')
        self.p_post()
        a('s_branch L_exit\nL_qpost:')
        a(f'''
        s_lshr_b32 {sT0}, {sI}, 2
        s_and_b32 {sR0}, {sI}, 3
        s_cmp_eq_u32 {sT0}, 3
        s_cbranch_scc1 L_final
        s_lshl_b32 {sR1}, {sT0}, 3
        s_add_u32 {sR1}, {sR1}, {sX}
        s_cmp_ge_u32 {sR1}, 22
        s_cbranch_scc1 L_idle
        ''')
        self.ffn()
        a('s_branch L_exit\nL_final:')
        self.final()
        a('s_branch L_exit\nL_idle:')
        a('s_waitcnt vmcnt(0)')
        self.d_flag()
        a(f's_cmp_eq_u32 s2, {7 + 8*11}\ns_cbranch_scc0 L_exit')
        self.epoch_update()
        a('s_branch L_exit')
        for code in self.failsites:
            a(f'L_fail_{code}:\ns_mov_b32 {sT0}, {code}\ns_branch L_fail')
        a(f'''
        L_fail:
        s_waitcnt vmcnt(0) lgkmcnt(0)
        s_mov_b32 s12, s{P_DBG}
        s_mov_b32 s13, s{P_DBG+1}
        s_mov_b32 s14, 256
        s_mov_b32 s15, 0x00020000
        s_mov_b64 exec, 1
        s_lshl_b32 {sT1}, {sT0}, 2
        v_mov_b32 v5, {sT1}
        v_mov_b32 v6, s2
        v_add_u32 v6, 1000, v6
        buffer_store_dword v6, v5, s[12:15], 0 offen
        s_mov_b64 exec, -1
        L_exit:
        ''')
        self.ts('end')
        if self.cfg['ts']:
            sk = a.label('nots')
            a(f's_cmp_lg_u32 {sW}, {self.cfg["tswave"]}\ns_cbranch_scc1 {sk}')
            a(f's_waitcnt lgkmcnt(0)\ns_mov_b64 exec, 1\ns_lshl_b32 {sT0}, s2, 6\ns_add_u32 {sT0}, {sT0}, {WS_TS}\nv_mov_b32 v5, 0')
            for k in range(len(TSREG)):
                a(f'v_mov_b32 v6, s{TSREG[k]}\nbuffer_store_dword v6, v5, {WS}, {sT0} offen offset:{4*k}')
            a(f'{sk}:')
        if self.cfg['endwait'] or self.cfg['ts']: a('s_waitcnt vmcnt(0) lgkmcnt(0)')
        a('L_end:\ns_endpgm')
        return a.finish()
HEADER = open('adaLN_cond__compressed_kv_cla__dense_activation_relu__decode.s.ref').read().split('; Override launch')[0]
def generate(cfg):
    g = Gen(cfg)
    body = g.build()
    init = ''
    if g.cfg['ts']:
        init = ''.join(f'    s_mov_b32 s{r}, 0\n' for r in TSREG[:10])
    txt = HEADER + f'''; @launch grid=(256,1,1) block=(512,1,1) lds={LDS_BYTES}
.amdgcn_target "amdgcn-amd-amdhsa--gfx950"
.text
.globl {KNAME}
.p2align 8
.type {KNAME},@function
{KNAME}:
{init}{body}.section .rodata,"a"
.p2align 6
.amdhsa_kernel {KNAME}
  .amdhsa_next_free_vgpr 256
  .amdhsa_next_free_sgpr 102
  .amdhsa_accum_offset 256
  .amdhsa_group_segment_fixed_size 0
  .amdhsa_kernarg_size 112
  .amdhsa_user_sgpr_count 2
  .amdhsa_user_sgpr_kernarg_segment_ptr 1
  .amdhsa_system_sgpr_workgroup_id_x 1
.end_amdhsa_kernel
'''
    return txt, g
if __name__ == '__main__':
    cfg = json.loads(sys.argv[2]) if len(sys.argv) > 2 else {}
    txt, g = generate(cfg)
    open(sys.argv[1], 'w').write(txt)
    json.dump(dict(ts=g.tsnames, slot=(g.cfg.get('tsmap') or TSSLOT), gen='g'), open(sys.argv[1] + '.json', 'w'))
    print('written', sys.argv[1], 'lines', txt.count('\n'), 'nops padded', g.a.npad)
```

```python
import sys, json, struct
from asmlib import Asm
KNAME = 'adaLN_cond__compressed_kv_cla__dense_activation_relu__decode_kernel'
CFG = dict(etrig2=True, endwait=False, pkmul=False, pvaearly=False, ones=True, codepf=True, ptrig=False, gpl=['e','e','c','b'], gplhp=['c','s','b','p'], wofirst=2, wo_pre=0, pthr=0, ckvsplit=False, ts=False, nt=False, nt_ckv_p=False, nt_ckv_q=True, limit=20000,
           sleepA=1, sleepA2=1, ckvB=False, sleepM=16, sleepC2=1, ftrig=False, sleepC=1, sleepD=1, sleepE=1, sleepF=1, tswave=0)
WS_H  = 0x500000
WS_MR = 0x510000
WS_Q  = 0x10000
WS_FL = 0x50000
WS_E  = 0x60000
WS_F  = 0xA0000
WS_D  = 0x100000
WS_TS = 0x600000
WS_SIZE = 0x700000
SM   = 131072
QT   = SM
RED  = SM
PT   = SM + 16384
WL   = PT
MX   = SM + 20480
LS   = SM + 20992
SV   = SM + 21504
QB   = SM + 25856
OB   = SM + 27136
RED2 = SM + 28160
LDS_BYTES = 163840
SVS = 1088
QBS = 320
TAGMUL = 0x9E3779B1
LOG2E = 1.4426950408889634
SCALE = (128 ** -0.5) * LOG2E
def fhex(x): return '0x%08x' % struct.unpack('<I', struct.pack('<f', x))[0]
sX, sI, sW, sTAG, sEP = 's3', 's4', 's5', 's6', 's7'
WS = 's[8:11]'; SA = 's[12:15]'; SB = 's[44:47]'; SC = 's[48:51]'
P_X, P_CKV, P_WQ, P_WUK, P_WUV, P_WO, P_W1, P_W2, P_C, P_WMOD, P_OUT, P_DBG, P_WS = 16, 18, 20, 22, 24, 26, 30, 32, 34, 36, 38, 40, 42
sWB = 's52'
sT0, sT1, sT2, sT3 = 's53', 's54', 's55', 's56'
sT4, sT5, sT6, sT7 = 's72', 's73', 's74', 's75'
sPLO, sPHI = 's57', 's58'
sCNT = 's59'
mT4 = 's[60:61]'
sU0, sU1 = 's62', 's63'
sCH, sBA, sS, sHH = 's64', 's65', 's66', 's67'
sR0, sR1, sR2, sR3 = 's68', 's69', 's70', 's71'
MK = 96
TSREG = [76,78,80,82,84,86,88,90,92,94,28,0]
TSSLOT = dict(start=0, hp_loaded=1, hp_pub=2, wq_landed=1, h_got=2, q_pub=3, ckv_iss=3, c_got=4, b1=5, b3=6, d_st=7, d_flag=8,
              dfl_got=9, d_got=10, e_pub=11, e_trig=9, e_got=10, f_pub=11, mr_pub=9, fe_got=10, out_st=11)
vL, vG, vT, vB4 = 'v1', 'v2', 'v3', 'v4'
def vr(a, n=1): return f'v{a}' if n == 1 else f'v[{a}:{a+n-1}]'
class Gen:
    def __init__(self, cfg):
        self.cfg = dict(CFG); self.cfg.update(cfg)
        self.a = Asm(); self.tsnames = []; self.failsites = []
    def ts(self, name):
        if not self.cfg['ts']: return
        slots = self.cfg.get('tsmap') or TSSLOT
        if name not in slots: return
        r = TSREG[slots[name]]
        if name not in self.tsnames: self.tsnames.append(name)
        self.a(f's_memrealtime s[{r}:{r+1}]')
    def srd(self, quad, ptr, size):
        q = int(quad[2:quad.index(':')])
        self.a(f's_mov_b32 s{q}, s{ptr}\ns_mov_b32 s{q+1}, s{ptr+1}\ns_mov_b32 s{q+2}, {size}\ns_mov_b32 s{q+3}, 0x00020000')
    def nt(self, key='nt'): return ' nt' if self.cfg[key] else ''
    def poll_begin(self):
        l = self.a.label('poll')
        self.a(f's_mov_b32 {sCNT}, {self.cfg["limit"]}\n{l}:')
        return l
    def poll_end(self, l, code, sleep, vacc):
        a = self.a; ok = a.label('ok')
        if code not in self.failsites: self.failsites.append(code)
        a(f'v_cmp_ne_u32 vcc, 0, {vacc}')
        a(f's_cbranch_vccz {ok}')
        a(f's_sub_u32 {sCNT}, {sCNT}, 1')
        a(f's_cbranch_scc1 L_fail_{code}')
        if sleep: a(f's_sleep {sleep}')
        a(f's_branch {l}')
        a(f'{ok}:')
    def poll_trig(self, voff, soff, ra, code, vacc):
        a = self.a
        if code not in self.failsites: self.failsites.append(code)
        l = a.label('pt'); ok = a.label('ptok')
        ld = lambda r: a(f'buffer_load_dwordx2 {vr(r,2)}, {voff}, {WS}, {soff} offen sc1')
        a(f's_mov_b32 {sCNT}, {self.cfg["limit"]}')
        ld(ra)
        a(f'{l}:')
        ld(ra+2)
        a(f's_waitcnt vmcnt(1)\nv_cmp_ne_u32 vcc, {sTAG}, v{ra+1}\ns_cbranch_vccz {ok}')
        ld(ra)
        a(f's_waitcnt vmcnt(1)\nv_cmp_ne_u32 vcc, {sTAG}, v{ra+3}\ns_cbranch_vccz {ok}')
        a(f's_sub_u32 {sCNT}, {sCNT}, 1\ns_cbranch_scc1 L_fail_{code}\ns_branch {l}\n{ok}:')
    def tagchk(self, vacc, regs):
        a = self.a
        for k, r in enumerate(regs):
            if k == 0: a(f'v_xor_b32 {vacc}, {sTAG}, {r}')
            else: a(f'v_bitop3_b32 {vacc}, {vacc}, {r}, {sTAG} bitop3:0xf6')
    def crossrow(self, regs, tmp, op):
        a = self.a
        for sw in ('v_permlane16_swap_b32', 'v_permlane32_swap_b32'):
            for r, t in zip(regs, tmp): a(f'v_mov_b32 {t}, {r}')
            for r, t in zip(regs, tmp): a(f'{sw} {r}, {t}')
            for r, t in zip(regs, tmp): a(f'{op} {r}, {r}, {t}')
    def allsum(self, regs, tmp, op='v_add_f32'):
        a = self.a
        for n in (8, 4, 2, 1):
            for r in regs: a(f'{op}_dpp {r}, {r}, {r} row_ror:{n} row_mask:0xf bank_mask:0xf')
        self.crossrow(regs, tmp, op)
    def ckv_prep(self, v):
        a = self.a
        self.srd(SA, P_CKV, 16 << 20)
        a(f'v_lshlrev_b32 v{v}, 4, {vL}')
        for k in range(1, 8): a(f'v_xor_b32 v{v+k}, {k << 5}, v{v}')
    def ckv_group(self, gi, v, ntkey):
        a = self.a
        a(f's_add_u32 {sU1}, {sWB}, {gi*4096}\ns_mov_b32 m0, {sU1}\ns_add_u32 {sU0}, {sCH}, {sU1}')
        for k in range(4):
            n = 4*gi + k
            off = f' offset:{k*1024}' if k else ''
            a(f'buffer_load_dwordx4 v{v + (n & 7)}, {SA}, {sU0} offen{off}{self.nt(ntkey)} lds')
    def dma_ckv_p(self):
        a = self.a
        thr = self.cfg.get('pthr', 2)
        self.srd(SA, P_CKV, 16 << 20)
        a(f'v_lshlrev_b32 v6, 4, {vL}')
        for k in range(1, 8): a(f'v_xor_b32 v{6+k}, {k << 5}, v6')
        for n in range(16):
            if n % 4 == 0:
                a(f's_add_u32 {sT1}, {sWB}, {(n>>2)*4096}')
                a(f's_mov_b32 m0, {sT1}')
                a(f's_add_u32 {sT0}, {sCH}, {sT1}')
            off = f' offset:{(n & 3)*1024}' if n & 3 else ''
            a(f'buffer_load_dwordx4 v{6 + (n & 7)}, {SA}, {sT0} offen{off}{self.nt("nt_ckv_p")} lds')
            if thr and n == thr - 1: a('s_waitcnt vmcnt(0)')
    def dma_groups(self, srd, voff4, sregs, mregs, nt):
        a = self.a
        for sr, mr in zip(sregs, mregs):
            a(f's_mov_b32 m0, {mr}\ns_nop 0')
            for k in range(4):
                off = f' offset:{k*1024}' if k else ''
                a(f'buffer_load_dwordx4 {voff4[k]}, {srd}, {sr} offen{off}{nt} lds')
    def rot_groups(self, ng, rot, sbase, step_log2, mbase, sregs, mregs, tmp=sCNT):
        a = self.a
        for j in range(ng):
            if rot is None:
                a(f's_add_u32 {sregs[j]}, {sbase}, {j << step_log2}')
                a(f's_add_u32 {mregs[j]}, {mbase}, {j*4096}')
            else:
                a(f's_add_u32 {tmp}, {rot}, {j}\ns_and_b32 {tmp}, {tmp}, {ng-1}')
                a(f's_lshl_b32 {sregs[j]}, {tmp}, {step_log2}\ns_add_u32 {sregs[j]}, {sregs[j]}, {sbase}')
                a(f's_lshl_b32 {mregs[j]}, {tmp}, 12\ns_add_u32 {mregs[j]}, {mregs[j]}, {mbase}')
    def voff128(self, v, rowstride):
        a = self.a
        a(f'''
        v_lshrrev_b32 v{v}, 3, {vL}
        v_mul_u32_u24 v{v}, {rowstride}, v{v}
        v_and_b32 v{v+1}, 7, {vL}
        v_lshlrev_b32 v{v+2}, 1, {vG}
        v_xor_b32 v{v+1}, v{v+1}, v{v+2}
        v_lshl_add_u32 v{v}, v{v+1}, 4, v{v}
        ''')
        for k in range(1, 4): a(f'v_add_u32 v{v+k}, {k*(8*rowstride-1024)}, v{v}')
        return [f'v{v+k}' for k in range(4)]
    def tr128_addr(self, v, base_s):
        a = self.a
        a(f'''
        v_lshrrev_b32 v{v}, 2, {vT}
        v_lshl_add_u32 v{v}, {vG}, 2, v{v}
        v_lshrrev_b32 v{v+1}, 1, v{v}
        v_and_b32 v{v+1}, 3, v{v+1}
        v_lshlrev_b32 v{v+1}, 5, v{v+1}
        v_lshl_add_u32 v{v}, v{v}, 7, v{v+1}
        v_lshrrev_b32 v{v+1}, 1, {vB4}
        v_lshl_add_u32 v{v}, v{v+1}, 4, v{v}
        v_and_b32 v{v+1}, 1, {vB4}
        v_lshl_add_u32 v{v}, v{v+1}, 3, v{v}
        v_add_u32 v{v}, {base_s}, v{v}
        ''')
        for ct in range(1, 4): a(f'v_xor_b32 v{v+ct}, {ct << 5}, v{v}')
        return [f'v{v+ct}' for ct in range(4)]
    def tr_reads(self, addrs, kss, rb, dst, base_off=0):
        a = self.a
        for ks in kss:
            for ct, ad in enumerate(addrs):
                d = dst + 4 * (ks * len(addrs) + ct)
                for hi in range(2):
                    a(f'ds_read_b64_tr_b16 {vr(d + 2*hi, 2)}, {ad} offset:{base_off + (32*ks + 16*hi)*rb}')
    def sel4(self, dst, srcs, masks):
        a = self.a
        a(f'v_cndmask_b32 {dst}, {srcs[0]}, {srcs[1]}, {masks[0]}')
        a(f'v_cndmask_b32 {dst}, {dst}, {srcs[2]}, {masks[1]}')
        a(f'v_cndmask_b32 {dst}, {dst}, {srcs[3]}, {masks[2]}')
    def masks_t(self):
        for k, val in enumerate((0x22222222, 0x44444444, 0x88888888)):
            self.a(f's_mov_b32 s{MK+2*k}, {val:#x}\ns_mov_b32 s{MK+2*k+1}, {val:#x}')
        return [f's[{MK+2*k}:{MK+2*k+1}]' for k in range(3)]
    def masks_q(self):
        for k, val in enumerate((0x00f000f0, 0x0f000f00, 0xf000f000)):
            self.a(f's_mov_b32 s{MK+2*k}, {val:#x}\ns_mov_b32 s{MK+2*k+1}, {val:#x}')
        return [f's[{MK+2*k}:{MK+2*k+1}]' for k in range(3)]
    def masks_g(self):
        for k, (lo, hi) in enumerate(((0xffff0000, 0), (0, 0x0000ffff), (0, 0xffff0000))):
            self.a(f's_mov_b32 s{MK+2*k}, {lo:#x}\ns_mov_b32 s{MK+2*k+1}, {hi:#x}')
        return [f's[{MK+2*k}:{MK+2*k+1}]' for k in range(3)]
    def mfma(self, acc, A, B, first):
        self.a(f'v_mfma_f32_16x16x32_bf16 {vr(acc,4)}, {vr(A,4)}, {vr(B,4)}, {"0" if first else vr(acc,4)}')
    def tree_add(self, regs):
        a = self.a; n = len(regs); step = 1
        while step < n:
            for k in range(0, n - step, 2*step): a(f'v_add_f32 {regs[k]}, {regs[k]}, {regs[k+step]}')
            step *= 2
    def prologue(self):
        a = self.a
        a('''
        s_cmp_ge_u32 s2, 256
        s_cbranch_scc1 L_end
        s_load_dwordx16 s[16:31], s[0:1], 0
        s_load_dwordx8 s[32:39], s[0:1], 64
        s_load_dwordx4 s[40:43], s[0:1], 96
        ''')
        self.ts('start')
        a(f'''
        v_lshrrev_b32 v5, 6, v0
        v_and_b32 {vL}, 63, v0
        v_readfirstlane_b32 {sW}, v5
        v_lshrrev_b32 {vG}, 4, {vL}
        v_and_b32 {vT}, 15, {vL}
        v_and_b32 {vB4}, 3, {vL}
        s_and_b32 {sX}, s2, 7
        s_lshr_b32 {sI}, s2, 3
        ''')
        if self.cfg.get('ixor'): a(f's_xor_b32 {sI}, {sI}, {self.cfg["ixor"]}')
        a(f'''
        s_lshl_b32 {sWB}, {sW}, 14
        s_mov_b32 s60, 0x000f000f
        s_mov_b32 s61, 0x000f000f
        s_lshl_b32 {sCH}, {sX}, 4
        s_and_b32 {sT0}, {sI}, 15
        s_add_u32 {sCH}, {sCH}, {sT0}
        s_lshr_b32 {sBA}, {sCH}, 5
        s_and_b32 {sS}, {sCH}, 31
        s_lshr_b32 {sHH}, {sI}, 4
        ''')
        if self.cfg.get('hhswap', True): a(f's_xor_b32 {sHH}, {sHH}, 1')
        a(f'''
        s_lshl_b32 {sCH}, {sCH}, 17
        ''')
        if self.cfg.get('codepf'):
            sk = a.label('nocpf')
            a(f's_cmp_lg_u32 {sI}, {self.cfg.get("codepf_i", 31)}\ns_cbranch_scc1 {sk}')
            a(f's_cmp_ge_u32 {sW}, 3\ns_cbranch_scc1 {sk}')
            a(f'''
            s_getpc_b64 s[62:63]
            L_pc:
            s_sub_u32 s62, s62, L_pc-{KNAME}
            s_subb_u32 s63, s63, 0
            v_lshlrev_b32 v5, 7, {vL}
            s_lshl_b32 {sT0}, {sW}, 13
            v_add_u32 v5, {sT0}, v5
            s_mov_b32 {sT0}, L_end-{KNAME}
            v_cmp_gt_u32 vcc, {sT0}, v5
            s_and_saveexec_b64 s[100:101], vcc
            s_cbranch_execz L_cpf_skip
            global_load_dword v255, v5, s[62:63]
            L_cpf_skip:
            s_mov_b64 exec, s[100:101]
            {sk}:
            ''')
        a(f'''
        s_cmp_lt_u32 {sI}, 16
        s_cbranch_scc1 L_qpre
        ''')
    def after_kernarg(self):
        a = self.a
        a(f's_waitcnt lgkmcnt(0)\ns_load_dword {sEP}, s[{P_WS}:{P_WS+1}], 0')
    def tag(self):
        self.srd(WS, P_WS, WS_SIZE)
        self.a(f'''
        s_waitcnt lgkmcnt(0)
        s_add_u32 {sTAG}, {sEP}, 1
        s_mul_i32 {sTAG}, {sTAG}, {TAGMUL:#x}
        s_add_u32 {sTAG}, {sTAG}, 0x7f4a7c15
        ''')
    def dma_ckv(self, ntkey, groups=(0, 1, 2, 3), v=6):
        a = self.a
        self.srd(SA, P_CKV, 16 << 20)
        a(f'v_lshlrev_b32 v{v}, 4, {vL}')
        for k in range(1, 8): a(f'v_xor_b32 v{v+k}, {k << 5}, v{v}')
        for gi in groups:
            a(f's_add_u32 {sT1}, {sWB}, {gi*4096}')
            a(f's_mov_b32 m0, {sT1}')
            a(f's_add_u32 {sT0}, {sCH}, {sT1}')
            for k in range(4):
                n = 4*gi + k
                off = f' offset:{k*1024}' if k else ''
                a(f'buffer_load_dwordx4 v{v + (n & 7)}, {SA}, {sT0} offen{off}{self.nt(ntkey)} lds')
    def silu_addr(self):
        self.a(f'''
        v_lshlrev_b32 v16, 3, v0
        v_lshrrev_b32 v20, 7, v0
        v_mul_u32_u24 v20, {SVS}, v20
        v_and_b32 v21, 127, v0
        v_lshrrev_b32 v21, 3, v21
        v_lshl_add_u32 v20, v21, 6, v20
        v_and_b32 v21, 3, v0
        v_lshl_add_u32 v20, v21, 4, v20
        v_lshrrev_b32 v21, 2, v0
        v_and_b32 v21, 1, v21
        v_lshl_add_u32 v20, v21, 3, v20
        v_add_u32 v20, {SV}, v20
        ''')
    def silu_calc(self):
        a = self.a
        a('''
        v_lshlrev_b32 v22, 16, v18
        v_and_b32 v23, 0xffff0000, v18
        v_lshlrev_b32 v24, 16, v19
        v_and_b32 v25, 0xffff0000, v19
        ''')
        for r in range(22, 26): a(f'v_mul_f32 v{r+4}, {fhex(-LOG2E)}, v{r}')
        for r in range(22, 26): a(f'v_exp_f32 v{r+4}, v{r+4}')
        for r in range(22, 26): a(f'v_add_f32 v{r+4}, 1.0, v{r+4}')
        for r in range(22, 26): a(f'v_rcp_f32 v{r+4}, v{r+4}')
        for r in range(22, 26): a(f'v_mul_f32 v{r}, v{r}, v{r+4}')
        a('v_cvt_pk_bf16_f32 v22, v22, v23\nv_cvt_pk_bf16_f32 v23, v24, v25\nds_write_b64 v20, v[22:23]')
    def sv_frag_addr(self, v):
        self.a(f'''
        v_mul_u32_u24 {v}, {SVS}, {vB4}
        v_lshl_add_u32 {v}, {vG}, 4, {v}
        s_lshl_b32 {sT2}, {sW}, 7
        s_add_u32 {sT2}, {sT2}, {SV}
        v_add_u32 {v}, {sT2}, {v}
        ''')
    def p_pre(self):
        a = self.a
        a('; ================= P pre')
        if self.cfg.get('stopq'):
            self.after_kernarg(); self.tag(); a('s_branch L_exit')
        skip = a.label('nohp'); done = a.label('hpdone')
        a(f's_sub_u32 {sR0}, {sI}, 16\ns_cmp_ge_u32 {sR0}, 4\ns_cbranch_scc1 {skip}')
        vo = self.voff128(6, 6144)
        a(f"""
        s_lshl_b32 {sT0}, {sR0}, 2
        s_and_b32 {sT4}, {sW}, 3
        s_add_u32 {sT0}, {sT0}, {sT4}
        s_mul_i32 {sT0}, {sT0}, {32*6144}
        s_lshr_b32 {sT1}, {sW}, 2
        s_lshl_b32 {sT1}, {sT1}, 10
        s_add_u32 {sT0}, {sT0}, {sT1}
        s_lshl_b32 {sT3}, {sX}, 7
        s_add_u32 {sT0}, {sT0}, {sT3}
        v_lshrrev_b32 v16, 7, v0
        v_and_b32 v17, 127, v0
        v_lshlrev_b32 v18, 10, v16
        v_lshl_add_u32 v18, v17, 1, v18
        s_lshl_b32 {sT2}, {sR0}, 8
        s_lshl_b32 {sT5}, {sT4}, 10
        v_lshlrev_b32 v30, 4, {vL}
        v_lshrrev_b32 v39, 1, v0
        v_and_b32 v39, 3, v39
        v_lshrrev_b32 v37, 3, v0
        v_and_b32 v36, 1, v0
        v_lshlrev_b32 v35, 10, v39
        v_lshl_add_u32 v35, v37, 3, v35
        v_lshl_add_u32 v35, v36, 2, v35
        """)
        self.after_kernarg()
        self.srd(SB, P_C, 4096); self.srd(SC, P_X, 4096); self.srd(SA, P_WMOD, 512 * 6144)
        self.ts('hp_karg')
        a(f"""
        buffer_load_ushort v20, v18, {SB}, {sT2} offen
        buffer_load_dwordx4 v[40:43], v30, {SC}, {sT5} offen
        buffer_load_dword v38, v35, {SC}, {sT3} offen
        """)
        self.dma_groups(SA, vo, [sT0], [sWB], self.nt())
        self.tag()
        ad = self.tr128_addr(6, sWB)
        mq = self.masks_q()
        a(f"""
        v_mul_u32_u24 v10, {QBS}, v16
        v_lshrrev_b32 v11, 5, v17
        v_lshl_add_u32 v10, v11, 6, v10
        v_lshrrev_b32 v11, 2, v17
        v_and_b32 v11, 3, v11
        v_lshl_add_u32 v10, v11, 4, v10
        v_lshrrev_b32 v11, 4, v17
        v_and_b32 v11, 1, v11
        v_lshl_add_u32 v10, v11, 3, v10
        v_and_b32 v11, 3, v17
        v_lshl_add_u32 v10, v11, 1, v10
        v_add_u32 v10, {SV}, v10
        v_mul_u32_u24 v11, {QBS}, {vB4}
        v_lshl_add_u32 v11, {vG}, 4, v11
        s_lshl_b32 {sT0}, {sT4}, 6
        s_add_u32 {sT0}, {sT0}, {SV}
        v_add_u32 v11, {sT0}, v11
        s_lshl_b32 {sT0}, {sW}, 10
        s_add_u32 {sT0}, {sT0}, {RED}
        v_lshrrev_b32 v12, 2, {vT}
        v_lshlrev_b32 v12, 8, v12
        v_lshl_add_u32 v12, {vG}, 6, v12
        v_lshl_add_u32 v12, {vB4}, 4, v12
        v_add_u32 v12, {sT0}, v12
        v_lshlrev_b32 v13, 3, v0
        v_add_u32 v13, {RED}, v13
        v_lshlrev_b32 v14, 3, v39
        v_add_u32 v14, {LS}, v14
        v_lshlrev_b32 v15, 11, v39
        v_lshl_add_u32 v15, v37, 4, v15
        v_lshl_add_u32 v15, v36, 3, v15
        s_lshl_b32 {sT6}, {sR0}, 13
        s_lshl_b32 {sT0}, {sX}, 8
        s_add_u32 {sT6}, {sT6}, {sT0}
        s_add_u32 {sT6}, {sT6}, {WS_H}
        s_lshl_b32 {sT3}, {sT4}, 3
        s_add_u32 {sT3}, {sT3}, {LS}
        v_mov_b32 v50, {sT3}
        s_cmp_eq_u32 {sR0}, 0
        s_cselect_b32 {sT7}, 1.0, 0
        v_mov_b32 v45, {sTAG}
        s_waitcnt vmcnt(6)
        v_lshlrev_b32 v20, 16, v20
        v_mul_f32 v21, {fhex(-LOG2E)}, v20
        v_exp_f32 v21, v21
        s_nop 0
        v_add_f32 v21, 1.0, v21
        v_rcp_f32 v21, v21
        s_nop 0
        v_mul_f32 v20, v20, v21
        v_cvt_pk_bf16_f32 v20, v20, v20
        ds_write_b16 v10, v20
        s_waitcnt vmcnt(5)
        """)
        self.ts('hp_c')
        for k in range(4):
            a(f'v_lshlrev_b32 v{52+2*k}, 16, v{40+k}\nv_and_b32 v{53+2*k}, 0xffff0000, v{40+k}')
        a('v_add_f32 v48, v52, v53\nv_mul_f32 v49, v52, v52\nv_fmac_f32 v49, v53, v53')
        for k in range(54, 60): a(f'v_add_f32 v48, v48, v{k}\nv_fmac_f32 v49, v{k}, v{k}')
        self.allsum(['v48', 'v49'], ['v51', 'v52'])
        a(f"""
        v_mul_f32 v48, {fhex(1/512)}, v48
        v_mul_f32 v49, {fhex(1/512)}, v49
        v_fma_f32 v49, -v48, v48, v49
        v_max_f32 v49, 0, v49
        v_add_f32 v49, {fhex(1e-5)}, v49
        v_rsq_f32 v49, v49
        s_nop 0
        ds_write_b64 v50, v[48:49]
        s_waitcnt lgkmcnt(0)
        """)
        self.ts('hp_ln')
        a('s_barrier\nds_read_b128 v[52:55], v11\ns_waitcnt vmcnt(0)')
        self.ts('hp_loaded')
        self.tr_reads(ad, range(1), 128, 16)
        a('s_waitcnt lgkmcnt(0)')
        for ct in range(4): self.mfma(60+4*ct, 16+4*ct, 52, True)
        for r in range(4): self.sel4(f'v{76+r}', [f'v{60+4*ct+r}' for ct in range(4)], mq)
        a('ds_write_b128 v12, v[76:79]\ns_waitcnt lgkmcnt(0)\ns_barrier')
        fin = a.label('hpfin')
        a(f's_cmp_ge_u32 {sW}, 2\ns_cbranch_scc1 {fin}')
        for ww in range(8): a(f'ds_read_b64 {vr(16+2*ww,2)}, v13 offset:{ww*1024}')
        a("""
        ds_read_b64 v[32:33], v14
        v_lshlrev_b32 v40, 16, v38
        v_and_b32 v41, 0xffff0000, v38
        s_waitcnt lgkmcnt(0)
        v_sub_f32 v40, v40, v32
        v_sub_f32 v41, v41, v32
        v_mul_f32 v40, v40, v33
        v_mul_f32 v41, v41, v33
        """)
        self.tree_add(['v16', 'v18', 'v20', 'v22'])
        self.tree_add(['v17', 'v19', 'v21', 'v23'])
        self.tree_add(['v24', 'v26', 'v28', 'v30'])
        self.tree_add(['v25', 'v27', 'v29', 'v31'])
        a(f"""
        v_add_f32 v24, {sT7}, v24
        v_add_f32 v25, {sT7}, v25
        v_fmac_f32 v16, v40, v24
        v_fmac_f32 v17, v41, v25
        v_cvt_pk_bf16_f32 v44, v16, v17
        buffer_store_dwordx2 v[44:45], v15, {WS}, {sT6} offen sc1
        {fin}:
        s_barrier
        """)
        self.ts('hp_pub')
        a(f's_branch {done}\n{skip}:')
        if self.cfg.get('pfuk', True):
            a(f'''
            s_sub_u32 {sT0}, {sI}, 20
            s_mul_i32 {sT0}, {sT0}, 6
            s_add_u32 {sT0}, {sT0}, {sW}
            s_lshl_b32 {sT0}, {sT0}, 3
            s_lshl_b32 {sT0}, {sT0}, 13
            s_lshl_b32 {sT1}, {sX}, 10
            s_add_u32 {sT0}, {sT0}, {sT1}
            v_lshrrev_b32 v6, 3, {vL}
            v_lshlrev_b32 v6, 13, v6
            v_and_b32 v7, 7, {vL}
            v_lshl_add_u32 v6, v7, 7, v6
            ''')
        self.after_kernarg()
        if self.cfg.get('pfuk', True):
            sk2 = a.label('nouk')
            self.srd(SB, P_WUK, 4 << 20)
            a(f's_cmp_ge_u32 {sW}, 6\ns_cbranch_scc1 {sk2}\nbuffer_load_dword v98, v6, {SB}, {sT0} offen\n{sk2}:')
        self.tag()
        if self.cfg.get('pdelay'):
            a(f's_lshl_b32 {sT0}, {sX}, 8\ns_add_u32 {sT0}, {sT0}, {WS_H + 3*8192}\nv_mov_b32 v5, 0')
            l = self.poll_begin()
            a(f'buffer_load_dwordx2 v[6:7], v5, {WS}, {sT0} offen sc1\ns_waitcnt vmcnt(0)')
            self.tagchk('v8', ['v7'])
            self.poll_end(l, 12, 4, 'v8')
        a(f'{done}:')
        a(f"""
        s_sub_u32 {sR0}, {sI}, 16
        s_lshr_b32 {sR1}, {sR0}, 2
        s_lshl_b32 {sT0}, {sX}, 2
        s_add_u32 {sR1}, {sR1}, {sT0}          ; hp
        s_and_b32 {sR0}, {sR0}, 3              ; bp
        s_mov_b32 {sPLO}, 0x05040100
        s_mov_b32 {sPHI}, 0x07060302
        """)
        self.touch_uv()
        if self.cfg.get('pwait'): a('s_waitcnt vmcnt(0)')
        self.dma_ckv_p()
        self.ts('ckv_iss')
        self.srd(SB, P_WUV, 4 << 20)
        a(f"""
        v_lshlrev_b32 v96, 16, {vG}
        v_lshl_add_u32 v96, {vT}, 4, v96
        s_lshl_b32 {sU0}, {sW}, 19
        s_lshl_b32 {sU1}, {sR1}, 8
        s_add_u32 {sU0}, {sU0}, {sU1}
        """)
        self.wuv_at('e', False)
    def wuv_group(self, gi):
        a = self.a
        a(f's_add_u32 {sU1}, {sU0}, {((gi >> 1) * 32 + (gi & 1) * 4) * 8192}')
        for e in range(4):
            n = 4*gi + e
            a(f'buffer_load_dwordx4 {vr(112+4*n,4)}, v96, {SB}, {sU1} offen{self.nt()}')
            if e < 3: a(f's_add_u32 {sU1}, {sU1}, 8192')
    def wuv_at(self, pos, guard=True):
        a = self.a
        g1 = [gi for gi, p in enumerate(self.cfg['gpl']) if p == pos]
        g2 = [gi for gi, p in enumerate(self.cfg['gplhp']) if p == pos]
        if g1 == g2:
            if not g1: return len(g1)
            sk = a.label('nouv')
            if guard: a(f's_cmp_lt_u32 {sI}, 16\ns_cbranch_scc1 {sk}')
            for gi in g1: self.wuv_group(gi)
            a(f'{sk}:')
            return len(g1)
        done = a.label('uvd'); hp = a.label('uvhp')
        if guard: a(f's_cmp_lt_u32 {sI}, 16\ns_cbranch_scc1 {done}')
        a(f's_cmp_lt_u32 {sI}, 20\ns_cbranch_scc1 {hp}')
        for gi in g1: self.wuv_group(gi)
        a(f's_branch {done}\n{hp}:')
        for gi in g2: self.wuv_group(gi)
        a(f'{done}:')
        assert pos not in ('x', 'y')
        return 0
    def wuv_unit(self, k):
        a = self.a
        a(f's_add_u32 {sU1}, {sU0}, {k * 32 * 8192}')
        for e in range(8):
            a(f'buffer_load_dwordx4 {vr(112+32*k+4*e,4)}, v96, {SB}, {sU1} offen{self.nt()}')
            if e < 7: a(f's_add_u32 {sU1}, {sU1}, 8192')
    def q_pre(self):
        a = self.a
        a('; ================= Q pre')
        a(f'''
        s_lshr_b32 {sR1}, {sI}, 2
        s_lshl_b32 {sT0}, {sX}, 2
        s_add_u32 {sR1}, {sR1}, {sT0}          ; hq
        s_and_b32 {sR0}, {sI}, 3               ; cq
        v_lshlrev_b32 v9, 1, {vG}
        v_xor_b32 v10, {vT}, v9
        v_lshlrev_b32 v6, 13, {vG}
        v_lshl_add_u32 v6, v10, 4, v6          ; k=0
        v_xor_b32 v7, 128, v6
        v_add_u32 v8, {2*31744}, v6            ; k=2
        v_add_u32 v9, {3*31744}, v7            ; k=3
        v_add_u32 v7, 31744, v7                ; k=1
        s_lshl_b32 {sU0}, {sW}, 19
        s_lshl_b32 {sU1}, {sR1}, 8
        s_add_u32 {sU0}, {sU0}, {sU1}
        ''')
        self.rot_groups(4, sR0, sU0, 17, sWB, [sT0, sT1, sT2, sT3], [sT4, sT5, sT6, sT7])
        a(f'''
        s_lshl_b32 {sU0}, {sR0}, 20
        s_add_u32 {sU0}, {sU0}, {sU1}
        s_lshl_b32 {sU1}, {sW}, 17
        s_add_u32 {sU0}, {sU0}, {sU1}
        ''')
        self.after_kernarg()
        self.ts('q_karg')
        self.srd(SA, P_WQ, 4 << 20)
        self.dma_groups(SA, ['v6', 'v7', 'v8', 'v9'], [sT0, sT1, sT2, sT3], [sT4, sT5, sT6, sT7], self.nt())
        self.ts('q_iss')
        self.srd(SB, P_WUK, 4 << 20)
        a(f's_lshl_b32 {sU1}, {sW}, 12\ns_add_u32 {sU1}, {sU1}, {SM}')
        self.dma_groups(SB, ['v6', 'v7', 'v8', 'v9'], [sU0], [sU1], self.nt())
        self.tag()
        a(f'''
        v_lshrrev_b32 v8, 2, {vT}
        v_lshl_add_u32 v8, {vG}, 2, v8
        v_and_b32 v9, 7, v8
        v_lshlrev_b32 v9, 5, v9
        v_lshl_add_u32 v8, v8, 8, v9
        v_lshrrev_b32 v9, 1, {vB4}
        v_lshl_add_u32 v8, v9, 4, v8
        v_and_b32 v9, 1, {vB4}
        v_lshl_add_u32 v8, v9, 3, v8
        v_add_u32 v8, {sWB}, v8
        ''')
        for ct in range(1, 8): a(f'v_xor_b32 v{8+ct}, {ct << 5}, v8')
        a(f'''
        v_lshlrev_b32 v152, 11, {vG}
        v_lshl_add_u32 v152, {vT}, 4, v152
        v_mul_u32_u24 v170, 192, {vG}
        v_lshrrev_b32 v171, 3, {vT}
        v_lshl_add_u32 v170, v171, 6, v170
        v_lshl_add_u32 v170, {vB4}, 4, v170
        v_lshrrev_b32 v171, 2, {vT}
        v_and_b32 v171, 1, v171
        v_lshl_add_u32 v170, v171, 3, v170
        v_add_u32 v170, {sWB}, v170
        v_mul_u32_u24 v174, 192, {vB4}
        v_lshl_add_u32 v174, {vG}, 4, v174
        v_add_u32 v174, {sWB}, v174
        s_lshl_b32 {sT3}, {sW}, 8
        s_add_u32 {sT3}, {sT3}, {WS_H}
        s_add_u32 {sT2}, {sWB}, 2048
        v_lshrrev_b32 v156, 2, {vT}
        v_lshlrev_b32 v156, 8, v156
        v_lshl_add_u32 v156, {vG}, 6, v156
        v_lshl_add_u32 v156, {vB4}, 4, v156
        v_add_u32 v156, {sT2}, v156
        v_lshlrev_b32 v157, 2, v0
        v_add_u32 v157, 2048, v157
        v_add_u32 v159, 0x10000, v157          ; regions 4..7
        v_lshrrev_b32 v154, 2, {vL}
        v_and_b32 v154, 3, v154
        v_mul_u32_u24 v154, {QBS}, v154
        v_lshl_add_u32 v154, {vG}, 3, v154
        v_lshl_add_u32 v154, {vB4}, 1, v154
        s_lshl_b32 {sT2}, {sW}, 5
        s_add_u32 {sT2}, {sT2}, {QB}
        v_add_u32 v154, {sT2}, v154
        v_mul_u32_u24 v155, {QBS}, {vB4}
        v_lshl_add_u32 v155, {vG}, 4, v155
        v_add_u32 v155, {QB}, v155
        v_lshlrev_b32 v158, 16, {vB4}
        v_lshl_add_u32 v158, {vG}, 4, v158
        s_lshl_b32 {sT4}, {sR1}, 11
        s_lshl_b32 {sT1}, {sR0}, 9
        s_add_u32 {sT4}, {sT4}, {sT1}
        s_lshl_b32 {sT1}, {sW}, 6
        s_add_u32 {sT4}, {sT4}, {sT1}
        s_add_u32 {sT4}, {sT4}, {WS_Q}
        s_mov_b32 {sT5}, {fhex(SCALE)}
        v_mov_b32 v149, {sTAG}
        v_mov_b32 v151, {sTAG}
        v_and_b32 v5, 7, {vT}
        v_lshlrev_b32 v5, 5, v5
        v_lshlrev_b32 v160, 4, {vG}
        v_xor_b32 v160, v160, v5
        v_lshl_add_u32 v160, {vT}, 8, v160
        v_add_u32 v160, {sU1}, v160
        v_xor_b32 v161, 64, v160
        v_xor_b32 v162, 128, v160
        v_xor_b32 v163, 192, v160
        s_waitcnt vmcnt(4)
        ''')
        self.ts('wq_landed')
        a(f's_add_u32 {sT0}, {sT3}, 8192\ns_add_u32 {sT1}, {sT3}, 16384\ns_add_u32 {sT2}, {sT3}, 24576')
        def hloads():
            for k, so in enumerate((sT3, sT0, sT1, sT2)):
                a(f'buffer_load_dwordx4 {vr(128+4*k,4)}, v152, {WS}, {so} offen sc1')
        atrig = self.cfg.get('atrig', False)
        if not atrig: hloads()
        self.tr_reads([f'v{8+ct}' for ct in range(8)], range(2), 256, 16)
        mq = self.masks_q()
        self.ckv_prep(176)
        a(f's_waitcnt vmcnt({0 if atrig else 4})')
        for st in range(4): a(f'ds_read_b128 {vr(112+4*st,4)}, v{160+st}')
        if atrig:
            sk = a.label('noatrig')
            a(f's_cmp_lg_u32 {sW}, 0\ns_cbranch_scc1 {sk}')
            a(f'''
            v_lshrrev_b32 v168, 3, {vL}
            v_and_b32 v168, 3, v168
            v_lshlrev_b32 v168, 13, v168
            v_and_b32 v169, 7, {vL}
            v_lshl_add_u32 v168, v169, 8, v168
            v_add_u32 v168, {3*2048+248}, v168
            s_mov_b32 {sU0}, {WS_H}
            ''')
            l = self.poll_begin()
            a(f'buffer_load_dwordx2 v[128:129], v168, {WS}, {sU0} offen sc1\ns_waitcnt vmcnt(0)')
            self.tagchk('v153', ['v129'])
            self.poll_end(l, 13, self.cfg['sleepA'], 'v153')
            a(f'{sk}:\ns_barrier')
            self.ts('q_atrig')
            l = self.poll_begin()
            hloads()
            a('s_waitcnt vmcnt(0)')
        else:
            first = a.label('hfirst')
            a(f's_mov_b32 {sCNT}, {self.cfg["limit"]}\ns_branch {first}')
            l = a.label('poll'); a(f'{l}:')
            hloads()
            a(f'{first}:\ns_waitcnt vmcnt(0)')
        self.tagchk('v153', [f'v{128+4*k+o}' for k in range(4) for o in (1, 3)])
        self.poll_end(l, 1, self.cfg['sleepA2'], 'v153')
        self.ts('h_got')
        a(f's_mov_b32 {sT0}, 0x00003f80\ns_mov_b32 {sT1}, 0x3f800000')
        for k in range(4):
            for j, (src, sel) in enumerate(((128+4*k, sT0), (128+4*k, sT1), (130+4*k, sT0), (130+4*k, sT1))):
                a(f'v_dot2_f32_bf16 v{144+j}, v{src}, {sel}, {"0" if k == 0 else f"v{144+j}"}')
        a('v_cvt_pk_bf16_f32 v144, v144, v145\nv_cvt_pk_bf16_f32 v145, v146, v147\nds_write_b64 v170, v[144:145]\ns_waitcnt lgkmcnt(0)')
        a('ds_read_b128 v[128:131], v174\nds_read_b128 v[136:139], v174 offset:64')
        if self.cfg.get('ckvA', True): self.ckv_group(1, 176, 'nt_ckv_q')
        a('s_waitcnt lgkmcnt(0)')
        for ks in range(2):
            for ct in range(8): self.mfma(80+4*ct, 16+4*(ks*8+ct), 128+8*ks, ks == 0)
        self.ts('q_mfma')
        for hf in range(2):
            for r in range(4): self.sel4(f'v{136+4*hf+r}', [f'v{80+16*hf+4*ct+r}' for ct in range(4)], mq)
            a(f'ds_write_b128 v156, {vr(136+4*hf,4)} offset:{hf*1024}')
        a('s_waitcnt lgkmcnt(0)')
        self.ts('q_wr')
        if self.cfg.get('ckvB2'): self.ckv_group(2, 176, 'nt_ckv_q')
        a('s_barrier')
        self.ts('q_bar1')
        if self.cfg['ckvB']: self.ckv_group(2, 176, 'nt_ckv_q')
        for ww in range(8): a(f'ds_read_b32 v{128+ww}, v{157 if ww < 4 else 159} offset:{(ww&3)*16384}')
        a('s_waitcnt lgkmcnt(0)')
        self.tree_add([f'v{128+k}' for k in range(8)])
        a('''
        v_cvt_pk_bf16_f32 v128, v128, v128
        ds_write_b16 v154, v128
        s_waitcnt lgkmcnt(0)
        ''')
        if self.cfg.get('ckvB3'): self.ckv_group(2, 176, 'nt_ckv_q')
        a('s_barrier')
        self.ts('q_bar2')
        for st in range(4): a(f'ds_read_b128 {vr(128+4*st,4)}, v155 offset:{st*64}')
        for st in range(4):
            a(f's_waitcnt lgkmcnt({3-st})')
            self.mfma(144, 112+4*st, 128+4*st, st == 0)
        a(f'''
        v_mul_f32 v144, {sT5}, v144
        v_mul_f32 v145, {sT5}, v145
        v_mul_f32 v146, {sT5}, v146
        v_mul_f32 v147, {sT5}, v147
        v_cvt_pk_bf16_f32 v148, v144, v145
        v_cvt_pk_bf16_f32 v150, v146, v147
        s_mov_b64 exec, {mT4}
        buffer_store_dwordx4 v[148:151], v158, {WS}, {sT4} offen sc1
        s_mov_b64 exec, -1
        ''')
        self.ts('q_pub')
        a('s_barrier')
        for gi in [0, 3] + ([] if self.cfg.get('ckvA', True) else [1]) + ([] if (self.cfg['ckvB'] or self.cfg.get('ckvB2') or self.cfg.get('ckvB3')) else [2]): self.ckv_group(gi, 176, 'nt_ckv_q')
        self.touch_o_prep()
    def att_addr(self):
        a = self.a
        a(f'''
        v_and_b32 v5, 7, {vT}
        v_lshlrev_b32 v5, 5, v5
        v_lshlrev_b32 v244, 4, {vG}
        v_xor_b32 v244, v244, v5
        v_lshl_add_u32 v244, {vT}, 10, v244
        v_xor_b32 v245, 64, v244
        v_xor_b32 v246, 128, v244
        v_xor_b32 v247, 192, v244
        v_add_u32 v248, {QT}, v244
        v_add_u32 v249, {QT}, v245
        v_add_u32 v250, {QT}, v246
        v_add_u32 v251, {QT}, v247
        v_add_u32 v244, {sWB}, v244
        v_add_u32 v245, {sWB}, v245
        v_add_u32 v246, {sWB}, v246
        v_add_u32 v247, {sWB}, v247
        v_lshrrev_b32 v80, 2, {vT}
        v_lshl_add_u32 v80, {vG}, 2, v80
        v_and_b32 v81, 7, v80
        v_lshlrev_b32 v81, 5, v81
        s_lshl_b32 {sT0}, {sW}, 7
        v_lshl_add_u32 v82, {vB4}, 4, {sT0}
        v_xor_b32 v81, v81, v82
        v_lshl_add_u32 v80, v80, 10, v81
        v_lshrrev_b32 v81, 1, {vB4}
        v_lshl_add_u32 v80, v81, 3, v80
        v_xor_b32 v81, 8, v80
        v_xor_b32 v82, 64, v80
        v_xor_b32 v83, 72, v80
        v_add_u32 v100, 0x10000, v80
        v_add_u32 v101, 0x10000, v81
        v_add_u32 v102, 0x10000, v82
        v_add_u32 v103, 0x10000, v83
        v_mov_b32 v240, 0x3f803f80
        v_mov_b32 v241, 0x3f803f80
        v_mov_b32 v242, 0x3f803f80
        v_mov_b32 v243, 0x3f803f80
        v_lshlrev_b32 v84, 4, v0
        v_lshrrev_b32 v85, 2, {vL}
        v_lshlrev_b32 v85, 11, v85
        v_lshl_add_u32 v85, {vB4}, 9, v85
        v_add_u32 v85, 504, v85
        s_lshr_b32 {sT0}, {sW}, 1
        v_and_b32 v86, 127, v0
        v_lshrrev_b32 v87, 1, v86
        s_lshl_b32 {sT1}, {sT0}, 1
        v_xor_b32 v87, {sT1}, v87
        v_lshlrev_b32 v87, 4, v87
        v_and_b32 v86, 1, v86
        v_lshl_add_u32 v86, v86, 3, v87
        s_lshl_b32 {sT1}, {sT0}, 10
        s_add_u32 {sT1}, {sT1}, {QT}
        v_add_u32 v86, {sT1}, v86
        v_xor_b32 v87, 128, v86
        v_lshlrev_b32 v89, 5, {vT}
        s_lshl_b32 {sT1}, {sW}, 2
        s_add_u32 {sT2}, {sT1}, {MX}
        v_add_u32 v88, {sT2}, v89
        s_add_u32 {sT2}, {sT1}, {LS}
        v_add_u32 v91, {sT2}, v89
        v_add_u32 v92, {LS}, v89
        v_add_u32 v89, {MX}, v89
        s_lshl_b32 {sT0}, {sT0}, 10
        s_and_b32 {sT1}, {sW}, 1
        s_lshl_b32 {sT1}, {sT1}, 3
        s_add_u32 {sT0}, {sT0}, {sT1}
        s_add_u32 {sT0}, {sT0}, {PT}
        v_lshl_add_u32 v90, {vL}, 4, {sT0}
        v_lshlrev_b32 v93, 4, {vL}
        v_add_u32 v93, {PT}, v93
        v_lshlrev_b32 v94, 15, {vT}
        v_lshl_add_u32 v94, {vG}, 4, v94
        v_lshlrev_b32 v95, 8, {vT}
        s_lshl_b32 {sT0}, {sBA}, 5
        s_lshl_b32 {sT1}, {sHH}, 4
        s_add_u32 {sT0}, {sT0}, {sT1}          ; row0
        s_lshl_b32 {sR3}, {sT0}, 8
        s_lshl_b32 {sT1}, {sS}, 3
        s_add_u32 {sR3}, {sR3}, {sT1}
        s_add_u32 {sR3}, {sR3}, {WS_FL}
        s_lshl_b32 {sR2}, {sT0}, 5
        s_add_u32 {sR2}, {sR2}, {sS}
        s_lshl_b32 {sR2}, {sR2}, 10
        s_lshl_b32 {sT1}, {sW}, 7
        s_add_u32 {sR2}, {sR2}, {sT1}
        s_add_u32 {sR2}, {sR2}, {WS_D}
        s_lshl_b32 {sT4}, {sBA}, 16
        s_lshl_b32 {sT1}, {sHH}, 15
        s_add_u32 {sT4}, {sT4}, {sT1}
        s_add_u32 {sT4}, {sT4}, {WS_Q}
        s_add_u32 {sT5}, {sT4}, 8192
        s_add_u32 {sT6}, {sT4}, 16384
        s_add_u32 {sT7}, {sT4}, 24576
        ''')
    def wuv_prep(self):
        a = self.a
        self.srd(SB, P_WUV, 4 << 20)
        a(f'''
        v_lshlrev_b32 v96, 16, {vG}
        v_lshl_add_u32 v96, {vT}, 4, v96
        s_lshl_b32 {sU0}, {sW}, 19
        s_lshl_b32 {sU1}, {sR1}, 8
        s_add_u32 {sU0}, {sU0}, {sU1}
        ''')
    def touch_uv(self):
        a = self.a; done = a.label('tuv')
        self.srd(SC, P_WUV, 4 << 20)
        a(f"""
        v_lshrrev_b32 v97, 1, {vL}
        v_lshlrev_b32 v97, 13, v97
        v_and_b32 v99, 1, {vL}
        v_lshl_add_u32 v97, v99, 7, v97
        s_cmp_ge_u32 {sW}, 4
        s_cbranch_scc1 {done}
        s_lshl_b32 {sT0}, {sR1}, 8
        s_lshl_b32 {sT1}, {sR0}, 20
        s_add_u32 {sT0}, {sT0}, {sT1}
        s_lshl_b32 {sT1}, {sW}, 18
        s_add_u32 {sT0}, {sT0}, {sT1}
        buffer_load_dword v98, v97, {SC}, {sT0} offen
        {done}:
        """)
    def touch_o_prep(self):
        a = self.a
        self.srd(SC, P_WO, 4 << 20)
        a(f"""
        v_lshlrev_b32 v97, 7, {vL}
        s_lshl_b32 {sU0}, {sR1}, 17
        s_lshl_b32 {sU1}, {sR0}, 15
        s_add_u32 {sU0}, {sU0}, {sU1}
        s_lshl_b32 {sU1}, {sW}, 13
        s_add_u32 {sU0}, {sU0}, {sU1}
        """)
    def touch_o(self):
        a = self.a; done = a.label('to')
        a(f's_cmp_ge_u32 {sI}, 16\ns_cbranch_scc1 {done}\ns_cmp_ge_u32 {sW}, 4\ns_cbranch_scc1 {done}')
        a(f'buffer_load_dword v98, v97, {SC}, {sU0} offen\n{done}:')
    def attention(self):
        a = self.a
        a('; ================= attention')
        if self.cfg.get('ctrig2'):
            sq = a.label('qnotrig')
            a(f's_cmp_lt_u32 {sI}, 16\ns_cbranch_scc1 {sq}')
            l = self.poll_begin()
            a(f'buffer_load_dwordx4 v[188:191], v84, {WS}, {sT7} offen sc1\ns_waitcnt vmcnt(0)')
            self.tagchk('v192', ['v189', 'v191'])
            self.poll_end(l, 2, self.cfg['sleepC'], 'v192')
            self.ts('p_ctrig')
            a(f'{sq}:')
        elif self.cfg.get('ctrig', True):
            sk = a.label('notrig'); sq = a.label('qnotrig')
            a(f's_cmp_lt_u32 {sI}, 16\ns_cbranch_scc1 {sq}')
            a(f's_cmp_lg_u32 {sW}, 0\ns_cbranch_scc1 {sk}')
            if self.cfg.get('ptrig', True):
                self.poll_trig('v85', sT4, 176, 2, 'v192')
            else:
                l = self.poll_begin()
                a(f'buffer_load_dwordx2 v[176:177], v85, {WS}, {sT4} offen sc1\ns_waitcnt vmcnt(0)')
                self.tagchk('v192', ['v177'])
                self.poll_end(l, 2, self.cfg['sleepC'], 'v192')
            a(f'{sk}:\ns_barrier')
            self.ts('p_ctrig')
            a(f'{sq}:')
        l = self.poll_begin()
        for n, so in enumerate((sT4, sT5, sT6, sT7)):
            a(f'buffer_load_dwordx4 {vr(176+4*n,4)}, v84, {WS}, {so} offen sc1')
        a('s_waitcnt vmcnt(4)')
        for st in range(16): a(f'ds_read_b128 {vr(16+4*st,4)}, v{244+(st&3)} offset:{(st>>2)*256}')
        a('s_waitcnt vmcnt(0)')
        self.tagchk('v192', [f'v{176+4*n+o}' for n in range(4) for o in (1, 3)])
        self.poll_end(l, 3, self.cfg['sleepC2'], 'v192')
        self.ts('c_got')
        for n in range(4):
            a(f'v_mov_b32 v{177+4*n}, v{178+4*n}')
            a(f'ds_write_b64 v{86 + (n & 1)}, {vr(176+4*n,2)} offset:{n*4096}')
        self.wuv_at('c')
        a('s_waitcnt lgkmcnt(0)\ns_barrier')
        self.ts('b1')
        NB = 8
        for st in range(NB): a(f'ds_read_b128 {vr(196+4*st,4)}, v{248+(st&3)} offset:{(st>>2)*256}')
        if self.cfg.get('pfQo', True): self.touch_o()
        for st in range(16):
            a(f's_waitcnt lgkmcnt({min(16, st+NB) - st - 1})')
            self.mfma(192, 16+4*st, 196+4*(st % NB), st == 0)
            if st + NB < 16:
                s2 = st + NB
                a(f'ds_read_b128 {vr(196+4*(s2%NB),4)}, v{248+(s2&3)} offset:{(s2>>2)*256}')
        self.ts('a_sdone')
        def pva(ks):
            for pp in range(2):
                for T in range(2):
                    d = 16 + 4 * ((ks * 2 + pp) * 2 + T)
                    base = (80 if ks < 2 else 100) + 2*pp + T
                    for hi in range(2):
                        a(f'ds_read_b64_tr_b16 {vr(d+2*hi,2)}, v{base} offset:{(ks & 1)*32768 + hi*16384}')
        early = self.cfg['pvaearly']
        if early: pva(0); pva(1)
        self.wuv_at('s')
        a('v_max_f32 v228, v192, v193\nv_max3_f32 v228, v228, v194, v195')
        self.crossrow(['v228'], ['v229'], 'v_max_f32')
        a('ds_write_b32 v88, v228')
        if early:
            pva(2); pva(3)
            a('s_waitcnt lgkmcnt(15)')
        else:
            a('s_waitcnt lgkmcnt(0)')
        self.ts('a_preb2')
        a('s_barrier')
        self.ts('a_b2')
        a('ds_read_b128 v[236:239], v89\nds_read_b128 v[232:235], v89 offset:16')
        self.wuv_at('b')
        if not early: pva(0)
        a(f's_waitcnt lgkmcnt({0 if early else 8})')
        a("""
        v_max3_f32 v236, v236, v237, v238
        v_max3_f32 v232, v232, v233, v234
        v_max3_f32 v228, v236, v239, v232
        v_max_f32 v228, v228, v235
        v_sub_f32 v192, v192, v228
        v_sub_f32 v193, v193, v228
        v_sub_f32 v194, v194, v228
        v_sub_f32 v195, v195, v228
        v_exp_f32 v192, v192
        v_exp_f32 v193, v193
        v_exp_f32 v194, v194
        v_exp_f32 v195, v195
        s_nop 0
        v_cvt_pk_bf16_f32 v234, v192, v193
        v_cvt_pk_bf16_f32 v235, v194, v195
        ds_write_b64 v90, v[234:235]
        """)
        if not self.cfg['ones']:
            a('v_add_f32 v229, v192, v193\nv_add_f32 v230, v194, v195\nv_add_f32 v229, v229, v230')
            if not early: pva(1)
            self.crossrow(['v229'], ['v230'], 'v_add_f32')
            a('ds_write_b32 v91, v229')
            if not early: pva(2); pva(3)
        elif not early: pva(1); pva(2); pva(3)
        self.wuv_at('p')
        self.ts('a_pvaiss')
        a('s_waitcnt lgkmcnt(0)')
        self.ts('a_preb3')
        a('s_barrier')
        self.ts('b3')
        for ks in range(4): a(f'ds_read_b128 {vr(196+4*ks,4)}, v93 offset:{ks*1024}')
        if not self.cfg['ones']: a('ds_read_b128 v[236:239], v92\nds_read_b128 v[240:243], v92 offset:16')
        for ks in range(4):
            a(f's_waitcnt lgkmcnt({3-ks + (0 if self.cfg["ones"] else 2)})')
            if self.cfg['ones']: self.mfma(236, 240, 196+4*ks, ks == 0)
            for pp in range(2):
                for T in range(2): self.mfma(212+4*(pp*2+T), 16+4*((ks*2+pp)*2+T), 196+4*ks, ks == 0)
        self.ts('a_pvdone')
        if not self.cfg['ones']:
            a('s_waitcnt lgkmcnt(0)')
            self.tree_add([f'v{236+k}' for k in range(8)])
        a(f"""
        v_rcp_f32 v232, v236
        v_log_f32 v238, v236
        v_mov_b32 v239, {sTAG}
        v_add_f32 v238, v228, v238
        """)
        for pp in range(2):
            b = 212 + 8*pp
            if self.cfg['pkmul']:
                for k in range(4): a(f'v_pk_mul_f32 {vr(b+2*k,2)}, {vr(b+2*k,2)}, v[232:233] op_sel_hi:[1,0]')
            else:
                for k in range(8): a(f'v_mul_f32 v{b+k}, v232, v{b+k}')
            for k in range(4): a(f'v_cvt_pk_bf16_f32 v{196+4*pp+k}, v{b+2*k}, v{b+2*k+1}')
            off = ' offset:64' if pp else ''
            a(f'buffer_store_dwordx4 {vr(196+4*pp,4)}, v94, {WS}, {sR2} offen{off} sc1')
        self.ts('d_st')
    def d_flag(self):
        a = self.a; sk = a.label('nofl')
        a(f'''
        s_barrier
        s_cmp_lg_u32 {sW}, 0
        s_cbranch_scc1 {sk}
        s_mov_b64 exec, 0xffff
        buffer_store_dwordx2 v[238:239], v95, {WS}, {sR3} offen sc1
        s_mov_b64 exec, -1
        {sk}:
        ''')
        self.ts('d_flag')
    def loader(self, srd, vo, kind, steps=(0, 1, 2, 3)):
        a = self.a
        a(f's_sub_u32 {sU0}, {sW}, 4')
        for st in steps:
            a(f"""
            s_add_u32 {sT0}, {sR0}, {st}
            s_and_b32 {sT0}, {sT0}, 3
            s_lshl_b32 {sT0}, {sT0}, 1
            s_lshr_b32 {sT1}, {sU0}, 1
            s_add_u32 {sT0}, {sT0}, {sT1}          ; region
            s_and_b32 {sT1}, {sU0}, 1
            s_lshl_b32 {sT1}, {sT1}, 3             ; n0
            s_lshl_b32 {sT4}, {sT0}, 14
            s_lshl_b32 {sT2}, {sT1}, 10
            s_add_u32 {sT4}, {sT4}, {sT2}          ; m0
            s_add_u32 {sT5}, {sT4}, 4096
            """)
            if kind == 'uv':
                a(f"""
                s_lshl_b32 {sT2}, {sT0}, 19
                s_lshl_b32 {sT3}, {sT1}, 15
                s_add_u32 {sT2}, {sT2}, {sT3}
                s_lshl_b32 {sT3}, {sR1}, 8
                s_add_u32 {sT2}, {sT2}, {sT3}
                s_add_u32 {sT3}, {sT2}, {4 << 15}
                """)
            else:
                a(f"""
                s_lshl_b32 {sT2}, {sT0}, 7
                s_lshl_b32 {sT3}, {sT1}, 13
                s_add_u32 {sT2}, {sT2}, {sT3}
                s_lshl_b32 {sT3}, {sR1}, 17
                s_add_u32 {sT2}, {sT2}, {sT3}
                s_add_u32 {sT3}, {sT2}, {4 << 13}
                """)
            self.dma_groups(srd, vo, [sT2, sT3], [sT4, sT5], self.nt())
    def perm_unit(self, src, dst):
        a = self.a
        for q in range(4):
            for p in range(4):
                X = src + 8*q + p; Y = src + 8*q + 4 + p
                a(f'v_perm_b32 v{dst+8*p+q}, v{Y}, v{X}, {sPLO}')
                a(f'v_perm_b32 v{dst+8*p+4+q}, v{Y}, v{X}, {sPHI}')
    def p_post(self):
        a = self.a
        a('; ================= P post')
        a('s_barrier')
        ng = self.wuv_at('x', False)
        self.srd(SA, P_WO, 4 << 20)
        vo = self.voff128(6, 1024)
        a(f"""
        s_lshl_b32 s98, {sR1}, 17
        s_lshl_b32 s99, {sW}, 7
        s_add_u32 s98, s98, s99
        """)
        self.rot_groups(4, sR0, 's98', 15, sWB, [sT0, sT1, sT2, sT3], [sT4, sT5, sT6, sT7])
        wf = self.cfg.get('wofirst', 0)
        SR = [sT0, sT1, sT2, sT3]; MR = [sT4, sT5, sT6, sT7]
        if wf: self.dma_groups(SA, vo, SR[:wf], MR[:wf], self.nt())
        a(f's_waitcnt vmcnt({4*ng + 4*wf})')
        self.d_flag()
        ny = self.wuv_at('y', False)
        if wf < 4: self.dma_groups(SA, vo, SR[wf:], MR[wf:], self.nt())
        self.ts('p_ldiss')
        ad = self.tr128_addr(220, sWB)
        a(f"""
        s_lshl_b32 {sT0}, {sR0}, 5
        s_add_u32 {sT0}, {sT0}, {sR1}
        s_lshl_b32 {sT1}, {sT0}, 8
        s_add_u32 {sT1}, {sT1}, {WS_FL}
        s_lshl_b32 {sT2}, {sT0}, 15
        s_lshl_b32 {sT3}, {sW}, 12
        s_add_u32 {sT2}, {sT2}, {sT3}
        s_add_u32 {sT2}, {sT2}, {WS_D}
        s_lshl_b32 {sR2}, {sT0}, 11
        s_lshl_b32 {sT5}, {sW}, 8
        s_add_u32 {sR2}, {sR2}, {sT5}
        s_add_u32 {sR2}, {sR2}, {WS_E}         ; E soff
        v_and_b32 v5, 31, {vL}
        v_lshlrev_b32 v5, 3, v5
        v_lshlrev_b32 v6, 4, {vL}
        s_lshl_b32 {sT0}, {sW}, 11
        s_add_u32 {sT0}, {sT0}, {RED}
        v_lshrrev_b32 v7, 1, {vL}
        v_and_b32 v7, 1, v7
        v_lshlrev_b32 v7, 4, v7
        v_lshl_add_u32 v7, {vL}, 5, v7
        v_add_u32 v7, {sT0}, v7
        v_xor_b32 v8, 16, v7
        s_lshl_b32 {sT0}, {sW}, 3
        s_add_u32 {sT0}, {sT0}, {MX}
        v_mov_b32 v9, {sT0}
        v_lshlrev_b32 v10, 2, v0
        v_add_u32 v10, {RED}, v10
        v_and_b32 v11, 7, {vL}
        v_lshlrev_b32 v11, 3, v11
        v_add_u32 v11, {MX}, v11
        v_lshlrev_b32 v12, 1, v0
        v_add_u32 v12, {OB}, v12
        s_lshl_b32 {sT0}, {sW}, 7
        s_add_u32 {sT0}, {sT0}, {OB}
        v_lshl_add_u32 v13, {vG}, 4, {sT0}
        s_lshl_b32 {sT0}, {sW}, 9
        s_add_u32 {sT0}, {sT0}, {RED2}
        v_lshlrev_b32 v14, 5, {vT}
        v_lshl_add_u32 v14, {vG}, 3, v14
        v_add_u32 v14, {sT0}, v14
        v_lshlrev_b32 v15, 3, {vL}
        v_add_u32 v15, {RED2}, v15
        v_lshlrev_b32 v232, 6, {vG}
        v_lshrrev_b32 v233, 1, {vL}
        v_and_b32 v233, 3, v233
        v_lshl_add_u32 v232, v233, 4, v232
        v_lshrrev_b32 v233, 3, {vL}
        v_and_b32 v233, 1, v233
        v_lshl_add_u32 v232, v233, 3, v232
        v_and_b32 v233, 1, {vL}
        v_lshl_add_u32 v232, v233, 2, v232
        s_lshl_b32 {sT0}, {sW}, 8
        s_add_u32 {sT0}, {sT0}, {WL}
        v_add_u32 v232, {sT0}, v232
        v_lshl_add_u32 v233, {vG}, 4, {sT0}
        v_lshlrev_b32 v234, 6, {vT}
        v_lshl_add_u32 v234, {vG}, 4, v234     ; E voff
        v_mov_b32 v229, {sTAG}
        v_mov_b32 v231, {sTAG}
        """)
        mg = self.masks_g()
        a(f's_waitcnt vmcnt({4*(4-wf)})')
        self.perm_unit(112, 80)
        self.perm_unit(144, 112)
        l = self.poll_begin()
        a(f'buffer_load_dwordx2 v[176:177], v5, {WS}, {sT1} offen sc1\ns_waitcnt vmcnt(0)')
        self.tagchk('v178', ['v177'])
        self.poll_end(l, 4, self.cfg['sleepD'], 'v178')
        self.ts('dfl_got')
        for k in range(4):
            off = f' offset:{k*1024}' if k else ''
            a(f'buffer_load_dwordx4 {vr(180+4*k,4)}, v6, {WS}, {sT2} offen{off} sc1')
        self.tr_reads(ad, range(4), 128, 16)
        a('v_mov_b32 v178, v176')
        for n in (8, 4, 2, 1): a(f'v_max_f32_dpp v178, v178, v178 row_ror:{n} row_mask:0xf bank_mask:0xf')
        a('v_mov_b32 v179, v178\nv_permlane16_swap_b32 v178, v179\nv_max_f32 v178, v178, v179')
        a("""
        v_sub_f32 v176, v176, v178
        v_exp_f32 v176, v176
        s_nop 0
        v_cvt_pk_bf16_f32 v177, v176, v176
        v_and_b32 v176, 0xffff0000, v177
        v_and_b32 v177, 0xffff, v177
        v_mov_b32 v178, v176
        """)
        for n in (8, 4, 2, 1): a(f'v_add_f32_dpp v178, v178, v178 row_ror:{n} row_mask:0xf bank_mask:0xf')
        a('v_mov_b32 v179, v178\nv_permlane16_swap_b32 v178, v179\nv_add_f32 v178, v178, v179\nv_rcp_f32 v203, v178')
        a(f's_lshl_b32 {sT3}, {sW}, 2')
        for k in range(4):
            a(f's_add_u32 {sT0}, {sT3}, {k}')
            a(f'v_readlane_b32 s{16+k}, v177, {sT0}')
            a(f'v_readlane_b32 s{32+k}, v176, {sT0}')
        for k in range(4):
            a(f's_waitcnt vmcnt({3-k})')
            for p in range(4):
                sreg = 180 + 4*k + p
                c0 = '0' if k == 0 else f'v{212+2*p}'; c1 = '0' if k == 0 else f'v{213+2*p}'
                a(f'v_dot2_f32_bf16 v{212+2*p}, v{sreg}, s{16+k}, {c0}')
                a(f'v_dot2_f32_bf16 v{213+2*p}, v{sreg}, s{32+k}, {c1}')
        self.ts('d_got')
        a('ds_write_b128 v7, v[212:215]\nds_write_b128 v8, v[216:219]')
        a('s_waitcnt lgkmcnt(0)\ns_barrier')
        self.ts('p_b1')
        for ww in range(8): a(f'ds_read_b32 v{192+ww}, v10 offset:{ww*2048}')
        a('s_waitcnt lgkmcnt(0)')
        self.tree_add([f'v{192+k}' for k in range(8)])
        a('v_mov_b32 v202, v192') if False else None
        a("""
        v_mul_f32 v192, v192, v203
        v_cvt_pk_bf16_f32 v202, v192, v192
        ds_write_b16 v12, v202
        s_waitcnt lgkmcnt(0)
        ds_read_b128 v[176:179], v13
        ds_read_b128 v[180:183], v13 offset:64
        """)
        self.ts('p_o')
        for k in range(2):
            a(f's_waitcnt lgkmcnt({1-k})')
            for u in range(8): self.mfma(184+4*u, 176+4*k, 80+32*k+4*u, k == 0)
        self.sel4('v216', [f'v{184+4*u}' for u in (0, 2, 4, 6)], mg)
        self.sel4('v217', [f'v{184+4*u}' for u in (1, 3, 5, 7)], mg)
        self.ts('p_uv')
        a('ds_write_b64 v14, v[216:217]\ns_waitcnt lgkmcnt(0)\ns_barrier')
        self.ts('p_b2')
        for ww in range(8): a(f'ds_read_b64 {vr(176+2*ww,2)}, v15 offset:{ww*512}')
        mt = self.masks_t()
        a('s_waitcnt lgkmcnt(0)')
        self.tree_add([f'v{176+2*k}' for k in range(8)])
        self.tree_add([f'v{177+2*k}' for k in range(8)])
        a('v_cvt_pk_bf16_f32 v176, v176, v177\nds_write_b32 v232, v176\ns_waitcnt lgkmcnt(0)')
        for ks in range(4): a(f'ds_read_b128 {vr(180+4*ks,4)}, v233 offset:{ks*64}')
        for ks in range(4):
            a(f's_waitcnt lgkmcnt({3-ks})')
            for ct in range(4): self.mfma(196+4*ct, 16+4*(ks*4+ct), 180+4*ks, ks == 0)
        self.ts('p_omf')
        for r in range(4): self.sel4(f'v{212+r}', [f'v{196+4*ct+r}' for ct in range(4)], mt)
        a(f"""
        v_cvt_pk_bf16_f32 v228, v212, v213
        v_cvt_pk_bf16_f32 v230, v214, v215
        s_mov_b64 exec, {mT4}
        buffer_store_dwordx4 v[228:231], v234, {WS}, {sR2} offen sc1
        s_mov_b64 exec, -1
        """)
        self.ts('e_pub')
    def ffn(self):
        a = self.a
        a('s_waitcnt vmcnt(0)')
        self.d_flag()
        self.srd(SA, P_W1, 512 * 2752)
        vo = self.voff128(6, 2752)
        a(f'''
        s_mul_i32 {sU0}, {sW}, {64*2752}
        s_lshl_b32 {sT2}, {sR1}, 7
        s_add_u32 {sU0}, {sU0}, {sT2}
        s_add_u32 {sT0}, {sU0}, {32*2752}
        s_add_u32 {sT1}, {sWB}, 4096
        ''')
        self.dma_groups(SA, vo, [sU0, sT0], [sWB, sT1], self.nt())
        self.srd(SB, P_W2, 1376 * 1024)
        vo = self.voff128(10, 1024)
        a(f'''
        s_lshl_b32 {sU0}, {sR1}, 16
        s_lshl_b32 {sT2}, {sW}, 7
        s_add_u32 {sU0}, {sU0}, {sT2}
        s_add_u32 {sT0}, {sU0}, 32768
        s_add_u32 {sT1}, {sWB}, 8192
        s_add_u32 {sT2}, {sWB}, 12288
        ''')
        self.dma_groups(SB, vo, [sU0, sT0], [sT1, sT2], self.nt())
        self.srd(SC, P_X, 4096)
        a(f'''
        v_lshlrev_b32 v5, 1, v0
        s_lshl_b32 {sT0}, {sR0}, 10
        buffer_load_ushort v100, v5, {SC}, {sT0} offen
        v_lshrrev_b32 v5, 1, v0
        v_lshlrev_b32 v5, 3, v5
        s_lshl_b32 {sT0}, {sR0}, 13
        s_add_u32 {sT0}, {sT0}, {WS_MR}
        s_add_u32 {sT1}, {sT0}, 4096
        ''')
        ad = self.tr128_addr(8, sWB)
        mt = self.masks_t()
        a(f'''
        s_lshl_b32 {sT2}, {sR0}, 5
        s_lshl_b32 {sT4}, {sT2}, 11
        s_add_u32 {sT4}, {sT4}, {WS_E}
        s_lshl_b32 {sT3}, {sW}, 13
        s_add_u32 {sT5}, {sT4}, {sT3}
        s_add_u32 {sT6}, {sT5}, 4096
        v_and_b32 v12, 31, {vL}
        v_lshlrev_b32 v12, 11, v12
        v_add_u32 v12, 2040, v12
        v_lshlrev_b32 v13, 4, {vL}
        s_lshl_b32 {sT2}, {sW}, 11
        s_add_u32 {sT2}, {sT2}, {RED}
        v_lshl_add_u32 v14, {vL}, 4, {sT2}
        v_lshlrev_b32 v15, 2, v0
        v_add_u32 v15, {RED}, v15
        s_lshl_b32 {sT2}, {sW}, 3
        s_add_u32 {sT2}, {sT2}, {MX}
        v_mov_b32 v220, {sT2}
        v_and_b32 v221, 7, {vL}
        v_lshlrev_b32 v221, 3, v221
        v_add_u32 v221, {MX}, v221
        v_lshrrev_b32 v222, 5, {vL}
        v_lshlrev_b32 v222, 6, v222
        v_lshrrev_b32 v223, 2, {vL}
        v_and_b32 v223, 3, v223
        v_lshl_add_u32 v222, v223, 4, v222
        v_and_b32 v223, 1, {vG}
        v_lshl_add_u32 v222, v223, 3, v222
        v_lshl_add_u32 v222, {vB4}, 1, v222
        s_lshl_b32 {sT2}, {sW}, 8
        s_add_u32 {sT2}, {sT2}, {WL}
        v_add_u32 v222, {sT2}, v222
        v_lshl_add_u32 v223, {vG}, 4, {sT2}
        s_lshl_b32 {sT2}, {sW}, 8
        s_add_u32 {sT2}, {sT2}, {RED2}
        v_lshlrev_b32 v224, 6, {vT}
        v_lshl_add_u32 v224, {vG}, 4, v224
        v_add_u32 v224, {sT2}, v224
        v_lshlrev_b32 v225, 2, {vL}
        v_add_u32 v225, {RED2}, v225
        s_lshl_b32 {sT2}, {sR0}, 3
        s_add_u32 {sT2}, {sT2}, {sW}
        s_mul_i32 {sT2}, {sT2}, {24*256}
        s_lshl_b32 {sT3}, {sR1}, 8
        s_add_u32 {sT2}, {sT2}, {sT3}
        s_add_u32 {sT7}, {sT2}, {WS_F}         ; F soff
        v_lshlrev_b32 v226, 6, {vT}
        v_lshl_add_u32 v226, {vG}, 4, v226     ; F voff
        s_lshl_b32 {sT2}, {sR1}, 6
        v_add_u32 v227, {sT2}, {vL}
        s_movk_i32 {sT3}, 1376
        v_cmp_gt_u32 s[62:63], {sT3}, v227
        v_mov_b32 v141, {sTAG}
        v_mov_b32 v143, {sTAG}
        ''')
        a(f'v_and_b32 v6, 1, v0\nv_lshlrev_b32 v6, 4, v6')
        a('s_waitcnt vmcnt(0)\nv_lshlrev_b32 v100, 16, v100')
        self.tr_reads(ad, range(2), 128, 16)
        self.tr_reads(ad, range(2), 128, 48, 8192)
        l = self.poll_begin()
        a(f'''
        buffer_load_dwordx2 v[102:103], v5, {WS}, {sT0} offen sc1
        buffer_load_dwordx2 v[104:105], v5, {WS}, {sT0} offen offset:2048 sc1
        buffer_load_dwordx2 v[106:107], v5, {WS}, {sT1} offen sc1
        s_waitcnt vmcnt(0)
        ''')
        self.tagchk('v208', ['v103', 'v105', 'v107'])
        self.poll_end(l, 5, self.cfg['sleepM'], 'v208')
        for r in (102, 104, 106):
            a(f'v_lshrrev_b32 v{r}, v6, v{r}\nv_lshlrev_b32 v{r}, 16, v{r}')
        a(f's_mov_b32 {sT0}, 0x00003f80\ns_mov_b32 {sT1}, 0x3f800000')
        if self.cfg.get('etrig2'):
            l = self.poll_begin()
            a(f'buffer_load_dwordx4 v[204:207], v13, {WS}, {sT6} offen offset:3072 sc1\ns_waitcnt vmcnt(0)')
            self.tagchk('v208', ['v205', 'v207'])
            self.poll_end(l, 6, self.cfg['sleepE'], 'v208')
        else:
            sk = a.label('noet')
            a(f's_cmp_lg_u32 {sW}, 0\ns_cbranch_scc1 {sk}')
            l = self.poll_begin()
            a(f'buffer_load_dwordx2 v[176:177], v12, {WS}, {sT4} offen sc1\ns_waitcnt vmcnt(0)')
            self.tagchk('v178', ['v177'])
            self.poll_end(l, 6, self.cfg['sleepE'], 'v178')
            a(f'{sk}:\ns_barrier')
        self.ts('e_trig')
        l = self.poll_begin()
        for k in range(8):
            so = sT5 if k < 4 else sT6
            off = f' offset:{(k&3)*1024}' if k & 3 else ''
            a(f'buffer_load_dwordx4 {vr(176+4*k,4)}, v13, {WS}, {so} offen{off} sc1')
        for k in range(8):
            a(f's_waitcnt vmcnt({7-k})')
            hf = k & 1; b = 176 + 4*k; acc = 112 + 4*hf
            for j, (src, sel) in enumerate(((b, sT0), (b, sT1), (b+2, sT0), (b+2, sT1))):
                c = '0' if k < 2 else f'v{acc+j}'
                a(f'v_dot2_f32_bf16 v{acc+j}, v{src}, {sel}, {c}')
            if k == 0: a(f'v_xor_b32 v208, {sTAG}, v{b+1}\nv_bitop3_b32 v208, v208, v{b+3}, {sTAG} bitop3:0xf6')
            else:
                for o in (1, 3): a(f'v_bitop3_b32 v208, v208, v{b+o}, {sTAG} bitop3:0xf6')
        self.poll_end(l, 7, 1, 'v208')
        self.ts('e_got')
        a('''
        ds_write_b128 v14, v[112:115]
        ds_write_b128 v14, v[116:119] offset:1024
        s_waitcnt lgkmcnt(0)
        s_barrier
        ''')
        self.ts('f_b1')
        for ww in range(8): a(f'ds_read_b32 v{112+ww}, v15 offset:{ww*2048}')
        a('s_waitcnt lgkmcnt(0)')
        self.tree_add([f'v{112+k}' for k in range(8)])
        a('v_fma_f32 v100, v102, v112, v100\nv_mov_b32 v120, v100\nv_mul_f32 v121, v100, v100')
        self.allsum(['v120', 'v121'], ['v122', 'v123'])
        a('ds_write_b64 v220, v[120:121]\ns_waitcnt lgkmcnt(0)\ns_barrier')
        self.ts('f_b2')
        a('ds_read_b64 v[112:113], v221\ns_waitcnt lgkmcnt(0)')
        for d in ('quad_perm:[1,0,3,2]', 'quad_perm:[2,3,0,1]', 'row_half_mirror'):
            for r in (112, 113): a(f'v_add_f32_dpp v{r}, v{r}, v{r} {d} row_mask:0xf bank_mask:0xf')
        a(f'''
        v_mul_f32 v112, {fhex(1/512)}, v112
        v_mul_f32 v113, {fhex(1/512)}, v113
        v_fma_f32 v113, -v112, v112, v113
        v_max_f32 v113, 0, v113
        v_add_f32 v113, {fhex(1e-5)}, v113
        v_rsq_f32 v113, v113
        v_sub_f32 v114, v100, v112
        v_mul_f32 v114, v114, v113
        v_add_f32 v115, v114, v104
        v_fmac_f32 v115, v114, v106
        v_cvt_pk_bf16_f32 v115, v115, v115
        ds_write_b16 v222, v115
        s_waitcnt lgkmcnt(0)
        ds_read_b128 v[112:115], v223
        ds_read_b128 v[116:119], v223 offset:64
        ''')
        for ks in range(2):
            a(f's_waitcnt lgkmcnt({1-ks})')
            for ct in range(4): self.mfma(120+4*ct, 16+4*(ks*4+ct), 112+4*ks, ks == 0)
        for r in range(4): self.sel4(f'v{136+r}', [f'v{120+4*ct+r}' for ct in range(4)], mt)
        a(f'''
        s_mov_b64 exec, {mT4}
        ds_write_b128 v224, v[136:139]
        s_mov_b64 exec, -1
        s_waitcnt lgkmcnt(0)
        s_barrier
        ''')
        self.ts('f_b3')
        for ww in range(8): a(f'ds_read_b32 v{112+ww}, v225 offset:{ww*256}')
        a('s_waitcnt lgkmcnt(0)')
        self.tree_add([f'v{112+k}' for k in range(8)])
        a('''
        v_max_f32 v112, 0, v112
        v_cndmask_b32 v112, 0, v112, s[62:63]
        v_cvt_pk_bf16_f32 v112, v112, v112
        ds_write_b16 v222, v112 offset:128
        s_waitcnt lgkmcnt(0)
        ds_read_b128 v[112:115], v223 offset:128
        ds_read_b128 v[116:119], v223 offset:192
        ''')
        for ks in range(2):
            a(f's_waitcnt lgkmcnt({1-ks})')
            for ct in range(4): self.mfma(120+4*ct, 48+4*(ks*4+ct), 112+4*ks, ks == 0)
        for r in range(4): self.sel4(f'v{136+r}', [f'v{120+4*ct+r}' for ct in range(4)], mt)
        a(f'''
        v_cvt_pk_bf16_f32 v140, v136, v137
        v_cvt_pk_bf16_f32 v142, v138, v139
        s_mov_b64 exec, {mT4}
        buffer_store_dwordx4 v[140:143], v226, {WS}, {sT7} offen sc1
        s_mov_b64 exec, -1
        ''')
        self.ts('f_pub')
    def final(self):
        a = self.a
        a('s_waitcnt vmcnt(0)')
        self.d_flag()
        a(f's_lshl_b32 {sR1}, {sX}, 2\ns_add_u32 {sR1}, {sR1}, {sR0}')
        self.silu_addr()
        self.srd(SB, P_C, 4096)
        a(f'buffer_load_dwordx2 v[18:19], v16, {SB}, 0 offen')
        self.srd(SA, P_WMOD, 512 * 6144)
        vo = self.voff128(6, 6144)
        a(f'''
        s_mul_i32 {sU0}, {sW}, {64*6144}
        s_lshl_b32 {sT2}, {sR1}, 7
        s_add_u32 {sU0}, {sU0}, {sT2}
        s_add_u32 {sU0}, {sU0}, 2048
        s_add_u32 {sT0}, {sU0}, {32*6144}
        s_add_u32 {sT1}, {sWB}, 4096
        ''')
        self.dma_groups(SA, vo, [sU0, sT0], [sWB, sT1], self.nt())
        self.sv_frag_addr('v12')
        ad = self.tr128_addr(8, sWB)
        a('s_waitcnt vmcnt(8)')
        self.silu_calc()
        a('s_waitcnt lgkmcnt(0)\ns_barrier')
        a('ds_read_b128 v[112:115], v12\nds_read_b128 v[116:119], v12 offset:64\ns_waitcnt vmcnt(0)')
        self.tr_reads(ad, range(2), 128, 24)
        a('s_waitcnt lgkmcnt(0)')
        for ks in range(2):
            for ct in range(4): self.mfma(120+4*ct, 24+4*(ks*4+ct), 112+4*ks, ks == 0)
        a(f'''
        s_lshl_b32 {sT0}, {sW}, 10
        s_add_u32 {sT0}, {sT0}, {RED}
        v_lshlrev_b32 v5, 6, {vG}
        v_lshl_add_u32 v5, {vT}, 4, v5
        v_add_u32 v5, {sT0}, v5
        s_mov_b64 exec, {mT4}
        ''')
        for ct in range(4): a(f'ds_write_b128 v5, {vr(120+4*ct,4)} offset:{ct*256}')
        a('s_mov_b64 exec, -1\ns_waitcnt lgkmcnt(0)\ns_barrier')
        sk = a.label('mrskip')
        a(f's_cmp_ge_u32 {sW}, 2\ns_cbranch_scc1 {sk}')
        a(f'v_lshlrev_b32 v5, 3, v0\nv_add_u32 v5, {RED}, v5')
        for ww in range(8): a(f'ds_read_b64 {vr(112+2*ww,2)}, v5 offset:{ww*1024}')
        a(f'''
        v_lshrrev_b32 v6, 1, v0
        v_and_b32 v6, 3, v6
        v_lshlrev_b32 v6, 13, v6
        v_lshrrev_b32 v7, 3, v0
        v_lshl_add_u32 v6, v7, 4, v6
        v_and_b32 v7, 1, v0
        v_lshl_add_u32 v6, v7, 3, v6
        s_lshl_b32 {sT0}, {sR1}, 8
        s_add_u32 {sT0}, {sT0}, {WS_MR}
        s_waitcnt lgkmcnt(0)
        ''')
        self.tree_add([f'v{112+2*k}' for k in range(8)])
        self.tree_add([f'v{113+2*k}' for k in range(8)])
        a(f'''
        v_cvt_pk_bf16_f32 v112, v112, v113
        v_mov_b32 v113, {sTAG}
        buffer_store_dwordx2 v[112:113], v6, {WS}, {sT0} offen sc1
        {sk}:
        ''')
        self.ts('mr_pub')
        a(f's_cmp_lg_u32 {sW}, 0\ns_cbranch_scc1 L_exit')
        self.srd(SC, P_X, 4096)
        self.srd(SA, P_OUT, 4096)
        a(f"""
        v_lshlrev_b32 v6, 3, {vT}
        s_lshl_b32 {sT0}, {sR0}, 10
        s_lshl_b32 {sT1}, {sX}, 7
        s_add_u32 {sR2}, {sT0}, {sT1}
        buffer_load_dwordx2 v[100:101], v6, {SC}, {sR2} offen
        v_lshlrev_b32 v7, 4, {vT}              ; 2 granules
        s_lshl_b32 {sT0}, {sR0}, 13
        s_lshl_b32 {sT1}, {sX}, 8
        s_add_u32 {sU0}, {sT0}, {sT1}
        s_add_u32 {sU0}, {sU0}, {WS_MR}        ; ga
        s_add_u32 {sU1}, {sU0}, {3*2048}       ; gb
        v_lshl_add_u32 v9, {vG}, 11, v7
        s_lshl_b32 {sT7}, {sR0}, 16
        s_add_u32 {sT7}, {sT7}, {WS_E}
        s_add_u32 {sT0}, {sT7}, {sT1}
        v_lshl_add_u32 v11, {vG}, 8, v7
        v_and_b32 v12, 31, {vL}
        v_lshlrev_b32 v12, 11, v12
        v_add_u32 v12, 2040, v12
        s_lshl_b32 {sT4}, {sR0}, 3
        s_add_u32 {sT4}, {sT4}, {sX}
        s_mul_i32 {sT4}, {sT4}, {24*256}
        s_add_u32 {sT4}, {sT4}, {WS_F}
        s_add_u32 {sT5}, {sT4}, 4096
        s_mov_b32 s98, 0x00003f80
        s_mov_b32 s99, 0x3f800000
        v_cmp_gt_u32 s[100:101], 2, {vG}
        """)
        l = self.poll_begin()
        a(f'buffer_load_dwordx2 v[112:113], v12, {WS}, {sT7} offen sc1\ns_waitcnt vmcnt(0)')
        self.tagchk('v10', ['v113'])
        self.poll_end(l, 12, self.cfg['sleepE'] + 2, 'v10')
        l = self.poll_begin()
        a(f"""
        buffer_load_dwordx4 v[104:107], v7, {WS}, {sU0} offen sc1
        buffer_load_dwordx4 v[108:111], v7, {WS}, {sU1} offen sc1
        s_mov_b32 {sT1}, {sT0}
        """)
        for k in range(8):
            a(f'buffer_load_dwordx4 {vr(112+4*k,4)}, v9, {WS}, {sT1} offen sc1')
            if k < 7: a(f's_add_u32 {sT1}, {sT1}, 8192')
        a('s_waitcnt vmcnt(0)')
        self.tagchk('v10', ['v105', 'v107', 'v109', 'v111'] + [f'v{112+4*k+o}' for k in range(8) for o in (1, 3)])
        self.poll_end(l, 9, 2, 'v10')
        self.ts('fe_got')
        def acc4(dst, srcs):
            for k, b in enumerate(srcs):
                for j, (src, sel) in enumerate(((b, 's98'), (b, 's99'), (b+2, 's98'), (b+2, 's99'))):
                    a(f'v_dot2_f32_bf16 v{dst+j}, v{src}, {sel}, {"0" if k == 0 else f"v{dst+j}"}')
        acc4(144, [112+4*k for k in range(8)])
        self.crossrow([f'v{144+j}' for j in range(4)], [f'v{148+j}' for j in range(4)], 'v_add_f32')
        a("""
        v_lshlrev_b32 v152, 16, v100
        v_and_b32 v153, 0xffff0000, v100
        v_lshlrev_b32 v154, 16, v101
        v_and_b32 v155, 0xffff0000, v101
        v_lshlrev_b32 v156, 16, v104
        v_and_b32 v157, 0xffff0000, v104
        v_lshlrev_b32 v158, 16, v106
        v_and_b32 v159, 0xffff0000, v106
        v_fmac_f32 v152, v156, v144            ; x1
        v_fmac_f32 v153, v157, v145
        v_fmac_f32 v154, v158, v146
        v_fmac_f32 v155, v159, v147
        v_lshlrev_b32 v156, 16, v108           ; gb
        v_and_b32 v157, 0xffff0000, v108
        v_lshlrev_b32 v158, 16, v110
        v_and_b32 v159, 0xffff0000, v110
        """)
        l = self.poll_begin()
        for k in range(6):
            so = sT4 if k < 4 else sT5
            off = f' offset:{(k&3)*1024}' if k & 3 else ''
            a(f'buffer_load_dwordx4 {vr(176+4*k,4)}, v11, {WS}, {so} offen{off} sc1')
        a('s_waitcnt vmcnt(0)')
        a(f'v_mov_b32 v10, {sTAG}')
        for r in (197, 199): a(f'v_cndmask_b32 v{r}, v10, v{r}, s[100:101]')
        for r in (196, 198): a(f'v_cndmask_b32 v{r}, 0, v{r}, s[100:101]')
        self.tagchk('v10', [f'v{176+4*k+o}' for k in range(6) for o in (1, 3)])
        self.poll_end(l, 10, self.cfg['sleepF'], 'v10')
        acc4(144, [176+4*k for k in range(6)])
        self.crossrow([f'v{144+j}' for j in range(4)], [f'v{148+j}' for j in range(4)], 'v_add_f32')
        a(f"""
        v_fmac_f32 v152, v156, v144
        v_fmac_f32 v153, v157, v145
        v_fmac_f32 v154, v158, v146
        v_fmac_f32 v155, v159, v147
        v_cvt_pk_bf16_f32 v152, v152, v153
        v_cvt_pk_bf16_f32 v153, v154, v155
        s_mov_b64 exec, 0xffff
        buffer_store_dwordx2 v[152:153], v6, {SA}, {sR2} offen
        s_mov_b64 exec, -1
        """)
        self.ts('out_st')
    def epoch_update(self):
        a = self.a
        a(f's_cmp_lg_u32 {sW}, 0\ns_cbranch_scc1 L_exit')
        a(f'v_and_b32 v5, 7, {vL}\nv_lshlrev_b32 v5, 15, v5\nv_add_u32 v5, 2040, v5\ns_mov_b32 {sT0}, {WS_E}')
        l = self.poll_begin()
        a(f'buffer_load_dwordx2 v[6:7], v5, {WS}, {sT0} offen sc1\ns_waitcnt vmcnt(0)')
        self.tagchk('v8', ['v7'])
        self.poll_end(l, 11, 8, 'v8')
        a(f'''
        s_add_u32 {sT0}, {sEP}, 1
        v_mov_b32 v6, {sT0}
        v_mov_b32 v5, 0
        s_mov_b64 exec, 1
        buffer_store_dword v6, v5, {WS}, 0 offen sc1
        s_mov_b64 exec, -1
        ''')
    def build(self):
        a = self.a
        self.prologue()
        self.p_pre()
        a('s_branch L_att\nL_qpre:')
        self.q_pre()
        a('L_att:')
        self.att_addr()
        self.attention()
        a(f's_cmp_lt_u32 {sI}, 16\ns_cbranch_scc1 L_qpost')
        self.p_post()
        a('s_branch L_exit\nL_qpost:')
        a(f'''
        s_lshr_b32 {sT0}, {sI}, 2
        s_and_b32 {sR0}, {sI}, 3
        s_cmp_eq_u32 {sT0}, 3
        s_cbranch_scc1 L_final
        s_lshl_b32 {sR1}, {sT0}, 3
        s_add_u32 {sR1}, {sR1}, {sX}
        s_cmp_ge_u32 {sR1}, 22
        s_cbranch_scc1 L_idle
        ''')
        self.ffn()
        a('s_branch L_exit\nL_final:')
        self.final()
        a('s_branch L_exit\nL_idle:')
        a('s_waitcnt vmcnt(0)')
        self.d_flag()
        a(f's_cmp_eq_u32 s2, {7 + 8*11}\ns_cbranch_scc0 L_exit')
        self.epoch_update()
        a('s_branch L_exit')
        for code in self.failsites:
            a(f'L_fail_{code}:\ns_mov_b32 {sT0}, {code}\ns_branch L_fail')
        a(f'''
        L_fail:
        s_waitcnt vmcnt(0) lgkmcnt(0)
        s_mov_b32 s12, s{P_DBG}
        s_mov_b32 s13, s{P_DBG+1}
        s_mov_b32 s14, 256
        s_mov_b32 s15, 0x00020000
        s_mov_b64 exec, 1
        s_lshl_b32 {sT1}, {sT0}, 2
        v_mov_b32 v5, {sT1}
        v_mov_b32 v6, s2
        v_add_u32 v6, 1000, v6
        buffer_store_dword v6, v5, s[12:15], 0 offen
        s_mov_b64 exec, -1
        L_exit:
        ''')
        self.ts('end')
        if self.cfg['ts']:
            sk = a.label('nots')
            a(f's_cmp_lg_u32 {sW}, {self.cfg["tswave"]}\ns_cbranch_scc1 {sk}')
            a(f's_waitcnt lgkmcnt(0)\ns_mov_b64 exec, 1\ns_lshl_b32 {sT0}, s2, 6\ns_add_u32 {sT0}, {sT0}, {WS_TS}\nv_mov_b32 v5, 0')
            for k in range(len(TSREG)):
                a(f'v_mov_b32 v6, s{TSREG[k]}\nbuffer_store_dword v6, v5, {WS}, {sT0} offen offset:{4*k}')
            a(f'{sk}:')
        if self.cfg['endwait'] or self.cfg['ts']: a('s_waitcnt vmcnt(0) lgkmcnt(0)')
        a('L_end:\ns_endpgm')
        return a.finish()
HEADER = open('adaLN_cond__compressed_kv_cla__dense_activation_relu__decode.s.ref').read().split('; Override launch')[0]
def generate(cfg):
    g = Gen(cfg)
    body = g.build()
    init = ''
    if g.cfg['ts']:
        init = ''.join(f'    s_mov_b32 s{r}, 0\n' for r in TSREG[:10])
    txt = HEADER + f'''; @launch grid=(256,1,1) block=(512,1,1) lds={LDS_BYTES}
.amdgcn_target "amdgcn-amd-amdhsa--gfx950"
.text
.globl {KNAME}
.p2align 8
.type {KNAME},@function
{KNAME}:
{init}{body}.section .rodata,"a"
.p2align 6
.amdhsa_kernel {KNAME}
  .amdhsa_next_free_vgpr 256
  .amdhsa_next_free_sgpr 102
  .amdhsa_accum_offset 256
  .amdhsa_group_segment_fixed_size 0
  .amdhsa_kernarg_size 112
  .amdhsa_user_sgpr_count 2
  .amdhsa_user_sgpr_kernarg_segment_ptr 1
  .amdhsa_system_sgpr_workgroup_id_x 1
.end_amdhsa_kernel
'''
    return txt, g
if __name__ == '__main__':
    cfg = json.loads(sys.argv[2]) if len(sys.argv) > 2 else {}
    txt, g = generate(cfg)
    open(sys.argv[1], 'w').write(txt)
    json.dump(dict(ts=g.tsnames, slot=(g.cfg.get('tsmap') or TSSLOT), gen='g'), open(sys.argv[1] + '.json', 'w'))
    print('written', sys.argv[1], 'lines', txt.count('\n'), 'nops padded', g.a.npad)
```

```python
import sys, json, struct
from asmlib import Asm
KNAME = 'adaLN_cond__compressed_kv_cla__dense_activation_relu__decode_kernel'
CFG = dict(etrig2=True, endwait=False, pkmul=False, pvaearly=False, ones=True, codepf=True, ptrig=False, gpl=['e','e','c','b'], gplhp=['c','s','b','p'], wofirst=2, wo_pre=0, pthr=0, ckvsplit=False, ts=False, nt=False, nt_ckv_p=False, nt_ckv_q=True, limit=20000,
           sleepA=1, sleepA2=1, ckvB=False, sleepM=16, sleepC2=1, ftrig=False, sleepC=1, sleepD=1, sleepE=1, sleepF=1, tswave=0)
WS_H  = 0x500000
WS_MR = 0x510000
WS_Q  = 0x10000
WS_FL = 0x50000
WS_E  = 0x60000
WS_F  = 0xA0000
WS_D  = 0x100000
WS_TS = 0x600000
WS_SIZE = 0x700000
SM   = 131072
QT   = SM
RED  = SM
PT   = SM + 16384
WL   = PT
MX   = SM + 20480
LS   = SM + 20992
SV   = SM + 21504
QB   = SM + 25856
OB   = SM + 27136
RED2 = SM + 28160
LDS_BYTES = 163840
SVS = 1088
QBS = 320
TAGMUL = 0x9E3779B1
LOG2E = 1.4426950408889634
SCALE = (128 ** -0.5) * LOG2E
def fhex(x): return '0x%08x' % struct.unpack('<I', struct.pack('<f', x))[0]
sX, sI, sW, sTAG, sEP = 's3', 's4', 's5', 's6', 's7'
WS = 's[8:11]'; SA = 's[12:15]'; SB = 's[44:47]'; SC = 's[48:51]'
P_X, P_CKV, P_WQ, P_WUK, P_WUV, P_WO, P_W1, P_W2, P_C, P_WMOD, P_OUT, P_DBG, P_WS = 16, 18, 20, 22, 24, 26, 30, 32, 34, 36, 38, 40, 42
sWB = 's52'
sT0, sT1, sT2, sT3 = 's53', 's54', 's55', 's56'
sT4, sT5, sT6, sT7 = 's72', 's73', 's74', 's75'
sPLO, sPHI = 's57', 's58'
sCNT = 's59'
mT4 = 's[60:61]'
sU0, sU1 = 's62', 's63'
sCH, sBA, sS, sHH = 's64', 's65', 's66', 's67'
sR0, sR1, sR2, sR3 = 's68', 's69', 's70', 's71'
MK = 96
TSREG = [76,78,80,82,84,86,88,90,92,94,28,0]
TSSLOT = dict(start=0, hp_loaded=1, hp_pub=2, wq_landed=1, h_got=2, q_pub=3, ckv_iss=3, c_got=4, b1=5, b3=6, d_st=7, d_flag=8,
              dfl_got=9, d_got=10, e_pub=11, e_trig=9, e_got=10, f_pub=11, mr_pub=9, fe_got=10, out_st=11)
vL, vG, vT, vB4 = 'v1', 'v2', 'v3', 'v4'
def vr(a, n=1): return f'v{a}' if n == 1 else f'v[{a}:{a+n-1}]'
class Gen:
    def __init__(self, cfg):
        self.cfg = dict(CFG); self.cfg.update(cfg)
        self.a = Asm(); self.tsnames = []; self.failsites = []
    def ts(self, name):
        if not self.cfg['ts']: return
        slots = self.cfg.get('tsmap') or TSSLOT
        if name not in slots: return
        r = TSREG[slots[name]]
        if name not in self.tsnames: self.tsnames.append(name)
        self.a(f's_memrealtime s[{r}:{r+1}]')
    def srd(self, quad, ptr, size):
        q = int(quad[2:quad.index(':')])
        self.a(f's_mov_b32 s{q}, s{ptr}\ns_mov_b32 s{q+1}, s{ptr+1}\ns_mov_b32 s{q+2}, {size}\ns_mov_b32 s{q+3}, 0x00020000')
    def nt(self, key='nt'): return ' nt' if self.cfg[key] else ''
    def poll_begin(self):
        l = self.a.label('poll')
        self.a(f's_mov_b32 {sCNT}, {self.cfg["limit"]}\n{l}:')
        return l
    def poll_end(self, l, code, sleep, vacc):
        a = self.a; ok = a.label('ok')
        if code not in self.failsites: self.failsites.append(code)
        a(f'v_cmp_ne_u32 vcc, 0, {vacc}')
        a(f's_cbranch_vccz {ok}')
        a(f's_sub_u32 {sCNT}, {sCNT}, 1')
        a(f's_cbranch_scc1 L_fail_{code}')
        if sleep: a(f's_sleep {sleep}')
        a(f's_branch {l}')
        a(f'{ok}:')
    def poll_trig(self, voff, soff, ra, code, vacc):
        a = self.a
        if code not in self.failsites: self.failsites.append(code)
        l = a.label('pt'); ok = a.label('ptok')
        ld = lambda r: a(f'buffer_load_dwordx2 {vr(r,2)}, {voff}, {WS}, {soff} offen sc1')
        a(f's_mov_b32 {sCNT}, {self.cfg["limit"]}')
        ld(ra)
        a(f'{l}:')
        ld(ra+2)
        a(f's_waitcnt vmcnt(1)\nv_cmp_ne_u32 vcc, {sTAG}, v{ra+1}\ns_cbranch_vccz {ok}')
        ld(ra)
        a(f's_waitcnt vmcnt(1)\nv_cmp_ne_u32 vcc, {sTAG}, v{ra+3}\ns_cbranch_vccz {ok}')
        a(f's_sub_u32 {sCNT}, {sCNT}, 1\ns_cbranch_scc1 L_fail_{code}\ns_branch {l}\n{ok}:')
    def tagchk(self, vacc, regs):
        a = self.a
        for k, r in enumerate(regs):
            if k == 0: a(f'v_xor_b32 {vacc}, {sTAG}, {r}')
            else: a(f'v_bitop3_b32 {vacc}, {vacc}, {r}, {sTAG} bitop3:0xf6')
    def crossrow(self, regs, tmp, op):
        a = self.a
        for sw in ('v_permlane16_swap_b32', 'v_permlane32_swap_b32'):
            for r, t in zip(regs, tmp): a(f'v_mov_b32 {t}, {r}')
            for r, t in zip(regs, tmp): a(f'{sw} {r}, {t}')
            for r, t in zip(regs, tmp): a(f'{op} {r}, {r}, {t}')
    def allsum(self, regs, tmp, op='v_add_f32'):
        a = self.a
        for n in (8, 4, 2, 1):
            for r in regs: a(f'{op}_dpp {r}, {r}, {r} row_ror:{n} row_mask:0xf bank_mask:0xf')
        self.crossrow(regs, tmp, op)
    def ckv_prep(self, v):
        a = self.a
        self.srd(SA, P_CKV, 16 << 20)
        a(f'v_lshlrev_b32 v{v}, 4, {vL}')
        for k in range(1, 8): a(f'v_xor_b32 v{v+k}, {k << 5}, v{v}')
    def ckv_group(self, gi, v, ntkey):
        a = self.a
        a(f's_add_u32 {sU1}, {sWB}, {gi*4096}\ns_mov_b32 m0, {sU1}\ns_add_u32 {sU0}, {sCH}, {sU1}')
        for k in range(4):
            n = 4*gi + k
            off = f' offset:{k*1024}' if k else ''
            a(f'buffer_load_dwordx4 v{v + (n & 7)}, {SA}, {sU0} offen{off}{self.nt(ntkey)} lds')
    def dma_ckv_p(self):
        a = self.a
        thr = self.cfg.get('pthr', 2)
        self.srd(SA, P_CKV, 16 << 20)
        a(f'v_lshlrev_b32 v6, 4, {vL}')
        for k in range(1, 8): a(f'v_xor_b32 v{6+k}, {k << 5}, v6')
        for n in range(16):
            if n % 4 == 0:
                a(f's_add_u32 {sT1}, {sWB}, {(n>>2)*4096}')
                a(f's_mov_b32 m0, {sT1}')
                a(f's_add_u32 {sT0}, {sCH}, {sT1}')
            off = f' offset:{(n & 3)*1024}' if n & 3 else ''
            a(f'buffer_load_dwordx4 v{6 + (n & 7)}, {SA}, {sT0} offen{off}{self.nt("nt_ckv_p")} lds')
            if thr and n == thr - 1: a('s_waitcnt vmcnt(0)')
    def dma_groups(self, srd, voff4, sregs, mregs, nt):
        a = self.a
        for sr, mr in zip(sregs, mregs):
            a(f's_mov_b32 m0, {mr}\ns_nop 0')
            for k in range(4):
                off = f' offset:{k*1024}' if k else ''
                a(f'buffer_load_dwordx4 {voff4[k]}, {srd}, {sr} offen{off}{nt} lds')
    def rot_groups(self, ng, rot, sbase, step_log2, mbase, sregs, mregs, tmp=sCNT):
        a = self.a
        for j in range(ng):
            if rot is None:
                a(f's_add_u32 {sregs[j]}, {sbase}, {j << step_log2}')
                a(f's_add_u32 {mregs[j]}, {mbase}, {j*4096}')
            else:
                a(f's_add_u32 {tmp}, {rot}, {j}\ns_and_b32 {tmp}, {tmp}, {ng-1}')
                a(f's_lshl_b32 {sregs[j]}, {tmp}, {step_log2}\ns_add_u32 {sregs[j]}, {sregs[j]}, {sbase}')
                a(f's_lshl_b32 {mregs[j]}, {tmp}, 12\ns_add_u32 {mregs[j]}, {mregs[j]}, {mbase}')
    def voff128(self, v, rowstride):
        a = self.a
        a(f'''
        v_lshrrev_b32 v{v}, 3, {vL}
        v_mul_u32_u24 v{v}, {rowstride}, v{v}
        v_and_b32 v{v+1}, 7, {vL}
        v_lshlrev_b32 v{v+2}, 1, {vG}
        v_xor_b32 v{v+1}, v{v+1}, v{v+2}
        v_lshl_add_u32 v{v}, v{v+1}, 4, v{v}
        ''')
        for k in range(1, 4): a(f'v_add_u32 v{v+k}, {k*(8*rowstride-1024)}, v{v}')
        return [f'v{v+k}' for k in range(4)]
    def tr128_addr(self, v, base_s):
        a = self.a
        a(f'''
        v_lshrrev_b32 v{v}, 2, {vT}
        v_lshl_add_u32 v{v}, {vG}, 2, v{v}
        v_lshrrev_b32 v{v+1}, 1, v{v}
        v_and_b32 v{v+1}, 3, v{v+1}
        v_lshlrev_b32 v{v+1}, 5, v{v+1}
        v_lshl_add_u32 v{v}, v{v}, 7, v{v+1}
        v_lshrrev_b32 v{v+1}, 1, {vB4}
        v_lshl_add_u32 v{v}, v{v+1}, 4, v{v}
        v_and_b32 v{v+1}, 1, {vB4}
        v_lshl_add_u32 v{v}, v{v+1}, 3, v{v}
        v_add_u32 v{v}, {base_s}, v{v}
        ''')
        for ct in range(1, 4): a(f'v_xor_b32 v{v+ct}, {ct << 5}, v{v}')
        return [f'v{v+ct}' for ct in range(4)]
    def tr_reads(self, addrs, kss, rb, dst, base_off=0):
        a = self.a
        for ks in kss:
            for ct, ad in enumerate(addrs):
                d = dst + 4 * (ks * len(addrs) + ct)
                for hi in range(2):
                    a(f'ds_read_b64_tr_b16 {vr(d + 2*hi, 2)}, {ad} offset:{base_off + (32*ks + 16*hi)*rb}')
    def sel4(self, dst, srcs, masks):
        a = self.a
        a(f'v_cndmask_b32 {dst}, {srcs[0]}, {srcs[1]}, {masks[0]}')
        a(f'v_cndmask_b32 {dst}, {dst}, {srcs[2]}, {masks[1]}')
        a(f'v_cndmask_b32 {dst}, {dst}, {srcs[3]}, {masks[2]}')
    def masks_t(self):
        for k, val in enumerate((0x22222222, 0x44444444, 0x88888888)):
            self.a(f's_mov_b32 s{MK+2*k}, {val:#x}\ns_mov_b32 s{MK+2*k+1}, {val:#x}')
        return [f's[{MK+2*k}:{MK+2*k+1}]' for k in range(3)]
    def masks_q(self):
        for k, val in enumerate((0x00f000f0, 0x0f000f00, 0xf000f000)):
            self.a(f's_mov_b32 s{MK+2*k}, {val:#x}\ns_mov_b32 s{MK+2*k+1}, {val:#x}')
        return [f's[{MK+2*k}:{MK+2*k+1}]' for k in range(3)]
    def masks_g(self):
        for k, (lo, hi) in enumerate(((0xffff0000, 0), (0, 0x0000ffff), (0, 0xffff0000))):
            self.a(f's_mov_b32 s{MK+2*k}, {lo:#x}\ns_mov_b32 s{MK+2*k+1}, {hi:#x}')
        return [f's[{MK+2*k}:{MK+2*k+1}]' for k in range(3)]
    def mfma(self, acc, A, B, first):
        self.a(f'v_mfma_f32_16x16x32_bf16 {vr(acc,4)}, {vr(A,4)}, {vr(B,4)}, {"0" if first else vr(acc,4)}')
    def tree_add(self, regs):
        a = self.a; n = len(regs); step = 1
        while step < n:
            for k in range(0, n - step, 2*step): a(f'v_add_f32 {regs[k]}, {regs[k]}, {regs[k+step]}')
            step *= 2
    def prologue(self):
        a = self.a
        a('''
        s_cmp_ge_u32 s2, 256
        s_cbranch_scc1 L_end
        s_load_dwordx16 s[16:31], s[0:1], 0
        s_load_dwordx8 s[32:39], s[0:1], 64
        s_load_dwordx4 s[40:43], s[0:1], 96
        ''')
        self.ts('start')
        if self.cfg.get('permtest'):
            a(f's_mul_i32 s2, s2, {self.cfg["permtest"]}\ns_add_u32 s2, s2, 11\ns_and_b32 s2, s2, 255')
        a(f'''
        v_lshrrev_b32 v5, 6, v0
        v_and_b32 {vL}, 63, v0
        v_readfirstlane_b32 {sW}, v5
        v_lshrrev_b32 {vG}, 4, {vL}
        v_and_b32 {vT}, 15, {vL}
        v_and_b32 {vB4}, 3, {vL}
        s_and_b32 {sX}, s2, 7
        s_lshr_b32 {sI}, s2, 3
        ''')
        if self.cfg.get('ixor'): a(f's_xor_b32 {sI}, {sI}, {self.cfg["ixor"]}')
        a(f'''
        s_lshl_b32 {sWB}, {sW}, 14
        s_mov_b32 s60, 0x000f000f
        s_mov_b32 s61, 0x000f000f
        s_lshl_b32 {sCH}, {sX}, 4
        s_and_b32 {sT0}, {sI}, 15
        s_add_u32 {sCH}, {sCH}, {sT0}
        s_lshr_b32 {sBA}, {sCH}, 5
        s_and_b32 {sS}, {sCH}, 31
        s_lshr_b32 {sHH}, {sI}, 4
        ''')
        if self.cfg.get('hhswap', True): a(f's_xor_b32 {sHH}, {sHH}, 1')
        a(f'''
        s_lshl_b32 {sCH}, {sCH}, 17
        ''')
        if self.cfg.get('codepf'):
            sk = a.label('nocpf')
            a(f's_cmp_lg_u32 {sI}, {self.cfg.get("codepf_i", 31)}\ns_cbranch_scc1 {sk}')
            a(f's_cmp_ge_u32 {sW}, 3\ns_cbranch_scc1 {sk}')
            a(f'''
            s_getpc_b64 s[62:63]
            L_pc:
            s_sub_u32 s62, s62, L_pc-{KNAME}
            s_subb_u32 s63, s63, 0
            v_lshlrev_b32 v5, 7, {vL}
            s_lshl_b32 {sT0}, {sW}, 13
            v_add_u32 v5, {sT0}, v5
            s_mov_b32 {sT0}, L_end-{KNAME}
            v_cmp_gt_u32 vcc, {sT0}, v5
            s_and_saveexec_b64 s[100:101], vcc
            s_cbranch_execz L_cpf_skip
            global_load_dword v255, v5, s[62:63]
            L_cpf_skip:
            s_mov_b64 exec, s[100:101]
            {sk}:
            ''')
        a(f'''
        s_cmp_lt_u32 {sI}, 16
        s_cbranch_scc1 L_qpre
        ''')
    def after_kernarg(self):
        a = self.a
        a(f's_waitcnt lgkmcnt(0)\ns_load_dword {sEP}, s[{P_WS}:{P_WS+1}], 0')
    def tag(self):
        self.srd(WS, P_WS, WS_SIZE)
        self.a(f'''
        s_waitcnt lgkmcnt(0)
        s_add_u32 {sTAG}, {sEP}, 1
        s_mul_i32 {sTAG}, {sTAG}, {TAGMUL:#x}
        s_add_u32 {sTAG}, {sTAG}, 0x7f4a7c15
        ''')
        if self.cfg.get('tlbpf'):
            a = self.a; sk = a.label('notlb')
            a(f's_cmp_lg_u32 {sW}, 7\ns_cbranch_scc1 {sk}\nv_mov_b32 v253, 0')
            for off in self.cfg['tlbpf']:
                a(f's_mov_b32 {sCNT}, {off}\nbuffer_load_dword v254, v253, {WS}, {sCNT} offen')
            a(f'{sk}:')
    def dma_ckv(self, ntkey, groups=(0, 1, 2, 3), v=6):
        a = self.a
        self.srd(SA, P_CKV, 16 << 20)
        a(f'v_lshlrev_b32 v{v}, 4, {vL}')
        for k in range(1, 8): a(f'v_xor_b32 v{v+k}, {k << 5}, v{v}')
        for gi in groups:
            a(f's_add_u32 {sT1}, {sWB}, {gi*4096}')
            a(f's_mov_b32 m0, {sT1}')
            a(f's_add_u32 {sT0}, {sCH}, {sT1}')
            for k in range(4):
                n = 4*gi + k
                off = f' offset:{k*1024}' if k else ''
                a(f'buffer_load_dwordx4 v{v + (n & 7)}, {SA}, {sT0} offen{off}{self.nt(ntkey)} lds')
    def silu_addr(self):
        self.a(f'''
        v_lshlrev_b32 v16, 3, v0
        v_lshrrev_b32 v20, 7, v0
        v_mul_u32_u24 v20, {SVS}, v20
        v_and_b32 v21, 127, v0
        v_lshrrev_b32 v21, 3, v21
        v_lshl_add_u32 v20, v21, 6, v20
        v_and_b32 v21, 3, v0
        v_lshl_add_u32 v20, v21, 4, v20
        v_lshrrev_b32 v21, 2, v0
        v_and_b32 v21, 1, v21
        v_lshl_add_u32 v20, v21, 3, v20
        v_add_u32 v20, {SV}, v20
        ''')
    def silu_calc(self):
        a = self.a
        a('''
        v_lshlrev_b32 v22, 16, v18
        v_and_b32 v23, 0xffff0000, v18
        v_lshlrev_b32 v24, 16, v19
        v_and_b32 v25, 0xffff0000, v19
        ''')
        for r in range(22, 26): a(f'v_mul_f32 v{r+4}, {fhex(-LOG2E)}, v{r}')
        for r in range(22, 26): a(f'v_exp_f32 v{r+4}, v{r+4}')
        for r in range(22, 26): a(f'v_add_f32 v{r+4}, 1.0, v{r+4}')
        for r in range(22, 26): a(f'v_rcp_f32 v{r+4}, v{r+4}')
        for r in range(22, 26): a(f'v_mul_f32 v{r}, v{r}, v{r+4}')
        a('v_cvt_pk_bf16_f32 v22, v22, v23\nv_cvt_pk_bf16_f32 v23, v24, v25\nds_write_b64 v20, v[22:23]')
    def sv_frag_addr(self, v):
        self.a(f'''
        v_mul_u32_u24 {v}, {SVS}, {vB4}
        v_lshl_add_u32 {v}, {vG}, 4, {v}
        s_lshl_b32 {sT2}, {sW}, 7
        s_add_u32 {sT2}, {sT2}, {SV}
        v_add_u32 {v}, {sT2}, {v}
        ''')
    def p_pre(self):
        a = self.a
        a('; ================= P pre')
        if self.cfg.get('stopq'):
            self.after_kernarg(); self.tag(); a('s_branch L_exit')
        skip = a.label('nohp'); done = a.label('hpdone')
        a(f's_sub_u32 {sR0}, {sI}, 16\ns_cmp_ge_u32 {sR0}, 4\ns_cbranch_scc1 {skip}')
        vo = self.voff128(6, 6144)
        a(f"""
        s_lshl_b32 {sT0}, {sR0}, 2
        s_and_b32 {sT4}, {sW}, 3
        s_add_u32 {sT0}, {sT0}, {sT4}
        s_mul_i32 {sT0}, {sT0}, {32*6144}
        s_lshr_b32 {sT1}, {sW}, 2
        s_lshl_b32 {sT1}, {sT1}, 10
        s_add_u32 {sT0}, {sT0}, {sT1}
        s_lshl_b32 {sT3}, {sX}, 7
        s_add_u32 {sT0}, {sT0}, {sT3}
        v_lshrrev_b32 v16, 7, v0
        v_and_b32 v17, 127, v0
        v_lshlrev_b32 v18, 10, v16
        v_lshl_add_u32 v18, v17, 1, v18
        s_lshl_b32 {sT2}, {sR0}, 8
        s_lshl_b32 {sT5}, {sT4}, 10
        v_lshlrev_b32 v30, 4, {vL}
        v_lshrrev_b32 v39, 1, v0
        v_and_b32 v39, 3, v39
        v_lshrrev_b32 v37, 3, v0
        v_and_b32 v36, 1, v0
        v_lshlrev_b32 v35, 10, v39
        v_lshl_add_u32 v35, v37, 3, v35
        v_lshl_add_u32 v35, v36, 2, v35
        """)
        self.after_kernarg()
        self.srd(SB, P_C, 4096); self.srd(SC, P_X, 4096); self.srd(SA, P_WMOD, 512 * 6144)
        self.ts('hp_karg')
        a(f"""
        buffer_load_ushort v20, v18, {SB}, {sT2} offen
        buffer_load_dwordx4 v[40:43], v30, {SC}, {sT5} offen
        buffer_load_dword v38, v35, {SC}, {sT3} offen
        """)
        self.dma_groups(SA, vo, [sT0], [sWB], self.nt())
        self.tag()
        ad = self.tr128_addr(6, sWB)
        mq = self.masks_q()
        a(f"""
        v_mul_u32_u24 v10, {QBS}, v16
        v_lshrrev_b32 v11, 5, v17
        v_lshl_add_u32 v10, v11, 6, v10
        v_lshrrev_b32 v11, 2, v17
        v_and_b32 v11, 3, v11
        v_lshl_add_u32 v10, v11, 4, v10
        v_lshrrev_b32 v11, 4, v17
        v_and_b32 v11, 1, v11
        v_lshl_add_u32 v10, v11, 3, v10
        v_and_b32 v11, 3, v17
        v_lshl_add_u32 v10, v11, 1, v10
        v_add_u32 v10, {SV}, v10
        v_mul_u32_u24 v11, {QBS}, {vB4}
        v_lshl_add_u32 v11, {vG}, 4, v11
        s_lshl_b32 {sT0}, {sT4}, 6
        s_add_u32 {sT0}, {sT0}, {SV}
        v_add_u32 v11, {sT0}, v11
        s_lshl_b32 {sT0}, {sW}, 10
        s_add_u32 {sT0}, {sT0}, {RED}
        v_lshrrev_b32 v12, 2, {vT}
        v_lshlrev_b32 v12, 8, v12
        v_lshl_add_u32 v12, {vG}, 6, v12
        v_lshl_add_u32 v12, {vB4}, 4, v12
        v_add_u32 v12, {sT0}, v12
        v_lshlrev_b32 v13, 3, v0
        v_add_u32 v13, {RED}, v13
        v_lshlrev_b32 v14, 3, v39
        v_add_u32 v14, {LS}, v14
        v_lshlrev_b32 v15, 11, v39
        v_lshl_add_u32 v15, v37, 4, v15
        v_lshl_add_u32 v15, v36, 3, v15
        s_lshl_b32 {sT6}, {sR0}, 13
        s_lshl_b32 {sT0}, {sX}, 8
        s_add_u32 {sT6}, {sT6}, {sT0}
        s_add_u32 {sT6}, {sT6}, {WS_H}
        s_lshl_b32 {sT3}, {sT4}, 3
        s_add_u32 {sT3}, {sT3}, {LS}
        v_mov_b32 v50, {sT3}
        s_cmp_eq_u32 {sR0}, 0
        s_cselect_b32 {sT7}, 1.0, 0
        v_mov_b32 v45, {sTAG}
        s_waitcnt vmcnt(6)
        v_lshlrev_b32 v20, 16, v20
        v_mul_f32 v21, {fhex(-LOG2E)}, v20
        v_exp_f32 v21, v21
        s_nop 0
        v_add_f32 v21, 1.0, v21
        v_rcp_f32 v21, v21
        s_nop 0
        v_mul_f32 v20, v20, v21
        v_cvt_pk_bf16_f32 v20, v20, v20
        ds_write_b16 v10, v20
        s_waitcnt vmcnt(5)
        """)
        self.ts('hp_c')
        for k in range(4):
            a(f'v_lshlrev_b32 v{52+2*k}, 16, v{40+k}\nv_and_b32 v{53+2*k}, 0xffff0000, v{40+k}')
        a('v_add_f32 v48, v52, v53\nv_mul_f32 v49, v52, v52\nv_fmac_f32 v49, v53, v53')
        for k in range(54, 60): a(f'v_add_f32 v48, v48, v{k}\nv_fmac_f32 v49, v{k}, v{k}')
        self.allsum(['v48', 'v49'], ['v51', 'v52'])
        a(f"""
        v_mul_f32 v48, {fhex(1/512)}, v48
        v_mul_f32 v49, {fhex(1/512)}, v49
        v_fma_f32 v49, -v48, v48, v49
        v_max_f32 v49, 0, v49
        v_add_f32 v49, {fhex(1e-5)}, v49
        v_rsq_f32 v49, v49
        s_nop 0
        ds_write_b64 v50, v[48:49]
        s_waitcnt lgkmcnt(0)
        """)
        self.ts('hp_ln')
        a('s_barrier\nds_read_b128 v[52:55], v11\ns_waitcnt vmcnt(0)')
        self.ts('hp_loaded')
        self.tr_reads(ad, range(1), 128, 16)
        a('s_waitcnt lgkmcnt(0)')
        for ct in range(4): self.mfma(60+4*ct, 16+4*ct, 52, True)
        for r in range(4): self.sel4(f'v{76+r}', [f'v{60+4*ct+r}' for ct in range(4)], mq)
        a('ds_write_b128 v12, v[76:79]\ns_waitcnt lgkmcnt(0)\ns_barrier')
        fin = a.label('hpfin')
        a(f's_cmp_ge_u32 {sW}, 2\ns_cbranch_scc1 {fin}')
        for ww in range(8): a(f'ds_read_b64 {vr(16+2*ww,2)}, v13 offset:{ww*1024}')
        a("""
        ds_read_b64 v[32:33], v14
        v_lshlrev_b32 v40, 16, v38
        v_and_b32 v41, 0xffff0000, v38
        s_waitcnt lgkmcnt(0)
        v_sub_f32 v40, v40, v32
        v_sub_f32 v41, v41, v32
        v_mul_f32 v40, v40, v33
        v_mul_f32 v41, v41, v33
        """)
        self.tree_add(['v16', 'v18', 'v20', 'v22'])
        self.tree_add(['v17', 'v19', 'v21', 'v23'])
        self.tree_add(['v24', 'v26', 'v28', 'v30'])
        self.tree_add(['v25', 'v27', 'v29', 'v31'])
        a(f"""
        v_add_f32 v24, {sT7}, v24
        v_add_f32 v25, {sT7}, v25
        v_fmac_f32 v16, v40, v24
        v_fmac_f32 v17, v41, v25
        v_cvt_pk_bf16_f32 v44, v16, v17
        buffer_store_dwordx2 v[44:45], v15, {WS}, {sT6} offen sc1
        {fin}:
        s_barrier
        """)
        self.ts('hp_pub')
        a(f's_branch {done}\n{skip}:')
        if self.cfg.get('pfuk', True):
            a(f'''
            s_sub_u32 {sT0}, {sI}, 20
            s_mul_i32 {sT0}, {sT0}, 6
            s_add_u32 {sT0}, {sT0}, {sW}
            s_lshl_b32 {sT0}, {sT0}, 3
            s_lshl_b32 {sT0}, {sT0}, 13
            s_lshl_b32 {sT1}, {sX}, 10
            s_add_u32 {sT0}, {sT0}, {sT1}
            v_lshrrev_b32 v6, 3, {vL}
            v_lshlrev_b32 v6, 13, v6
            v_and_b32 v7, 7, {vL}
            v_lshl_add_u32 v6, v7, 7, v6
            ''')
        self.after_kernarg()
        if self.cfg.get('pfuk', True):
            sk2 = a.label('nouk')
            self.srd(SB, P_WUK, 4 << 20)
            a(f's_cmp_ge_u32 {sW}, 6\ns_cbranch_scc1 {sk2}\nbuffer_load_dword v98, v6, {SB}, {sT0} offen\n{sk2}:')
        self.tag()
        if self.cfg.get('pdelay'):
            a(f's_lshl_b32 {sT0}, {sX}, 8\ns_add_u32 {sT0}, {sT0}, {WS_H + 3*8192}\nv_mov_b32 v5, 0')
            l = self.poll_begin()
            a(f'buffer_load_dwordx2 v[6:7], v5, {WS}, {sT0} offen sc1\ns_waitcnt vmcnt(0)')
            self.tagchk('v8', ['v7'])
            self.poll_end(l, 12, 4, 'v8')
        a(f'{done}:')
        a(f"""
        s_sub_u32 {sR0}, {sI}, 16
        s_lshr_b32 {sR1}, {sR0}, 2
        s_lshl_b32 {sT0}, {sX}, 2
        s_add_u32 {sR1}, {sR1}, {sT0}          ; hp
        s_and_b32 {sR0}, {sR0}, 3              ; bp
        s_mov_b32 {sPLO}, 0x05040100
        s_mov_b32 {sPHI}, 0x07060302
        """)
        self.touch_uv()
        if self.cfg.get('pwait'): a('s_waitcnt vmcnt(0)')
        self.dma_ckv_p()
        self.ts('ckv_iss')
        self.srd(SB, P_WUV, 4 << 20)
        a(f"""
        v_lshlrev_b32 v96, 16, {vG}
        v_lshl_add_u32 v96, {vT}, 4, v96
        s_lshl_b32 {sU0}, {sW}, 19
        s_lshl_b32 {sU1}, {sR1}, 8
        s_add_u32 {sU0}, {sU0}, {sU1}
        """)
        self.wuv_at('e', False)
    def wuv_group(self, gi):
        a = self.a
        a(f's_add_u32 {sU1}, {sU0}, {((gi >> 1) * 32 + (gi & 1) * 4) * 8192}')
        for e in range(4):
            n = 4*gi + e
            a(f'buffer_load_dwordx4 {vr(112+4*n,4)}, v96, {SB}, {sU1} offen{self.nt()}')
            if e < 3: a(f's_add_u32 {sU1}, {sU1}, 8192')
    def wuv_at(self, pos, guard=True):
        a = self.a
        g1 = [gi for gi, p in enumerate(self.cfg['gpl']) if p == pos]
        g2 = [gi for gi, p in enumerate(self.cfg['gplhp']) if p == pos]
        if g1 == g2:
            if not g1: return len(g1)
            sk = a.label('nouv')
            if guard: a(f's_cmp_lt_u32 {sI}, 16\ns_cbranch_scc1 {sk}')
            for gi in g1: self.wuv_group(gi)
            a(f'{sk}:')
            return len(g1)
        done = a.label('uvd'); hp = a.label('uvhp')
        if guard: a(f's_cmp_lt_u32 {sI}, 16\ns_cbranch_scc1 {done}')
        a(f's_cmp_lt_u32 {sI}, 20\ns_cbranch_scc1 {hp}')
        for gi in g1: self.wuv_group(gi)
        a(f's_branch {done}\n{hp}:')
        for gi in g2: self.wuv_group(gi)
        a(f'{done}:')
        assert pos not in ('x', 'y')
        return 0
    def wuv_unit(self, k):
        a = self.a
        a(f's_add_u32 {sU1}, {sU0}, {k * 32 * 8192}')
        for e in range(8):
            a(f'buffer_load_dwordx4 {vr(112+32*k+4*e,4)}, v96, {SB}, {sU1} offen{self.nt()}')
            if e < 7: a(f's_add_u32 {sU1}, {sU1}, 8192')
    def q_pre(self):
        a = self.a
        a('; ================= Q pre')
        a(f'''
        s_lshr_b32 {sR1}, {sI}, 2
        s_lshl_b32 {sT0}, {sX}, 2
        s_add_u32 {sR1}, {sR1}, {sT0}          ; hq
        s_and_b32 {sR0}, {sI}, 3               ; cq
        v_lshlrev_b32 v9, 1, {vG}
        v_xor_b32 v10, {vT}, v9
        v_lshlrev_b32 v6, 13, {vG}
        v_lshl_add_u32 v6, v10, 4, v6          ; k=0
        v_xor_b32 v7, 128, v6
        v_add_u32 v8, {2*31744}, v6            ; k=2
        v_add_u32 v9, {3*31744}, v7            ; k=3
        v_add_u32 v7, 31744, v7                ; k=1
        s_lshl_b32 {sU0}, {sW}, 19
        s_lshl_b32 {sU1}, {sR1}, 8
        s_add_u32 {sU0}, {sU0}, {sU1}
        ''')
        self.rot_groups(4, sR0, sU0, 17, sWB, [sT0, sT1, sT2, sT3], [sT4, sT5, sT6, sT7])
        a(f'''
        s_lshl_b32 {sU0}, {sR0}, 20
        s_add_u32 {sU0}, {sU0}, {sU1}
        s_lshl_b32 {sU1}, {sW}, 17
        s_add_u32 {sU0}, {sU0}, {sU1}
        ''')
        self.after_kernarg()
        self.ts('q_karg')
        self.srd(SA, P_WQ, 4 << 20)
        self.dma_groups(SA, ['v6', 'v7', 'v8', 'v9'], [sT0, sT1, sT2, sT3], [sT4, sT5, sT6, sT7], self.nt())
        self.ts('q_iss')
        self.srd(SB, P_WUK, 4 << 20)
        a(f's_lshl_b32 {sU1}, {sW}, 12\ns_add_u32 {sU1}, {sU1}, {SM}')
        self.dma_groups(SB, ['v6', 'v7', 'v8', 'v9'], [sU0], [sU1], self.nt())
        self.tag()
        a(f'''
        v_lshrrev_b32 v8, 2, {vT}
        v_lshl_add_u32 v8, {vG}, 2, v8
        v_and_b32 v9, 7, v8
        v_lshlrev_b32 v9, 5, v9
        v_lshl_add_u32 v8, v8, 8, v9
        v_lshrrev_b32 v9, 1, {vB4}
        v_lshl_add_u32 v8, v9, 4, v8
        v_and_b32 v9, 1, {vB4}
        v_lshl_add_u32 v8, v9, 3, v8
        v_add_u32 v8, {sWB}, v8
        ''')
        for ct in range(1, 8): a(f'v_xor_b32 v{8+ct}, {ct << 5}, v8')
        a(f'''
        v_lshlrev_b32 v152, 11, {vG}
        v_lshl_add_u32 v152, {vT}, 4, v152
        v_mul_u32_u24 v170, 192, {vG}
        v_lshrrev_b32 v171, 3, {vT}
        v_lshl_add_u32 v170, v171, 6, v170
        v_lshl_add_u32 v170, {vB4}, 4, v170
        v_lshrrev_b32 v171, 2, {vT}
        v_and_b32 v171, 1, v171
        v_lshl_add_u32 v170, v171, 3, v170
        v_add_u32 v170, {sWB}, v170
        v_mul_u32_u24 v174, 192, {vB4}
        v_lshl_add_u32 v174, {vG}, 4, v174
        v_add_u32 v174, {sWB}, v174
        s_lshl_b32 {sT3}, {sW}, 8
        s_add_u32 {sT3}, {sT3}, {WS_H}
        s_add_u32 {sT2}, {sWB}, 2048
        v_lshrrev_b32 v156, 2, {vT}
        v_lshlrev_b32 v156, 8, v156
        v_lshl_add_u32 v156, {vG}, 6, v156
        v_lshl_add_u32 v156, {vB4}, 4, v156
        v_add_u32 v156, {sT2}, v156
        v_lshlrev_b32 v157, 2, v0
        v_add_u32 v157, 2048, v157
        v_add_u32 v159, 0x10000, v157          ; regions 4..7
        v_lshrrev_b32 v154, 2, {vL}
        v_and_b32 v154, 3, v154
        v_mul_u32_u24 v154, {QBS}, v154
        v_lshl_add_u32 v154, {vG}, 3, v154
        v_lshl_add_u32 v154, {vB4}, 1, v154
        s_lshl_b32 {sT2}, {sW}, 5
        s_add_u32 {sT2}, {sT2}, {QB}
        v_add_u32 v154, {sT2}, v154
        v_mul_u32_u24 v155, {QBS}, {vB4}
        v_lshl_add_u32 v155, {vG}, 4, v155
        v_add_u32 v155, {QB}, v155
        v_lshlrev_b32 v158, 16, {vB4}
        v_lshl_add_u32 v158, {vG}, 4, v158
        s_lshl_b32 {sT4}, {sR1}, 11
        s_lshl_b32 {sT1}, {sR0}, 9
        s_add_u32 {sT4}, {sT4}, {sT1}
        s_lshl_b32 {sT1}, {sW}, 6
        s_add_u32 {sT4}, {sT4}, {sT1}
        s_add_u32 {sT4}, {sT4}, {WS_Q}
        s_mov_b32 {sT5}, {fhex(SCALE)}
        v_mov_b32 v149, {sTAG}
        v_mov_b32 v151, {sTAG}
        v_and_b32 v5, 7, {vT}
        v_lshlrev_b32 v5, 5, v5
        v_lshlrev_b32 v160, 4, {vG}
        v_xor_b32 v160, v160, v5
        v_lshl_add_u32 v160, {vT}, 8, v160
        v_add_u32 v160, {sU1}, v160
        v_xor_b32 v161, 64, v160
        v_xor_b32 v162, 128, v160
        v_xor_b32 v163, 192, v160
        s_waitcnt vmcnt(4)
        ''')
        self.ts('wq_landed')
        a(f's_add_u32 {sT0}, {sT3}, 8192\ns_add_u32 {sT1}, {sT3}, 16384\ns_add_u32 {sT2}, {sT3}, 24576')
        def hloads():
            for k, so in enumerate((sT3, sT0, sT1, sT2)):
                a(f'buffer_load_dwordx4 {vr(128+4*k,4)}, v152, {WS}, {so} offen sc1')
        atrig = self.cfg.get('atrig', False)
        if not atrig: hloads()
        self.tr_reads([f'v{8+ct}' for ct in range(8)], range(2), 256, 16)
        mq = self.masks_q()
        self.ckv_prep(176)
        a(f's_waitcnt vmcnt({0 if atrig else 4})')
        for st in range(4): a(f'ds_read_b128 {vr(112+4*st,4)}, v{160+st}')
        if atrig:
            sk = a.label('noatrig')
            a(f's_cmp_lg_u32 {sW}, 0\ns_cbranch_scc1 {sk}')
            a(f'''
            v_lshrrev_b32 v168, 3, {vL}
            v_and_b32 v168, 3, v168
            v_lshlrev_b32 v168, 13, v168
            v_and_b32 v169, 7, {vL}
            v_lshl_add_u32 v168, v169, 8, v168
            v_add_u32 v168, {3*2048+248}, v168
            s_mov_b32 {sU0}, {WS_H}
            ''')
            l = self.poll_begin()
            a(f'buffer_load_dwordx2 v[128:129], v168, {WS}, {sU0} offen sc1\ns_waitcnt vmcnt(0)')
            self.tagchk('v153', ['v129'])
            self.poll_end(l, 13, self.cfg['sleepA'], 'v153')
            a(f'{sk}:\ns_barrier')
            self.ts('q_atrig')
            l = self.poll_begin()
            hloads()
            a('s_waitcnt vmcnt(0)')
        else:
            first = a.label('hfirst')
            a(f's_mov_b32 {sCNT}, {self.cfg["limit"]}\ns_branch {first}')
            l = a.label('poll'); a(f'{l}:')
            hloads()
            a(f'{first}:\ns_waitcnt vmcnt(0)')
        self.tagchk('v153', [f'v{128+4*k+o}' for k in range(4) for o in (1, 3)])
        self.poll_end(l, 1, self.cfg['sleepA2'], 'v153')
        self.ts('h_got')
        a(f's_mov_b32 {sT0}, 0x00003f80\ns_mov_b32 {sT1}, 0x3f800000')
        for k in range(4):
            for j, (src, sel) in enumerate(((128+4*k, sT0), (128+4*k, sT1), (130+4*k, sT0), (130+4*k, sT1))):
                a(f'v_dot2_f32_bf16 v{144+j}, v{src}, {sel}, {"0" if k == 0 else f"v{144+j}"}')
        a('v_cvt_pk_bf16_f32 v144, v144, v145\nv_cvt_pk_bf16_f32 v145, v146, v147\nds_write_b64 v170, v[144:145]\ns_waitcnt lgkmcnt(0)')
        a('ds_read_b128 v[128:131], v174\nds_read_b128 v[136:139], v174 offset:64')
        if self.cfg.get('ckvA', True): self.ckv_group(1, 176, 'nt_ckv_q')
        a('s_waitcnt lgkmcnt(0)')
        for ks in range(2):
            for ct in range(8): self.mfma(80+4*ct, 16+4*(ks*8+ct), 128+8*ks, ks == 0)
        self.ts('q_mfma')
        for hf in range(2):
            for r in range(4): self.sel4(f'v{136+4*hf+r}', [f'v{80+16*hf+4*ct+r}' for ct in range(4)], mq)
            a(f'ds_write_b128 v156, {vr(136+4*hf,4)} offset:{hf*1024}')
        a('s_waitcnt lgkmcnt(0)')
        self.ts('q_wr')
        if self.cfg.get('ckvB2'): self.ckv_group(2, 176, 'nt_ckv_q')
        a('s_barrier')
        self.ts('q_bar1')
        if self.cfg['ckvB']: self.ckv_group(2, 176, 'nt_ckv_q')
        for ww in range(8): a(f'ds_read_b32 v{128+ww}, v{157 if ww < 4 else 159} offset:{(ww&3)*16384}')
        a('s_waitcnt lgkmcnt(0)')
        self.tree_add([f'v{128+k}' for k in range(8)])
        a('''
        v_cvt_pk_bf16_f32 v128, v128, v128
        ds_write_b16 v154, v128
        s_waitcnt lgkmcnt(0)
        ''')
        if self.cfg.get('ckvB3'): self.ckv_group(2, 176, 'nt_ckv_q')
        a('s_barrier')
        self.ts('q_bar2')
        for st in range(4): a(f'ds_read_b128 {vr(128+4*st,4)}, v155 offset:{st*64}')
        for st in range(4):
            a(f's_waitcnt lgkmcnt({3-st})')
            self.mfma(144, 112+4*st, 128+4*st, st == 0)
        a(f'''
        v_mul_f32 v144, {sT5}, v144
        v_mul_f32 v145, {sT5}, v145
        v_mul_f32 v146, {sT5}, v146
        v_mul_f32 v147, {sT5}, v147
        v_cvt_pk_bf16_f32 v148, v144, v145
        v_cvt_pk_bf16_f32 v150, v146, v147
        s_mov_b64 exec, {mT4}
        buffer_store_dwordx4 v[148:151], v158, {WS}, {sT4} offen sc1
        s_mov_b64 exec, -1
        ''')
        self.ts('q_pub')
        a('s_barrier')
        for gi in [0, 3] + ([] if self.cfg.get('ckvA', True) else [1]) + ([] if (self.cfg['ckvB'] or self.cfg.get('ckvB2') or self.cfg.get('ckvB3')) else [2]): self.ckv_group(gi, 176, 'nt_ckv_q')
        self.touch_o_prep()
    def att_addr(self):
        a = self.a
        a(f'''
        v_and_b32 v5, 7, {vT}
        v_lshlrev_b32 v5, 5, v5
        v_lshlrev_b32 v244, 4, {vG}
        v_xor_b32 v244, v244, v5
        v_lshl_add_u32 v244, {vT}, 10, v244
        v_xor_b32 v245, 64, v244
        v_xor_b32 v246, 128, v244
        v_xor_b32 v247, 192, v244
        v_add_u32 v248, {QT}, v244
        v_add_u32 v249, {QT}, v245
        v_add_u32 v250, {QT}, v246
        v_add_u32 v251, {QT}, v247
        v_add_u32 v244, {sWB}, v244
        v_add_u32 v245, {sWB}, v245
        v_add_u32 v246, {sWB}, v246
        v_add_u32 v247, {sWB}, v247
        v_lshrrev_b32 v80, 2, {vT}
        v_lshl_add_u32 v80, {vG}, 2, v80
        v_and_b32 v81, 7, v80
        v_lshlrev_b32 v81, 5, v81
        s_lshl_b32 {sT0}, {sW}, 7
        v_lshl_add_u32 v82, {vB4}, 4, {sT0}
        v_xor_b32 v81, v81, v82
        v_lshl_add_u32 v80, v80, 10, v81
        v_lshrrev_b32 v81, 1, {vB4}
        v_lshl_add_u32 v80, v81, 3, v80
        v_xor_b32 v81, 8, v80
        v_xor_b32 v82, 64, v80
        v_xor_b32 v83, 72, v80
        v_add_u32 v100, 0x10000, v80
        v_add_u32 v101, 0x10000, v81
        v_add_u32 v102, 0x10000, v82
        v_add_u32 v103, 0x10000, v83
        v_mov_b32 v240, 0x3f803f80
        v_mov_b32 v241, 0x3f803f80
        v_mov_b32 v242, 0x3f803f80
        v_mov_b32 v243, 0x3f803f80
        v_lshlrev_b32 v84, 4, v0
        v_lshrrev_b32 v85, 2, {vL}
        v_lshlrev_b32 v85, 11, v85
        v_lshl_add_u32 v85, {vB4}, 9, v85
        v_add_u32 v85, 504, v85
        s_lshr_b32 {sT0}, {sW}, 1
        v_and_b32 v86, 127, v0
        v_lshrrev_b32 v87, 1, v86
        s_lshl_b32 {sT1}, {sT0}, 1
        v_xor_b32 v87, {sT1}, v87
        v_lshlrev_b32 v87, 4, v87
        v_and_b32 v86, 1, v86
        v_lshl_add_u32 v86, v86, 3, v87
        s_lshl_b32 {sT1}, {sT0}, 10
        s_add_u32 {sT1}, {sT1}, {QT}
        v_add_u32 v86, {sT1}, v86
        v_xor_b32 v87, 128, v86
        v_lshlrev_b32 v89, 5, {vT}
        s_lshl_b32 {sT1}, {sW}, 2
        s_add_u32 {sT2}, {sT1}, {MX}
        v_add_u32 v88, {sT2}, v89
        s_add_u32 {sT2}, {sT1}, {LS}
        v_add_u32 v91, {sT2}, v89
        v_add_u32 v92, {LS}, v89
        v_add_u32 v89, {MX}, v89
        s_lshl_b32 {sT0}, {sT0}, 10
        s_and_b32 {sT1}, {sW}, 1
        s_lshl_b32 {sT1}, {sT1}, 3
        s_add_u32 {sT0}, {sT0}, {sT1}
        s_add_u32 {sT0}, {sT0}, {PT}
        v_lshl_add_u32 v90, {vL}, 4, {sT0}
        v_lshlrev_b32 v93, 4, {vL}
        v_add_u32 v93, {PT}, v93
        v_lshlrev_b32 v94, 15, {vT}
        v_lshl_add_u32 v94, {vG}, 4, v94
        v_lshlrev_b32 v95, 8, {vT}
        s_lshl_b32 {sT0}, {sBA}, 5
        s_lshl_b32 {sT1}, {sHH}, 4
        s_add_u32 {sT0}, {sT0}, {sT1}          ; row0
        s_lshl_b32 {sR3}, {sT0}, 8
        s_lshl_b32 {sT1}, {sS}, 3
        s_add_u32 {sR3}, {sR3}, {sT1}
        s_add_u32 {sR3}, {sR3}, {WS_FL}
        s_lshl_b32 {sR2}, {sT0}, 5
        s_add_u32 {sR2}, {sR2}, {sS}
        s_lshl_b32 {sR2}, {sR2}, 10
        s_lshl_b32 {sT1}, {sW}, 7
        s_add_u32 {sR2}, {sR2}, {sT1}
        s_add_u32 {sR2}, {sR2}, {WS_D}
        s_lshl_b32 {sT4}, {sBA}, 16
        s_lshl_b32 {sT1}, {sHH}, 15
        s_add_u32 {sT4}, {sT4}, {sT1}
        s_add_u32 {sT4}, {sT4}, {WS_Q}
        s_add_u32 {sT5}, {sT4}, 8192
        s_add_u32 {sT6}, {sT4}, 16384
        s_add_u32 {sT7}, {sT4}, 24576
        ''')
    def wuv_prep(self):
        a = self.a
        self.srd(SB, P_WUV, 4 << 20)
        a(f'''
        v_lshlrev_b32 v96, 16, {vG}
        v_lshl_add_u32 v96, {vT}, 4, v96
        s_lshl_b32 {sU0}, {sW}, 19
        s_lshl_b32 {sU1}, {sR1}, 8
        s_add_u32 {sU0}, {sU0}, {sU1}
        ''')
    def touch_uv(self):
        a = self.a; done = a.label('tuv')
        self.srd(SC, P_WUV, 4 << 20)
        a(f"""
        v_lshrrev_b32 v97, 1, {vL}
        v_lshlrev_b32 v97, 13, v97
        v_and_b32 v99, 1, {vL}
        v_lshl_add_u32 v97, v99, 7, v97
        s_cmp_ge_u32 {sW}, 4
        s_cbranch_scc1 {done}
        s_lshl_b32 {sT0}, {sR1}, 8
        s_lshl_b32 {sT1}, {sR0}, 20
        s_add_u32 {sT0}, {sT0}, {sT1}
        s_lshl_b32 {sT1}, {sW}, 18
        s_add_u32 {sT0}, {sT0}, {sT1}
        buffer_load_dword v98, v97, {SC}, {sT0} offen
        {done}:
        """)
    def touch_o_prep(self):
        a = self.a
        self.srd(SC, P_WO, 4 << 20)
        a(f"""
        v_lshlrev_b32 v97, 7, {vL}
        s_lshl_b32 {sU0}, {sR1}, 17
        s_lshl_b32 {sU1}, {sR0}, 15
        s_add_u32 {sU0}, {sU0}, {sU1}
        s_lshl_b32 {sU1}, {sW}, 13
        s_add_u32 {sU0}, {sU0}, {sU1}
        """)
    def touch_o(self):
        a = self.a; done = a.label('to')
        a(f's_cmp_ge_u32 {sI}, 16\ns_cbranch_scc1 {done}\ns_cmp_ge_u32 {sW}, 4\ns_cbranch_scc1 {done}')
        a(f'buffer_load_dword v98, v97, {SC}, {sU0} offen\n{done}:')
    def attention(self):
        a = self.a
        a('; ================= attention')
        if self.cfg.get('ctrig2'):
            sq = a.label('qnotrig')
            a(f's_cmp_lt_u32 {sI}, 16\ns_cbranch_scc1 {sq}')
            l = self.poll_begin()
            a(f'buffer_load_dwordx4 v[188:191], v84, {WS}, {sT7} offen sc1\ns_waitcnt vmcnt(0)')
            self.tagchk('v192', ['v189', 'v191'])
            self.poll_end(l, 2, self.cfg['sleepC'], 'v192')
            self.ts('p_ctrig')
            a(f'{sq}:')
        elif self.cfg.get('ctrig', True):
            sk = a.label('notrig'); sq = a.label('qnotrig')
            a(f's_cmp_lt_u32 {sI}, 16\ns_cbranch_scc1 {sq}')
            a(f's_cmp_lg_u32 {sW}, 0\ns_cbranch_scc1 {sk}')
            if self.cfg.get('ptrig', True):
                self.poll_trig('v85', sT4, 176, 2, 'v192')
            else:
                l = self.poll_begin()
                a(f'buffer_load_dwordx2 v[176:177], v85, {WS}, {sT4} offen sc1\ns_waitcnt vmcnt(0)')
                self.tagchk('v192', ['v177'])
                self.poll_end(l, 2, self.cfg['sleepC'], 'v192')
            a(f'{sk}:\ns_barrier')
            self.ts('p_ctrig')
            a(f'{sq}:')
        l = self.poll_begin()
        for n, so in enumerate((sT4, sT5, sT6, sT7)):
            a(f'buffer_load_dwordx4 {vr(176+4*n,4)}, v84, {WS}, {so} offen sc1')
        a('s_waitcnt vmcnt(4)')
        for st in range(16): a(f'ds_read_b128 {vr(16+4*st,4)}, v{244+(st&3)} offset:{(st>>2)*256}')
        a('s_waitcnt vmcnt(0)')
        self.tagchk('v192', [f'v{176+4*n+o}' for n in range(4) for o in (1, 3)])
        self.poll_end(l, 3, self.cfg['sleepC2'], 'v192')
        self.ts('c_got')
        for n in range(4):
            a(f'v_mov_b32 v{177+4*n}, v{178+4*n}')
            a(f'ds_write_b64 v{86 + (n & 1)}, {vr(176+4*n,2)} offset:{n*4096}')
        self.wuv_at('c')
        a('s_waitcnt lgkmcnt(0)\ns_barrier')
        self.ts('b1')
        NB = 8
        for st in range(NB): a(f'ds_read_b128 {vr(196+4*st,4)}, v{248+(st&3)} offset:{(st>>2)*256}')
        if self.cfg.get('pfQo', True): self.touch_o()
        for st in range(16):
            a(f's_waitcnt lgkmcnt({min(16, st+NB) - st - 1})')
            self.mfma(192, 16+4*st, 196+4*(st % NB), st == 0)
            if st + NB < 16:
                s2 = st + NB
                a(f'ds_read_b128 {vr(196+4*(s2%NB),4)}, v{248+(s2&3)} offset:{(s2>>2)*256}')
        self.ts('a_sdone')
        def pva(ks):
            for pp in range(2):
                for T in range(2):
                    d = 16 + 4 * ((ks * 2 + pp) * 2 + T)
                    base = (80 if ks < 2 else 100) + 2*pp + T
                    for hi in range(2):
                        a(f'ds_read_b64_tr_b16 {vr(d+2*hi,2)}, v{base} offset:{(ks & 1)*32768 + hi*16384}')
        early = self.cfg['pvaearly']
        if early: pva(0); pva(1)
        self.wuv_at('s')
        a('v_max_f32 v228, v192, v193\nv_max3_f32 v228, v228, v194, v195')
        self.crossrow(['v228'], ['v229'], 'v_max_f32')
        a('ds_write_b32 v88, v228')
        if early:
            pva(2); pva(3)
            a('s_waitcnt lgkmcnt(15)')
        else:
            a('s_waitcnt lgkmcnt(0)')
        self.ts('a_preb2')
        a('s_barrier')
        self.ts('a_b2')
        a('ds_read_b128 v[236:239], v89\nds_read_b128 v[232:235], v89 offset:16')
        self.wuv_at('b')
        if not early: pva(0)
        a(f's_waitcnt lgkmcnt({0 if early else 8})')
        a("""
        v_max3_f32 v236, v236, v237, v238
        v_max3_f32 v232, v232, v233, v234
        v_max3_f32 v228, v236, v239, v232
        v_max_f32 v228, v228, v235
        v_sub_f32 v192, v192, v228
        v_sub_f32 v193, v193, v228
        v_sub_f32 v194, v194, v228
        v_sub_f32 v195, v195, v228
        v_exp_f32 v192, v192
        v_exp_f32 v193, v193
        v_exp_f32 v194, v194
        v_exp_f32 v195, v195
        s_nop 0
        v_cvt_pk_bf16_f32 v234, v192, v193
        v_cvt_pk_bf16_f32 v235, v194, v195
        ds_write_b64 v90, v[234:235]
        """)
        if not self.cfg['ones']:
            a('v_add_f32 v229, v192, v193\nv_add_f32 v230, v194, v195\nv_add_f32 v229, v229, v230')
            if not early: pva(1)
            self.crossrow(['v229'], ['v230'], 'v_add_f32')
            a('ds_write_b32 v91, v229')
            if not early: pva(2); pva(3)
        elif not early: pva(1); pva(2); pva(3)
        self.wuv_at('p')
        self.ts('a_pvaiss')
        a('s_waitcnt lgkmcnt(0)')
        self.ts('a_preb3')
        a('s_barrier')
        self.ts('b3')
        for ks in range(4): a(f'ds_read_b128 {vr(196+4*ks,4)}, v93 offset:{ks*1024}')
        if not self.cfg['ones']: a('ds_read_b128 v[236:239], v92\nds_read_b128 v[240:243], v92 offset:16')
        for ks in range(4):
            a(f's_waitcnt lgkmcnt({3-ks + (0 if self.cfg["ones"] else 2)})')
            if self.cfg['ones']: self.mfma(236, 240, 196+4*ks, ks == 0)
            for pp in range(2):
                for T in range(2): self.mfma(212+4*(pp*2+T), 16+4*((ks*2+pp)*2+T), 196+4*ks, ks == 0)
        self.ts('a_pvdone')
        if not self.cfg['ones']:
            a('s_waitcnt lgkmcnt(0)')
            self.tree_add([f'v{236+k}' for k in range(8)])
        a(f"""
        v_rcp_f32 v232, v236
        v_log_f32 v238, v236
        v_mov_b32 v239, {sTAG}
        v_add_f32 v238, v228, v238
        """)
        for pp in range(2):
            b = 212 + 8*pp
            if self.cfg['pkmul']:
                for k in range(4): a(f'v_pk_mul_f32 {vr(b+2*k,2)}, {vr(b+2*k,2)}, v[232:233] op_sel_hi:[1,0]')
            else:
                for k in range(8): a(f'v_mul_f32 v{b+k}, v232, v{b+k}')
            for k in range(4): a(f'v_cvt_pk_bf16_f32 v{196+4*pp+k}, v{b+2*k}, v{b+2*k+1}')
            off = ' offset:64' if pp else ''
            a(f'buffer_store_dwordx4 {vr(196+4*pp,4)}, v94, {WS}, {sR2} offen{off} sc1')
        self.ts('d_st')
    def d_flag(self):
        a = self.a; sk = a.label('nofl')
        a(f'''
        s_barrier
        s_cmp_lg_u32 {sW}, 0
        s_cbranch_scc1 {sk}
        s_mov_b64 exec, 0xffff
        buffer_store_dwordx2 v[238:239], v95, {WS}, {sR3} offen sc1
        s_mov_b64 exec, -1
        {sk}:
        ''')
        self.ts('d_flag')
    def loader(self, srd, vo, kind, steps=(0, 1, 2, 3)):
        a = self.a
        a(f's_sub_u32 {sU0}, {sW}, 4')
        for st in steps:
            a(f"""
            s_add_u32 {sT0}, {sR0}, {st}
            s_and_b32 {sT0}, {sT0}, 3
            s_lshl_b32 {sT0}, {sT0}, 1
            s_lshr_b32 {sT1}, {sU0}, 1
            s_add_u32 {sT0}, {sT0}, {sT1}          ; region
            s_and_b32 {sT1}, {sU0}, 1
            s_lshl_b32 {sT1}, {sT1}, 3             ; n0
            s_lshl_b32 {sT4}, {sT0}, 14
            s_lshl_b32 {sT2}, {sT1}, 10
            s_add_u32 {sT4}, {sT4}, {sT2}          ; m0
            s_add_u32 {sT5}, {sT4}, 4096
            """)
            if kind == 'uv':
                a(f"""
                s_lshl_b32 {sT2}, {sT0}, 19
                s_lshl_b32 {sT3}, {sT1}, 15
                s_add_u32 {sT2}, {sT2}, {sT3}
                s_lshl_b32 {sT3}, {sR1}, 8
                s_add_u32 {sT2}, {sT2}, {sT3}
                s_add_u32 {sT3}, {sT2}, {4 << 15}
                """)
            else:
                a(f"""
                s_lshl_b32 {sT2}, {sT0}, 7
                s_lshl_b32 {sT3}, {sT1}, 13
                s_add_u32 {sT2}, {sT2}, {sT3}
                s_lshl_b32 {sT3}, {sR1}, 17
                s_add_u32 {sT2}, {sT2}, {sT3}
                s_add_u32 {sT3}, {sT2}, {4 << 13}
                """)
            self.dma_groups(srd, vo, [sT2, sT3], [sT4, sT5], self.nt())
    def perm_unit(self, src, dst):
        a = self.a
        for q in range(4):
            for p in range(4):
                X = src + 8*q + p; Y = src + 8*q + 4 + p
                a(f'v_perm_b32 v{dst+8*p+q}, v{Y}, v{X}, {sPLO}')
                a(f'v_perm_b32 v{dst+8*p+4+q}, v{Y}, v{X}, {sPHI}')
    def p_post(self):
        a = self.a
        a('; ================= P post')
        a('s_barrier')
        ng = self.wuv_at('x', False)
        self.srd(SA, P_WO, 4 << 20)
        vo = self.voff128(6, 1024)
        a(f"""
        s_lshl_b32 s98, {sR1}, 17
        s_lshl_b32 s99, {sW}, 7
        s_add_u32 s98, s98, s99
        """)
        self.rot_groups(4, sR0, 's98', 15, sWB, [sT0, sT1, sT2, sT3], [sT4, sT5, sT6, sT7])
        wf = self.cfg.get('wofirst', 0)
        SR = [sT0, sT1, sT2, sT3]; MR = [sT4, sT5, sT6, sT7]
        if wf: self.dma_groups(SA, vo, SR[:wf], MR[:wf], self.nt())
        a(f's_waitcnt vmcnt({4*ng + 4*wf})')
        self.d_flag()
        ny = self.wuv_at('y', False)
        if wf < 4: self.dma_groups(SA, vo, SR[wf:], MR[wf:], self.nt())
        self.ts('p_ldiss')
        ad = self.tr128_addr(220, sWB)
        a(f"""
        s_lshl_b32 {sT0}, {sR0}, 5
        s_add_u32 {sT0}, {sT0}, {sR1}
        s_lshl_b32 {sT1}, {sT0}, 8
        s_add_u32 {sT1}, {sT1}, {WS_FL}
        s_lshl_b32 {sT2}, {sT0}, 15
        s_lshl_b32 {sT3}, {sW}, 12
        s_add_u32 {sT2}, {sT2}, {sT3}
        s_add_u32 {sT2}, {sT2}, {WS_D}
        s_lshl_b32 {sR2}, {sT0}, 11
        s_lshl_b32 {sT5}, {sW}, 8
        s_add_u32 {sR2}, {sR2}, {sT5}
        s_add_u32 {sR2}, {sR2}, {WS_E}         ; E soff
        v_and_b32 v5, 31, {vL}
        v_lshlrev_b32 v5, 3, v5
        v_lshlrev_b32 v6, 4, {vL}
        s_lshl_b32 {sT0}, {sW}, 11
        s_add_u32 {sT0}, {sT0}, {RED}
        v_lshrrev_b32 v7, 1, {vL}
        v_and_b32 v7, 1, v7
        v_lshlrev_b32 v7, 4, v7
        v_lshl_add_u32 v7, {vL}, 5, v7
        v_add_u32 v7, {sT0}, v7
        v_xor_b32 v8, 16, v7
        s_lshl_b32 {sT0}, {sW}, 3
        s_add_u32 {sT0}, {sT0}, {MX}
        v_mov_b32 v9, {sT0}
        v_lshlrev_b32 v10, 2, v0
        v_add_u32 v10, {RED}, v10
        v_and_b32 v11, 7, {vL}
        v_lshlrev_b32 v11, 3, v11
        v_add_u32 v11, {MX}, v11
        v_lshlrev_b32 v12, 1, v0
        v_add_u32 v12, {OB}, v12
        s_lshl_b32 {sT0}, {sW}, 7
        s_add_u32 {sT0}, {sT0}, {OB}
        v_lshl_add_u32 v13, {vG}, 4, {sT0}
        s_lshl_b32 {sT0}, {sW}, 9
        s_add_u32 {sT0}, {sT0}, {RED2}
        v_lshlrev_b32 v14, 5, {vT}
        v_lshl_add_u32 v14, {vG}, 3, v14
        v_add_u32 v14, {sT0}, v14
        v_lshlrev_b32 v15, 3, {vL}
        v_add_u32 v15, {RED2}, v15
        v_lshlrev_b32 v232, 6, {vG}
        v_lshrrev_b32 v233, 1, {vL}
        v_and_b32 v233, 3, v233
        v_lshl_add_u32 v232, v233, 4, v232
        v_lshrrev_b32 v233, 3, {vL}
        v_and_b32 v233, 1, v233
        v_lshl_add_u32 v232, v233, 3, v232
        v_and_b32 v233, 1, {vL}
        v_lshl_add_u32 v232, v233, 2, v232
        s_lshl_b32 {sT0}, {sW}, 8
        s_add_u32 {sT0}, {sT0}, {WL}
        v_add_u32 v232, {sT0}, v232
        v_lshl_add_u32 v233, {vG}, 4, {sT0}
        v_lshlrev_b32 v234, 6, {vT}
        v_lshl_add_u32 v234, {vG}, 4, v234     ; E voff
        v_mov_b32 v229, {sTAG}
        v_mov_b32 v231, {sTAG}
        """)
        mg = self.masks_g()
        a(f's_waitcnt vmcnt({4*(4-wf)})')
        self.perm_unit(112, 80)
        self.perm_unit(144, 112)
        if self.cfg.get('dcomb2', True):
            a(f"""
            v_and_b32 v5, 7, {vT}
            v_lshlrev_b32 v5, 5, v5
            v_lshl_add_u32 v5, {vG}, 3, v5
            v_lshlrev_b32 v6, 3, {vT}
            v_lshl_add_u32 v6, {vG}, 10, v6
            s_lshl_b32 {sT0}, {sR0}, 5
            s_add_u32 {sT0}, {sT0}, {sR1}
            s_lshl_b32 {sT2}, {sT0}, 15
            s_lshl_b32 {sT3}, {sW}, 7
            s_add_u32 {sT2}, {sT2}, {sT3}
            s_add_u32 {sT2}, {sT2}, {WS_D}
            v_lshrrev_b32 v12, 2, {vT}
            v_xor_b32 v12, v12, {vT}
            v_and_b32 v12, 1, v12
            v_lshlrev_b32 v12, 3, v12
            v_lshrrev_b32 v7, 1, {vT}
            v_lshl_add_u32 v12, v7, 4, v12
            s_add_u32 {sT3}, {sT3}, {OB}
            v_add_u32 v12, {sT3}, v12
            """)
            l = self.poll_begin()
            a(f'buffer_load_dwordx2 v[176:177], v5, {WS}, {sT1} offen sc1\ns_waitcnt vmcnt(0)')
            self.tagchk('v178', ['v177'])
            self.poll_end(l, 4, self.cfg['sleepD'], 'v178')
            self.ts('dfl_got')
            for j in range(8):
                a(f'buffer_load_dwordx2 {vr(180+2*j,2)}, v6, {WS}, {sT2} offen sc1')
                if j < 7: a(f's_add_u32 {sT2}, {sT2}, 4096')
            self.tr_reads(ad, range(4), 128, 16)
            oct3 = ('quad_perm:[1,0,3,2]', 'quad_perm:[2,3,0,1]', 'row_half_mirror')
            a('v_mov_b32 v178, v176')
            for d in oct3: a(f'v_max_f32_dpp v178, v178, v178 {d} row_mask:0xf bank_mask:0xf')
            self.crossrow(['v178'], ['v179'], 'v_max_f32')
            a("""
            v_sub_f32 v176, v176, v178
            v_exp_f32 v176, v176
            s_nop 0
            v_cvt_pk_bf16_f32 v177, v176, v176
            v_and_b32 v176, 0xffff0000, v177
            v_and_b32 v177, 0xffff, v177
            v_mov_b32 v178, v176
            """)
            for d in oct3: a(f'v_add_f32_dpp v178, v178, v178 {d} row_mask:0xf bank_mask:0xf')
            self.crossrow(['v178'], ['v179'], 'v_add_f32')
            a('v_rcp_f32 v203, v178')
            for j in range(8):
                a(f'v_mov_b32_dpp v{212+2*j}, v177 row_newbcast:{j} row_mask:0xf bank_mask:0xf')
                a(f'v_mov_b32_dpp v{213+2*j}, v176 row_newbcast:{j} row_mask:0xf bank_mask:0xf')
            for j in range(8):
                a(f's_waitcnt vmcnt({7-j})')
                for e, (src, wv) in enumerate(((180+2*j, 212+2*j), (180+2*j, 213+2*j), (181+2*j, 212+2*j), (181+2*j, 213+2*j))):
                    a(f'v_dot2_f32_bf16 v{204+e}, v{src}, v{wv}, {"0" if j == 0 else f"v{204+e}"}')
            self.ts('d_got')
            self.crossrow([f'v{204+e}' for e in range(4)], [f'v{208+e}' for e in range(4)], 'v_add_f32')
            for e in range(4): a(f'v_mul_f32 v{204+e}, v{204+e}, v203')
            a('v_cvt_pk_bf16_f32 v204, v204, v205\nv_cvt_pk_bf16_f32 v205, v206, v207\nds_write_b64 v12, v[204:205]')
            a("""
            s_waitcnt lgkmcnt(0)
        ds_read_b128 v[176:179], v13
        ds_read_b128 v[180:183], v13 offset:64
        """)
        self.ts('p_o')
        for k in range(2):
            a(f's_waitcnt lgkmcnt({1-k})')
            for u in range(8): self.mfma(184+4*u, 176+4*k, 80+32*k+4*u, k == 0)
        self.sel4('v216', [f'v{184+4*u}' for u in (0, 2, 4, 6)], mg)
        self.sel4('v217', [f'v{184+4*u}' for u in (1, 3, 5, 7)], mg)
        self.ts('p_uv')
        a('ds_write_b64 v14, v[216:217]\ns_waitcnt lgkmcnt(0)\ns_barrier')
        self.ts('p_b2')
        for ww in range(8): a(f'ds_read_b64 {vr(176+2*ww,2)}, v15 offset:{ww*512}')
        mt = self.masks_t()
        a('s_waitcnt lgkmcnt(0)')
        self.tree_add([f'v{176+2*k}' for k in range(8)])
        self.tree_add([f'v{177+2*k}' for k in range(8)])
        a('v_cvt_pk_bf16_f32 v176, v176, v177\nds_write_b32 v232, v176\ns_waitcnt lgkmcnt(0)')
        for ks in range(4): a(f'ds_read_b128 {vr(180+4*ks,4)}, v233 offset:{ks*64}')
        for ks in range(4):
            a(f's_waitcnt lgkmcnt({3-ks})')
            for ct in range(4): self.mfma(196+4*ct, 16+4*(ks*4+ct), 180+4*ks, ks == 0)
        self.ts('p_omf')
        for r in range(4): self.sel4(f'v{212+r}', [f'v{196+4*ct+r}' for ct in range(4)], mt)
        a(f"""
        v_cvt_pk_bf16_f32 v228, v212, v213
        v_cvt_pk_bf16_f32 v230, v214, v215
        s_mov_b64 exec, {mT4}
        buffer_store_dwordx4 v[228:231], v234, {WS}, {sR2} offen sc1
        s_mov_b64 exec, -1
        """)
        self.ts('e_pub')
    def ffn(self):
        a = self.a
        a('s_waitcnt vmcnt(0)')
        self.d_flag()
        self.srd(SA, P_W1, 512 * 2752)
        vo = self.voff128(6, 2752)
        a(f'''
        s_mul_i32 {sU0}, {sW}, {64*2752}
        s_lshl_b32 {sT2}, {sR1}, 7
        s_add_u32 {sU0}, {sU0}, {sT2}
        s_add_u32 {sT0}, {sU0}, {32*2752}
        s_add_u32 {sT1}, {sWB}, 4096
        ''')
        self.dma_groups(SA, vo, [sU0, sT0], [sWB, sT1], self.nt())
        self.srd(SB, P_W2, 1376 * 1024)
        vo = self.voff128(10, 1024)
        a(f'''
        s_lshl_b32 {sU0}, {sR1}, 16
        s_lshl_b32 {sT2}, {sW}, 7
        s_add_u32 {sU0}, {sU0}, {sT2}
        s_add_u32 {sT0}, {sU0}, 32768
        s_add_u32 {sT1}, {sWB}, 8192
        s_add_u32 {sT2}, {sWB}, 12288
        ''')
        self.dma_groups(SB, vo, [sU0, sT0], [sT1, sT2], self.nt())
        self.srd(SC, P_X, 4096)
        a(f'''
        v_lshlrev_b32 v5, 3, {vT}
        s_lshl_b32 {sT0}, {sR0}, 10
        s_lshl_b32 {sT1}, {sW}, 7
        s_add_u32 {sT0}, {sT0}, {sT1}
        buffer_load_dwordx2 v[100:101], v5, {SC}, {sT0} offen
        v_lshlrev_b32 v5, 4, {vT}
        s_lshl_b32 {sT0}, {sR0}, 13
        s_lshl_b32 {sT1}, {sW}, 8
        s_add_u32 {sT0}, {sT0}, {sT1}
        s_add_u32 {sT0}, {sT0}, {WS_MR}
        s_add_u32 {sT1}, {sT0}, 4096
        ''')
        ad = self.tr128_addr(8, sWB)
        mt = self.masks_t()
        a(f'''
        s_lshl_b32 {sT4}, {sR0}, 16
        s_add_u32 {sT4}, {sT4}, {WS_E}
        s_lshl_b32 {sT3}, {sW}, 8
        s_add_u32 {sT5}, {sT4}, {sT3}
        s_add_u32 {sT6}, {sT5}, {7*8192}
        v_lshlrev_b32 v13, 4, {vT}
        v_lshl_add_u32 v13, {vG}, 11, v13
        s_lshl_b32 {sT2}, {sW}, 3
        s_add_u32 {sT2}, {sT2}, {MX}
        v_mov_b32 v220, {sT2}
        v_and_b32 v221, 7, {vL}
        v_lshlrev_b32 v221, 3, v221
        v_add_u32 v221, {MX}, v221
        v_lshrrev_b32 v222, 5, {vL}
        v_lshlrev_b32 v222, 6, v222
        v_lshrrev_b32 v223, 2, {vL}
        v_and_b32 v223, 3, v223
        v_lshl_add_u32 v222, v223, 4, v222
        v_and_b32 v223, 1, {vG}
        v_lshl_add_u32 v222, v223, 3, v222
        v_lshl_add_u32 v222, {vB4}, 1, v222
        v_lshrrev_b32 v219, 3, {vT}
        v_lshlrev_b32 v219, 6, v219
        v_lshl_add_u32 v219, {vB4}, 4, v219
        v_lshrrev_b32 v223, 2, {vT}
        v_and_b32 v223, 1, v223
        v_lshl_add_u32 v219, v223, 3, v219
        s_lshl_b32 {sT2}, {sW}, 8
        s_add_u32 {sT2}, {sT2}, {WL}
        v_add_u32 v222, {sT2}, v222
        v_add_u32 v219, {sT2}, v219
        v_lshl_add_u32 v223, {vG}, 4, {sT2}
        s_lshl_b32 {sT2}, {sW}, 8
        s_add_u32 {sT2}, {sT2}, {RED2}
        v_lshlrev_b32 v224, 6, {vT}
        v_lshl_add_u32 v224, {vG}, 4, v224
        v_add_u32 v224, {sT2}, v224
        v_lshlrev_b32 v225, 2, {vL}
        v_add_u32 v225, {RED2}, v225
        s_lshl_b32 {sT2}, {sR0}, 3
        s_add_u32 {sT2}, {sT2}, {sW}
        s_mul_i32 {sT2}, {sT2}, {24*256}
        s_lshl_b32 {sT3}, {sR1}, 8
        s_add_u32 {sT2}, {sT2}, {sT3}
        s_add_u32 {sT7}, {sT2}, {WS_F}         ; F soff
        v_lshlrev_b32 v226, 6, {vT}
        v_lshl_add_u32 v226, {vG}, 4, v226     ; F voff
        s_lshl_b32 {sT2}, {sR1}, 6
        v_add_u32 v227, {sT2}, {vL}
        s_movk_i32 {sT3}, 1376
        v_cmp_gt_u32 s[62:63], {sT3}, v227
        v_mov_b32 v141, {sTAG}
        v_mov_b32 v143, {sTAG}
        ''')
        a('s_waitcnt vmcnt(0)')
        self.tr_reads(ad, range(2), 128, 16)
        self.tr_reads(ad, range(2), 128, 48, 8192)
        l = self.poll_begin()
        a(f'''
        buffer_load_dwordx4 v[84:87], v5, {WS}, {sT0} offen sc1
        buffer_load_dwordx4 v[88:91], v5, {WS}, {sT0} offen offset:2048 sc1
        buffer_load_dwordx4 v[92:95], v5, {WS}, {sT1} offen sc1
        s_waitcnt vmcnt(0)
        ''')
        self.tagchk('v208', ['v85', 'v87', 'v89', 'v91', 'v93', 'v95'])
        self.poll_end(l, 5, self.cfg['sleepM'], 'v208')
        a('v_lshlrev_b32 v96, 16, v100\nv_and_b32 v97, 0xffff0000, v100\nv_lshlrev_b32 v98, 16, v101\nv_and_b32 v99, 0xffff0000, v101')
        for src, dst in ((84, 100), (88, 104), (92, 108)):
            a(f'v_lshlrev_b32 v{dst}, 16, v{src}\nv_and_b32 v{dst+1}, 0xffff0000, v{src}\nv_lshlrev_b32 v{dst+2}, 16, v{src+2}\nv_and_b32 v{dst+3}, 0xffff0000, v{src+2}')
        a(f's_mov_b32 {sT0}, 0x00003f80\ns_mov_b32 {sT1}, 0x3f800000')
        l = self.poll_begin()
        a(f'buffer_load_dwordx4 v[204:207], v13, {WS}, {sT6} offen sc1\ns_waitcnt vmcnt(0)')
        self.tagchk('v208', ['v205', 'v207'])
        self.poll_end(l, 6, self.cfg['sleepE'], 'v208')
        self.ts('e_trig')
        l = self.poll_begin()
        a(f's_mov_b32 {sT2}, {sT5}')
        for k in range(8):
            a(f'buffer_load_dwordx4 {vr(176+4*k,4)}, v13, {WS}, {sT2} offen sc1')
            if k < 7: a(f's_add_u32 {sT2}, {sT2}, 8192')
        for k in range(8):
            a(f's_waitcnt vmcnt({7-k})')
            b = 176 + 4*k
            for j, (src, sel) in enumerate(((b, sT0), (b, sT1), (b+2, sT0), (b+2, sT1))):
                a(f'v_dot2_f32_bf16 v{112+j}, v{src}, {sel}, {"0" if k == 0 else f"v{112+j}"}')
            if k == 0: a(f'v_xor_b32 v208, {sTAG}, v{b+1}\nv_bitop3_b32 v208, v208, v{b+3}, {sTAG} bitop3:0xf6')
            else:
                for o in (1, 3): a(f'v_bitop3_b32 v208, v208, v{b+o}, {sTAG} bitop3:0xf6')
        self.poll_end(l, 7, 1, 'v208')
        self.ts('e_got')
        self.crossrow([f'v{112+j}' for j in range(4)], [f'v{116+j}' for j in range(4)], 'v_add_f32')
        for j in range(4): a(f'v_fmac_f32 v{96+j}, v{100+j}, v{112+j}')
        a('''
        v_add_f32 v120, v96, v97
        v_add_f32 v122, v98, v99
        v_mul_f32 v121, v96, v96
        v_fmac_f32 v121, v97, v97
        v_fmac_f32 v121, v98, v98
        v_fmac_f32 v121, v99, v99
        v_add_f32 v120, v120, v122
        ''')
        for n in (8, 4, 2, 1):
            for r in (120, 121): a(f'v_add_f32_dpp v{r}, v{r}, v{r} row_ror:{n} row_mask:0xf bank_mask:0xf')
        a('ds_write_b64 v220, v[120:121]\ns_waitcnt lgkmcnt(0)\ns_barrier')
        self.ts('f_b2')
        a('ds_read_b64 v[112:113], v221\ns_waitcnt lgkmcnt(0)')
        for d in ('quad_perm:[1,0,3,2]', 'quad_perm:[2,3,0,1]', 'row_half_mirror'):
            for r in (112, 113): a(f'v_add_f32_dpp v{r}, v{r}, v{r} {d} row_mask:0xf bank_mask:0xf')
        a(f'''
        v_mul_f32 v112, {fhex(1/512)}, v112
        v_mul_f32 v113, {fhex(1/512)}, v113
        v_fma_f32 v113, -v112, v112, v113
        v_max_f32 v113, 0, v113
        v_add_f32 v113, {fhex(1e-5)}, v113
        v_rsq_f32 v113, v113
        ''')
        for j in range(4): a(f'v_sub_f32 v{96+j}, v{96+j}, v112')
        for j in range(4): a(f'v_mul_f32 v{96+j}, v{96+j}, v113')
        for j in range(4): a(f'v_add_f32 v{104+j}, v{104+j}, v{96+j}')
        for j in range(4): a(f'v_fmac_f32 v{104+j}, v{96+j}, v{108+j}')
        a(f'''
        v_cvt_pk_bf16_f32 v104, v104, v105
        v_cvt_pk_bf16_f32 v105, v106, v107
        ds_write_b64 v219, v[104:105]
        s_waitcnt lgkmcnt(0)
        ds_read_b128 v[112:115], v223
        ds_read_b128 v[116:119], v223 offset:64
        ''')
        for ks in range(2):
            a(f's_waitcnt lgkmcnt({1-ks})')
            for ct in range(4): self.mfma(120+4*ct, 16+4*(ks*4+ct), 112+4*ks, ks == 0)
        for r in range(4): self.sel4(f'v{136+r}', [f'v{120+4*ct+r}' for ct in range(4)], mt)
        a(f'''
        s_mov_b64 exec, {mT4}
        ds_write_b128 v224, v[136:139]
        s_mov_b64 exec, -1
        s_waitcnt lgkmcnt(0)
        s_barrier
        ''')
        self.ts('f_b3')
        for ww in range(8): a(f'ds_read_b32 v{112+ww}, v225 offset:{ww*256}')
        a('s_waitcnt lgkmcnt(0)')
        self.tree_add([f'v{112+k}' for k in range(8)])
        a('''
        v_max_f32 v112, 0, v112
        v_cndmask_b32 v112, 0, v112, s[62:63]
        v_cvt_pk_bf16_f32 v112, v112, v112
        ds_write_b16 v222, v112 offset:128
        s_waitcnt lgkmcnt(0)
        ds_read_b128 v[112:115], v223 offset:128
        ds_read_b128 v[116:119], v223 offset:192
        ''')
        for ks in range(2):
            a(f's_waitcnt lgkmcnt({1-ks})')
            for ct in range(4): self.mfma(120+4*ct, 48+4*(ks*4+ct), 112+4*ks, ks == 0)
        for r in range(4): self.sel4(f'v{136+r}', [f'v{120+4*ct+r}' for ct in range(4)], mt)
        a(f'''
        v_cvt_pk_bf16_f32 v140, v136, v137
        v_cvt_pk_bf16_f32 v142, v138, v139
        s_mov_b64 exec, {mT4}
        buffer_store_dwordx4 v[140:143], v226, {WS}, {sT7} offen sc1
        s_mov_b64 exec, -1
        ''')
        self.ts('f_pub')
    def final(self):
        a = self.a
        a('s_waitcnt vmcnt(0)')
        self.d_flag()
        a(f's_lshl_b32 {sR1}, {sX}, 2\ns_add_u32 {sR1}, {sR1}, {sR0}')
        self.silu_addr()
        self.srd(SB, P_C, 4096)
        a(f'buffer_load_dwordx2 v[18:19], v16, {SB}, 0 offen')
        self.srd(SA, P_WMOD, 512 * 6144)
        vo = self.voff128(6, 6144)
        a(f'''
        s_mul_i32 {sU0}, {sW}, {64*6144}
        s_lshl_b32 {sT2}, {sR1}, 7
        s_add_u32 {sU0}, {sU0}, {sT2}
        s_add_u32 {sU0}, {sU0}, 2048
        s_add_u32 {sT0}, {sU0}, {32*6144}
        s_add_u32 {sT1}, {sWB}, 4096
        ''')
        self.dma_groups(SA, vo, [sU0, sT0], [sWB, sT1], self.nt())
        self.sv_frag_addr('v12')
        ad = self.tr128_addr(8, sWB)
        a('s_waitcnt vmcnt(8)')
        self.silu_calc()
        a('s_waitcnt lgkmcnt(0)\ns_barrier')
        a('ds_read_b128 v[112:115], v12\nds_read_b128 v[116:119], v12 offset:64\ns_waitcnt vmcnt(0)')
        self.tr_reads(ad, range(2), 128, 24)
        a('s_waitcnt lgkmcnt(0)')
        for ks in range(2):
            for ct in range(4): self.mfma(120+4*ct, 24+4*(ks*4+ct), 112+4*ks, ks == 0)
        a(f'''
        s_lshl_b32 {sT0}, {sW}, 10
        s_add_u32 {sT0}, {sT0}, {RED}
        v_lshlrev_b32 v5, 6, {vG}
        v_lshl_add_u32 v5, {vT}, 4, v5
        v_add_u32 v5, {sT0}, v5
        s_mov_b64 exec, {mT4}
        ''')
        for ct in range(4): a(f'ds_write_b128 v5, {vr(120+4*ct,4)} offset:{ct*256}')
        a('s_mov_b64 exec, -1\ns_waitcnt lgkmcnt(0)\ns_barrier')
        sk = a.label('mrskip')
        a(f's_cmp_ge_u32 {sW}, 2\ns_cbranch_scc1 {sk}')
        a(f'v_lshlrev_b32 v5, 3, v0\nv_add_u32 v5, {RED}, v5')
        for ww in range(8): a(f'ds_read_b64 {vr(112+2*ww,2)}, v5 offset:{ww*1024}')
        a(f'''
        v_lshrrev_b32 v6, 1, v0
        v_and_b32 v6, 3, v6
        v_lshlrev_b32 v6, 13, v6
        v_lshrrev_b32 v7, 3, v0
        v_lshl_add_u32 v6, v7, 4, v6
        v_and_b32 v7, 1, v0
        v_lshl_add_u32 v6, v7, 3, v6
        s_lshl_b32 {sT0}, {sR1}, 8
        s_add_u32 {sT0}, {sT0}, {WS_MR}
        s_waitcnt lgkmcnt(0)
        ''')
        self.tree_add([f'v{112+2*k}' for k in range(8)])
        self.tree_add([f'v{113+2*k}' for k in range(8)])
        a(f'''
        v_cvt_pk_bf16_f32 v112, v112, v113
        v_mov_b32 v113, {sTAG}
        buffer_store_dwordx2 v[112:113], v6, {WS}, {sT0} offen sc1
        {sk}:
        ''')
        self.ts('mr_pub')
        a(f's_cmp_lg_u32 {sW}, 0\ns_cbranch_scc1 L_exit')
        self.srd(SC, P_X, 4096)
        self.srd(SA, P_OUT, 4096)
        a(f"""
        v_lshlrev_b32 v6, 3, {vT}
        s_lshl_b32 {sT0}, {sR0}, 10
        s_lshl_b32 {sT1}, {sX}, 7
        s_add_u32 {sR2}, {sT0}, {sT1}
        buffer_load_dwordx2 v[100:101], v6, {SC}, {sR2} offen
        v_lshlrev_b32 v7, 4, {vT}              ; 2 granules
        s_lshl_b32 {sT0}, {sR0}, 13
        s_lshl_b32 {sT1}, {sX}, 8
        s_add_u32 {sU0}, {sT0}, {sT1}
        s_add_u32 {sU0}, {sU0}, {WS_MR}        ; ga
        s_add_u32 {sU1}, {sU0}, {3*2048}       ; gb
        v_lshl_add_u32 v9, {vG}, 11, v7
        s_lshl_b32 {sT7}, {sR0}, 16
        s_add_u32 {sT7}, {sT7}, {WS_E}
        s_add_u32 {sT0}, {sT7}, {sT1}
        v_lshl_add_u32 v11, {vG}, 8, v7
        v_and_b32 v12, 31, {vL}
        v_lshlrev_b32 v12, 11, v12
        v_add_u32 v12, 2040, v12
        s_lshl_b32 {sT4}, {sR0}, 3
        s_add_u32 {sT4}, {sT4}, {sX}
        s_mul_i32 {sT4}, {sT4}, {24*256}
        s_add_u32 {sT4}, {sT4}, {WS_F}
        s_add_u32 {sT5}, {sT4}, 4096
        s_mov_b32 s98, 0x00003f80
        s_mov_b32 s99, 0x3f800000
        v_cmp_gt_u32 s[100:101], 2, {vG}
        """)
        l = self.poll_begin()
        a(f'buffer_load_dwordx2 v[112:113], v12, {WS}, {sT7} offen sc1\ns_waitcnt vmcnt(0)')
        self.tagchk('v10', ['v113'])
        self.poll_end(l, 12, self.cfg['sleepE'] + 2, 'v10')
        l = self.poll_begin()
        a(f"""
        buffer_load_dwordx4 v[104:107], v7, {WS}, {sU0} offen sc1
        buffer_load_dwordx4 v[108:111], v7, {WS}, {sU1} offen sc1
        s_mov_b32 {sT1}, {sT0}
        """)
        for k in range(8):
            a(f'buffer_load_dwordx4 {vr(112+4*k,4)}, v9, {WS}, {sT1} offen sc1')
            if k < 7: a(f's_add_u32 {sT1}, {sT1}, 8192')
        a('s_waitcnt vmcnt(0)')
        self.tagchk('v10', ['v105', 'v107', 'v109', 'v111'] + [f'v{112+4*k+o}' for k in range(8) for o in (1, 3)])
        self.poll_end(l, 9, 2, 'v10')
        self.ts('fe_got')
        def acc4(dst, srcs):
            for k, b in enumerate(srcs):
                for j, (src, sel) in enumerate(((b, 's98'), (b, 's99'), (b+2, 's98'), (b+2, 's99'))):
                    a(f'v_dot2_f32_bf16 v{dst+j}, v{src}, {sel}, {"0" if k == 0 else f"v{dst+j}"}')
        acc4(144, [112+4*k for k in range(8)])
        self.crossrow([f'v{144+j}' for j in range(4)], [f'v{148+j}' for j in range(4)], 'v_add_f32')
        a("""
        v_lshlrev_b32 v152, 16, v100
        v_and_b32 v153, 0xffff0000, v100
        v_lshlrev_b32 v154, 16, v101
        v_and_b32 v155, 0xffff0000, v101
        v_lshlrev_b32 v156, 16, v104
        v_and_b32 v157, 0xffff0000, v104
        v_lshlrev_b32 v158, 16, v106
        v_and_b32 v159, 0xffff0000, v106
        v_fmac_f32 v152, v156, v144            ; x1
        v_fmac_f32 v153, v157, v145
        v_fmac_f32 v154, v158, v146
        v_fmac_f32 v155, v159, v147
        v_lshlrev_b32 v156, 16, v108           ; gb
        v_and_b32 v157, 0xffff0000, v108
        v_lshlrev_b32 v158, 16, v110
        v_and_b32 v159, 0xffff0000, v110
        """)
        l = self.poll_begin()
        for k in range(6):
            so = sT4 if k < 4 else sT5
            off = f' offset:{(k&3)*1024}' if k & 3 else ''
            a(f'buffer_load_dwordx4 {vr(176+4*k,4)}, v11, {WS}, {so} offen{off} sc1')
        a('s_waitcnt vmcnt(0)')
        a(f'v_mov_b32 v10, {sTAG}')
        for r in (197, 199): a(f'v_cndmask_b32 v{r}, v10, v{r}, s[100:101]')
        for r in (196, 198): a(f'v_cndmask_b32 v{r}, 0, v{r}, s[100:101]')
        self.tagchk('v10', [f'v{176+4*k+o}' for k in range(6) for o in (1, 3)])
        self.poll_end(l, 10, self.cfg['sleepF'], 'v10')
        acc4(144, [176+4*k for k in range(6)])
        self.crossrow([f'v{144+j}' for j in range(4)], [f'v{148+j}' for j in range(4)], 'v_add_f32')
        a(f"""
        v_fmac_f32 v152, v156, v144
        v_fmac_f32 v153, v157, v145
        v_fmac_f32 v154, v158, v146
        v_fmac_f32 v155, v159, v147
        v_cvt_pk_bf16_f32 v152, v152, v153
        v_cvt_pk_bf16_f32 v153, v154, v155
        s_mov_b64 exec, 0xffff
        buffer_store_dwordx2 v[152:153], v6, {SA}, {sR2} offen
        s_mov_b64 exec, -1
        """)
        self.ts('out_st')
    def epoch_update(self):
        a = self.a
        a(f's_cmp_lg_u32 {sW}, 0\ns_cbranch_scc1 L_exit')
        a(f'v_and_b32 v5, 7, {vL}\nv_lshlrev_b32 v5, 15, v5\nv_add_u32 v5, 2040, v5\ns_mov_b32 {sT0}, {WS_E}')
        l = self.poll_begin()
        a(f'buffer_load_dwordx2 v[6:7], v5, {WS}, {sT0} offen sc1\ns_waitcnt vmcnt(0)')
        self.tagchk('v8', ['v7'])
        self.poll_end(l, 11, 8, 'v8')
        a(f'''
        s_add_u32 {sT0}, {sEP}, 1
        v_mov_b32 v6, {sT0}
        v_mov_b32 v5, 0
        s_mov_b64 exec, 1
        buffer_store_dword v6, v5, {WS}, 0 offen sc1
        s_mov_b64 exec, -1
        ''')
    def build(self):
        a = self.a
        self.prologue()
        self.p_pre()
        a('s_branch L_att\nL_qpre:')
        self.q_pre()
        a('L_att:')
        self.att_addr()
        self.attention()
        a(f's_cmp_lt_u32 {sI}, 16\ns_cbranch_scc1 L_qpost')
        self.p_post()
        a('s_branch L_exit\nL_qpost:')
        a(f'''
        s_lshr_b32 {sT0}, {sI}, 2
        s_and_b32 {sR0}, {sI}, 3
        s_cmp_eq_u32 {sT0}, 3
        s_cbranch_scc1 L_final
        s_lshl_b32 {sR1}, {sT0}, 3
        s_add_u32 {sR1}, {sR1}, {sX}
        s_cmp_ge_u32 {sR1}, 22
        s_cbranch_scc1 L_idle
        ''')
        self.ffn()
        a('s_branch L_exit\nL_final:')
        self.final()
        a('s_branch L_exit\nL_idle:')
        a('s_waitcnt vmcnt(0)')
        self.d_flag()
        a(f's_cmp_eq_u32 s2, {7 + 8*11}\ns_cbranch_scc0 L_exit')
        self.epoch_update()
        a('s_branch L_exit')
        for code in self.failsites:
            a(f'L_fail_{code}:\ns_mov_b32 {sT0}, {code}\ns_branch L_fail')
        a(f'''
        L_fail:
        s_waitcnt vmcnt(0) lgkmcnt(0)
        s_mov_b32 s12, s{P_DBG}
        s_mov_b32 s13, s{P_DBG+1}
        s_mov_b32 s14, 256
        s_mov_b32 s15, 0x00020000
        s_mov_b64 exec, 1
        s_lshl_b32 {sT1}, {sT0}, 2
        v_mov_b32 v5, {sT1}
        v_mov_b32 v6, s2
        v_add_u32 v6, 1000, v6
        buffer_store_dword v6, v5, s[12:15], 0 offen
        s_mov_b64 exec, -1
        L_exit:
        ''')
        self.ts('end')
        if self.cfg['ts']:
            sk = a.label('nots')
            a(f's_cmp_lg_u32 {sW}, {self.cfg["tswave"]}\ns_cbranch_scc1 {sk}')
            a(f's_waitcnt lgkmcnt(0)\ns_mov_b64 exec, 1\ns_lshl_b32 {sT0}, s2, 6\ns_add_u32 {sT0}, {sT0}, {WS_TS}\nv_mov_b32 v5, 0')
            for k in range(len(TSREG)):
                a(f'v_mov_b32 v6, s{TSREG[k]}\nbuffer_store_dword v6, v5, {WS}, {sT0} offen offset:{4*k}')
            a(f'{sk}:')
        if self.cfg['endwait'] or self.cfg['ts']: a('s_waitcnt vmcnt(0) lgkmcnt(0)')
        a('L_end:\ns_endpgm')
        return a.finish()
HEADER = open('adaLN_cond__compressed_kv_cla__dense_activation_relu__decode.s.ref').read().split('; Override launch')[0]
def generate(cfg):
    g = Gen(cfg)
    body = g.build()
    init = ''
    if g.cfg['ts']:
        init = ''.join(f'    s_mov_b32 s{r}, 0\n' for r in TSREG[:10])
    txt = HEADER + f'''; @launch grid=(256,1,1) block=(512,1,1) lds={LDS_BYTES}
.amdgcn_target "amdgcn-amd-amdhsa--gfx950"
.text
.globl {KNAME}
.p2align 8
.type {KNAME},@function
{KNAME}:
{init}{body}.section .rodata,"a"
.p2align 6
.amdhsa_kernel {KNAME}
  .amdhsa_next_free_vgpr 256
  .amdhsa_next_free_sgpr 102
  .amdhsa_accum_offset 256
  .amdhsa_group_segment_fixed_size 0
  .amdhsa_kernarg_size 112
  .amdhsa_user_sgpr_count 2
  .amdhsa_user_sgpr_kernarg_segment_ptr 1
  .amdhsa_system_sgpr_workgroup_id_x 1
.end_amdhsa_kernel
'''
    return txt, g
if __name__ == '__main__':
    cfg = json.loads(sys.argv[2]) if len(sys.argv) > 2 else {}
    txt, g = generate(cfg)
    open(sys.argv[1], 'w').write(txt)
    json.dump(dict(ts=g.tsnames, slot=(g.cfg.get('tsmap') or TSSLOT), gen='g'), open(sys.argv[1] + '.json', 'w'))
    print('written', sys.argv[1], 'lines', txt.count('\n'), 'nops padded', g.a.npad)
```

```python
import sys, json, struct
from asmlib import Asm
KNAME = 'adaLN_cond__compressed_kv_cla__dense_activation_relu__decode_kernel'
CFG = dict(fl=3, etrig2=True, endwait=False, pkmul=False, pvaearly=False, ones=True, codepf=True, ptrig=False, gpl=['e','e','c','b'], gplhp=['c','s','b','p'], wofirst=2, wo_pre=0, pthr=0, ckvsplit=False, ts=False, nt=False, nt_ckv_p=False, nt_ckv_q=True, limit=20000,
           sleepA=1, sleepA2=1, ckvB=False, sleepM=16, sleepC2=1, ftrig=False, sleepC=1, sleepD=1, sleepE=1, sleepF=1, tswave=0)
WS_H  = 0x500000
WS_MR = 0x510000
WS_Q  = 0x10000
WS_FL = 0x520000
WS_E  = 0x60000
WS_F  = 0xA0000
WS_D  = 0x100000
WS_TS = 0x600000
WS_SIZE = 0x700000
SM   = 131072
QT   = SM
RED  = SM
PT   = SM + 16384
WL   = PT
MX   = SM + 20480
LS   = SM + 20992
SV   = SM + 21504
QB   = SM + 25856
OB   = SM + 27136
RED2 = SM + 28160
LDS_BYTES = 163840
SVS = 1088
QBS = 320
TAGMUL = 0x9E3779B1
LOG2E = 1.4426950408889634
SCALE = (128 ** -0.5) * LOG2E
def fhex(x): return '0x%08x' % struct.unpack('<I', struct.pack('<f', x))[0]
sX, sI, sW, sTAG, sEP = 's3', 's4', 's5', 's6', 's7'
WS = 's[8:11]'; SA = 's[12:15]'; SB = 's[44:47]'; SC = 's[48:51]'
P_X, P_CKV, P_WQ, P_WUK, P_WUV, P_WO, P_W1, P_W2, P_C, P_WMOD, P_OUT, P_DBG, P_WS = 16, 18, 20, 22, 24, 26, 30, 32, 34, 36, 38, 40, 42
sWB = 's52'
sT0, sT1, sT2, sT3 = 's53', 's54', 's55', 's56'
sT4, sT5, sT6, sT7 = 's72', 's73', 's74', 's75'
sPLO, sPHI = 's57', 's58'
sCNT = 's59'
mT4 = 's[60:61]'
sU0, sU1 = 's62', 's63'
sCH, sBA, sS, sHH = 's64', 's65', 's66', 's67'
sR0, sR1, sR2, sR3 = 's68', 's69', 's70', 's71'
MK = 96
TSREG = [76,78,80,82,84,86,88,90,92,94,28,0]
TSSLOT = dict(start=0, hp_loaded=1, hp_pub=2, wq_landed=1, h_got=2, q_pub=3, ckv_iss=3, c_got=4, b1=5, b3=6, d_st=7, d_flag=8,
              dfl_got=9, d_got=10, e_pub=11, e_trig=9, e_got=10, f_pub=11, mr_pub=9, fe_got=10, out_st=11)
vL, vG, vT, vB4 = 'v1', 'v2', 'v3', 'v4'
def vr(a, n=1): return f'v{a}' if n == 1 else f'v[{a}:{a+n-1}]'
class Gen:
    def __init__(self, cfg):
        self.cfg = dict(CFG); self.cfg.update(cfg)
        self.a = Asm(); self.tsnames = []; self.failsites = []
    def ts(self, name):
        if not self.cfg['ts']: return
        slots = self.cfg.get('tsmap') or TSSLOT
        if name not in slots: return
        r = TSREG[slots[name]]
        if name not in self.tsnames: self.tsnames.append(name)
        self.a(f's_memrealtime s[{r}:{r+1}]')
    def srd(self, quad, ptr, size):
        q = int(quad[2:quad.index(':')])
        self.a(f's_mov_b32 s{q}, s{ptr}\ns_mov_b32 s{q+1}, s{ptr+1}\ns_mov_b32 s{q+2}, {size}\ns_mov_b32 s{q+3}, 0x00020000')
    def nt(self, key='nt'): return ' nt' if self.cfg[key] else ''
    def poll_begin(self):
        l = self.a.label('poll')
        self.a(f's_mov_b32 {sCNT}, {self.cfg["limit"]}\n{l}:')
        return l
    def poll_end(self, l, code, sleep, vacc):
        a = self.a; ok = a.label('ok')
        if code not in self.failsites: self.failsites.append(code)
        a(f'v_cmp_ne_u32 vcc, 0, {vacc}')
        a(f's_cbranch_vccz {ok}')
        a(f's_sub_u32 {sCNT}, {sCNT}, 1')
        a(f's_cbranch_scc1 L_fail_{code}')
        if sleep: a(f's_sleep {sleep}')
        a(f's_branch {l}')
        a(f'{ok}:')
    def poll_trig(self, voff, soff, ra, code, vacc):
        a = self.a
        if code not in self.failsites: self.failsites.append(code)
        l = a.label('pt'); ok = a.label('ptok')
        ld = lambda r: a(f'buffer_load_dwordx2 {vr(r,2)}, {voff}, {WS}, {soff} offen sc1')
        a(f's_mov_b32 {sCNT}, {self.cfg["limit"]}')
        ld(ra)
        a(f'{l}:')
        ld(ra+2)
        a(f's_waitcnt vmcnt(1)\nv_cmp_ne_u32 vcc, {sTAG}, v{ra+1}\ns_cbranch_vccz {ok}')
        ld(ra)
        a(f's_waitcnt vmcnt(1)\nv_cmp_ne_u32 vcc, {sTAG}, v{ra+3}\ns_cbranch_vccz {ok}')
        a(f's_sub_u32 {sCNT}, {sCNT}, 1\ns_cbranch_scc1 L_fail_{code}\ns_branch {l}\n{ok}:')
    def tagchk(self, vacc, regs):
        a = self.a
        for k, r in enumerate(regs):
            if k == 0: a(f'v_xor_b32 {vacc}, {sTAG}, {r}')
            else: a(f'v_bitop3_b32 {vacc}, {vacc}, {r}, {sTAG} bitop3:0xf6')
    def crossrow(self, regs, tmp, op):
        a = self.a
        for sw in ('v_permlane16_swap_b32', 'v_permlane32_swap_b32'):
            for r, t in zip(regs, tmp): a(f'v_mov_b32 {t}, {r}')
            for r, t in zip(regs, tmp): a(f'{sw} {r}, {t}')
            for r, t in zip(regs, tmp): a(f'{op} {r}, {r}, {t}')
    def allsum(self, regs, tmp, op='v_add_f32'):
        a = self.a
        for n in (8, 4, 2, 1):
            for r in regs: a(f'{op}_dpp {r}, {r}, {r} row_ror:{n} row_mask:0xf bank_mask:0xf')
        self.crossrow(regs, tmp, op)
    def ckv_prep(self, v):
        a = self.a
        self.srd(SA, P_CKV, 16 << 20)
        a(f'v_lshlrev_b32 v{v}, 4, {vL}')
        for k in range(1, 8): a(f'v_xor_b32 v{v+k}, {k << 5}, v{v}')
    def ckv_group(self, gi, v, ntkey):
        a = self.a
        a(f's_add_u32 {sU1}, {sWB}, {gi*4096}\ns_mov_b32 m0, {sU1}\ns_add_u32 {sU0}, {sCH}, {sU1}')
        for k in range(4):
            n = 4*gi + k
            off = f' offset:{k*1024}' if k else ''
            a(f'buffer_load_dwordx4 v{v + (n & 7)}, {SA}, {sU0} offen{off}{self.nt(ntkey)} lds')
    def dma_ckv_p(self):
        a = self.a
        thr = self.cfg.get('pthr', 2)
        self.srd(SA, P_CKV, 16 << 20)
        a(f'v_lshlrev_b32 v6, 4, {vL}')
        for k in range(1, 8): a(f'v_xor_b32 v{6+k}, {k << 5}, v6')
        for n in range(16):
            if n % 4 == 0:
                a(f's_add_u32 {sT1}, {sWB}, {(n>>2)*4096}')
                a(f's_mov_b32 m0, {sT1}')
                a(f's_add_u32 {sT0}, {sCH}, {sT1}')
            off = f' offset:{(n & 3)*1024}' if n & 3 else ''
            a(f'buffer_load_dwordx4 v{6 + (n & 7)}, {SA}, {sT0} offen{off}{self.nt("nt_ckv_p")} lds')
            if thr and n == thr - 1: a('s_waitcnt vmcnt(0)')
    def dma_groups(self, srd, voff4, sregs, mregs, nt):
        a = self.a
        for sr, mr in zip(sregs, mregs):
            a(f's_mov_b32 m0, {mr}\ns_nop 0')
            for k in range(4):
                off = f' offset:{k*1024}' if k else ''
                a(f'buffer_load_dwordx4 {voff4[k]}, {srd}, {sr} offen{off}{nt} lds')
    def rot_groups(self, ng, rot, sbase, step_log2, mbase, sregs, mregs, tmp=sCNT):
        a = self.a
        for j in range(ng):
            if rot is None:
                a(f's_add_u32 {sregs[j]}, {sbase}, {j << step_log2}')
                a(f's_add_u32 {mregs[j]}, {mbase}, {j*4096}')
            else:
                a(f's_add_u32 {tmp}, {rot}, {j}\ns_and_b32 {tmp}, {tmp}, {ng-1}')
                a(f's_lshl_b32 {sregs[j]}, {tmp}, {step_log2}\ns_add_u32 {sregs[j]}, {sregs[j]}, {sbase}')
                a(f's_lshl_b32 {mregs[j]}, {tmp}, 12\ns_add_u32 {mregs[j]}, {mregs[j]}, {mbase}')
    def voff128(self, v, rowstride):
        a = self.a
        a(f'''
        v_lshrrev_b32 v{v}, 3, {vL}
        v_mul_u32_u24 v{v}, {rowstride}, v{v}
        v_and_b32 v{v+1}, 7, {vL}
        v_lshlrev_b32 v{v+2}, 1, {vG}
        v_xor_b32 v{v+1}, v{v+1}, v{v+2}
        v_lshl_add_u32 v{v}, v{v+1}, 4, v{v}
        ''')
        for k in range(1, 4): a(f'v_add_u32 v{v+k}, {k*(8*rowstride-1024)}, v{v}')
        return [f'v{v+k}' for k in range(4)]
    def tr128_addr(self, v, base_s):
        a = self.a
        a(f'''
        v_lshrrev_b32 v{v}, 2, {vT}
        v_lshl_add_u32 v{v}, {vG}, 2, v{v}
        v_lshrrev_b32 v{v+1}, 1, v{v}
        v_and_b32 v{v+1}, 3, v{v+1}
        v_lshlrev_b32 v{v+1}, 5, v{v+1}
        v_lshl_add_u32 v{v}, v{v}, 7, v{v+1}
        v_lshrrev_b32 v{v+1}, 1, {vB4}
        v_lshl_add_u32 v{v}, v{v+1}, 4, v{v}
        v_and_b32 v{v+1}, 1, {vB4}
        v_lshl_add_u32 v{v}, v{v+1}, 3, v{v}
        v_add_u32 v{v}, {base_s}, v{v}
        ''')
        for ct in range(1, 4): a(f'v_xor_b32 v{v+ct}, {ct << 5}, v{v}')
        return [f'v{v+ct}' for ct in range(4)]
    def tr_reads(self, addrs, kss, rb, dst, base_off=0):
        a = self.a
        for ks in kss:
            for ct, ad in enumerate(addrs):
                d = dst + 4 * (ks * len(addrs) + ct)
                for hi in range(2):
                    a(f'ds_read_b64_tr_b16 {vr(d + 2*hi, 2)}, {ad} offset:{base_off + (32*ks + 16*hi)*rb}')
    def sel4(self, dst, srcs, masks):
        a = self.a
        a(f'v_cndmask_b32 {dst}, {srcs[0]}, {srcs[1]}, {masks[0]}')
        a(f'v_cndmask_b32 {dst}, {dst}, {srcs[2]}, {masks[1]}')
        a(f'v_cndmask_b32 {dst}, {dst}, {srcs[3]}, {masks[2]}')
    def masks_t(self):
        for k, val in enumerate((0x22222222, 0x44444444, 0x88888888)):
            self.a(f's_mov_b32 s{MK+2*k}, {val:#x}\ns_mov_b32 s{MK+2*k+1}, {val:#x}')
        return [f's[{MK+2*k}:{MK+2*k+1}]' for k in range(3)]
    def masks_q(self):
        for k, val in enumerate((0x00f000f0, 0x0f000f00, 0xf000f000)):
            self.a(f's_mov_b32 s{MK+2*k}, {val:#x}\ns_mov_b32 s{MK+2*k+1}, {val:#x}')
        return [f's[{MK+2*k}:{MK+2*k+1}]' for k in range(3)]
    def masks_g(self):
        for k, (lo, hi) in enumerate(((0xffff0000, 0), (0, 0x0000ffff), (0, 0xffff0000))):
            self.a(f's_mov_b32 s{MK+2*k}, {lo:#x}\ns_mov_b32 s{MK+2*k+1}, {hi:#x}')
        return [f's[{MK+2*k}:{MK+2*k+1}]' for k in range(3)]
    def mfma(self, acc, A, B, first):
        self.a(f'v_mfma_f32_16x16x32_bf16 {vr(acc,4)}, {vr(A,4)}, {vr(B,4)}, {"0" if first else vr(acc,4)}')
    def tree_add(self, regs):
        a = self.a; n = len(regs); step = 1
        while step < n:
            for k in range(0, n - step, 2*step): a(f'v_add_f32 {regs[k]}, {regs[k]}, {regs[k+step]}')
            step *= 2
    def prologue(self):
        a = self.a
        a('''
        s_cmp_ge_u32 s2, 256
        s_cbranch_scc1 L_end
        s_load_dwordx16 s[16:31], s[0:1], 0
        s_load_dwordx8 s[32:39], s[0:1], 64
        s_load_dwordx4 s[40:43], s[0:1], 96
        ''')
        self.ts('start')
        if self.cfg.get('permtest'):
            a(f's_mul_i32 s2, s2, {self.cfg["permtest"]}\ns_add_u32 s2, s2, 11\ns_and_b32 s2, s2, 255')
        a(f'''
        v_lshrrev_b32 v5, 6, v0
        v_and_b32 {vL}, 63, v0
        v_readfirstlane_b32 {sW}, v5
        v_lshrrev_b32 {vG}, 4, {vL}
        v_and_b32 {vT}, 15, {vL}
        v_and_b32 {vB4}, 3, {vL}
        s_and_b32 {sX}, s2, 7
        s_lshr_b32 {sI}, s2, 3
        ''')
        if self.cfg.get('ixor'): a(f's_xor_b32 {sI}, {sI}, {self.cfg["ixor"]}')
        a(f'''
        s_lshl_b32 {sWB}, {sW}, 14
        s_mov_b32 s60, 0x000f000f
        s_mov_b32 s61, 0x000f000f
        s_lshl_b32 {sCH}, {sX}, 4
        s_and_b32 {sT0}, {sI}, 15
        s_add_u32 {sCH}, {sCH}, {sT0}
        s_lshr_b32 {sBA}, {sCH}, 5
        s_and_b32 {sS}, {sCH}, 31
        s_lshr_b32 {sHH}, {sI}, 4
        ''')
        if self.cfg.get('hhswap', True): a(f's_xor_b32 {sHH}, {sHH}, 1')
        a(f'''
        s_lshl_b32 {sCH}, {sCH}, 17
        ''')
        if self.cfg.get('codepf'):
            sk = a.label('nocpf')
            a(f's_cmp_lg_u32 {sI}, {self.cfg.get("codepf_i", 31)}\ns_cbranch_scc1 {sk}')
            a(f's_cmp_ge_u32 {sW}, 3\ns_cbranch_scc1 {sk}')
            a(f'''
            s_getpc_b64 s[62:63]
            L_pc:
            s_sub_u32 s62, s62, L_pc-{KNAME}
            s_subb_u32 s63, s63, 0
            v_lshlrev_b32 v5, 7, {vL}
            s_lshl_b32 {sT0}, {sW}, 13
            v_add_u32 v5, {sT0}, v5
            s_mov_b32 {sT0}, L_end-{KNAME}
            v_cmp_gt_u32 vcc, {sT0}, v5
            s_and_saveexec_b64 s[100:101], vcc
            s_cbranch_execz L_cpf_skip
            global_load_dword v255, v5, s[62:63]
            L_cpf_skip:
            s_mov_b64 exec, s[100:101]
            {sk}:
            ''')
        a(f'''
        s_cmp_lt_u32 {sI}, 16
        s_cbranch_scc1 L_qpre
        ''')
    def after_kernarg(self):
        a = self.a
        a(f's_waitcnt lgkmcnt(0)\ns_load_dword {sEP}, s[{P_WS}:{P_WS+1}], 0')
    def tag(self):
        self.srd(WS, P_WS, WS_SIZE)
        self.a(f'''
        s_waitcnt lgkmcnt(0)
        s_add_u32 {sTAG}, {sEP}, 1
        s_mul_i32 {sTAG}, {sTAG}, {TAGMUL:#x}
        s_add_u32 {sTAG}, {sTAG}, 0x7f4a7c15
        ''')
        if self.cfg.get('tlbpf'):
            a = self.a; sk = a.label('notlb')
            a(f's_cmp_lg_u32 {sW}, 7\ns_cbranch_scc1 {sk}\nv_mov_b32 v253, 0')
            for off in self.cfg['tlbpf']:
                a(f's_mov_b32 {sCNT}, {off}\nbuffer_load_dword v254, v253, {WS}, {sCNT} offen')
            a(f'{sk}:')
    def dma_ckv(self, ntkey, groups=(0, 1, 2, 3), v=6):
        a = self.a
        self.srd(SA, P_CKV, 16 << 20)
        a(f'v_lshlrev_b32 v{v}, 4, {vL}')
        for k in range(1, 8): a(f'v_xor_b32 v{v+k}, {k << 5}, v{v}')
        for gi in groups:
            a(f's_add_u32 {sT1}, {sWB}, {gi*4096}')
            a(f's_mov_b32 m0, {sT1}')
            a(f's_add_u32 {sT0}, {sCH}, {sT1}')
            for k in range(4):
                n = 4*gi + k
                off = f' offset:{k*1024}' if k else ''
                a(f'buffer_load_dwordx4 v{v + (n & 7)}, {SA}, {sT0} offen{off}{self.nt(ntkey)} lds')
    def silu_addr(self):
        self.a(f'''
        v_lshlrev_b32 v16, 3, v0
        v_lshrrev_b32 v20, 7, v0
        v_mul_u32_u24 v20, {SVS}, v20
        v_and_b32 v21, 127, v0
        v_lshrrev_b32 v21, 3, v21
        v_lshl_add_u32 v20, v21, 6, v20
        v_and_b32 v21, 3, v0
        v_lshl_add_u32 v20, v21, 4, v20
        v_lshrrev_b32 v21, 2, v0
        v_and_b32 v21, 1, v21
        v_lshl_add_u32 v20, v21, 3, v20
        v_add_u32 v20, {SV}, v20
        ''')
    def silu_calc(self):
        a = self.a
        a('''
        v_lshlrev_b32 v22, 16, v18
        v_and_b32 v23, 0xffff0000, v18
        v_lshlrev_b32 v24, 16, v19
        v_and_b32 v25, 0xffff0000, v19
        ''')
        for r in range(22, 26): a(f'v_mul_f32 v{r+4}, {fhex(-LOG2E)}, v{r}')
        for r in range(22, 26): a(f'v_exp_f32 v{r+4}, v{r+4}')
        for r in range(22, 26): a(f'v_add_f32 v{r+4}, 1.0, v{r+4}')
        for r in range(22, 26): a(f'v_rcp_f32 v{r+4}, v{r+4}')
        for r in range(22, 26): a(f'v_mul_f32 v{r}, v{r}, v{r+4}')
        a('v_cvt_pk_bf16_f32 v22, v22, v23\nv_cvt_pk_bf16_f32 v23, v24, v25\nds_write_b64 v20, v[22:23]')
    def sv_frag_addr(self, v):
        self.a(f'''
        v_mul_u32_u24 {v}, {SVS}, {vB4}
        v_lshl_add_u32 {v}, {vG}, 4, {v}
        s_lshl_b32 {sT2}, {sW}, 7
        s_add_u32 {sT2}, {sT2}, {SV}
        v_add_u32 {v}, {sT2}, {v}
        ''')
    def p_pre(self):
        a = self.a
        a('; ================= P pre')
        if self.cfg.get('stopq'):
            self.after_kernarg(); self.tag(); a('s_branch L_exit')
        skip = a.label('nohp'); done = a.label('hpdone')
        a(f's_sub_u32 {sR0}, {sI}, 16\ns_cmp_ge_u32 {sR0}, 4\ns_cbranch_scc1 {skip}')
        vo = self.voff128(6, 6144)
        a(f"""
        s_lshl_b32 {sT0}, {sR0}, 2
        s_and_b32 {sT4}, {sW}, 3
        s_add_u32 {sT0}, {sT0}, {sT4}
        s_mul_i32 {sT0}, {sT0}, {32*6144}
        s_lshr_b32 {sT1}, {sW}, 2
        s_lshl_b32 {sT1}, {sT1}, 10
        s_add_u32 {sT0}, {sT0}, {sT1}
        s_lshl_b32 {sT3}, {sX}, 7
        s_add_u32 {sT0}, {sT0}, {sT3}
        v_lshrrev_b32 v16, 7, v0
        v_and_b32 v17, 127, v0
        v_lshlrev_b32 v18, 10, v16
        v_lshl_add_u32 v18, v17, 1, v18
        s_lshl_b32 {sT2}, {sR0}, 8
        s_lshl_b32 {sT5}, {sT4}, 10
        v_lshlrev_b32 v30, 4, {vL}
        v_lshrrev_b32 v39, 1, v0
        v_and_b32 v39, 3, v39
        v_lshrrev_b32 v37, 3, v0
        v_and_b32 v36, 1, v0
        v_lshlrev_b32 v35, 10, v39
        v_lshl_add_u32 v35, v37, 3, v35
        v_lshl_add_u32 v35, v36, 2, v35
        """)
        self.after_kernarg()
        self.srd(SB, P_C, 4096); self.srd(SC, P_X, 4096); self.srd(SA, P_WMOD, 512 * 6144)
        self.ts('hp_karg')
        a(f"""
        buffer_load_ushort v20, v18, {SB}, {sT2} offen
        buffer_load_dwordx4 v[40:43], v30, {SC}, {sT5} offen
        buffer_load_dword v38, v35, {SC}, {sT3} offen
        """)
        self.dma_groups(SA, vo, [sT0], [sWB], self.nt())
        self.tag()
        ad = self.tr128_addr(6, sWB)
        mq = self.masks_q()
        a(f"""
        v_mul_u32_u24 v10, {QBS}, v16
        v_lshrrev_b32 v11, 5, v17
        v_lshl_add_u32 v10, v11, 6, v10
        v_lshrrev_b32 v11, 2, v17
        v_and_b32 v11, 3, v11
        v_lshl_add_u32 v10, v11, 4, v10
        v_lshrrev_b32 v11, 4, v17
        v_and_b32 v11, 1, v11
        v_lshl_add_u32 v10, v11, 3, v10
        v_and_b32 v11, 3, v17
        v_lshl_add_u32 v10, v11, 1, v10
        v_add_u32 v10, {SV}, v10
        v_mul_u32_u24 v11, {QBS}, {vB4}
        v_lshl_add_u32 v11, {vG}, 4, v11
        s_lshl_b32 {sT0}, {sT4}, 6
        s_add_u32 {sT0}, {sT0}, {SV}
        v_add_u32 v11, {sT0}, v11
        s_lshl_b32 {sT0}, {sW}, 10
        s_add_u32 {sT0}, {sT0}, {RED}
        v_lshrrev_b32 v12, 2, {vT}
        v_lshlrev_b32 v12, 8, v12
        v_lshl_add_u32 v12, {vG}, 6, v12
        v_lshl_add_u32 v12, {vB4}, 4, v12
        v_add_u32 v12, {sT0}, v12
        v_lshlrev_b32 v13, 3, v0
        v_add_u32 v13, {RED}, v13
        v_lshlrev_b32 v14, 3, v39
        v_add_u32 v14, {LS}, v14
        v_lshlrev_b32 v15, 11, v39
        v_lshl_add_u32 v15, v37, 4, v15
        v_lshl_add_u32 v15, v36, 3, v15
        s_lshl_b32 {sT6}, {sR0}, 13
        s_lshl_b32 {sT0}, {sX}, 8
        s_add_u32 {sT6}, {sT6}, {sT0}
        s_add_u32 {sT6}, {sT6}, {WS_H}
        s_lshl_b32 {sT3}, {sT4}, 3
        s_add_u32 {sT3}, {sT3}, {LS}
        v_mov_b32 v50, {sT3}
        s_cmp_eq_u32 {sR0}, 0
        s_cselect_b32 {sT7}, 1.0, 0
        v_mov_b32 v45, {sTAG}
        s_waitcnt vmcnt(6)
        v_lshlrev_b32 v20, 16, v20
        v_mul_f32 v21, {fhex(-LOG2E)}, v20
        v_exp_f32 v21, v21
        s_nop 0
        v_add_f32 v21, 1.0, v21
        v_rcp_f32 v21, v21
        s_nop 0
        v_mul_f32 v20, v20, v21
        v_cvt_pk_bf16_f32 v20, v20, v20
        ds_write_b16 v10, v20
        s_waitcnt vmcnt(5)
        """)
        self.ts('hp_c')
        for k in range(4):
            a(f'v_lshlrev_b32 v{52+2*k}, 16, v{40+k}\nv_and_b32 v{53+2*k}, 0xffff0000, v{40+k}')
        a('v_add_f32 v48, v52, v53\nv_mul_f32 v49, v52, v52\nv_fmac_f32 v49, v53, v53')
        for k in range(54, 60): a(f'v_add_f32 v48, v48, v{k}\nv_fmac_f32 v49, v{k}, v{k}')
        self.allsum(['v48', 'v49'], ['v51', 'v52'])
        a(f"""
        v_mul_f32 v48, {fhex(1/512)}, v48
        v_mul_f32 v49, {fhex(1/512)}, v49
        v_fma_f32 v49, -v48, v48, v49
        v_max_f32 v49, 0, v49
        v_add_f32 v49, {fhex(1e-5)}, v49
        v_rsq_f32 v49, v49
        s_nop 0
        ds_write_b64 v50, v[48:49]
        s_waitcnt lgkmcnt(0)
        """)
        self.ts('hp_ln')
        a('s_barrier\nds_read_b128 v[52:55], v11\ns_waitcnt vmcnt(0)')
        self.ts('hp_loaded')
        self.tr_reads(ad, range(1), 128, 16)
        a('s_waitcnt lgkmcnt(0)')
        for ct in range(4): self.mfma(60+4*ct, 16+4*ct, 52, True)
        for r in range(4): self.sel4(f'v{76+r}', [f'v{60+4*ct+r}' for ct in range(4)], mq)
        a('ds_write_b128 v12, v[76:79]\ns_waitcnt lgkmcnt(0)\ns_barrier')
        fin = a.label('hpfin')
        a(f's_cmp_ge_u32 {sW}, 2\ns_cbranch_scc1 {fin}')
        for ww in range(8): a(f'ds_read_b64 {vr(16+2*ww,2)}, v13 offset:{ww*1024}')
        a("""
        ds_read_b64 v[32:33], v14
        v_lshlrev_b32 v40, 16, v38
        v_and_b32 v41, 0xffff0000, v38
        s_waitcnt lgkmcnt(0)
        v_sub_f32 v40, v40, v32
        v_sub_f32 v41, v41, v32
        v_mul_f32 v40, v40, v33
        v_mul_f32 v41, v41, v33
        """)
        self.tree_add(['v16', 'v18', 'v20', 'v22'])
        self.tree_add(['v17', 'v19', 'v21', 'v23'])
        self.tree_add(['v24', 'v26', 'v28', 'v30'])
        self.tree_add(['v25', 'v27', 'v29', 'v31'])
        a(f"""
        v_add_f32 v24, {sT7}, v24
        v_add_f32 v25, {sT7}, v25
        v_fmac_f32 v16, v40, v24
        v_fmac_f32 v17, v41, v25
        v_cvt_pk_bf16_f32 v44, v16, v17
        buffer_store_dwordx2 v[44:45], v15, {WS}, {sT6} offen sc1
        {fin}:
        s_barrier
        """)
        self.ts('hp_pub')
        a(f's_branch {done}\n{skip}:')
        if self.cfg.get('pfuk', True):
            a(f'''
            s_sub_u32 {sT0}, {sI}, 20
            s_mul_i32 {sT0}, {sT0}, 6
            s_add_u32 {sT0}, {sT0}, {sW}
            s_lshl_b32 {sT0}, {sT0}, 3
            s_lshl_b32 {sT0}, {sT0}, 13
            s_lshl_b32 {sT1}, {sX}, 10
            s_add_u32 {sT0}, {sT0}, {sT1}
            v_lshrrev_b32 v6, 3, {vL}
            v_lshlrev_b32 v6, 13, v6
            v_and_b32 v7, 7, {vL}
            v_lshl_add_u32 v6, v7, 7, v6
            ''')
        self.after_kernarg()
        if self.cfg.get('pfuk', True):
            sk2 = a.label('nouk')
            self.srd(SB, P_WUK, 4 << 20)
            a(f's_cmp_ge_u32 {sW}, 6\ns_cbranch_scc1 {sk2}\nbuffer_load_dword v98, v6, {SB}, {sT0} offen\n{sk2}:')
        self.tag()
        if self.cfg.get('pdelay'):
            a(f's_lshl_b32 {sT0}, {sX}, 8\ns_add_u32 {sT0}, {sT0}, {WS_H + 3*8192}\nv_mov_b32 v5, 0')
            l = self.poll_begin()
            a(f'buffer_load_dwordx2 v[6:7], v5, {WS}, {sT0} offen sc1\ns_waitcnt vmcnt(0)')
            self.tagchk('v8', ['v7'])
            self.poll_end(l, 12, 4, 'v8')
        a(f'{done}:')
        a(f"""
        s_sub_u32 {sR0}, {sI}, 16
        s_lshr_b32 {sR1}, {sR0}, 2
        s_lshl_b32 {sT0}, {sX}, 2
        s_add_u32 {sR1}, {sR1}, {sT0}          ; hp
        s_and_b32 {sR0}, {sR0}, 3              ; bp
        s_mov_b32 {sPLO}, 0x05040100
        s_mov_b32 {sPHI}, 0x07060302
        """)
        self.touch_uv()
        if self.cfg.get('pwait'): a('s_waitcnt vmcnt(0)')
        self.dma_ckv_p()
        self.ts('ckv_iss')
        self.srd(SB, P_WUV, 4 << 20)
        a(f"""
        v_lshlrev_b32 v96, 16, {vG}
        v_lshl_add_u32 v96, {vT}, 4, v96
        s_lshl_b32 {sU0}, {sW}, 19
        s_lshl_b32 {sU1}, {sR1}, 8
        s_add_u32 {sU0}, {sU0}, {sU1}
        """)
        self.wuv_at('e', False)
    def wuv_group(self, gi):
        a = self.a
        a(f's_add_u32 {sU1}, {sU0}, {((gi >> 1) * 32 + (gi & 1) * 4) * 8192}')
        for e in range(4):
            n = 4*gi + e
            a(f'buffer_load_dwordx4 {vr(112+4*n,4)}, v96, {SB}, {sU1} offen{self.nt()}')
            if e < 3: a(f's_add_u32 {sU1}, {sU1}, 8192')
    def wuv_at(self, pos, guard=True):
        a = self.a
        g1 = [gi for gi, p in enumerate(self.cfg['gpl']) if p == pos]
        g2 = [gi for gi, p in enumerate(self.cfg['gplhp']) if p == pos]
        if g1 == g2:
            if not g1: return len(g1)
            sk = a.label('nouv')
            if guard: a(f's_cmp_lt_u32 {sI}, 16\ns_cbranch_scc1 {sk}')
            for gi in g1: self.wuv_group(gi)
            a(f'{sk}:')
            return len(g1)
        done = a.label('uvd'); hp = a.label('uvhp')
        if guard: a(f's_cmp_lt_u32 {sI}, 16\ns_cbranch_scc1 {done}')
        a(f's_cmp_lt_u32 {sI}, 20\ns_cbranch_scc1 {hp}')
        for gi in g1: self.wuv_group(gi)
        a(f's_branch {done}\n{hp}:')
        for gi in g2: self.wuv_group(gi)
        a(f'{done}:')
        assert pos not in ('x', 'y')
        return 0
    def wuv_unit(self, k):
        a = self.a
        a(f's_add_u32 {sU1}, {sU0}, {k * 32 * 8192}')
        for e in range(8):
            a(f'buffer_load_dwordx4 {vr(112+32*k+4*e,4)}, v96, {SB}, {sU1} offen{self.nt()}')
            if e < 7: a(f's_add_u32 {sU1}, {sU1}, 8192')
    def q_pre(self):
        a = self.a
        a('; ================= Q pre')
        a(f'''
        s_lshr_b32 {sR1}, {sI}, 2
        s_lshl_b32 {sT0}, {sX}, 2
        s_add_u32 {sR1}, {sR1}, {sT0}          ; hq
        s_and_b32 {sR0}, {sI}, 3               ; cq
        v_lshlrev_b32 v9, 1, {vG}
        v_xor_b32 v10, {vT}, v9
        v_lshlrev_b32 v6, 13, {vG}
        v_lshl_add_u32 v6, v10, 4, v6          ; k=0
        v_xor_b32 v7, 128, v6
        v_add_u32 v8, {2*31744}, v6            ; k=2
        v_add_u32 v9, {3*31744}, v7            ; k=3
        v_add_u32 v7, 31744, v7                ; k=1
        s_lshl_b32 {sU0}, {sW}, 19
        s_lshl_b32 {sU1}, {sR1}, 8
        s_add_u32 {sU0}, {sU0}, {sU1}
        ''')
        self.rot_groups(4, sR0, sU0, 17, sWB, [sT0, sT1, sT2, sT3], [sT4, sT5, sT6, sT7])
        a(f'''
        s_lshl_b32 {sU0}, {sR0}, 20
        s_add_u32 {sU0}, {sU0}, {sU1}
        s_lshl_b32 {sU1}, {sW}, 17
        s_add_u32 {sU0}, {sU0}, {sU1}
        ''')
        self.after_kernarg()
        self.ts('q_karg')
        self.srd(SA, P_WQ, 4 << 20)
        self.dma_groups(SA, ['v6', 'v7', 'v8', 'v9'], [sT0, sT1, sT2, sT3], [sT4, sT5, sT6, sT7], self.nt())
        self.ts('q_iss')
        self.srd(SB, P_WUK, 4 << 20)
        a(f's_lshl_b32 {sU1}, {sW}, 12\ns_add_u32 {sU1}, {sU1}, {SM}')
        self.dma_groups(SB, ['v6', 'v7', 'v8', 'v9'], [sU0], [sU1], self.nt())
        self.tag()
        a(f'''
        v_lshrrev_b32 v8, 2, {vT}
        v_lshl_add_u32 v8, {vG}, 2, v8
        v_and_b32 v9, 7, v8
        v_lshlrev_b32 v9, 5, v9
        v_lshl_add_u32 v8, v8, 8, v9
        v_lshrrev_b32 v9, 1, {vB4}
        v_lshl_add_u32 v8, v9, 4, v8
        v_and_b32 v9, 1, {vB4}
        v_lshl_add_u32 v8, v9, 3, v8
        v_add_u32 v8, {sWB}, v8
        ''')
        for ct in range(1, 8): a(f'v_xor_b32 v{8+ct}, {ct << 5}, v8')
        a(f'''
        v_lshlrev_b32 v152, 11, {vG}
        v_lshl_add_u32 v152, {vT}, 4, v152
        v_mul_u32_u24 v170, 192, {vG}
        v_lshrrev_b32 v171, 3, {vT}
        v_lshl_add_u32 v170, v171, 6, v170
        v_lshl_add_u32 v170, {vB4}, 4, v170
        v_lshrrev_b32 v171, 2, {vT}
        v_and_b32 v171, 1, v171
        v_lshl_add_u32 v170, v171, 3, v170
        v_add_u32 v170, {sWB}, v170
        v_mul_u32_u24 v174, 192, {vB4}
        v_lshl_add_u32 v174, {vG}, 4, v174
        v_add_u32 v174, {sWB}, v174
        s_lshl_b32 {sT3}, {sW}, 8
        s_add_u32 {sT3}, {sT3}, {WS_H}
        s_add_u32 {sT2}, {sWB}, 2048
        v_lshrrev_b32 v156, 2, {vT}
        v_lshlrev_b32 v156, 8, v156
        v_lshl_add_u32 v156, {vG}, 6, v156
        v_lshl_add_u32 v156, {vB4}, 4, v156
        v_add_u32 v156, {sT2}, v156
        v_lshlrev_b32 v157, 2, v0
        v_add_u32 v157, 2048, v157
        v_add_u32 v159, 0x10000, v157          ; regions 4..7
        v_lshrrev_b32 v154, 2, {vL}
        v_and_b32 v154, 3, v154
        v_mul_u32_u24 v154, {QBS}, v154
        v_lshl_add_u32 v154, {vG}, 3, v154
        v_lshl_add_u32 v154, {vB4}, 1, v154
        s_lshl_b32 {sT2}, {sW}, 5
        s_add_u32 {sT2}, {sT2}, {QB}
        v_add_u32 v154, {sT2}, v154
        v_mul_u32_u24 v155, {QBS}, {vB4}
        v_lshl_add_u32 v155, {vG}, 4, v155
        v_add_u32 v155, {QB}, v155
        v_lshlrev_b32 v158, 16, {vB4}
        v_lshl_add_u32 v158, {vG}, 4, v158
        s_lshl_b32 {sT4}, {sR1}, 11
        s_lshl_b32 {sT1}, {sR0}, 9
        s_add_u32 {sT4}, {sT4}, {sT1}
        s_lshl_b32 {sT1}, {sW}, 6
        s_add_u32 {sT4}, {sT4}, {sT1}
        s_add_u32 {sT4}, {sT4}, {WS_Q}
        s_mov_b32 {sT5}, {fhex(SCALE)}
        v_mov_b32 v149, {sTAG}
        v_mov_b32 v151, {sTAG}
        v_and_b32 v5, 7, {vT}
        v_lshlrev_b32 v5, 5, v5
        v_lshlrev_b32 v160, 4, {vG}
        v_xor_b32 v160, v160, v5
        v_lshl_add_u32 v160, {vT}, 8, v160
        v_add_u32 v160, {sU1}, v160
        v_xor_b32 v161, 64, v160
        v_xor_b32 v162, 128, v160
        v_xor_b32 v163, 192, v160
        s_waitcnt vmcnt(4)
        ''')
        self.ts('wq_landed')
        a(f's_add_u32 {sT0}, {sT3}, 8192\ns_add_u32 {sT1}, {sT3}, 16384\ns_add_u32 {sT2}, {sT3}, 24576')
        def hloads():
            for k, so in enumerate((sT3, sT0, sT1, sT2)):
                a(f'buffer_load_dwordx4 {vr(128+4*k,4)}, v152, {WS}, {so} offen sc1')
        atrig = self.cfg.get('atrig', False)
        if not atrig: hloads()
        self.tr_reads([f'v{8+ct}' for ct in range(8)], range(2), 256, 16)
        mq = self.masks_q()
        self.ckv_prep(176)
        a(f's_waitcnt vmcnt({0 if atrig else 4})')
        for st in range(4): a(f'ds_read_b128 {vr(112+4*st,4)}, v{160+st}')
        if atrig:
            sk = a.label('noatrig')
            a(f's_cmp_lg_u32 {sW}, 0\ns_cbranch_scc1 {sk}')
            a(f'''
            v_lshrrev_b32 v168, 3, {vL}
            v_and_b32 v168, 3, v168
            v_lshlrev_b32 v168, 13, v168
            v_and_b32 v169, 7, {vL}
            v_lshl_add_u32 v168, v169, 8, v168
            v_add_u32 v168, {3*2048+248}, v168
            s_mov_b32 {sU0}, {WS_H}
            ''')
            l = self.poll_begin()
            a(f'buffer_load_dwordx2 v[128:129], v168, {WS}, {sU0} offen sc1\ns_waitcnt vmcnt(0)')
            self.tagchk('v153', ['v129'])
            self.poll_end(l, 13, self.cfg['sleepA'], 'v153')
            a(f'{sk}:\ns_barrier')
            self.ts('q_atrig')
            l = self.poll_begin()
            hloads()
            a('s_waitcnt vmcnt(0)')
        else:
            first = a.label('hfirst')
            a(f's_mov_b32 {sCNT}, {self.cfg["limit"]}\ns_branch {first}')
            l = a.label('poll'); a(f'{l}:')
            hloads()
            a(f'{first}:\ns_waitcnt vmcnt(0)')
        self.tagchk('v153', [f'v{128+4*k+o}' for k in range(4) for o in (1, 3)])
        self.poll_end(l, 1, self.cfg['sleepA2'], 'v153')
        self.ts('h_got')
        a(f's_mov_b32 {sT0}, 0x00003f80\ns_mov_b32 {sT1}, 0x3f800000')
        for k in range(4):
            for j, (src, sel) in enumerate(((128+4*k, sT0), (128+4*k, sT1), (130+4*k, sT0), (130+4*k, sT1))):
                a(f'v_dot2_f32_bf16 v{144+j}, v{src}, {sel}, {"0" if k == 0 else f"v{144+j}"}')
        a('v_cvt_pk_bf16_f32 v144, v144, v145\nv_cvt_pk_bf16_f32 v145, v146, v147\nds_write_b64 v170, v[144:145]\ns_waitcnt lgkmcnt(0)')
        a('ds_read_b128 v[128:131], v174\nds_read_b128 v[136:139], v174 offset:64')
        if self.cfg.get('ckvA', True): self.ckv_group(1, 176, 'nt_ckv_q')
        a('s_waitcnt lgkmcnt(0)')
        for ks in range(2):
            for ct in range(8): self.mfma(80+4*ct, 16+4*(ks*8+ct), 128+8*ks, ks == 0)
        self.ts('q_mfma')
        for hf in range(2):
            for r in range(4): self.sel4(f'v{136+4*hf+r}', [f'v{80+16*hf+4*ct+r}' for ct in range(4)], mq)
            a(f'ds_write_b128 v156, {vr(136+4*hf,4)} offset:{hf*1024}')
        a('s_waitcnt lgkmcnt(0)')
        self.ts('q_wr')
        if self.cfg.get('ckvB2'): self.ckv_group(2, 176, 'nt_ckv_q')
        a('s_barrier')
        self.ts('q_bar1')
        if self.cfg['ckvB']: self.ckv_group(2, 176, 'nt_ckv_q')
        for ww in range(8): a(f'ds_read_b32 v{128+ww}, v{157 if ww < 4 else 159} offset:{(ww&3)*16384}')
        a('s_waitcnt lgkmcnt(0)')
        self.tree_add([f'v{128+k}' for k in range(8)])
        a('''
        v_cvt_pk_bf16_f32 v128, v128, v128
        ds_write_b16 v154, v128
        s_waitcnt lgkmcnt(0)
        ''')
        if self.cfg.get('ckvB3'): self.ckv_group(2, 176, 'nt_ckv_q')
        a('s_barrier')
        self.ts('q_bar2')
        for st in range(4): a(f'ds_read_b128 {vr(128+4*st,4)}, v155 offset:{st*64}')
        for st in range(4):
            a(f's_waitcnt lgkmcnt({3-st})')
            self.mfma(144, 112+4*st, 128+4*st, st == 0)
        a(f'''
        v_mul_f32 v144, {sT5}, v144
        v_mul_f32 v145, {sT5}, v145
        v_mul_f32 v146, {sT5}, v146
        v_mul_f32 v147, {sT5}, v147
        v_cvt_pk_bf16_f32 v148, v144, v145
        v_cvt_pk_bf16_f32 v150, v146, v147
        s_mov_b64 exec, {mT4}
        buffer_store_dwordx4 v[148:151], v158, {WS}, {sT4} offen sc1
        s_mov_b64 exec, -1
        ''')
        self.ts('q_pub')
        a('s_barrier')
        for gi in [0, 3] + ([] if self.cfg.get('ckvA', True) else [1]) + ([] if (self.cfg['ckvB'] or self.cfg.get('ckvB2') or self.cfg.get('ckvB3')) else [2]): self.ckv_group(gi, 176, 'nt_ckv_q')
        self.touch_o_prep()
    def att_addr(self):
        a = self.a
        a(f'''
        v_and_b32 v5, 7, {vT}
        v_lshlrev_b32 v5, 5, v5
        v_lshlrev_b32 v244, 4, {vG}
        v_xor_b32 v244, v244, v5
        v_lshl_add_u32 v244, {vT}, 10, v244
        v_xor_b32 v245, 64, v244
        v_xor_b32 v246, 128, v244
        v_xor_b32 v247, 192, v244
        v_add_u32 v248, {QT}, v244
        v_add_u32 v249, {QT}, v245
        v_add_u32 v250, {QT}, v246
        v_add_u32 v251, {QT}, v247
        v_add_u32 v244, {sWB}, v244
        v_add_u32 v245, {sWB}, v245
        v_add_u32 v246, {sWB}, v246
        v_add_u32 v247, {sWB}, v247
        v_lshrrev_b32 v80, 2, {vT}
        v_lshl_add_u32 v80, {vG}, 2, v80
        v_and_b32 v81, 7, v80
        v_lshlrev_b32 v81, 5, v81
        s_lshl_b32 {sT0}, {sW}, 7
        v_lshl_add_u32 v82, {vB4}, 4, {sT0}
        v_xor_b32 v81, v81, v82
        v_lshl_add_u32 v80, v80, 10, v81
        v_lshrrev_b32 v81, 1, {vB4}
        v_lshl_add_u32 v80, v81, 3, v80
        v_xor_b32 v81, 8, v80
        v_xor_b32 v82, 64, v80
        v_xor_b32 v83, 72, v80
        v_add_u32 v100, 0x10000, v80
        v_add_u32 v101, 0x10000, v81
        v_add_u32 v102, 0x10000, v82
        v_add_u32 v103, 0x10000, v83
        v_mov_b32 v240, 0x3f803f80
        v_mov_b32 v241, 0x3f803f80
        v_mov_b32 v242, 0x3f803f80
        v_mov_b32 v243, 0x3f803f80
        v_lshlrev_b32 v84, 4, v0
        v_lshrrev_b32 v85, 2, {vL}
        v_lshlrev_b32 v85, 11, v85
        v_lshl_add_u32 v85, {vB4}, 9, v85
        v_add_u32 v85, 504, v85
        s_lshr_b32 {sT0}, {sW}, 1
        v_and_b32 v86, 127, v0
        v_lshrrev_b32 v87, 1, v86
        s_lshl_b32 {sT1}, {sT0}, 1
        v_xor_b32 v87, {sT1}, v87
        v_lshlrev_b32 v87, 4, v87
        v_and_b32 v86, 1, v86
        v_lshl_add_u32 v86, v86, 3, v87
        s_lshl_b32 {sT1}, {sT0}, 10
        s_add_u32 {sT1}, {sT1}, {QT}
        v_add_u32 v86, {sT1}, v86
        v_xor_b32 v87, 128, v86
        v_lshlrev_b32 v89, 5, {vT}
        s_lshl_b32 {sT1}, {sW}, 2
        s_add_u32 {sT2}, {sT1}, {MX}
        v_add_u32 v88, {sT2}, v89
        s_add_u32 {sT2}, {sT1}, {LS}
        v_add_u32 v91, {sT2}, v89
        v_add_u32 v92, {LS}, v89
        v_add_u32 v89, {MX}, v89
        s_lshl_b32 {sT0}, {sT0}, 10
        s_and_b32 {sT1}, {sW}, 1
        s_lshl_b32 {sT1}, {sT1}, 3
        s_add_u32 {sT0}, {sT0}, {sT1}
        s_add_u32 {sT0}, {sT0}, {PT}
        v_lshl_add_u32 v90, {vL}, 4, {sT0}
        v_lshlrev_b32 v93, 4, {vL}
        v_add_u32 v93, {PT}, v93
        v_lshlrev_b32 v94, 15, {vT}
        v_lshl_add_u32 v94, {vG}, 4, v94
        v_lshlrev_b32 v95, {5+self.cfg['fl']}, {vT}
        s_lshl_b32 {sT0}, {sBA}, 5
        s_lshl_b32 {sT1}, {sHH}, 4
        s_add_u32 {sT0}, {sT0}, {sT1}          ; row0
        s_lshl_b32 {sR3}, {sT0}, {5+self.cfg['fl']}
        s_lshl_b32 {sT1}, {sS}, {self.cfg['fl']}
        s_add_u32 {sR3}, {sR3}, {sT1}
        s_add_u32 {sR3}, {sR3}, {WS_FL}
        s_lshl_b32 {sR2}, {sT0}, 5
        s_add_u32 {sR2}, {sR2}, {sS}
        s_lshl_b32 {sR2}, {sR2}, 10
        s_lshl_b32 {sT1}, {sW}, 7
        s_add_u32 {sR2}, {sR2}, {sT1}
        s_add_u32 {sR2}, {sR2}, {WS_D}
        s_lshl_b32 {sT4}, {sBA}, 16
        s_lshl_b32 {sT1}, {sHH}, 15
        s_add_u32 {sT4}, {sT4}, {sT1}
        s_add_u32 {sT4}, {sT4}, {WS_Q}
        s_add_u32 {sT5}, {sT4}, 8192
        s_add_u32 {sT6}, {sT4}, 16384
        s_add_u32 {sT7}, {sT4}, 24576
        ''')
    def wuv_prep(self):
        a = self.a
        self.srd(SB, P_WUV, 4 << 20)
        a(f'''
        v_lshlrev_b32 v96, 16, {vG}
        v_lshl_add_u32 v96, {vT}, 4, v96
        s_lshl_b32 {sU0}, {sW}, 19
        s_lshl_b32 {sU1}, {sR1}, 8
        s_add_u32 {sU0}, {sU0}, {sU1}
        ''')
    def touch_uv(self):
        a = self.a; done = a.label('tuv')
        self.srd(SC, P_WUV, 4 << 20)
        a(f"""
        v_lshrrev_b32 v97, 1, {vL}
        v_lshlrev_b32 v97, 13, v97
        v_and_b32 v99, 1, {vL}
        v_lshl_add_u32 v97, v99, 7, v97
        s_cmp_ge_u32 {sW}, 4
        s_cbranch_scc1 {done}
        s_lshl_b32 {sT0}, {sR1}, 8
        s_lshl_b32 {sT1}, {sR0}, 20
        s_add_u32 {sT0}, {sT0}, {sT1}
        s_lshl_b32 {sT1}, {sW}, 18
        s_add_u32 {sT0}, {sT0}, {sT1}
        buffer_load_dword v98, v97, {SC}, {sT0} offen
        {done}:
        """)
    def touch_o_prep(self):
        a = self.a
        self.srd(SC, P_WO, 4 << 20)
        a(f"""
        v_lshlrev_b32 v97, 7, {vL}
        s_lshl_b32 {sU0}, {sR1}, 17
        s_lshl_b32 {sU1}, {sR0}, 15
        s_add_u32 {sU0}, {sU0}, {sU1}
        s_lshl_b32 {sU1}, {sW}, 13
        s_add_u32 {sU0}, {sU0}, {sU1}
        """)
    def touch_o(self):
        a = self.a; done = a.label('to')
        a(f's_cmp_ge_u32 {sI}, 16\ns_cbranch_scc1 {done}\ns_cmp_ge_u32 {sW}, 4\ns_cbranch_scc1 {done}')
        a(f'buffer_load_dword v98, v97, {SC}, {sU0} offen\n{done}:')
    def attention(self):
        a = self.a
        a('; ================= attention')
        if self.cfg.get('ctrig2'):
            sq = a.label('qnotrig')
            a(f's_cmp_lt_u32 {sI}, 16\ns_cbranch_scc1 {sq}')
            l = self.poll_begin()
            a(f'buffer_load_dwordx4 v[188:191], v84, {WS}, {sT7} offen sc1\ns_waitcnt vmcnt(0)')
            self.tagchk('v192', ['v189', 'v191'])
            self.poll_end(l, 2, self.cfg['sleepC'], 'v192')
            self.ts('p_ctrig')
            a(f'{sq}:')
        elif self.cfg.get('ctrig', True):
            sk = a.label('notrig'); sq = a.label('qnotrig')
            a(f's_cmp_lt_u32 {sI}, 16\ns_cbranch_scc1 {sq}')
            a(f's_cmp_lg_u32 {sW}, 0\ns_cbranch_scc1 {sk}')
            if self.cfg.get('ptrig', True):
                self.poll_trig('v85', sT4, 176, 2, 'v192')
            else:
                l = self.poll_begin()
                a(f'buffer_load_dwordx2 v[176:177], v85, {WS}, {sT4} offen sc1\ns_waitcnt vmcnt(0)')
                self.tagchk('v192', ['v177'])
                self.poll_end(l, 2, self.cfg['sleepC'], 'v192')
            a(f'{sk}:\ns_barrier')
            self.ts('p_ctrig')
            a(f'{sq}:')
        l = self.poll_begin()
        for n, so in enumerate((sT4, sT5, sT6, sT7)):
            a(f'buffer_load_dwordx4 {vr(176+4*n,4)}, v84, {WS}, {so} offen sc1')
        a('s_waitcnt vmcnt(4)')
        for st in range(16): a(f'ds_read_b128 {vr(16+4*st,4)}, v{244+(st&3)} offset:{(st>>2)*256}')
        a('s_waitcnt vmcnt(0)')
        self.tagchk('v192', [f'v{176+4*n+o}' for n in range(4) for o in (1, 3)])
        self.poll_end(l, 3, self.cfg['sleepC2'], 'v192')
        self.ts('c_got')
        for n in range(4):
            a(f'v_mov_b32 v{177+4*n}, v{178+4*n}')
            a(f'ds_write_b64 v{86 + (n & 1)}, {vr(176+4*n,2)} offset:{n*4096}')
        self.wuv_at('c')
        a('s_waitcnt lgkmcnt(0)\ns_barrier')
        self.ts('b1')
        NB = 8
        for st in range(NB): a(f'ds_read_b128 {vr(196+4*st,4)}, v{248+(st&3)} offset:{(st>>2)*256}')
        if self.cfg.get('pfQo', True): self.touch_o()
        for st in range(16):
            a(f's_waitcnt lgkmcnt({min(16, st+NB) - st - 1})')
            self.mfma(192, 16+4*st, 196+4*(st % NB), st == 0)
            if st + NB < 16:
                s2 = st + NB
                a(f'ds_read_b128 {vr(196+4*(s2%NB),4)}, v{248+(s2&3)} offset:{(s2>>2)*256}')
        self.ts('a_sdone')
        def pva(ks):
            for pp in range(2):
                for T in range(2):
                    d = 16 + 4 * ((ks * 2 + pp) * 2 + T)
                    base = (80 if ks < 2 else 100) + 2*pp + T
                    for hi in range(2):
                        a(f'ds_read_b64_tr_b16 {vr(d+2*hi,2)}, v{base} offset:{(ks & 1)*32768 + hi*16384}')
        early = self.cfg['pvaearly']
        if early: pva(0); pva(1)
        self.wuv_at('s')
        a('v_max_f32 v228, v192, v193\nv_max3_f32 v228, v228, v194, v195')
        self.crossrow(['v228'], ['v229'], 'v_max_f32')
        a('ds_write_b32 v88, v228')
        if early:
            pva(2); pva(3)
            a('s_waitcnt lgkmcnt(15)')
        else:
            a('s_waitcnt lgkmcnt(0)')
        self.ts('a_preb2')
        a('s_barrier')
        self.ts('a_b2')
        a('ds_read_b128 v[236:239], v89\nds_read_b128 v[232:235], v89 offset:16')
        self.wuv_at('b')
        if not early: pva(0)
        a(f's_waitcnt lgkmcnt({0 if early else 8})')
        a("""
        v_max3_f32 v236, v236, v237, v238
        v_max3_f32 v232, v232, v233, v234
        v_max3_f32 v228, v236, v239, v232
        v_max_f32 v228, v228, v235
        v_sub_f32 v192, v192, v228
        v_sub_f32 v193, v193, v228
        v_sub_f32 v194, v194, v228
        v_sub_f32 v195, v195, v228
        v_exp_f32 v192, v192
        v_exp_f32 v193, v193
        v_exp_f32 v194, v194
        v_exp_f32 v195, v195
        s_nop 0
        v_cvt_pk_bf16_f32 v234, v192, v193
        v_cvt_pk_bf16_f32 v235, v194, v195
        ds_write_b64 v90, v[234:235]
        """)
        if not self.cfg['ones']:
            a('v_add_f32 v229, v192, v193\nv_add_f32 v230, v194, v195\nv_add_f32 v229, v229, v230')
            if not early: pva(1)
            self.crossrow(['v229'], ['v230'], 'v_add_f32')
            a('ds_write_b32 v91, v229')
            if not early: pva(2); pva(3)
        elif not early: pva(1); pva(2); pva(3)
        self.wuv_at('p')
        self.ts('a_pvaiss')
        a('s_waitcnt lgkmcnt(0)')
        self.ts('a_preb3')
        a('s_barrier')
        self.ts('b3')
        for ks in range(4): a(f'ds_read_b128 {vr(196+4*ks,4)}, v93 offset:{ks*1024}')
        if not self.cfg['ones']: a('ds_read_b128 v[236:239], v92\nds_read_b128 v[240:243], v92 offset:16')
        for ks in range(4):
            a(f's_waitcnt lgkmcnt({3-ks + (0 if self.cfg["ones"] else 2)})')
            if self.cfg['ones']: self.mfma(236, 240, 196+4*ks, ks == 0)
            for pp in range(2):
                for T in range(2): self.mfma(212+4*(pp*2+T), 16+4*((ks*2+pp)*2+T), 196+4*ks, ks == 0)
        self.ts('a_pvdone')
        if not self.cfg['ones']:
            a('s_waitcnt lgkmcnt(0)')
            self.tree_add([f'v{236+k}' for k in range(8)])
        a(f"""
        v_rcp_f32 v232, v236
        v_log_f32 v238, v236
        v_mov_b32 v239, {sTAG}
        v_add_f32 v238, v228, v238
        """)
        for pp in range(2):
            b = 212 + 8*pp
            if self.cfg['pkmul']:
                for k in range(4): a(f'v_pk_mul_f32 {vr(b+2*k,2)}, {vr(b+2*k,2)}, v[232:233] op_sel_hi:[1,0]')
            else:
                for k in range(8): a(f'v_mul_f32 v{b+k}, v232, v{b+k}')
            for k in range(4): a(f'v_cvt_pk_bf16_f32 v{196+4*pp+k}, v{b+2*k}, v{b+2*k+1}')
            off = ' offset:64' if pp else ''
            a(f'buffer_store_dwordx4 {vr(196+4*pp,4)}, v94, {WS}, {sR2} offen{off} sc1')
        self.ts('d_st')
    def d_flag(self):
        a = self.a; sk = a.label('nofl')
        a(f'''
        s_barrier
        s_cmp_lg_u32 {sW}, 0
        s_cbranch_scc1 {sk}
        s_mov_b64 exec, 0xffff
        buffer_store_dwordx2 v[238:239], v95, {WS}, {sR3} offen sc1
        s_mov_b64 exec, -1
        {sk}:
        ''')
        self.ts('d_flag')
    def loader(self, srd, vo, kind, steps=(0, 1, 2, 3)):
        a = self.a
        a(f's_sub_u32 {sU0}, {sW}, 4')
        for st in steps:
            a(f"""
            s_add_u32 {sT0}, {sR0}, {st}
            s_and_b32 {sT0}, {sT0}, 3
            s_lshl_b32 {sT0}, {sT0}, 1
            s_lshr_b32 {sT1}, {sU0}, 1
            s_add_u32 {sT0}, {sT0}, {sT1}          ; region
            s_and_b32 {sT1}, {sU0}, 1
            s_lshl_b32 {sT1}, {sT1}, 3             ; n0
            s_lshl_b32 {sT4}, {sT0}, 14
            s_lshl_b32 {sT2}, {sT1}, 10
            s_add_u32 {sT4}, {sT4}, {sT2}          ; m0
            s_add_u32 {sT5}, {sT4}, 4096
            """)
            if kind == 'uv':
                a(f"""
                s_lshl_b32 {sT2}, {sT0}, 19
                s_lshl_b32 {sT3}, {sT1}, 15
                s_add_u32 {sT2}, {sT2}, {sT3}
                s_lshl_b32 {sT3}, {sR1}, 8
                s_add_u32 {sT2}, {sT2}, {sT3}
                s_add_u32 {sT3}, {sT2}, {4 << 15}
                """)
            else:
                a(f"""
                s_lshl_b32 {sT2}, {sT0}, 7
                s_lshl_b32 {sT3}, {sT1}, 13
                s_add_u32 {sT2}, {sT2}, {sT3}
                s_lshl_b32 {sT3}, {sR1}, 17
                s_add_u32 {sT2}, {sT2}, {sT3}
                s_add_u32 {sT3}, {sT2}, {4 << 13}
                """)
            self.dma_groups(srd, vo, [sT2, sT3], [sT4, sT5], self.nt())
    def perm_unit(self, src, dst):
        a = self.a
        for q in range(4):
            for p in range(4):
                X = src + 8*q + p; Y = src + 8*q + 4 + p
                a(f'v_perm_b32 v{dst+8*p+q}, v{Y}, v{X}, {sPLO}')
                a(f'v_perm_b32 v{dst+8*p+4+q}, v{Y}, v{X}, {sPHI}')
    def p_post(self):
        a = self.a
        a('; ================= P post')
        a('s_barrier')
        ng = self.wuv_at('x', False)
        self.srd(SA, P_WO, 4 << 20)
        vo = self.voff128(6, 1024)
        a(f"""
        s_lshl_b32 s98, {sR1}, 17
        s_lshl_b32 s99, {sW}, 7
        s_add_u32 s98, s98, s99
        """)
        self.rot_groups(4, sR0, 's98', 15, sWB, [sT0, sT1, sT2, sT3], [sT4, sT5, sT6, sT7])
        wf = self.cfg.get('wofirst', 0)
        SR = [sT0, sT1, sT2, sT3]; MR = [sT4, sT5, sT6, sT7]
        if wf: self.dma_groups(SA, vo, SR[:wf], MR[:wf], self.nt())
        a(f's_waitcnt vmcnt({4*ng + 4*wf})')
        self.d_flag()
        ny = self.wuv_at('y', False)
        if wf < 4: self.dma_groups(SA, vo, SR[wf:], MR[wf:], self.nt())
        self.ts('p_ldiss')
        ad = self.tr128_addr(220, sWB)
        a(f"""
        s_lshl_b32 {sT0}, {sR0}, 5
        s_add_u32 {sT0}, {sT0}, {sR1}
        s_lshl_b32 {sT1}, {sT0}, {5+self.cfg['fl']}
        s_add_u32 {sT1}, {sT1}, {WS_FL}
        s_lshl_b32 {sT2}, {sT0}, 15
        s_lshl_b32 {sT3}, {sW}, 12
        s_add_u32 {sT2}, {sT2}, {sT3}
        s_add_u32 {sT2}, {sT2}, {WS_D}
        s_lshl_b32 {sR2}, {sT0}, 11
        s_lshl_b32 {sT5}, {sW}, 8
        s_add_u32 {sR2}, {sR2}, {sT5}
        s_add_u32 {sR2}, {sR2}, {WS_E}         ; E soff
        v_and_b32 v5, 31, {vL}
        v_lshlrev_b32 v5, 3, v5
        v_lshlrev_b32 v6, 4, {vL}
        s_lshl_b32 {sT0}, {sW}, 11
        s_add_u32 {sT0}, {sT0}, {RED}
        v_lshrrev_b32 v7, 1, {vL}
        v_and_b32 v7, 1, v7
        v_lshlrev_b32 v7, 4, v7
        v_lshl_add_u32 v7, {vL}, 5, v7
        v_add_u32 v7, {sT0}, v7
        v_xor_b32 v8, 16, v7
        s_lshl_b32 {sT0}, {sW}, 3
        s_add_u32 {sT0}, {sT0}, {MX}
        v_mov_b32 v9, {sT0}
        v_lshlrev_b32 v10, 2, v0
        v_add_u32 v10, {RED}, v10
        v_and_b32 v11, 7, {vL}
        v_lshlrev_b32 v11, 3, v11
        v_add_u32 v11, {MX}, v11
        v_lshlrev_b32 v12, 1, v0
        v_add_u32 v12, {OB}, v12
        s_lshl_b32 {sT0}, {sW}, 7
        s_add_u32 {sT0}, {sT0}, {OB}
        v_lshl_add_u32 v13, {vG}, 4, {sT0}
        s_lshl_b32 {sT0}, {sW}, 9
        s_add_u32 {sT0}, {sT0}, {RED2}
        v_lshlrev_b32 v14, 5, {vT}
        v_lshl_add_u32 v14, {vG}, 3, v14
        v_add_u32 v14, {sT0}, v14
        v_lshlrev_b32 v15, 3, {vL}
        v_add_u32 v15, {RED2}, v15
        v_lshlrev_b32 v232, 6, {vG}
        v_lshrrev_b32 v233, 1, {vL}
        v_and_b32 v233, 3, v233
        v_lshl_add_u32 v232, v233, 4, v232
        v_lshrrev_b32 v233, 3, {vL}
        v_and_b32 v233, 1, v233
        v_lshl_add_u32 v232, v233, 3, v232
        v_and_b32 v233, 1, {vL}
        v_lshl_add_u32 v232, v233, 2, v232
        s_lshl_b32 {sT0}, {sW}, 8
        s_add_u32 {sT0}, {sT0}, {WL}
        v_add_u32 v232, {sT0}, v232
        v_lshl_add_u32 v233, {vG}, 4, {sT0}
        v_lshlrev_b32 v234, 6, {vT}
        v_lshl_add_u32 v234, {vG}, 4, v234     ; E voff
        v_mov_b32 v229, {sTAG}
        v_mov_b32 v231, {sTAG}
        """)
        mg = self.masks_g()
        a(f's_waitcnt vmcnt({4*(4-wf)})')
        self.perm_unit(112, 80)
        self.perm_unit(144, 112)
        if self.cfg.get('dcomb2', True):
            a(f"""
            v_and_b32 v5, 7, {vT}
            v_lshl_add_u32 v5, v5, 2, {vG}
            v_lshlrev_b32 v5, {self.cfg['fl']}, v5
            v_lshlrev_b32 v6, 3, {vT}
            v_lshl_add_u32 v6, {vG}, 10, v6
            s_lshl_b32 {sT0}, {sR0}, 5
            s_add_u32 {sT0}, {sT0}, {sR1}
            s_lshl_b32 {sT2}, {sT0}, 15
            s_lshl_b32 {sT3}, {sW}, 7
            s_add_u32 {sT2}, {sT2}, {sT3}
            s_add_u32 {sT2}, {sT2}, {WS_D}
            v_lshrrev_b32 v12, 2, {vT}
            v_xor_b32 v12, v12, {vT}
            v_and_b32 v12, 1, v12
            v_lshlrev_b32 v12, 3, v12
            v_lshrrev_b32 v7, 1, {vT}
            v_lshl_add_u32 v12, v7, 4, v12
            s_add_u32 {sT3}, {sT3}, {OB}
            v_add_u32 v12, {sT3}, v12
            """)
            l = self.poll_begin()
            a(f'buffer_load_dwordx2 v[176:177], v5, {WS}, {sT1} offen sc1\ns_waitcnt vmcnt(0)')
            self.tagchk('v178', ['v177'])
            self.poll_end(l, 4, self.cfg['sleepD'], 'v178')
            self.ts('dfl_got')
            for j in range(8):
                a(f'buffer_load_dwordx2 {vr(180+2*j,2)}, v6, {WS}, {sT2} offen sc1')
                if j < 7: a(f's_add_u32 {sT2}, {sT2}, 4096')
            self.tr_reads(ad, range(4), 128, 16)
            oct3 = ('quad_perm:[1,0,3,2]', 'quad_perm:[2,3,0,1]', 'row_half_mirror')
            a('v_mov_b32 v178, v176')
            for d in oct3: a(f'v_max_f32_dpp v178, v178, v178 {d} row_mask:0xf bank_mask:0xf')
            self.crossrow(['v178'], ['v179'], 'v_max_f32')
            a("""
            v_sub_f32 v176, v176, v178
            v_exp_f32 v176, v176
            s_nop 0
            v_cvt_pk_bf16_f32 v177, v176, v176
            v_and_b32 v176, 0xffff0000, v177
            v_and_b32 v177, 0xffff, v177
            v_mov_b32 v178, v176
            """)
            for d in oct3: a(f'v_add_f32_dpp v178, v178, v178 {d} row_mask:0xf bank_mask:0xf')
            self.crossrow(['v178'], ['v179'], 'v_add_f32')
            a('v_rcp_f32 v203, v178')
            for j in range(8):
                a(f'v_mov_b32_dpp v{212+2*j}, v177 row_newbcast:{j} row_mask:0xf bank_mask:0xf')
                a(f'v_mov_b32_dpp v{213+2*j}, v176 row_newbcast:{j} row_mask:0xf bank_mask:0xf')
            for j in range(8):
                a(f's_waitcnt vmcnt({7-j})')
                for e, (src, wv) in enumerate(((180+2*j, 212+2*j), (180+2*j, 213+2*j), (181+2*j, 212+2*j), (181+2*j, 213+2*j))):
                    a(f'v_dot2_f32_bf16 v{204+e}, v{src}, v{wv}, {"0" if j == 0 else f"v{204+e}"}')
            self.ts('d_got')
            self.crossrow([f'v{204+e}' for e in range(4)], [f'v{208+e}' for e in range(4)], 'v_add_f32')
            for e in range(4): a(f'v_mul_f32 v{204+e}, v{204+e}, v203')
            a('v_cvt_pk_bf16_f32 v204, v204, v205\nv_cvt_pk_bf16_f32 v205, v206, v207\nds_write_b64 v12, v[204:205]')
            a("""
            s_waitcnt lgkmcnt(0)
        ds_read_b128 v[176:179], v13
        ds_read_b128 v[180:183], v13 offset:64
        """)
        self.ts('p_o')
        for k in range(2):
            a(f's_waitcnt lgkmcnt({1-k})')
            for u in range(8): self.mfma(184+4*u, 176+4*k, 80+32*k+4*u, k == 0)
        self.sel4('v216', [f'v{184+4*u}' for u in (0, 2, 4, 6)], mg)
        self.sel4('v217', [f'v{184+4*u}' for u in (1, 3, 5, 7)], mg)
        self.ts('p_uv')
        a('ds_write_b64 v14, v[216:217]\ns_waitcnt lgkmcnt(0)\ns_barrier')
        self.ts('p_b2')
        for ww in range(8): a(f'ds_read_b64 {vr(176+2*ww,2)}, v15 offset:{ww*512}')
        mt = self.masks_t()
        a('s_waitcnt lgkmcnt(0)')
        self.tree_add([f'v{176+2*k}' for k in range(8)])
        self.tree_add([f'v{177+2*k}' for k in range(8)])
        a('v_cvt_pk_bf16_f32 v176, v176, v177\nds_write_b32 v232, v176\ns_waitcnt lgkmcnt(0)')
        for ks in range(4): a(f'ds_read_b128 {vr(180+4*ks,4)}, v233 offset:{ks*64}')
        for ks in range(4):
            a(f's_waitcnt lgkmcnt({3-ks})')
            for ct in range(4): self.mfma(196+4*ct, 16+4*(ks*4+ct), 180+4*ks, ks == 0)
        self.ts('p_omf')
        for r in range(4): self.sel4(f'v{212+r}', [f'v{196+4*ct+r}' for ct in range(4)], mt)
        a(f"""
        v_cvt_pk_bf16_f32 v228, v212, v213
        v_cvt_pk_bf16_f32 v230, v214, v215
        s_mov_b64 exec, {mT4}
        buffer_store_dwordx4 v[228:231], v234, {WS}, {sR2} offen sc1
        s_mov_b64 exec, -1
        """)
        self.ts('e_pub')
    def ffn(self):
        a = self.a
        a('s_waitcnt vmcnt(0)')
        self.d_flag()
        self.srd(SA, P_W1, 512 * 2752)
        vo = self.voff128(6, 2752)
        a(f'''
        s_mul_i32 {sU0}, {sW}, {64*2752}
        s_lshl_b32 {sT2}, {sR1}, 7
        s_add_u32 {sU0}, {sU0}, {sT2}
        s_add_u32 {sT0}, {sU0}, {32*2752}
        s_add_u32 {sT1}, {sWB}, 4096
        ''')
        self.dma_groups(SA, vo, [sU0, sT0], [sWB, sT1], self.nt())
        self.srd(SB, P_W2, 1376 * 1024)
        vo = self.voff128(10, 1024)
        a(f'''
        s_lshl_b32 {sU0}, {sR1}, 16
        s_lshl_b32 {sT2}, {sW}, 7
        s_add_u32 {sU0}, {sU0}, {sT2}
        s_add_u32 {sT0}, {sU0}, 32768
        s_add_u32 {sT1}, {sWB}, 8192
        s_add_u32 {sT2}, {sWB}, 12288
        ''')
        self.dma_groups(SB, vo, [sU0, sT0], [sT1, sT2], self.nt())
        self.srd(SC, P_X, 4096)
        a(f'''
        v_lshlrev_b32 v5, 3, {vT}
        s_lshl_b32 {sT0}, {sR0}, 10
        s_lshl_b32 {sT1}, {sW}, 7
        s_add_u32 {sT0}, {sT0}, {sT1}
        buffer_load_dwordx2 v[100:101], v5, {SC}, {sT0} offen
        v_lshlrev_b32 v5, 4, {vT}
        s_lshl_b32 {sT0}, {sR0}, 13
        s_lshl_b32 {sT1}, {sW}, 8
        s_add_u32 {sT0}, {sT0}, {sT1}
        s_add_u32 {sT0}, {sT0}, {WS_MR}
        s_add_u32 {sT1}, {sT0}, 4096
        ''')
        ad = self.tr128_addr(8, sWB)
        mt = self.masks_t()
        a(f'''
        s_lshl_b32 {sT4}, {sR0}, 16
        s_add_u32 {sT4}, {sT4}, {WS_E}
        s_lshl_b32 {sT3}, {sW}, 8
        s_add_u32 {sT5}, {sT4}, {sT3}
        s_add_u32 {sT6}, {sT5}, {7*8192}
        v_lshlrev_b32 v13, 4, {vT}
        v_lshl_add_u32 v13, {vG}, 11, v13
        s_lshl_b32 {sT2}, {sW}, 3
        s_add_u32 {sT2}, {sT2}, {MX}
        v_mov_b32 v220, {sT2}
        v_and_b32 v221, 7, {vL}
        v_lshlrev_b32 v221, 3, v221
        v_add_u32 v221, {MX}, v221
        v_lshrrev_b32 v222, 5, {vL}
        v_lshlrev_b32 v222, 6, v222
        v_lshrrev_b32 v223, 2, {vL}
        v_and_b32 v223, 3, v223
        v_lshl_add_u32 v222, v223, 4, v222
        v_and_b32 v223, 1, {vG}
        v_lshl_add_u32 v222, v223, 3, v222
        v_lshl_add_u32 v222, {vB4}, 1, v222
        v_lshrrev_b32 v219, 3, {vT}
        v_lshlrev_b32 v219, 6, v219
        v_lshl_add_u32 v219, {vB4}, 4, v219
        v_lshrrev_b32 v223, 2, {vT}
        v_and_b32 v223, 1, v223
        v_lshl_add_u32 v219, v223, 3, v219
        s_lshl_b32 {sT2}, {sW}, 8
        s_add_u32 {sT2}, {sT2}, {WL}
        v_add_u32 v222, {sT2}, v222
        v_add_u32 v219, {sT2}, v219
        v_lshl_add_u32 v223, {vG}, 4, {sT2}
        s_lshl_b32 {sT2}, {sW}, 8
        s_add_u32 {sT2}, {sT2}, {RED2}
        v_lshlrev_b32 v224, 6, {vT}
        v_lshl_add_u32 v224, {vG}, 4, v224
        v_add_u32 v224, {sT2}, v224
        v_lshlrev_b32 v225, 2, {vL}
        v_add_u32 v225, {RED2}, v225
        s_lshl_b32 {sT2}, {sR0}, 3
        s_add_u32 {sT2}, {sT2}, {sW}
        s_mul_i32 {sT2}, {sT2}, {24*256}
        s_lshl_b32 {sT3}, {sR1}, 8
        s_add_u32 {sT2}, {sT2}, {sT3}
        s_add_u32 {sT7}, {sT2}, {WS_F}         ; F soff
        v_lshlrev_b32 v226, 6, {vT}
        v_lshl_add_u32 v226, {vG}, 4, v226     ; F voff
        s_lshl_b32 {sT2}, {sR1}, 6
        v_add_u32 v227, {sT2}, {vL}
        s_movk_i32 {sT3}, 1376
        v_cmp_gt_u32 s[62:63], {sT3}, v227
        v_mov_b32 v141, {sTAG}
        v_mov_b32 v143, {sTAG}
        ''')
        a('s_waitcnt vmcnt(0)')
        self.tr_reads(ad, range(2), 128, 16)
        self.tr_reads(ad, range(2), 128, 48, 8192)
        l = self.poll_begin()
        a(f'''
        buffer_load_dwordx4 v[84:87], v5, {WS}, {sT0} offen sc1
        buffer_load_dwordx4 v[88:91], v5, {WS}, {sT0} offen offset:2048 sc1
        buffer_load_dwordx4 v[92:95], v5, {WS}, {sT1} offen sc1
        s_waitcnt vmcnt(0)
        ''')
        self.tagchk('v208', ['v85', 'v87', 'v89', 'v91', 'v93', 'v95'])
        self.poll_end(l, 5, self.cfg['sleepM'], 'v208')
        a('v_lshlrev_b32 v96, 16, v100\nv_and_b32 v97, 0xffff0000, v100\nv_lshlrev_b32 v98, 16, v101\nv_and_b32 v99, 0xffff0000, v101')
        for src, dst in ((84, 100), (88, 104), (92, 108)):
            a(f'v_lshlrev_b32 v{dst}, 16, v{src}\nv_and_b32 v{dst+1}, 0xffff0000, v{src}\nv_lshlrev_b32 v{dst+2}, 16, v{src+2}\nv_and_b32 v{dst+3}, 0xffff0000, v{src+2}')
        a(f's_mov_b32 {sT0}, 0x00003f80\ns_mov_b32 {sT1}, 0x3f800000')
        l = self.poll_begin()
        a(f'buffer_load_dwordx4 v[204:207], v13, {WS}, {sT6} offen sc1\ns_waitcnt vmcnt(0)')
        self.tagchk('v208', ['v205', 'v207'])
        self.poll_end(l, 6, self.cfg['sleepE'], 'v208')
        self.ts('e_trig')
        l = self.poll_begin()
        a(f's_mov_b32 {sT2}, {sT5}')
        for k in range(8):
            a(f'buffer_load_dwordx4 {vr(176+4*k,4)}, v13, {WS}, {sT2} offen sc1')
            if k < 7: a(f's_add_u32 {sT2}, {sT2}, 8192')
        for k in range(8):
            a(f's_waitcnt vmcnt({7-k})')
            b = 176 + 4*k
            for j, (src, sel) in enumerate(((b, sT0), (b, sT1), (b+2, sT0), (b+2, sT1))):
                a(f'v_dot2_f32_bf16 v{112+j}, v{src}, {sel}, {"0" if k == 0 else f"v{112+j}"}')
            if k == 0: a(f'v_xor_b32 v208, {sTAG}, v{b+1}\nv_bitop3_b32 v208, v208, v{b+3}, {sTAG} bitop3:0xf6')
            else:
                for o in (1, 3): a(f'v_bitop3_b32 v208, v208, v{b+o}, {sTAG} bitop3:0xf6')
        self.poll_end(l, 7, 1, 'v208')
        self.ts('e_got')
        self.crossrow([f'v{112+j}' for j in range(4)], [f'v{116+j}' for j in range(4)], 'v_add_f32')
        for j in range(4): a(f'v_fmac_f32 v{96+j}, v{100+j}, v{112+j}')
        a('''
        v_add_f32 v120, v96, v97
        v_add_f32 v122, v98, v99
        v_mul_f32 v121, v96, v96
        v_fmac_f32 v121, v97, v97
        v_fmac_f32 v121, v98, v98
        v_fmac_f32 v121, v99, v99
        v_add_f32 v120, v120, v122
        ''')
        for n in (8, 4, 2, 1):
            for r in (120, 121): a(f'v_add_f32_dpp v{r}, v{r}, v{r} row_ror:{n} row_mask:0xf bank_mask:0xf')
        a('ds_write_b64 v220, v[120:121]\ns_waitcnt lgkmcnt(0)\ns_barrier')
        self.ts('f_b2')
        a('ds_read_b64 v[112:113], v221\ns_waitcnt lgkmcnt(0)')
        for d in ('quad_perm:[1,0,3,2]', 'quad_perm:[2,3,0,1]', 'row_half_mirror'):
            for r in (112, 113): a(f'v_add_f32_dpp v{r}, v{r}, v{r} {d} row_mask:0xf bank_mask:0xf')
        a(f'''
        v_mul_f32 v112, {fhex(1/512)}, v112
        v_mul_f32 v113, {fhex(1/512)}, v113
        v_fma_f32 v113, -v112, v112, v113
        v_max_f32 v113, 0, v113
        v_add_f32 v113, {fhex(1e-5)}, v113
        v_rsq_f32 v113, v113
        ''')
        for j in range(4): a(f'v_sub_f32 v{96+j}, v{96+j}, v112')
        for j in range(4): a(f'v_mul_f32 v{96+j}, v{96+j}, v113')
        for j in range(4): a(f'v_add_f32 v{104+j}, v{104+j}, v{96+j}')
        for j in range(4): a(f'v_fmac_f32 v{104+j}, v{96+j}, v{108+j}')
        a(f'''
        v_cvt_pk_bf16_f32 v104, v104, v105
        v_cvt_pk_bf16_f32 v105, v106, v107
        ds_write_b64 v219, v[104:105]
        s_waitcnt lgkmcnt(0)
        ds_read_b128 v[112:115], v223
        ds_read_b128 v[116:119], v223 offset:64
        ''')
        for ks in range(2):
            a(f's_waitcnt lgkmcnt({1-ks})')
            for ct in range(4): self.mfma(120+4*ct, 16+4*(ks*4+ct), 112+4*ks, ks == 0)
        for r in range(4): self.sel4(f'v{136+r}', [f'v{120+4*ct+r}' for ct in range(4)], mt)
        a(f'''
        s_mov_b64 exec, {mT4}
        ds_write_b128 v224, v[136:139]
        s_mov_b64 exec, -1
        s_waitcnt lgkmcnt(0)
        s_barrier
        ''')
        self.ts('f_b3')
        for ww in range(8): a(f'ds_read_b32 v{112+ww}, v225 offset:{ww*256}')
        a('s_waitcnt lgkmcnt(0)')
        self.tree_add([f'v{112+k}' for k in range(8)])
        a('''
        v_max_f32 v112, 0, v112
        v_cndmask_b32 v112, 0, v112, s[62:63]
        v_cvt_pk_bf16_f32 v112, v112, v112
        ds_write_b16 v222, v112 offset:128
        s_waitcnt lgkmcnt(0)
        ds_read_b128 v[112:115], v223 offset:128
        ds_read_b128 v[116:119], v223 offset:192
        ''')
        for ks in range(2):
            a(f's_waitcnt lgkmcnt({1-ks})')
            for ct in range(4): self.mfma(120+4*ct, 48+4*(ks*4+ct), 112+4*ks, ks == 0)
        for r in range(4): self.sel4(f'v{136+r}', [f'v{120+4*ct+r}' for ct in range(4)], mt)
        a(f'''
        v_cvt_pk_bf16_f32 v140, v136, v137
        v_cvt_pk_bf16_f32 v142, v138, v139
        s_mov_b64 exec, {mT4}
        buffer_store_dwordx4 v[140:143], v226, {WS}, {sT7} offen sc1
        s_mov_b64 exec, -1
        ''')
        self.ts('f_pub')
    def final(self):
        a = self.a
        a('s_waitcnt vmcnt(0)')
        self.d_flag()
        a(f's_lshl_b32 {sR1}, {sX}, 2\ns_add_u32 {sR1}, {sR1}, {sR0}')
        self.silu_addr()
        self.srd(SB, P_C, 4096)
        a(f'buffer_load_dwordx2 v[18:19], v16, {SB}, 0 offen')
        self.srd(SA, P_WMOD, 512 * 6144)
        vo = self.voff128(6, 6144)
        a(f'''
        s_mul_i32 {sU0}, {sW}, {64*6144}
        s_lshl_b32 {sT2}, {sR1}, 7
        s_add_u32 {sU0}, {sU0}, {sT2}
        s_add_u32 {sU0}, {sU0}, 2048
        s_add_u32 {sT0}, {sU0}, {32*6144}
        s_add_u32 {sT1}, {sWB}, 4096
        ''')
        self.dma_groups(SA, vo, [sU0, sT0], [sWB, sT1], self.nt())
        self.sv_frag_addr('v12')
        ad = self.tr128_addr(8, sWB)
        a('s_waitcnt vmcnt(8)')
        self.silu_calc()
        a('s_waitcnt lgkmcnt(0)\ns_barrier')
        a('ds_read_b128 v[112:115], v12\nds_read_b128 v[116:119], v12 offset:64\ns_waitcnt vmcnt(0)')
        self.tr_reads(ad, range(2), 128, 24)
        a('s_waitcnt lgkmcnt(0)')
        for ks in range(2):
            for ct in range(4): self.mfma(120+4*ct, 24+4*(ks*4+ct), 112+4*ks, ks == 0)
        a(f'''
        s_lshl_b32 {sT0}, {sW}, 10
        s_add_u32 {sT0}, {sT0}, {RED}
        v_lshlrev_b32 v5, 6, {vG}
        v_lshl_add_u32 v5, {vT}, 4, v5
        v_add_u32 v5, {sT0}, v5
        s_mov_b64 exec, {mT4}
        ''')
        for ct in range(4): a(f'ds_write_b128 v5, {vr(120+4*ct,4)} offset:{ct*256}')
        a('s_mov_b64 exec, -1\ns_waitcnt lgkmcnt(0)\ns_barrier')
        sk = a.label('mrskip')
        a(f's_cmp_ge_u32 {sW}, 2\ns_cbranch_scc1 {sk}')
        a(f'v_lshlrev_b32 v5, 3, v0\nv_add_u32 v5, {RED}, v5')
        for ww in range(8): a(f'ds_read_b64 {vr(112+2*ww,2)}, v5 offset:{ww*1024}')
        a(f'''
        v_lshrrev_b32 v6, 1, v0
        v_and_b32 v6, 3, v6
        v_lshlrev_b32 v6, 13, v6
        v_lshrrev_b32 v7, 3, v0
        v_lshl_add_u32 v6, v7, 4, v6
        v_and_b32 v7, 1, v0
        v_lshl_add_u32 v6, v7, 3, v6
        s_lshl_b32 {sT0}, {sR1}, 8
        s_add_u32 {sT0}, {sT0}, {WS_MR}
        s_waitcnt lgkmcnt(0)
        ''')
        self.tree_add([f'v{112+2*k}' for k in range(8)])
        self.tree_add([f'v{113+2*k}' for k in range(8)])
        a(f'''
        v_cvt_pk_bf16_f32 v112, v112, v113
        v_mov_b32 v113, {sTAG}
        buffer_store_dwordx2 v[112:113], v6, {WS}, {sT0} offen sc1
        {sk}:
        ''')
        self.ts('mr_pub')
        a(f's_cmp_lg_u32 {sW}, 0\ns_cbranch_scc1 L_exit')
        self.srd(SC, P_X, 4096)
        self.srd(SA, P_OUT, 4096)
        a(f"""
        v_lshlrev_b32 v6, 3, {vT}
        s_lshl_b32 {sT0}, {sR0}, 10
        s_lshl_b32 {sT1}, {sX}, 7
        s_add_u32 {sR2}, {sT0}, {sT1}
        buffer_load_dwordx2 v[100:101], v6, {SC}, {sR2} offen
        v_lshlrev_b32 v7, 4, {vT}              ; 2 granules
        s_lshl_b32 {sT0}, {sR0}, 13
        s_lshl_b32 {sT1}, {sX}, 8
        s_add_u32 {sU0}, {sT0}, {sT1}
        s_add_u32 {sU0}, {sU0}, {WS_MR}        ; ga
        s_add_u32 {sU1}, {sU0}, {3*2048}       ; gb
        v_lshl_add_u32 v9, {vG}, 11, v7
        s_lshl_b32 {sT7}, {sR0}, 16
        s_add_u32 {sT7}, {sT7}, {WS_E}
        s_add_u32 {sT0}, {sT7}, {sT1}
        v_lshl_add_u32 v11, {vG}, 8, v7
        v_and_b32 v12, 31, {vL}
        v_lshlrev_b32 v12, 11, v12
        v_add_u32 v12, 2040, v12
        s_lshl_b32 {sT4}, {sR0}, 3
        s_add_u32 {sT4}, {sT4}, {sX}
        s_mul_i32 {sT4}, {sT4}, {24*256}
        s_add_u32 {sT4}, {sT4}, {WS_F}
        s_add_u32 {sT5}, {sT4}, 4096
        s_mov_b32 s98, 0x00003f80
        s_mov_b32 s99, 0x3f800000
        v_cmp_gt_u32 s[100:101], 2, {vG}
        """)
        l = self.poll_begin()
        a(f'buffer_load_dwordx2 v[112:113], v12, {WS}, {sT7} offen sc1\ns_waitcnt vmcnt(0)')
        self.tagchk('v10', ['v113'])
        self.poll_end(l, 12, self.cfg['sleepE'] + 2, 'v10')
        l = self.poll_begin()
        a(f"""
        buffer_load_dwordx4 v[104:107], v7, {WS}, {sU0} offen sc1
        buffer_load_dwordx4 v[108:111], v7, {WS}, {sU1} offen sc1
        s_mov_b32 {sT1}, {sT0}
        """)
        for k in range(8):
            a(f'buffer_load_dwordx4 {vr(112+4*k,4)}, v9, {WS}, {sT1} offen sc1')
            if k < 7: a(f's_add_u32 {sT1}, {sT1}, 8192')
        a('s_waitcnt vmcnt(0)')
        self.tagchk('v10', ['v105', 'v107', 'v109', 'v111'] + [f'v{112+4*k+o}' for k in range(8) for o in (1, 3)])
        self.poll_end(l, 9, 2, 'v10')
        self.ts('fe_got')
        def acc4(dst, srcs):
            for k, b in enumerate(srcs):
                for j, (src, sel) in enumerate(((b, 's98'), (b, 's99'), (b+2, 's98'), (b+2, 's99'))):
                    a(f'v_dot2_f32_bf16 v{dst+j}, v{src}, {sel}, {"0" if k == 0 else f"v{dst+j}"}')
        acc4(144, [112+4*k for k in range(8)])
        self.crossrow([f'v{144+j}' for j in range(4)], [f'v{148+j}' for j in range(4)], 'v_add_f32')
        a("""
        v_lshlrev_b32 v152, 16, v100
        v_and_b32 v153, 0xffff0000, v100
        v_lshlrev_b32 v154, 16, v101
        v_and_b32 v155, 0xffff0000, v101
        v_lshlrev_b32 v156, 16, v104
        v_and_b32 v157, 0xffff0000, v104
        v_lshlrev_b32 v158, 16, v106
        v_and_b32 v159, 0xffff0000, v106
        v_fmac_f32 v152, v156, v144            ; x1
        v_fmac_f32 v153, v157, v145
        v_fmac_f32 v154, v158, v146
        v_fmac_f32 v155, v159, v147
        v_lshlrev_b32 v156, 16, v108           ; gb
        v_and_b32 v157, 0xffff0000, v108
        v_lshlrev_b32 v158, 16, v110
        v_and_b32 v159, 0xffff0000, v110
        """)
        l = self.poll_begin()
        for k in range(6):
            so = sT4 if k < 4 else sT5
            off = f' offset:{(k&3)*1024}' if k & 3 else ''
            a(f'buffer_load_dwordx4 {vr(176+4*k,4)}, v11, {WS}, {so} offen{off} sc1')
        a('s_waitcnt vmcnt(0)')
        a(f'v_mov_b32 v10, {sTAG}')
        for r in (197, 199): a(f'v_cndmask_b32 v{r}, v10, v{r}, s[100:101]')
        for r in (196, 198): a(f'v_cndmask_b32 v{r}, 0, v{r}, s[100:101]')
        self.tagchk('v10', [f'v{176+4*k+o}' for k in range(6) for o in (1, 3)])
        self.poll_end(l, 10, self.cfg['sleepF'], 'v10')
        acc4(144, [176+4*k for k in range(6)])
        self.crossrow([f'v{144+j}' for j in range(4)], [f'v{148+j}' for j in range(4)], 'v_add_f32')
        a(f"""
        v_fmac_f32 v152, v156, v144
        v_fmac_f32 v153, v157, v145
        v_fmac_f32 v154, v158, v146
        v_fmac_f32 v155, v159, v147
        v_cvt_pk_bf16_f32 v152, v152, v153
        v_cvt_pk_bf16_f32 v153, v154, v155
        s_mov_b64 exec, 0xffff
        buffer_store_dwordx2 v[152:153], v6, {SA}, {sR2} offen
        s_mov_b64 exec, -1
        """)
        self.ts('out_st')
    def epoch_update(self):
        a = self.a
        a(f's_cmp_lg_u32 {sW}, 0\ns_cbranch_scc1 L_exit')
        a(f'v_and_b32 v5, 7, {vL}\nv_lshlrev_b32 v5, 15, v5\nv_add_u32 v5, 2040, v5\ns_mov_b32 {sT0}, {WS_E}')
        l = self.poll_begin()
        a(f'buffer_load_dwordx2 v[6:7], v5, {WS}, {sT0} offen sc1\ns_waitcnt vmcnt(0)')
        self.tagchk('v8', ['v7'])
        self.poll_end(l, 11, 8, 'v8')
        a(f'''
        s_add_u32 {sT0}, {sEP}, 1
        v_mov_b32 v6, {sT0}
        v_mov_b32 v5, 0
        s_mov_b64 exec, 1
        buffer_store_dword v6, v5, {WS}, 0 offen sc1
        s_mov_b64 exec, -1
        ''')
    def build(self):
        a = self.a
        self.prologue()
        self.p_pre()
        a('s_branch L_att\nL_qpre:')
        self.q_pre()
        a('L_att:')
        self.att_addr()
        self.attention()
        a(f's_cmp_lt_u32 {sI}, 16\ns_cbranch_scc1 L_qpost')
        self.p_post()
        a('s_branch L_exit\nL_qpost:')
        a(f'''
        s_lshr_b32 {sT0}, {sI}, 2
        s_and_b32 {sR0}, {sI}, 3
        s_cmp_eq_u32 {sT0}, 3
        s_cbranch_scc1 L_final
        s_lshl_b32 {sR1}, {sT0}, 3
        s_add_u32 {sR1}, {sR1}, {sX}
        s_cmp_ge_u32 {sR1}, 22
        s_cbranch_scc1 L_idle
        ''')
        self.ffn()
        a('s_branch L_exit\nL_final:')
        self.final()
        a('s_branch L_exit\nL_idle:')
        a('s_waitcnt vmcnt(0)')
        self.d_flag()
        a(f's_cmp_eq_u32 s2, {7 + 8*11}\ns_cbranch_scc0 L_exit')
        self.epoch_update()
        a('s_branch L_exit')
        for code in self.failsites:
            a(f'L_fail_{code}:\ns_mov_b32 {sT0}, {code}\ns_branch L_fail')
        a(f'''
        L_fail:
        s_waitcnt vmcnt(0) lgkmcnt(0)
        s_mov_b32 s12, s{P_DBG}
        s_mov_b32 s13, s{P_DBG+1}
        s_mov_b32 s14, 256
        s_mov_b32 s15, 0x00020000
        s_mov_b64 exec, 1
        s_lshl_b32 {sT1}, {sT0}, 2
        v_mov_b32 v5, {sT1}
        v_mov_b32 v6, s2
        v_add_u32 v6, 1000, v6
        buffer_store_dword v6, v5, s[12:15], 0 offen
        s_mov_b64 exec, -1
        L_exit:
        ''')
        self.ts('end')
        if self.cfg['ts']:
            sk = a.label('nots')
            a(f's_cmp_lg_u32 {sW}, {self.cfg["tswave"]}\ns_cbranch_scc1 {sk}')
            a(f's_waitcnt lgkmcnt(0)\ns_mov_b64 exec, 1\ns_lshl_b32 {sT0}, s2, 6\ns_add_u32 {sT0}, {sT0}, {WS_TS}\nv_mov_b32 v5, 0')
            for k in range(len(TSREG)):
                a(f'v_mov_b32 v6, s{TSREG[k]}\nbuffer_store_dword v6, v5, {WS}, {sT0} offen offset:{4*k}')
            a(f'{sk}:')
        if self.cfg['endwait'] or self.cfg['ts']: a('s_waitcnt vmcnt(0) lgkmcnt(0)')
        a('L_end:\ns_endpgm')
        return a.finish()
HEADER = open('adaLN_cond__compressed_kv_cla__dense_activation_relu__decode.s.ref').read().split('; Override launch')[0]
DOC = '''; ---------------------------------------------------------------------------------------------
;   P workgroups (i >= 16): modulation slices for h (i < 20), later split combine + w_uv + w_o for one (batch, head).
;   Hand-offs go through d_ws with write-through (sc1) stores; small payloads are 8-byte {2 x bf16, tag} granules,
; ---------------------------------------------------------------------------------------------
'''
def generate(cfg):
    g = Gen(cfg)
    body = g.build()
    init = ''
    if g.cfg['ts']:
        init = ''.join(f'    s_mov_b32 s{r}, 0\n' for r in TSREG[:10])
    txt = HEADER + DOC + f'''; @launch grid=(256,1,1) block=(512,1,1) lds={LDS_BYTES}
.amdgcn_target "amdgcn-amd-amdhsa--gfx950"
.text
.globl {KNAME}
.p2align 8
.type {KNAME},@function
{KNAME}:
{init}{body}.section .rodata,"a"
.p2align 6
.amdhsa_kernel {KNAME}
  .amdhsa_next_free_vgpr 256
  .amdhsa_next_free_sgpr 102
  .amdhsa_accum_offset 256
  .amdhsa_group_segment_fixed_size 0
  .amdhsa_kernarg_size 112
  .amdhsa_user_sgpr_count 2
  .amdhsa_user_sgpr_kernarg_segment_ptr 1
  .amdhsa_system_sgpr_workgroup_id_x 1
.end_amdhsa_kernel
'''
    return txt, g
if __name__ == '__main__':
    cfg = json.loads(sys.argv[2]) if len(sys.argv) > 2 else {}
    txt, g = generate(cfg)
    open(sys.argv[1], 'w').write(txt)
    json.dump(dict(ts=g.tsnames, slot=(g.cfg.get('tsmap') or TSSLOT), gen='g'), open(sys.argv[1] + '.json', 'w'))
    print('written', sys.argv[1], 'lines', txt.count('\n'), 'nops padded', g.a.npad)
```
